```python
import torch

def _softmax(x, axis=-1):
    return torch.softmax(x, dim=axis)

def _gelu(x):
    return torch.nn.functional.gelu(x, approximate='tanh')

def _silu(x):
    return torch.nn.functional.silu(x)

def _sigmoid(x):
    return torch.sigmoid(x)

def _layernorm(x, axis=-1, eps=1e-05):
    m = x.mean(dim=axis, keepdim=True)
    v = x.var(dim=axis, keepdim=True, unbiased=False)
    return (x - m) / torch.sqrt(v + eps)

def _scatter_add(tgt, idx, src, axis=0):
    return tgt.clone().index_add_(axis, idx, src)

def _segment_sum(src, seg, n):
    out = torch.zeros((n,) + src.shape[1:], dtype=src.dtype)
    return out.index_add_(0, seg, src)

def _pad(x, pw):
    flat = tuple((v for pair in reversed(pw) for v in pair))
    return torch.nn.functional.pad(x, flat)
kernel_name = 'concat_heads__memory_aug_recurrent_mem_tr__grouped_kv_mqa__prompt'

def setup_inputs():

    _w = lambda a: (lambda t: t.to(torch.bfloat16) if t.is_floating_point() else t)(torch.as_tensor(a))

    def _A_setup():
        B, S, Dm = (1, 2048, 576)
        H, Dh = (32, 128)
        M, seg = (8, 32)
        seg = min(seg, S)
        S = S // seg * seg
        return {'x': _w((lambda *s: torch.randn(*s, dtype=torch.bfloat16) * 0.05)(B, S, Dm)), 'mem0': _w((lambda *s: torch.randn(*s, dtype=torch.bfloat16) * 0.8)(B, M, Dm)), 'Wq': _w((lambda *s: torch.randn(*s, dtype=torch.bfloat16) * 1.6)(Dm, H, Dh) * Dm ** (-0.5)), 'Wk': _w((lambda *s: torch.randn(*s, dtype=torch.bfloat16) * 1.6)(Dm, H, Dh) * Dm ** (-0.5)), 'Wv': _w((lambda *s: torch.randn(*s, dtype=torch.bfloat16) * 0.8)(Dm, H, Dh) * Dm ** (-0.5)), 'Wo': _w((lambda *s: torch.randn(*s, dtype=torch.bfloat16) * 0.8)(H, Dh, Dm) * (H * Dh) ** (-0.5)), 'seg_len': seg}
    _A_in = _A_setup()

    def _B_setup():
        B, S, D, H = (1, 2048, 576, 32)
        Dh = D // H
        return {'x': _w((lambda *s: torch.randn(*s, dtype=torch.bfloat16) * 0.05)(B, S, D)), 'wq': _w((lambda *s: torch.randn(*s, dtype=torch.bfloat16) * 1.6)(D, H * Dh)), 'wk': _w((lambda *s: torch.randn(*s, dtype=torch.bfloat16) * 1.6)(D, Dh)), 'wv': _w((lambda *s: torch.randn(*s, dtype=torch.bfloat16) * 0.05)(D, Dh)), 'wo': _w((lambda *s: torch.randn(*s, dtype=torch.bfloat16) * 0.05)(H * Dh, D))}
    _B_in = _B_setup()
    return {'A_x': _A_in['x'], 'A_mem0': _A_in['mem0'], 'A_Wq': _A_in['Wq'], 'A_Wk': _A_in['Wk'], 'A_Wv': _A_in['Wv'], 'A_Wo': _A_in['Wo'], 'A_seg_len': _A_in['seg_len'], 'B_x': _B_in['x'], 'B_wq': _B_in['wq'], 'B_wk': _B_in['wk'], 'B_wv': _B_in['wv'], 'B_wo': _B_in['wo']}

def reference(A_x, A_mem0, A_Wq, A_Wk, A_Wv, A_Wo, A_seg_len, B_x, B_wq, B_wk, B_wv, B_wo):

    def _A_ref(x, mem0, Wq, Wk, Wv, Wo, seg_len):
        B, S, Dm = x.shape
        H, Dh = (Wq.shape[1], Wq.shape[2])
        M = mem0.shape[1]
        scale = Dh ** (-0.5)
        n_seg = S // seg_len
        L = M + seg_len
        idx = torch.arange(L)
        mask = (idx[:, None] < M) | (idx[:, None] >= idx[None, :])
        mem = mem0
        outs = []
        for s in range(n_seg):
            xs = x[:, s * seg_len:(s + 1) * seg_len, :].clone()
            h = torch.concatenate([mem, xs], axis=1)
            q = torch.einsum('btd,dhe->bhte', h, Wq)
            k = torch.einsum('btd,dhe->bhte', h, Wk)
            v = torch.einsum('btd,dhe->bhte', h, Wv)
            scores = torch.einsum('bhqe,bhke->bhqk', q, k) * scale
            scores = torch.where(mask[None, None], scores, -1000000000.0)
            p = _softmax(scores, axis=-1)
            o = torch.einsum('bhqk,bhke->bhqe', p, v)
            o = torch.einsum('bhte,hed->btd', o, Wo)
            mem = o[:, :M, :].clone()
            outs.append(o[:, M:, :])
        return torch.concatenate(outs, axis=1)

    def _B_ref(x, wq, wk, wv, wo):
        B, S, D = x.shape
        H = 32
        Dh = D // H
        q = (lambda x, *d: x.permute(*d))((x @ wq).reshape(B, S, H, Dh), 0, 2, 1, 3)
        k = x @ wk
        v = x @ wv
        scores = torch.einsum('bhqd,bkd->bhqk', q, k) * Dh ** (-0.5)
        p = _softmax(scores, axis=-1)
        o = torch.einsum('bhqk,bkd->bhqd', p, v)
        return (lambda x, *d: x.permute(*d))(o, 0, 2, 1, 3).reshape(B, S, H * Dh) @ wo
    a = _A_ref(A_x, A_mem0, A_Wq, A_Wk, A_Wv, A_Wo, A_seg_len)
    b = _B_ref(B_x, B_wq, B_wk, B_wv, B_wo)
    return torch.concatenate([a, b], axis=-1)
```

```python
import re

TRANS = ("v_exp_f32", "v_log_f32", "v_rcp_f32", "v_rsq_f32", "v_sqrt_f32", "v_sin_f32", "v_cos_f32", "v_rcp_iflag_f32")

def split_ops(s):
    out, depth, cur = [], 0, ""
    for ch in s:
        if ch == "[": depth += 1
        if ch == "]": depth -= 1
        if ch == "," and depth == 0:
            out.append(cur.strip()); cur = ""
        else:
            cur += ch
    if cur.strip(): out.append(cur.strip())
    return out

_reg1 = re.compile(r"^-?\|?(abs\()?([vas])(\d+)\)?\|?$")
_regn = re.compile(r"^-?([vas])\[(\d+):(\d+)\]$")
def regs_of(op):
    op = op.strip()
    first = op.split()[0] if op else ""
    m = _reg1.match(first)
    if m: return {(m.group(2), int(m.group(3)))}
    m = _regn.match(first)
    if m: return {(m.group(1), i) for i in range(int(m.group(2)), int(m.group(3)) + 1)}
    if first == "vcc": return {("s", "vcc")}
    if first in ("exec", "exec_hi", "exec_lo"): return {("s", "exec")}
    if first == "m0": return {("s", "m0")}
    return set()

class Ins:
    __slots__ = ("text", "mn", "ops", "cls", "defs", "uses", "passes", "srcC", "srcAB", "slots", "trans", "dpp", "wide_store", "lds_dma", "sdefs", "suses")
    def __init__(self, text):
        self.text = text
        t = text.split(";")[0].strip()
        parts = t.split(None, 1)
        self.mn = parts[0]
        rest = parts[1] if len(parts) > 1 else ""
        self.ops = split_ops(rest)
        self.defs, self.uses = set(), set()
        self.srcC, self.srcAB = set(), set()
        self.passes = 0; self.slots = 1; self.trans = False; self.dpp = False
        self.wide_store = set(); self.lds_dma = False
        mn, ops = self.mn, self.ops
        R = lambda i: regs_of(ops[i]) if i < len(ops) else set()
        if mn == "s_nop":
            self.cls = "nop"; self.slots = int(ops[0], 0) + 1
        elif mn.startswith("v_mfma") or mn.startswith("v_smfmac"):
            self.cls = "mfma"
            self.passes = 8 if "32x32" in mn else 4
            if "4x4" in mn: self.passes = 2
            self.defs = R(0)
            self.srcAB = R(1) | R(2)
            if mn.startswith("v_smfmac"):
                self.srcC = R(0); self.srcAB |= R(3)
            else:
                self.srcC = R(3)
            self.uses = self.srcAB | self.srcC
        elif mn.startswith("v_"):
            self.cls = "valu"
            base = mn.replace("_e32", "").replace("_e64", "").replace("_dpp", "").replace("_sdwa", "")
            self.trans = base in TRANS
            self.dpp = ("row_" in rest) or ("quad_perm" in rest) or mn.endswith("_dpp")
            if base.startswith("v_permlane") and "swap" in base:
                self.defs = R(0) | R(1); self.uses = R(0) | R(1); self.cls = "permlane"
            elif base.startswith("v_cmp"):
                self.defs = R(0)
                for i in range(1, len(ops)): self.uses |= R(i)
                if base.startswith("v_cmpx"): self.defs |= {("s", "exec")}
            elif base.startswith("v_readfirstlane") or base.startswith("v_readlane"):
                self.defs = R(0); self.uses = R(1) | R(2); self.cls = "readlane"
            elif base in ("v_add_co_u32", "v_sub_co_u32", "v_addc_co_u32", "v_subb_co_u32", "v_mad_u64_u32"):
                self.defs = R(0) | R(1)
                for i in range(2, len(ops)): self.uses |= R(i)
            else:
                self.defs = R(0)
                for i in range(1, len(ops)): self.uses |= R(i)
                if base in ("v_fmac_f32", "v_dot2c_f32_bf16", "v_writelane_b32", "v_pk_fmac_f16") or self.dpp:
                    self.uses |= R(0)
                if base == "v_cndmask_b32" and len(ops) == 3: self.uses |= {("s", "vcc")}
        elif mn.startswith("ds_"):
            self.cls = "ds"
            if mn.startswith("ds_read") or mn.startswith("ds_bpermute") or mn.startswith("ds_permute") or mn.startswith("ds_swizzle"):
                self.defs = R(0)
                for i in range(1, len(ops)): self.uses |= R(i)
            else:
                for i in range(len(ops)): self.uses |= R(i)
        elif mn.startswith("buffer_") or mn.startswith("global_") or mn.startswith("flat_"):
            self.cls = "vmem"
            toks = rest.split()
            is_lds = ("lds" in toks) or ("_lds_" in mn)
            self.lds_dma = is_lds
            if "_load" in mn and not is_lds:
                self.defs = R(0)
                for i in range(1, len(ops)): self.uses |= R(i)
            elif "atomic" in mn and "sc0" in toks:
                self.defs = R(0)
                for i in range(0 if mn.startswith("buffer_") else 1, len(ops)): self.uses |= R(i)
            else:
                for i in range(len(ops)): self.uses |= R(i)
                if "store" in mn and ("x4" in mn or "x3" in mn):
                    self.wide_store = R(0) if mn.startswith("buffer_") else R(1)
            if is_lds: self.uses |= {("s", "m0")}
        elif mn.startswith("s_"):
            self.cls = "salu"
            if mn.startswith("s_cmp") or mn.startswith("s_bitcmp") or mn.startswith("s_cbranch") or mn in ("s_branch", "s_barrier", "s_waitcnt", "s_endpgm", "s_sleep", "s_setprio"):
                for i in range(len(ops)): self.uses |= R(i)
            else:
                self.defs = R(0)
                for i in range(1, len(ops)): self.uses |= R(i)
                if "saveexec" in mn: self.defs |= {("s", "exec")}
        else:
            raise ValueError("unknown instr: " + text)

def vec(s): return {r for r in s if r[0] in "va"}
def sca(s): return {r for r in s if r[0] == "s"}

def need(prev, cur):
    n = 0
    pv, cv_use, cv_def = vec(prev.defs), vec(cur.uses), vec(cur.defs)
    valu_like = ("valu", "permlane", "readlane")
    if prev.cls in valu_like:
        if cur.cls == "mfma" and pv & cv_use: n = max(n, 2)
        if cur.cls == "permlane" and pv & cv_use: n = max(n, 2)
        if cur.cls in valu_like and cur.dpp and pv & cv_use: n = max(n, 2)
        if cur.cls == "readlane" and pv & cv_use: n = max(n, 1)
        if prev.trans and cur.cls in valu_like + ("mfma",) and not cur.trans and pv & cv_use: n = max(n, 1)
        if prev.trans and cur.cls in ("ds", "vmem") and pv & cv_use: n = max(n, 1)
        ps = sca(prev.defs)
        if ps:
            if cur.cls in valu_like and ps & sca(cur.uses): n = max(n, 2 if cur.cls != "readlane" else 4)
            if cur.cls == "vmem" and ps & sca(cur.uses): n = max(n, 5)
            if cur.cls == "salu" and ps & sca(cur.uses): n = max(n, 1)
            if ("s", "exec") in ps:
                if cur.cls == "mfma": n = max(n, 4)
                if cur.cls in valu_like and cur.dpp: n = max(n, 5)
                if cur.cls in ("readlane", "permlane"): n = max(n, 4)
    if prev.cls == "mfma":
        P = prev.passes
        tbl_valu = {2: 5, 4: 8, 8: 12, 16: 20}[P]
        tbl_ovl = {2: 4, 4: 6, 8: 10, 16: 18}[P]
        tbl_war = {2: 1, 4: 3, 8: 7, 16: 15}[P]
        if cur.cls == "mfma":
            if pv & vec(cur.srcAB): n = max(n, tbl_valu)
            if pv & vec(cur.srcC):
                same = (vec(cur.srcC) == pv and cur.passes == P and cur.mn == prev.mn)
                n = max(n, (2 if P == 2 else 0) if same else tbl_ovl)
            elif pv & cv_def:
                n = max(n, tbl_valu)
        elif cur.cls in valu_like + ("ds", "vmem"):
            if pv & (cv_use | cv_def): n = max(n, tbl_valu)
            if cur.cls in valu_like and vec(prev.srcC) & cv_def: n = max(n, tbl_war)
            if cur.cls in valu_like and prev.mn.startswith("v_smfmac") and vec(prev.srcAB) & cv_def: n = max(n, 4)
    if prev.cls == "vmem" and prev.wide_store:
        if cur.cls in valu_like + ("mfma",) and vec(prev.wide_store) & cv_def: n = max(n, 2)
        if cur.cls in ("ds", "vmem") and vec(prev.wide_store) & cv_def: n = max(n, 1)
    if prev.cls == "salu" and ("s", "m0") in prev.defs and cur.cls == "vmem" and cur.lds_dma: n = max(n, 1)
    return n

class Prog:
    def __init__(self):
        self.items = []
        self.nlab = 0
    def I(self, text, *more):
        for t in (text,) + more:
            for line in t.split("\n"):
                line = line.strip()
                if not line: continue
                self.items.append(("i", Ins(line)))
    def raw(self, text): self.items.append(("raw", text))
    def L(self, name): self.items.append(("label", name))
    def C(self, text): self.items.append(("raw", "    ; " + text))
    def newlabel(self, base="L"):
        self.nlab += 1
        return f"{base}_{self.nlab}"
    def fence(self):
        self.items.append(("fence", None))
    def render(self):
        out = []
        hist = []
        nnop = 0
        t = 0
        last_mfma = None
        def place(x, t):
            if last_mfma is not None:
                tm, ps = last_mfma
                if x.cls == "mfma": t = max(t, tm + 4 * ps)
                elif x.cls in ("valu", "permlane", "readlane"): t = max(t, tm + 8)
            return t
        def emit_nops(req):
            nonlocal t, nnop
            while req > 0:
                k = min(req, 16); out.append(f"    s_nop {k-1}"); n_ = Ins(f"s_nop {k-1}"); hist.append((n_, t)); t += 4 * k; req -= k; nnop += 1
        for kind, x in self.items:
            if kind == "raw": out.append(x); continue
            if kind == "label": out.append(x + ":"); continue
            if kind == "fence":
                req = 0
                for p, tp in reversed(hist[-40:]):
                    n = 0
                    if p.cls == "mfma": n = {2:5,4:8,8:12,16:20}[p.passes]
                    elif p.cls in ("valu", "permlane", "readlane"): n = 5
                    elif p.cls == "vmem" and p.wide_store: n = 2
                    if n:
                        short = tp + 4 * (n + 1) - t
                        req = max(req, -(-short // 4))
                emit_nops(req)
                last_mfma = None
                continue
            while True:
                ti = place(x, t)
                req = 0
                cnt = 0
                for p, tp in reversed(hist[-40:]):
                    n = need(p, x)
                    if n:
                        if cnt < n:
                            margin = 4 if p.cls == "mfma" else 0
                            if p.cls == "mfma":
                                short = tp + 4 * (n + 1) + margin - ti
                                if short > 0: req = max(req, min(n - cnt, -(-(tp + 4 * (n + 1) + margin - t) // 4)))
                            else:
                                req = max(req, n - cnt)
                    cnt += p.slots
                    if cnt > 24: break
                if req <= 0: break
                emit_nops(req)
            ti = place(x, t)
            out.append("    " + x.text)
            hist.append((x, ti))
            if x.cls == "mfma": last_mfma = (ti, x.passes)
            t = ti + 4 * x.slots
            if len(hist) > 100: hist = hist[-60:]
        self.nnop = nnop
        return "\n".join(out) + "\n"

def vr(b, n=1): return f"v{b}" if n == 1 else f"v[{b}:{b+n-1}]"
def ar(b, n=1): return f"a{b}" if n == 1 else f"a[{b}:{b+n-1}]"
def sr(b, n=1): return f"s{b}" if n == 1 else f"s[{b}:{b+n-1}]"

class KProg(Prog):
    def __init__(self):
        super().__init__()
        self.lq = []
        self.vq = []
    def lds(self, text, tag=None):
        self.I(text); self.lq.append(tag)
    def vm(self, text, tag=None):
        self.I(text); self.vq.append(tag)
    def _wait(self, q, tag, name, maxn):
        idx = [i for i, t in enumerate(q) if t == tag]
        if not idx: return q
        last = idx[-1]
        n = len(q) - 1 - last
        n = min(n, maxn)
        self.I(f"s_waitcnt {name}({n})")
        return q[len(q) - n:] if n else []
    def wait_lds(self, tag): self.lq = self._wait(self.lq, tag, "lgkmcnt", 15)
    def wait_vm(self, tag): self.vq = self._wait(self.vq, tag, "vmcnt", 63)
    def wait_lds_all(self):
        self.I("s_waitcnt lgkmcnt(0)"); self.lq = []
    def wait_vm_all(self):
        self.I("s_waitcnt vmcnt(0)"); self.vq = []
    def wait_all(self):
        self.I("s_waitcnt vmcnt(0) lgkmcnt(0)"); self.vq = []; self.lq = []
```

```python
from asmlib import *

class AProg(Prog):
    def pseudo(self, name): self.items.append(("pseudo", name))
    def waitw(self): self.pseudo("WAITW")
    def reset_q(self): self.pseudo("RESETQ")
    def render(self):
        new_items = []
        lq, vq = [], []
        def emit_wait(nl, nv):
            nonlocal lq, vq
            parts = []
            if nv is not None:
                parts.append(f"vmcnt({min(nv,63)})"); vq = vq[len(vq) - nv:] if nv else []
            if nl is not None:
                parts.append(f"lgkmcnt({min(nl,15)})"); lq = lq[len(lq) - nl:] if nl else []
            new_items.append(("i", Ins("s_waitcnt " + " ".join(parts))))
        for kind, x in self.items:
            if kind == "pseudo":
                if x == "WAITW":
                    idx = [i for i, e in enumerate(lq) if e[1]]
                    if idx:
                        n = len(lq) - 1 - idx[-1]
                        emit_wait(min(n, 15), None)
                elif x == "RESETQ":
                    lq, vq = [], []
                continue
            if kind != "i":
                new_items.append((kind, x)); continue
            if x.mn == "s_waitcnt":
                t = x.text
                m = re.search(r"vmcnt\((\d+)\)", t)
                if m:
                    n = int(m.group(1)); vq = vq[len(vq) - n:] if (n and n < len(vq)) else ([] if n == 0 else vq)
                m = re.search(r"lgkmcnt\((\d+)\)", t)
                if m:
                    n = int(m.group(1)); lq = lq[len(lq) - n:] if (n and n < len(lq)) else ([] if n == 0 else lq)
                new_items.append((kind, x)); continue
            touched = vec(x.uses) | vec(x.defs)
            nl = nv = None
            for i in range(len(lq) - 1, -1, -1):
                if lq[i][0] & touched:
                    nl = len(lq) - 1 - i; break
            for i in range(len(vq) - 1, -1, -1):
                if vq[i][0] & touched:
                    nv = len(vq) - 1 - i; break
            if nl is not None and nl > 15: nl = 15
            if nl is not None or nv is not None: emit_wait(nl, nv)
            new_items.append((kind, x))
            if x.cls == "ds":
                lq.append((vec(x.defs), not x.defs))
            elif x.cls == "vmem":
                vq.append((vec(x.defs), not x.defs))
        save = self.items
        self.items = new_items
        out = Prog.render(self)
        self.items = save
        return out


class Weaver:
    LDS_LAT = 72
    VM_LAT = 300
    def __init__(self, p):
        self.p = p
        self.t = 0
        self.ready = {}
        self.kind = {}
        self.mf_t = -100; self.mf_p = 4; self.mf_blk = 0
        self.ds_t = -100
        self.vm_t = -100
    def cost(self, x):
        if x.cls == "permlane": return 9
        if x.cls == "valu": return 8 if x.trans else 5
        if x.cls == "nop": return 4 * x.slots
        return 4
    def earliest(self, x):
        e = self.t
        if x.cls == "mfma": e = max(e, self.mf_t + 4 * self.mf_p)
        elif x.cls in ("valu", "permlane", "readlane"): e = max(e, self.mf_t + self.mf_blk)
        elif x.cls == "ds": e = max(e, self.ds_t + 16)
        elif x.cls == "vmem": e = max(e, self.vm_t + 16)
        for r in vec(x.uses) | vec(x.defs):
            if r in self.ready:
                rt = self.ready[r]; k = self.kind[r]
                if k == "mfma" and x.cls == "mfma" and r in vec(x.srcC) and r not in vec(x.srcAB): continue
                if k == "valu":
                    if r in vec(x.uses) and (x.cls in ("mfma", "permlane") or x.dpp): rt += 8
                    else: continue
                e = max(e, rt)
        return e
    def issue(self, x):
        e = self.earliest(x)
        self.p.items.append(("i", x))
        if x.cls == "mfma":
            self.mf_t = e; self.mf_p = x.passes; self.mf_blk = 12 if x.mn.startswith("v_smfmac") else 8
            for r in vec(x.defs): self.ready[r] = e + 4 * ({2:5,4:8,8:12}[x.passes] + 2); self.kind[r] = "mfma"
            self.t = e + 4
        elif x.cls == "ds":
            self.ds_t = e
            for r in vec(x.defs): self.ready[r] = e + self.LDS_LAT; self.kind[r] = "ds"
            self.t = e + 4
        elif x.cls == "vmem":
            self.vm_t = e
            for r in vec(x.defs): self.ready[r] = e + self.VM_LAT; self.kind[r] = "vm"
            self.t = e + 4
        else:
            c = self.cost(x)
            for r in vec(x.defs): self.ready[r] = e + c; self.kind[r] = "valu"
            self.t = e + c
    def raw(self, s):
        self.issue(Ins(s))
    def passthru(self, fn):
        fn()
    def weave(self, crit, items, period=None, slack=2):
        items = [[Ins(f) if isinstance(f, str) else f for f in it] for it in items]
        last_item = self.t
        def icost(it):
            c = 0
            for f in it:
                if f.cls == "mfma": c = max(c + 4, 12 if f.mn.startswith("v_smfmac") else 8)
                else: c += self.cost(f)
            return c
        def put():
            nonlocal last_item
            it = items.pop(0)
            for f in it: self.issue(f)
            last_item = self.t
        for c in crit:
            if isinstance(c, tuple):
                if c[0] == "call": c[1](); continue
                if c[0] == "gap":
                    target = self.t + c[1]
                    while items and self.earliest(items[0][0]) + icost(items[0]) <= target + slack: put()
                    self.t = max(self.t, target)
                    continue
                if c[0] == "atomic":
                    for y in c[1]: self.issue(Ins(y))
                    continue
                raise ValueError(c)
            x = Ins(c)
            while items:
                ec = self.earliest(x)
                it = items[0]; ef = self.earliest(it[0])
                fits = ef + icost(it) <= ec + slack
                if fits and it[0].cls == "mfma" and x.cls == "mfma": fits = ef + 4 * it[0].passes <= ec + slack
                due = period is not None and ef <= self.t + slack and self.t - last_item >= period
                if fits or due: put()
                else: break
                if due and not fits: break
            self.issue(x)
        return items
    def drain(self, items):
        for it in items:
            for f in it: self.issue(Ins(f) if isinstance(f, str) else f)
```

```python
import struct
from asmlib2 import *
from common import *
from gemm576 import G_WS, G_WV, G_T0, G_T1, G_T2, G_T3
SCALE_LOG2E = 0.08838834764831845 * 1.4426950408889634
A_TASK, A_STEP, A_END = 20, 21, 22
A_C = 23
A_MASK = 60
A_ONES = 68
def attna_setup(p):
    I = p.I
    cbits = struct.unpack("<I", struct.pack("<f", SCALE_LOG2E))[0]
    I(f"s_mov_b32 s{A_C}, 0x{cbits:08x}", f"s_mov_b32 s{A_ONES}, 0x3f803f80", f"s_mov_b32 s{A_ONES+1}, 0x3f803f80")
    for r in range(4):
        I(f"v_lshl_add_u32 v40, v35, 2, {r}", f"v_cmp_le_u32 s[{A_MASK+2*r}:{A_MASK+2*r+1}], v40, v34")
def attna_task(p, signal=None):
    I = p.I
    WS = f"s[{G_WS}:{G_WS+3}]"
    Q, KX, KM, VX, VM = 32, 64, 96, 112, 144
    S00, S01, S11, M0, M1 = 152, 156, 160, 164, 168
    I(f"s_lshl_b32 s{G_T0}, s{A_TASK}, 13")
    I(f"s_add_u32 s{G_T1}, s{G_T0}, {QX_OFF}", f"s_add_u32 s{G_T2}, s{G_T1}, 4096")
    for i in range(8): I(f"buffer_load_dwordx4 v[{Q+4*i}:{Q+4*i+3}], v0, {WS}, s{G_T1 if i < 4 else G_T2} offen offset:{(i%4)*1024} sc1")
    I(f"s_add_u32 s{G_T1}, s{G_T0}, {KX_OFF}", f"s_add_u32 s{G_T2}, s{G_T1}, 4096")
    for i in range(8): I(f"buffer_load_dwordx4 v[{KX+4*i}:{KX+4*i+3}], v0, {WS}, s{G_T1 if i < 4 else G_T2} offen offset:{(i%4)*1024} sc1")
    I(f"s_lshr_b32 s{G_T3}, s{G_T0}, 1", f"s_add_u32 s{G_T1}, s{G_T3}, {KM_OFF}")
    for i in range(4): I(f"buffer_load_dwordx4 v[{KM+4*i}:{KM+4*i+3}], v0, {WS}, s{G_T1} offen offset:{i*1024} sc1")
    I(f"s_add_u32 s{G_T1}, s{G_T0}, {VX_OFF}", f"s_add_u32 s{G_T2}, s{G_T1}, 4096")
    for i in range(8): I(f"buffer_load_dwordx4 v[{VX+4*i}:{VX+4*i+3}], v0, {WS}, s{G_T1 if i < 4 else G_T2} offen offset:{(i%4)*1024} sc1")
    I(f"s_lshr_b32 s{G_T3}, s{G_T0}, 2", f"s_add_u32 s{G_T1}, s{G_T3}, {VM_OFF}", "v_lshrrev_b32 v31, 1, v0")
    for i in range(4): I(f"buffer_load_dwordx2 v[{VM+2*i}:{VM+2*i+1}], v31, {WS}, s{G_T1} offen offset:{i*512} sc1")
    mf = lambda d, a, b, c: f"v_mfma_f32_16x16x32_bf16 v[{d}:{d+3}], v[{a}:{a+3}], v[{b}:{b+3}], {c}"
    for pp in range(4):
        cc = lambda d: "0" if pp == 0 else f"v[{d}:{d+3}]"
        q0, q1 = Q + 8 * pp, Q + 8 * pp + 4
        k0, k1 = KX + 8 * pp, KX + 8 * pp + 4
        I(mf(S00, k0, q0, cc(S00)), mf(S01, k0, q1, cc(S01)), mf(S11, k1, q1, cc(S11)), mf(M0, KM + 4 * pp, q0, cc(M0)), mf(M1, KM + 4 * pp, q1, cc(M1)))
    I("v_mov_b32 v172, 0xf149f2ca")
    for r in range(4):
        I(f"v_cndmask_b32_e64 v{S00+r}, v172, v{S00+r}, s[{A_MASK+2*r}:{A_MASK+2*r+1}]", f"v_cndmask_b32_e64 v{S11+r}, v172, v{S11+r}, s[{A_MASK+2*r}:{A_MASK+2*r+1}]")
    I(f"v_max3_f32 v173, v{S00}, v{S00+1}, v{S00+2}", f"v_max3_f32 v173, v173, v{S00+3}, v{M0}", f"v_max_f32 v173, v173, v{M0+1}")
    I(f"v_max3_f32 v174, v{S01}, v{S01+1}, v{S01+2}", f"v_max3_f32 v174, v174, v{S01+3}, v{S11}", f"v_max3_f32 v174, v174, v{S11+1}, v{S11+2}", f"v_max3_f32 v174, v174, v{S11+3}, v{M1}", f"v_max_f32 v174, v174, v{M1+1}")
    for sw in ("v_permlane16_swap_b32", "v_permlane32_swap_b32"):
        I("v_mov_b32 v175, v173", "v_mov_b32 v176, v174", f"{sw} v173, v175", f"{sw} v174, v176", "v_max_f32 v173, v173, v175", "v_max_f32 v174, v174, v176")
    I(f"v_mul_f32 v173, s{A_C}, v173", f"v_mul_f32 v174, s{A_C}, v174")
    vals0 = [S00 + r for r in range(4)] + [M0, M0 + 1]
    vals1 = [S01 + r for r in range(4)] + [S11 + r for r in range(4)] + [M1, M1 + 1]
    for v in vals0: I(f"v_fma_f32 v{v}, v{v}, s{A_C}, -v173")
    for v in vals1: I(f"v_fma_f32 v{v}, v{v}, s{A_C}, -v174")
    for v in vals0 + vals1: I(f"v_exp_f32 v{v}, v{v}")
    cv = lambda d, a, b: f"v_cvt_pk_bf16_f32 v{d}, v{a}, v{b}"
    B0, B1, PA0, PB0, PA1, PB1, ON = 176, 180, 184, 186, 188, 190, 192
    I(cv(B0, S00, S00 + 1), cv(B0 + 1, S00 + 2, S00 + 3), f"v_mov_b64 v[{B0+2}:{B0+3}], 0")
    I(cv(B1, S01, S01 + 1), cv(B1 + 1, S01 + 2, S01 + 3), cv(B1 + 2, S11, S11 + 1), cv(B1 + 3, S11 + 2, S11 + 3))
    I(cv(PA0, M0, M0 + 1), f"v_mov_b32 v{PA0+1}, 0", f"v_mov_b32 v{PB0}, 0", f"v_mov_b32 v{PB0+1}, v{PA0}")
    I(cv(PA1, M1, M1 + 1), f"v_mov_b32 v{PA1+1}, 0", f"v_mov_b32 v{PB1}, 0", f"v_mov_b32 v{PB1+1}, v{PA1}")
    I(f"v_mov_b64 v[{ON}:{ON+1}], s[{A_ONES}:{A_ONES+1}]", f"v_mov_b64 v[{ON+2}:{ON+3}], s[{A_ONES}:{A_ONES+1}]")
    L0, L1 = 196, 200
    m16 = lambda d, a, b: f"v_mfma_f32_16x16x16_bf16 v[{d}:{d+3}], v[{a}:{a+1}], v[{b}:{b+1}], v[{d}:{d+3}]"
    I(mf(L0, ON, B0, "0"), mf(L1, ON, B1, "0"), m16(L0, ON, PA0), m16(L1, ON, PA1))
    O = 32
    for dt in range(8):
        for tt in range(2):
            I(mf(O + 4 * (dt * 2 + tt), VX + 4 * dt, B0 if tt == 0 else B1, "0"))
    for dt in range(8):
        for tt in range(2):
            pb = (PA0, PB0, PA1, PB1)[tt * 2 + dt % 2]
            I(m16(O + 4 * (dt * 2 + tt), VM + 2 * (dt // 2), pb))
    I(f"v_rcp_f32 v{L0}, v{L0}", f"v_rcp_f32 v{L1}, v{L1}")
    I(f"s_lshr_b32 s{G_T0}, s{A_TASK}, 5", f"s_and_b32 s{G_T1}, s{A_TASK}, 31", f"s_lshl_b32 s{G_T0}, s{G_T0}, 6", f"s_add_u32 s{G_T0}, s{G_T0}, s{G_T1}", f"s_lshl_b32 s{G_T0}, s{G_T0}, 12", f"s_add_u32 s{G_T0}, s{G_T0}, {OX_OFF}",
      f"s_add_u32 s{G_T1}, s{G_T0}, {32*4096}")
    for tt in range(2):
        for pp in range(4):
            a = O + 4 * ((2 * pp) * 2 + tt); b = O + 4 * ((2 * pp + 1) * 2 + tt); o = 204 + 4 * (pp % 2)
            for r in range(4): I(f"v_mul_f32 v{a+r}, v{a+r}, v{L0 if tt == 0 else L1}", f"v_mul_f32 v{b+r}, v{b+r}, v{L0 if tt == 0 else L1}")
            I(cv(o, a, a + 1), cv(o + 1, a + 2, a + 3), cv(o + 2, b, b + 1), cv(o + 3, b + 2, b + 3))
            I(f"buffer_store_dwordx4 v[{o}:{o+3}], v0, {WS}, s{G_T0 if tt == 0 else G_T1} offen offset:{pp*1024} sc1")
```

```python
import struct
from asmlib2 import *
from common import *
from gemm576 import G_WS, G_X, G_W, G_WV, G_T0, G_T1, G_T2, G_T3
B_C = 23
B_TASK = 20
SCB = (18 ** -0.5) * 1.4426950408889634

def kvproj(p, pWk, pWv, ntasks_per_wave, task0_reg):
    I = p.I
    WS = f"s[{G_WS}:{G_WS+3}]"
    for (ptr, base) in ((pWk, 0), (pWv, 20992)):
        srd(p, G_W, ptr, 20736)
        for i in range(6):
            I(f"s_lshl_b32 s{G_T0}, s{G_WV}, 10", f"s_add_u32 s{G_T0}, s{G_T0}, {i*4096}", f"s_add_u32 m0, s{G_T0}, {base}")
            if base == 0 and i == 5:
                pass
            I(f"buffer_load_dwordx4 v0, s[{G_W}:{G_W+3}], s{G_T0} offen lds")
        I("s_waitcnt vmcnt(0)", "s_barrier")
    I("v_and_b32 v4, 31, v33", "v_lshrrev_b32 v5, 5, v33", "v_mul_u32_u24 v6, 288, v5", "v_lshl_add_u32 v6, v4, 1, v6")
    WK, WV_ = 64, 0
    for r in range(0, 144, 2): I(f"v_mov_b64 v[{WK+r}:{WK+r+1}], 0")
    for r in range(144): I(f"v_accvgpr_write_b32 a{r}, 0")
    I("v_cmp_gt_u32 vcc, 18, v4", "s_and_saveexec_b64 s[60:61], vcc")
    for mat in range(2):
        for ks in range(36):
            for e in range(8):
                op = "ds_read_u16" if e % 2 == 0 else "ds_read_u16_d16_hi"
                I(f"{op} v{208+e}, v6 offset:{mat*20992+(16*ks+e)*36}")
            for j in range(4):
                if mat == 0: I(f"v_or_b32 v{WK+4*ks+j}, v{208+2*j}, v{209+2*j}")
                else: I(f"v_or_b32 v{216+j}, v{208+2*j}, v{209+2*j}", f"v_accvgpr_write_b32 a{4*ks+j}, v{216+j}")
    I("s_mov_b64 exec, s[60:61]")
    p.fence()
    I("v_mul_u32_u24 v7, 1152, v4", "v_lshl_add_u32 v7, v5, 4, v7")
    loop = p.newlabel("kv_loop")
    I(f"s_mov_b32 s{G_T3}, 0")
    p.reset_q(); p.L(loop)
    I(f"s_mul_i32 s{G_T0}, s{task0_reg}, {32*1152}")
    X = 208
    KD, VD = 32, 48
    NB = 12
    for ks in range(NB): I(f"buffer_load_dwordx4 v[{X+4*ks}:{X+4*ks+3}], v7, s[{G_X}:{G_X+3}], s{G_T0} offen offset:{ks*32}")
    for ks in range(36):
        b = X + 4 * (ks % NB)
        ck = "0" if ks == 0 else f"v[{KD}:{KD+15}]"; cv_ = "0" if ks == 0 else f"v[{VD}:{VD+15}]"
        I(f"v_mfma_f32_32x32x16_bf16 v[{KD}:{KD+15}], v[{WK+4*ks}:{WK+4*ks+3}], v[{b}:{b+3}], {ck}")
        I(f"v_mfma_f32_32x32x16_bf16 v[{VD}:{VD+15}], v[{b}:{b+3}], a[{4*ks}:{4*ks+3}], {cv_}")
        if ks + NB < 36: I(f"buffer_load_dwordx4 v[{b}:{b+3}], v7, s[{G_X}:{G_X+3}], s{G_T0} offen offset:{(ks+NB)*32}")
    cv = lambda d, a, b: f"v_cvt_pk_bf16_f32 v{d}, v{a}, v{b}"
    I("v_cmp_eq_u32 vcc, 18, v4")
    for r in range(16): I(f"v_cndmask_b32 v{VD+r}, v{VD+r}, 1.0, vcc" if False else f"v_cndmask_b32_e64 v{VD+r}, v{VD+r}, 1.0, vcc")
    for j in range(8): I(cv(X + j, KD + 2 * j, KD + 2 * j + 1))
    for j in range(8): I(cv(X + 8 + j, VD + 2 * j, VD + 2 * j + 1))
    I(f"s_lshl_b32 s{G_T0}, s{task0_reg}, 11", f"s_add_u32 s{G_T1}, s{G_T0}, {KB_OFF}", f"s_add_u32 s{G_T2}, s{G_T0}, {VB_OFF}")
    I(f"buffer_store_dwordx4 v[{X}:{X+3}], v0, {WS}, s{G_T1} offen sc1", f"buffer_store_dwordx4 v[{X+4}:{X+7}], v0, {WS}, s{G_T1} offen offset:1024 sc1")
    I(f"buffer_store_dwordx4 v[{X+8}:{X+11}], v0, {WS}, s{G_T2} offen sc1", f"buffer_store_dwordx4 v[{X+12}:{X+15}], v0, {WS}, s{G_T2} offen offset:1024 sc1")
    I(f"s_add_u32 s{task0_reg}, s{task0_reg}, s{task0_reg+1}", f"s_add_u32 s{G_T3}, s{G_T3}, 1")
    p.fence(); p.reset_q()
    I(f"s_cmp_lt_u32 s{G_T3}, {ntasks_per_wave}", f"s_cbranch_scc1 {loop}")

def attnb_setup(p):
    cbits = struct.unpack("<I", struct.pack("<f", SCB))[0]
    p.I(f"s_mov_b32 s{B_C}, 0x{cbits:08x}")
    p.I("v_and_b32 v40, 31, v33", "v_lshrrev_b32 v41, 5, v33", "v_mul_u32_u24 v1, 1152, v40", "v_lshl_add_u32 v1, v41, 3, v1", "v_lshrrev_b32 v2, 1, v0")

def attnb_task(p):
    I = p.I
    WS = f"s[{G_WS}:{G_WS+3}]"
    NC, NK = 2, 4
    Q1, Q2 = 8, 16
    MX = 20
    O = 32
    S = 64
    KV = [192, 248 - 256 + 256]
    def k1(st, i): return f"v[{192+4*i}:{195+4*i}]" if st == 0 else f"a[{4*i}:{4*i+3}]"
    def k2(st, i): return f"v[{208+2*i}:{209+2*i}]" if st == 0 else f"a[{16+2*i}:{17+2*i}]"
    def vv(st, i, b): return f"v[{216+8*i+4*b}:{219+8*i+4*b}]" if st == 0 else f"a[{24+8*i+4*b}:{27+8*i+4*b}]"
    I(f"s_lshr_b32 s{G_T0}, s{B_TASK}, 5", f"s_and_b32 s{G_T1}, s{B_TASK}, 31", f"s_mul_i32 s36, s{G_T0}, 36", f"s_mul_i32 s{G_T1}, s{G_T1}, {64*1152}", f"s_add_u32 s36, s36, s{G_T1}")
    I(f"s_add_u32 s{G_T0}, s36, {QB_OFF}")
    for c in range(NC):
        I(f"s_add_u32 s{G_T1}, s{G_T0}, {c*32*1152}")
        I(f"buffer_load_dwordx2 v[{Q1+4*c}:{Q1+4*c+1}], v1, {WS}, s{G_T1} offen sc1", f"buffer_load_dwordx2 v[{Q1+4*c+2}:{Q1+4*c+3}], v1, {WS}, s{G_T1} offen offset:16 sc1")
        I(f"v_mov_b64 v[{Q2+2*c}:{Q2+2*c+1}], 0", "s_mov_b32 exec_hi, 0", f"buffer_load_dword v{Q2+2*c}, v1, {WS}, s{G_T1} offen offset:32 sc1", "s_mov_b32 exec_hi, -1")
    for c in range(NC):
        I(f"v_mov_b32 v{MX+c}, 0xf149f2ca")
        for r in range(0, 16, 2): I(f"v_mov_b64 v[{O+16*c+r}:{O+16*c+r+1}], 0")
    def loadkv(st, sreg):
        I(f"s_add_u32 s{G_T1}, s{sreg}, {KB_OFF}", f"s_add_u32 s{G_T2}, s{sreg}, {VB_OFF}")
        for i in range(NK):
            if i % 2 == 0 and i: I(f"s_add_u32 s{G_T1}, s{G_T1}, 4096", f"s_add_u32 s{G_T2}, s{G_T2}, 4096")
            o = (i % 2) * 2048
            I(f"buffer_load_dwordx4 {k1(st, i)}, v0, {WS}, s{G_T1} offen offset:{o} sc1")
            I(f"buffer_load_dwordx2 {k2(st, i)}, v0, {WS}, s{G_T1} offen offset:{o+1024} sc1")
            I(f"buffer_load_dwordx4 {vv(st, i, 0)}, v0, {WS}, s{G_T2} offen offset:{o} sc1", f"buffer_load_dwordx4 {vv(st, i, 1)}, v0, {WS}, s{G_T2} offen offset:{o+1024} sc1")
    I("s_mov_b32 s37, 0")
    loadkv(0, 37)
    loop = p.newlabel("ab_loop")
    I("s_mov_b32 s38, 0")
    I("s_waitcnt vmcnt(0)")
    p.fence(); p.reset_q(); p.L(loop)
    for st in range(2):
        I("s_add_u32 s37, s37, 8192")
        loadkv(1 - st, 37)
        for c in range(NC):
            for i in range(NK):
                d = S + 16 * (c * 4 + i)
                I(f"v_mfma_f32_32x32x16_bf16 v[{d}:{d+15}], {k1(st, i)}, v[{Q1+4*c}:{Q1+4*c+3}], 0")
                I(f"v_mfma_f32_32x32x8_bf16 v[{d}:{d+15}], {k2(st, i)}, v[{Q2+2*c}:{Q2+2*c+1}], v[{d}:{d+15}]")
        for c in range(NC):
            b = S + 64 * c
            t0, t1 = 22 + 4 * c, 23 + 4 * c
            I(f"v_max3_f32 v{t0}, v{b}, v{b+1}, v{b+2}", f"v_max3_f32 v{t1}, v{b+3}, v{b+4}, v{b+5}")
            for r in range(6, 62, 4):
                I(f"v_max3_f32 v{t0}, v{t0}, v{b+r}, v{b+r+1}", f"v_max3_f32 v{t1}, v{t1}, v{b+r+2}, v{b+r+3}")
            I(f"v_max3_f32 v{t0}, v{t0}, v{b+62}, v{b+63}", f"v_max_f32 v{t0}, v{t0}, v{t1}")
            I(f"v_mov_b32 v{t1}, v{t0}", f"v_permlane32_swap_b32 v{t0}, v{t1}", f"v_max_f32 v{t0}, v{t0}, v{t1}")
            I(f"v_mul_f32 v{t0}, s{B_C}, v{t0}", f"v_max_f32 v{t0}, v{t0}, v{MX+c}")
            I(f"v_sub_f32 v{t1}, v{MX+c}, v{t0}", f"v_exp_f32 v{t1}, v{t1}", f"v_mov_b32 v{MX+c}, v{t0}")
            for r in range(16): I(f"v_mul_f32 v{O+16*c+r}, v{O+16*c+r}, v{t1}")
            for r in range(64): I(f"v_fma_f32 v{b+r}, v{b+r}, s{B_C}, -v{t0}")
            for r in range(64): I(f"v_exp_f32 v{b+r}, v{b+r}")
            for r in range(32): I(f"v_cvt_pk_bf16_f32 v{b+r}, v{b+2*r}, v{b+2*r+1}")
        for c in range(NC):
            b = S + 64 * c
            for i in range(NK):
                for bb in range(2):
                    pr = b + 8 * i + 4 * bb
                    I(f"v_mfma_f32_32x32x16_bf16 v[{O+16*c}:{O+16*c+15}], {vv(st, i, bb)}, v[{pr}:{pr+3}], v[{O+16*c}:{O+16*c+15}]")
        I("s_waitcnt vmcnt(0)")
        p.fence(); p.reset_q()
    I("s_add_u32 s38, s38, 2", "s_cmp_lt_u32 s38, 16", f"s_cbranch_scc1 {loop}")
    I(f"s_add_u32 s{G_T0}, s36, {OB_OFF}")
    for c in range(NC):
        o = O + 16 * c
        I(f"v_mov_b32 v22, v{o+10}", f"v_mov_b32 v23, v{o+10}", "v_permlane32_swap_b32 v22, v23", "v_rcp_f32 v22, v22")
        for r in range(10): I(f"v_mul_f32 v{o+r}, v{o+r}, v22")
        for j in range(5): I(f"v_cvt_pk_bf16_f32 v{24+j}, v{o+2*j}, v{o+2*j+1}")
        I(f"s_add_u32 s{G_T1}, s{G_T0}, {c*32*1152}")
        I(f"buffer_store_dwordx2 v[24:25], v1, {WS}, s{G_T1} offen sc1", f"buffer_store_dwordx2 v[26:27], v1, {WS}, s{G_T1} offen offset:16 sc1")
        I("s_mov_b32 exec_hi, 0", f"buffer_store_dword v28, v1, {WS}, s{G_T1} offen offset:32 sc1", "s_mov_b32 exec_hi, -1")
```

```python
import struct
from asmlib2 import *
from common import *
import common, sys as _sys
if 'hot' in _sys.argv: MEM_SLOT = 0

MEMIMG, SEXM, SEXX, OIMG, WVL = 0, 9216, 10240, 14336, 16384
PART_BYTES = 48 * 8192
SCALE_LOG2E = 0.08838834764831845 * 1.4426950408889634

S_WS, S_MEM, S_W = 4, 8, 12
S_DBG = 16
S_H, S_WV, S_STEP = 18, 19, 20
S_MEMR, S_MEMW, S_KX, S_VX, S_KM, S_VM = 21, 22, 23, 24, 25, 26
S_TO, S_T0, S_T1, S_T2 = 27, 28, 29, 30
S_C = 31
S_NLT8 = 32
S_M8 = 34
S_PS = 36
S_PL, S_ISW2 = 41, 42
S_W1024, S_W256 = 43, 44
S_HASTASK = 45
S_PTR = 46
S_EXMS = 58
S_D8, S_L8, S_MEMR8, S_TAG = 64, 65, 66, 67
S_ONES, S_W4 = 68, 70
S_MEMR2 = 57
S_C2 = 62
S_TCH, S_TMASK = 98, 100
TOUCH = [2]
S_TO2 = 71
S_TS = 60
S_ST = 72

V_L16, V_IDX = 0, 1
V_SQA, V_SQB, V_SKA, V_SKB = 2, 4, 6, 8
V_KX, V_VX = 10, 18
V_WV, V_MP, V_PS, V_SRX, V_SRM, V_OR = 26, 27, 28, 29, 30, 31

def frag(f): return ar(8 * f, 8) if f < 32 else vr(80 + 8 * (f - 32), 8)
def fragb(f): return ("a", 8 * f) if f < 32 else ("v", 80 + 8 * (f - 32))
def frag_sub(f, off, n):
    k, b = fragb(f)
    return f"{k}[{b+off}:{b+off+n-1}]" if n > 1 else f"{k}{b+off}"
def F_QA(kb): return kb
def F_QB(kb): return 9 + kb
def F_KA(kb): return 18 + kb
F_KB0 = 27
VRES = [6, 7, 0, 1]
VSTR = [2, 3, 4, 5, 8]
def F_VS(tb, slot): return 28 + slot * 2 + tb
def F_WO(j, kb): return 36 + j * 2 + kb

PROF = [False]
RT = [False]
TAGALL = [False]
def stamp(p, k, on):
    if PROF[0] and on: p.I(f"{'s_memrealtime' if RT[0] else 's_memtime'} s[{S_ST+2*k}:{S_ST+2*k+1}]")

def lane_consts(p):
    I = p.I
    I("v_lshrrev_b32 v32, 6, v0", "v_and_b32 v33, 63, v0", f"v_readfirstlane_b32 s{S_WV}, v32")
    I("v_and_b32 v34, 15, v33", "v_lshrrev_b32 v35, 4, v33")
    I("v_and_b32 v36, 7, v33")
    I("v_bfe_u32 v37, v33, 3, 1")
    I(f"v_lshlrev_b32 v{V_L16}, 4, v33")
    I("v_lshrrev_b32 v38, 2, v34", "v_lshlrev_b32 v38, 1, v38", "v_and_b32 v39, 1, v34", "v_or_b32 v38, v38, v39", "v_bfe_u32 v39, v34, 1, 1")
    I("v_mov_b32 v40, 0x44444444", "v_mov_b32 v41, 0xeeeeeeee", "v_cmp_eq_u32 vcc, 0, v39", f"v_cndmask_b32 v{V_IDX}, v41, v40, vcc")

def setup_chain(p, local):
    I = p.I
    sc_st = "" if local else " sc1"
    I(f"s_lshl_b32 s{S_W1024}, s{S_WV}, 10", f"s_lshl_b32 s{S_W256}, s{S_WV}, 8")
    I(f"s_lshl_b32 s{S_T0}, s{S_WV}, 11", f"s_add_u32 s{S_T0}, s{S_T0}, {WVL}", f"v_add_u32 v{V_WV}, s{S_T0}, v{V_L16}")
    I(f"v_mul_u32_u24 v{V_MP}, 1152, v38", f"v_lshl_add_u32 v{V_MP}, v35, 5, v{V_MP}", f"v_lshl_add_u32 v{V_MP}, v39, 4, v{V_MP}",
      f"s_lshl_b32 s{S_T0}, s{S_WV}, 7", f"v_add_u32 v{V_MP}, s{S_T0}, v{V_MP}")
    I(f"v_lshlrev_b32 v{V_PS}, 13, v35", f"v_lshl_add_u32 v{V_PS}, v37, 12, v{V_PS}", f"v_lshl_add_u32 v{V_PS}, v36, 4, v{V_PS}")
    I("v_lshlrev_b32 v40, 7, v35", "v_lshl_add_u32 v40, v36, 4, v40", f"v_lshl_add_u32 v{V_SRX}, v37, 9, v40", f"v_add_u32 v{V_SRX}, {SEXX}, v{V_SRX}")
    I("v_lshrrev_b32 v40, 1, v40", f"v_add_u32 v{V_SRM}, {SEXM}, v40")
    I("v_lshl_add_u32 v40, v35, 1, v39", "v_xor_b32 v40, v40, v38", "v_lshlrev_b32 v40, 4, v40", "v_lshl_add_u32 v40, v38, 8, v40", f"v_add_u32 v{V_OR}, {OIMG}, v40")
    for src, ra, rb in ((36, V_SQA, V_SQB), (38, V_SKA, V_SKB)):
        I("v_lshlrev_b32 v40, 1, v35", f"v_sub_u32 v40, v{src}, v40", "v_mov_b32 v41, 0", "v_mov_b32 v42, 0x3f80", "v_mov_b32 v43, 0x3f800000")
        I("v_cmp_eq_u32 vcc, 0, v40", "v_cndmask_b32 v41, v41, v42, vcc", "v_cmp_eq_u32 vcc, 1, v40", f"v_cndmask_b32 v{ra}, v41, v43, vcc")
        I(f"v_mov_b32 v{ra+1}, 0", f"v_mov_b32 v{rb}, 0", f"v_mov_b32 v{rb+1}, v{ra}")
    I(f"s_mov_b32 s{S_NLT8}, 0x00ff00ff", f"s_mov_b32 s{S_NLT8+1}, 0x00ff00ff")
    I(f"s_mov_b32 s{S_ONES}, 0x3f803f80", f"s_mov_b32 s{S_ONES+1}, 0x3f803f80", f"s_lshl_b32 s{S_W4}, s{S_WV}, 2")
    cbits = struct.unpack("<I", struct.pack("<f", SCALE_LOG2E))[0]
    I(f"s_mov_b32 s{S_C}, 0x{cbits:08x}", f"s_mov_b32 s{S_C2}, 0x{cbits:08x}", f"s_mov_b32 s{S_C2+1}, 0x{cbits:08x}")
    p.C("init fills: PART zero (12288 B per WG), MEM sentinel (18432 B per WG)")
    I(f"s_mul_i32 s{S_T0}, s{S_H}, 12288", f"s_add_u32 s{S_T1}, s{S_T0}, s{S_W1024}", f"s_add_u32 s{S_T1}, s{S_T1}, {PART_OFF}")
    I(f"s_mul_i32 s{S_T0}, s{S_H}, 18432", f"s_add_u32 s{S_T2}, s{S_T0}, s{S_W1024}", f"s_add_u32 s{S_T2}, s{S_T2}, {MEM_OFF}")
    I("v_mov_b64 v[44:45], 0", "v_mov_b64 v[46:47], 0", "v_mov_b64 v[48:49], -1", "v_mov_b64 v[50:51], -1")
    for rnd in range(5):
        if rnd < 3: I(f"buffer_store_dwordx4 v[44:47], v{V_L16}, s[{S_WS}:{S_WS+3}], s{S_T1} offen{sc_st}")
        if rnd == 4:
            lab = p.newlabel("fill_skip")
            I(f"s_cmp_ge_u32 s{S_WV}, 2", f"s_cbranch_scc1 {lab}")
        I(f"buffer_store_dwordx4 v[48:51], v{V_L16}, s[{S_WS}:{S_WS+3}], s{S_T2} offen{sc_st}")
        if rnd == 4: p.L(lab)
        else: I(f"s_add_u32 s{S_T1}, s{S_T1}, 4096", f"s_add_u32 s{S_T2}, s{S_T2}, 4096")
    I("s_waitcnt vmcnt(0)", "s_barrier")
    lab = p.newlabel("no_m0")
    I(f"s_cmp_lg_u32 s{S_H}, 0", f"s_cbranch_scc1 {lab}")
    I(f"buffer_load_dwordx4 v[44:47], v{V_MP}, s[{S_MEM}:{S_MEM+3}], 0 offen", f"buffer_load_dwordx4 v[48:51], v{V_MP}, s[{S_MEM}:{S_MEM+3}], 0 offen offset:512")
    I(f"s_lshl_b32 s{S_T0}, s{S_WV}, 7", f"v_subrev_u32 v52, s{S_T0}, v{V_MP}", f"buffer_load_dwordx4 v[56:59], v52, s[{S_MEM}:{S_MEM+3}], 0 offen offset:1024")
    I(f"s_add_u32 s{S_T0}, s{S_W1024}, {MEM_OFF}", f"s_mov_b32 s{S_T1}, {MEM_OFF + 8192}", "s_waitcnt vmcnt(0)")
    I(f"buffer_store_dwordx4 v[44:47], v{V_L16}, s[{S_WS}:{S_WS+3}], s{S_T0} offen{sc_st}")
    I(f"s_add_u32 s{S_T0}, s{S_T0}, 4096", f"buffer_store_dwordx4 v[48:51], v{V_L16}, s[{S_WS}:{S_WS+3}], s{S_T0} offen{sc_st}")
    I(f"buffer_store_dwordx4 v[56:59], v{V_L16}, s[{S_WS}:{S_WS+3}], s{S_T1} offen{sc_st}")
    I("s_waitcnt vmcnt(0)")
    p.L(lab)
    I("s_barrier")
    lab = p.newlabel("init_arr")
    I(f"s_cmp_lg_u32 s{S_WV}, 0", f"s_cbranch_scc1 {lab}")
    I("s_mov_b64 exec, 1", "v_mov_b32 v44, 1", "v_mov_b32 v45, 40", f"global_atomic_add v45, v44, s[{S_DBG}:{S_DBG+1}]", "s_mov_b64 exec, -1")
    p.L(lab)

def preload(p):
    I = p.I
    p.C("weight preload")
    I("v_lshrrev_b32 v40, 4, v33", "v_lshlrev_b32 v41, 13, v40")
    I("v_and_b32 v42, 1, v40", "v_lshlrev_b32 v42, 1, v42", "v_xor_b32 v42, v42, v34", "v_lshlrev_b32 v42, 4, v42")
    for jj in range(4):
        I(f"v_xor_b32 v43, {64*jj}, v42", "v_add_u32 v43, v43, v41", f"v_add_u32 v{52+jj}, {jj*32768}, v43")
    I("v_lshrrev_b32 v40, 3, v33", "v_and_b32 v41, 7, v33", "v_lshrrev_b32 v42, 5, v33")
    for jj in range(4):
        I(f"v_add_u32 v43, {8*jj}, v40", "v_mul_u32_u24 v43, 1152, v43")
        I(f"v_add_u32 v44, {2*(jj&1)}, v42", "v_lshlrev_b32 v44, 1, v44", "v_xor_b32 v44, v44, v41", f"v_lshl_add_u32 v{56+jj}, v44, 4, v43")
    I("v_lshrrev_b32 v40, 2, v34", "v_and_b32 v41, 3, v34")
    I("v_lshrrev_b32 v42, 1, v35", "v_lshlrev_b32 v42, 4, v42", "v_and_b32 v43, 1, v35", "v_lshl_add_u32 v42, v43, 2, v42")
    I("v_and_b32 v44, 1, v40", "v_add_u32 v42, v42, v44", "v_lshrrev_b32 v45, 1, v40", "v_lshl_add_u32 v42, v45, 3, v42")
    I("v_lshl_add_u32 v46, v45, 1, v43")
    I("v_lshl_or_b32 v47, v46, 1, v44")
    I(f"s_lshl_b32 s{S_T0}, s{S_WV}, 1", f"v_xor_b32 v47, s{S_T0}, v47", "v_lshlrev_b32 v47, 5, v47", "v_lshl_add_u32 v47, v41, 3, v47", "v_lshl_add_u32 v60, v42, 8, v47", "v_xor_b32 v61, 32, v60")
    I(f"v_xor_b32 v46, s{S_WV}, v46", "v_lshlrev_b32 v46, 5, v46", "v_lshl_add_u32 v46, v41, 3, v46", "v_lshl_add_u32 v62, v42, 7, v46")
    chunks = [("q", kb) for kb in range(9)] + [("o", cc) for cc in range(9)] + [("k", kb) for kb in range(9)] + [("v", kb) for kb in VRES + VSTR]
    slot = lambda c: (c + 4) % 10
    ptr = {"q": S_PTR + 2, "k": S_PTR + 4, "v": S_PTR + 6, "o": S_PTR + 8}
    cur = [None]
    nissued = [0]
    def issue(c):
        kind, x = chunks[c]
        if cur[0] != kind:
            cur[0] = kind
            I(f"s_mov_b32 s{S_W}, s{ptr[kind]}", f"s_and_b32 s{S_W+1}, s{ptr[kind]+1}, 0xffff", f"s_mov_b32 s{S_W+2}, {576*8192 if kind != 'o' else 4096*1152}", f"s_mov_b32 s{S_W+3}, 0x20000")
        if kind != "o":
            I(f"s_lshl_b32 s{S_T0}, s{S_WV}, 17", f"s_lshl_b32 s{S_T1}, s{S_H}, 8", f"s_add_u32 s{S_T0}, s{S_T0}, s{S_T1}", f"s_add_u32 s{S_T0}, s{S_T0}, {x*524288}")
            vb = 52
        else:
            I(f"s_lshl_b32 s{S_T0}, s{S_H}, 7", f"s_lshl_b32 s{S_T1}, s{S_WV}, 5", f"s_add_u32 s{S_T0}, s{S_T0}, s{S_T1}", f"s_mul_i32 s{S_T0}, s{S_T0}, 1152", f"s_add_u32 s{S_T0}, s{S_T0}, {x*128}")
            vb = 56
        I(f"s_lshl_b32 s{S_T1}, s{S_WV}, 12", f"s_add_u32 s{S_T1}, s{S_T1}, {slot(c)*16384}")
        for jj in range(4):
            I(f"s_add_u32 m0, s{S_T1}, {jj*1024}")
            I(f"buffer_load_dwordx4 v{vb+jj}, s[{S_W}:{S_W+3}], s{S_T0} offen lds")
        nissued[0] = c + 1
    def tr(dst_of_t, areg, rowb, row0):
        for t in range(4):
            I(f"ds_read_b64_tr_b16 {dst_of_t(t)}, v{areg} offset:{(row0+32*(t//2)+2*(t%2))*rowb}")
    for c in range(10): issue(c)
    for c in range(36):
        kind, x = chunks[c]
        I(f"s_waitcnt vmcnt({4*(nissued[0]-1-c)})", "s_barrier")
        sb = slot(c) * 16384
        I(f"v_add_u32 v40, {sb}, v60", f"v_add_u32 v41, {sb}, v61", f"v_add_u32 v42, {sb}, v62")
        if kind == "q":
            tr(lambda t: frag_sub(F_QA(x), 2*t, 2), 40, 256, 0); tr(lambda t: frag_sub(F_QB(x), 2*t, 2), 41, 256, 0)
        elif kind == "k":
            fb = F_KB0 if x == 0 else F_VS((x-1) % 2, (x-1) // 2)
            tr(lambda t: frag_sub(F_KA(x), 2*t, 2), 40, 256, 0); tr(lambda t: frag_sub(fb, 2*t, 2), 41, 256, 0)
        elif kind == "o":
            for kb in range(2): tr(lambda t: frag_sub(F_WO(x, kb), 2*t, 2), 42, 128, 64*kb)
        else:
            for tb in range(2): tr(lambda t: f"v[{64+8*tb+2*t}:{65+8*tb+2*t}]", 40 + tb, 256, 0)
        I("s_waitcnt lgkmcnt(0)", "s_barrier")
        if kind == "v":
            pos = c - 27
            I(f"s_lshl_b32 s{S_T0}, s{S_WV}, 11", f"s_add_u32 s{S_T0}, s{S_T0}, {sb}", f"v_add_u32 v40, s{S_T0}, v{V_L16}")
            for sub in range(2):
                for half in range(2):
                    src = frag_sub(F_VS(sub, pos), 4*half, 4) if pos < 4 else f"v[{64+8*sub+4*half}:{67+8*sub+4*half}]"
                    I(f"ds_write_b128 v40, {src} offset:{sub*8192+half*1024}")
            I("s_waitcnt lgkmcnt(0)")
            if pos < 4:
                for tb in range(2):
                    k, b = fragb(F_VS(tb, pos))
                    for r in range(8):
                        I(f"v_accvgpr_write_b32 a{b+r}, v{64+8*tb+r}" if k == "a" else f"v_mov_b32 v{b+r}, v{64+8*tb+r}")
        if c + 10 < 36: issue(c + 10)
    I("s_barrier")

def chain_state(p):
    I = p.I
    lab = p.newlabel("initw"); lab2 = p.newlabel("initd")
    I(f"s_mov_b32 s{S_TO}, 0", "v_mov_b32 v45, 40")
    p.L(lab)
    I(f"global_load_dword v44, v45, s[{S_DBG}:{S_DBG+1}] sc1", "s_waitcnt vmcnt(0)", f"v_readfirstlane_b32 s{S_T0}, v44", f"s_add_u32 s{S_TO}, s{S_TO}, 1")
    I(f"s_cmp_ge_u32 s{S_T0}, 32", f"s_cbranch_scc1 {lab2}", f"s_cmp_lt_u32 s{S_TO}, 0x40000", f"s_cbranch_scc1 {lab}")
    p.L(lab2)
    I(f"s_mov_b32 s{S_STEP}, 0", f"s_mov_b32 s{S_TO}, 0", f"s_mov_b32 s{S_TO2}, 0", f"s_add_u32 s{S_MEMR}, s{S_W1024}, {MEM_OFF}")
    I(f"s_lshl_b32 s{S_T0}, s{S_WV}, 5", f"s_add_u32 s{S_T0}, s{S_T0}, s{S_H}")
    I(f"s_cmp_lt_u32 s{S_WV}, 3", f"s_cselect_b32 s{S_HASTASK}, 1, 0")
    I(f"s_lshl_b32 s{S_PL}, s{S_T0}, 12", f"s_add_u32 s{S_PL}, s{S_PL}, {PART_OFF}")
    I(f"s_mul_i32 s{S_MEMW}, s{S_WV}, 3072")
    I(f"s_lshr_b32 s{S_T1}, s{S_H}, 3", f"s_lshl_b32 s{S_T1}, s{S_T1}, 8", f"s_add_u32 s{S_MEMW}, s{S_MEMW}, s{S_T1}")
    I(f"s_bfe_u32 s{S_T1}, s{S_H}, 0x20001", f"s_lshl_b32 s{S_T1}, s{S_T1}, 6", f"s_add_u32 s{S_MEMW}, s{S_MEMW}, s{S_T1}")
    I(f"s_and_b32 s{S_T1}, s{S_H}, 1", f"s_lshl_b32 s{S_T1}, s{S_T1}, 5", f"s_add_u32 s{S_MEMW}, s{S_MEMW}, s{S_T1}", f"s_add_u32 s{S_MEMW}, s{S_MEMW}, {MEM_OFF + MEM_SLOT}")
    I(f"s_mov_b32 s{S_EXMS+1}, 0x00000055", f"s_mov_b32 s{S_EXMS}, 0x00550055")
    I(f"s_cmp_eq_u32 s{S_WV}, 2", f"s_cselect_b32 s{S_ISW2}, 1, 0")
    I(f"s_mul_i32 s{S_D8}, s{S_WV}, 768", f"s_sub_u32 s{S_D8}, 8192, s{S_D8}", f"s_add_u32 s{S_L8}, s{S_W256}, {MEMIMG + 8192}")
    I(f"s_mov_b32 s{S_M8}, 0xffff", f"s_mov_b32 s{S_M8+1}, 0")
    I(f"s_mul_i32 s{S_TCH}, s{S_H}, 384", f"s_add_u32 s{S_TCH}, s{S_TCH}, {MEM_OFF}")
    I(f"s_cmp_lt_u32 s{S_H}, 24", f"s_cselect_b32 s{S_TMASK}, 7, 0", f"s_cmp_eq_u32 s{S_WV}, 0", f"s_cselect_b32 s{S_TMASK}, s{S_TMASK}, 0", f"s_mov_b32 s{S_TMASK+1}, 0")
    I(f"s_lshl_b32 s{S_T0}, s{S_H}, 13", f"s_lshl_b32 s{S_T1}, s{S_WV}, 11", f"s_add_u32 s{S_T0}, s{S_T0}, s{S_T1}", f"s_add_u32 s{S_KX}, s{S_T0}, {KX_OFF}", f"s_add_u32 s{S_VX}, s{S_T0}, {VX_OFF}")
    I(f"s_lshr_b32 s{S_T1}, s{S_T0}, 1", f"s_add_u32 s{S_KM}, s{S_T1}, {KM_OFF}", f"s_lshr_b32 s{S_T1}, s{S_T0}, 2", f"s_add_u32 s{S_VM}, s{S_T1}, {VM_OFF}")
    I(f"s_lshl_b32 s{S_T0}, s{S_WV}, 15", f"s_lshl_b32 s{S_T1}, s{S_H}, 7", f"s_add_u32 s{S_T0}, s{S_T0}, s{S_T1}", f"s_add_u32 s{S_PS}, s{S_T0}, {PART_OFF}")
    for e in range(1, 3): I(f"s_add_u32 s{S_PS+e}, s{S_PS}, {e*131072}")
    I(f"s_add_u32 s{S_MEMR8}, s{S_MEMR}, s{S_D8}", f"s_add_u32 s{S_MEMR2}, s{S_MEMR}, 4096")
    for kt in range(2):
        I(f"buffer_load_dwordx4 v[{V_KX+4*kt}:{V_KX+4*kt+3}], v{V_L16}, s[{S_WS}:{S_WS+3}], s{S_KX} offen offset:{kt*1024} sc1")
    I(f"s_add_u32 s{S_KX}, s{S_KX}, {32*8192}", "s_waitcnt vmcnt(0)")

SM = lambda d, a, b: f"v_smfmac_f32_16x16x64_bf16 v[{d}:{d+3}], v[{a}:{a+3}], {b}, v{V_IDX}"

class Stream:
    def __init__(self, p): self.p = p; self.q = []
    def add(self, *instrs): self.q.append(list(instrs))
    def emit(self, n=1):
        for _ in range(n):
            if not self.q: return
            for x in self.q.pop(0): self.p.I(x)
    def drain(self): self.emit(len(self.q))


VPERIOD = [24]
BAR4 = [True]
def delay(p, clks):
    n = clks // 4
    while n > 0:
        k = min(n, 16); p.raw(f"    s_nop {k-1}"); n -= k
DELAY1 = [0]
DELAY2 = [0]
def step(p, tag, local, first):
    I = p.I
    sc_st = "" if local else " sc1"
    WS = f"s[{S_WS}:{S_WS+3}]"
    MEM = f"s[{S_MEM}:{S_MEM+3}]"
    QA, QB, KA, KB = 32, 36, 40, 44
    A0, A1, A2 = 56, 60, 48
    VA, VB = 48, 52
    W1, W2 = 64, 72
    wv_state = {"b": 0}
    def wread(u, buf):
        out = []
        blk = u // 8
        while wv_state["b"] < blk:
            out.append(f"v_add_u32 v{V_WV}, 0x10000, v{V_WV}"); wv_state["b"] += 1
        off = (u % 8) * 8192
        out.append(f"ds_read_b128 v[{buf}:{buf+3}], v{V_WV} offset:{off}")
        out.append(f"ds_read_b128 v[{buf+4}:{buf+7}], v{V_WV} offset:{off+1024}")
        return out
    aread = lambda kb, a: f"ds_read_b128 v[{a}:{a+3}], v{V_L16} offset:{MEMIMG+kb*1024}"
    pk = lambda d, a_, b_: f"v_pk_add_f32 v[{d}:{d+1}], v[{a_}:{a_+1}], v[{b_}:{b_+1}]"
    ad = lambda d, a_, b_: f"v_add_f32 v{d}, v{a_}, v{b_}"
    cv = lambda d, a_, b_: f"v_cvt_pk_bf16_f32 v{d}, v{a_}, v{b_}"
    p.C("==== step : acquire mem")
    stamp(p, 0, first)
    I(f"v_add_u32 v55, s{S_W1024}, v{V_L16}", f"v_add_u32 v54, s{S_L8}, v{V_L16}")
    I("v_mov_b64 v[48:49], 0", "v_mov_b64 v[50:51], 0")
    for r in range(0, 16, 2): I(f"v_mov_b64 v[{QA+r}:{QA+r+1}], 0")
    I(*wread(0, W1)); I(*wread(1, W2))
    delay(p, DELAY2[0])
    loop = p.newlabel("mem_poll"); done = p.newlabel("mem_done")
    p.L(loop)
    a, b, c = 56, 60, 48
    I(f"buffer_load_dwordx4 v[{a}:{a+3}], v{V_L16}, {WS}, s{S_MEMR} offen sc1")
    I(f"buffer_load_dwordx4 v[{b}:{b+3}], v{V_L16}, {WS}, s{S_MEMR2} offen sc1")
    I(f"s_mov_b64 exec, s[{S_M8}:{S_M8+1}]")
    I(f"buffer_load_dwordx4 v[{c}:{c+3}], v{V_L16}, {WS}, s{S_MEMR8} offen sc1")
    I("s_mov_b64 exec, -1")
    I(f"s_add_u32 s{S_TO}, s{S_TO}, 1")
    I("s_waitcnt vmcnt(2)")
    I(f"ds_write_b128 v55, v[{a}:{a+3}] offset:{MEMIMG}")
    I(f"v_max3_u32 v52, v{a}, v{a+1}, v{a+2}")
    I("s_waitcnt vmcnt(1)")
    I(f"ds_write_b128 v55, v[{b}:{b+3}] offset:{MEMIMG+4096}")
    I(f"v_max3_u32 v52, v52, v{a+3}, v{b}", f"v_max3_u32 v52, v52, v{b+1}, v{b+2}")
    I("s_waitcnt vmcnt(0)")
    I(f"s_mov_b64 exec, s[{S_M8}:{S_M8+1}]", f"ds_write_b128 v54, v[{c}:{c+3}]", "s_mov_b64 exec, -1")
    I(f"v_max3_u32 v52, v52, v{b+3}, v{c}", f"v_max3_u32 v52, v52, v{c+1}, v{c+2}", f"v_max_u32 v52, v52, v{c+3}")
    I("v_cmp_eq_u32 vcc, -1, v52", f"s_cbranch_vccz {done}", f"s_cmp_lt_u32 s{S_TO}, 0x200000", f"s_cbranch_scc1 {loop}")
    p.L(done)
    stamp(p, 1, first)
    I("s_waitcnt lgkmcnt(0)")
    I("s_barrier")
    p.reset_q()
    stamp(p, 2, first)
    p.C("QK")
    W = Weaver(p)
    Ab = [A0, A1, A2]
    wb = [W1, W2]
    W.raw(aread(0, Ab[0])); W.raw(aread(1, Ab[1]))
    if TOUCH[0]:
        W.raw(f"s_add_u32 s{S_T0}, s{S_STEP}, {TOUCH[0]}"); W.raw(f"s_mul_i32 s{S_T0}, s{S_T0}, {MEM_SLOT}"); W.raw(f"s_add_u32 s{S_T0}, s{S_T0}, s{S_TCH}")
        W.raw(f"v_lshlrev_b32 v52, 3, v{V_L16}")
        W.raw(f"s_mov_b64 exec, s[{S_TMASK}:{S_TMASK+1}]")
        p.raw(f"    buffer_load_dword v{V_VX}, v52, {WS}, s{S_T0} offen")
        W.raw("s_mov_b64 exec, -1")
    for tb in range(2):
        W.raw(f"buffer_load_dwordx4 v[{V_VX+4*tb}:{V_VX+4*tb+3}], v{V_L16}, {WS}, s{S_VX} offen offset:{tb*1024} sc1")
    W.raw(f"s_add_u32 s{S_TAG}, s{S_STEP}, 1"); W.raw(f"s_add_u32 s{S_MEMR}, s{S_MEMR}, {MEM_SLOT}"); W.raw(f"s_add_u32 s{S_MEMR2}, s{S_MEMR}, 4096"); W.raw(f"s_add_u32 s{S_MEMR8}, s{S_MEMR}, s{S_D8}")
    for kb in range(9):
        a = Ab[kb % 3]
        kbsrc = frag(F_KB0) if kb == 0 else f"v[{wb[(kb-1)%2]}:{wb[(kb-1)%2]+7}]"
        X = []
        if kb + 2 < 9: X.append([aread(kb + 2, Ab[(kb + 2) % 3])])
        if kb >= 2:
            w = wread(kb, wb[(kb - 2) % 2])
            if len(w) == 3: X.append([w[0], w[1]]); X.append([w[2]])
            else: X.append([w[0]]); X.append([w[1]])
        ms = [SM(QA, a, frag(F_QA(kb))), SM(QB, a, frag(F_QB(kb))), SM(KA, a, frag(F_KA(kb))), SM(KB, a, kbsrc)]
        for i, m in enumerate(ms):
            W.raw(m)
            if i < 3 and X:
                for y in X.pop(0): W.raw(y)
        assert not X
    stamp(p, 3, first)
    p.C("post QK, V phase as filler")
    items = []
    items.append([f"v_mov_b64 v[{VA}:{VA+1}], 0", wread(9, wb[1])[0]])
    items.append([f"v_mov_b64 v[{VA+2}:{VA+3}], 0", f"ds_read_b128 v[{wb[1]+4}:{wb[1]+7}], v{V_WV} offset:{8192+1024}"])
    items.append([f"v_mov_b64 v[{VB}:{VB+1}], 0"]); items.append([f"v_mov_b64 v[{VB+2}:{VB+3}], 0"])
    vorder = VRES + VSTR
    vA = [A0, A1]
    ubuf = {8: wb[0], 9: wb[1]}
    for pos, kb in enumerate(vorder):
        a = vA[pos % 2]
        for tb in range(2):
            it = []
            if pos < 4:
                it.append(SM(VA + 4 * tb, a, frag(F_VS(tb, pos))))
            else:
                u = 8 + (pos - 4) * 2 + tb
                b = ubuf[u]
                it.append(SM(VA + 4 * tb, a, f"v[{b}:{b+7}]"))
                if u + 2 < 18:
                    it += wread(u + 2, b); ubuf[u + 2] = b
            if tb == 1 and pos + 2 < 9: it.append(aread(vorder[pos + 2], a))
            items.append(it)
    crit = []
    C = crit.append
    C(ad(32, 32, 34)); C(ad(33, 33, 35)); C(ad(36, 36, 38)); C(ad(37, 37, 39)); C(cv(34, 32, 33)); C(cv(35, 36, 37))
    C(ad(40, 40, 42)); C(ad(41, 41, 43)); C(ad(44, 44, 46)); C(ad(45, 45, 47)); C(cv(42, 40, 41)); C(cv(43, 44, 45))
    C(f"v_mfma_f32_16x16x16_bf16 v[36:39], v[34:35], v[{V_SQA}:{V_SQA+1}], 0")
    C(f"v_mfma_f32_16x16x16_bf16 v[32:35], v[34:35], v[{V_SQB}:{V_SQB+1}], 0")
    C(f"v_mfma_f32_16x16x16_bf16 v[44:47], v[42:43], v[{V_SKA}:{V_SKA+1}], 0")
    C(f"v_mfma_f32_16x16x16_bf16 v[40:43], v[42:43], v[{V_SKB}:{V_SKB+1}], 0")
    C(cv(36, 36, 37)); C(cv(37, 38, 39)); C(cv(38, 32, 33)); C(cv(39, 34, 35))
    C(f"v_mfma_f32_16x16x32_bf16 v[32:35], v[{V_KX}:{V_KX+3}], v[36:39], 0")
    C(cv(44, 44, 45)); C(cv(45, 46, 47))
    C(cv(46, 40, 41)); C(cv(47, 42, 43))
    C(f"v_mfma_f32_16x16x32_bf16 v[40:43], v[{V_KX+4}:{V_KX+7}], v[36:39], 0")
    C(f"buffer_store_dwordx4 v[44:47], v{V_L16}, {WS}, s{S_KM} offen sc1")
    C(f"v_mfma_f32_16x16x32_bf16 v[44:47], v[44:47], v[36:39], 0")
    C(f"v_add_u32 v36, s{S_W1024}, v{V_SRX}"); C(f"v_add_u32 v37, s{S_W256}, v{V_SRM}")
    C(("atomic", [f"s_mov_b64 exec, s[{S_NLT8}:{S_NLT8+1}]", "ds_write_b128 v36, v[32:35]", "ds_write_b128 v36, v[40:43] offset:512", "ds_write_b64 v37, v[44:45]", "s_mov_b64 exec, -1"]))
    C(("call", lambda: stamp(p, 4, first)))
    C(("gap", 60))
    C(("call", p.waitw)); C("s_barrier")
    C(("call", lambda: stamp(p, 5, first)))
    for w in range(4): C(f"ds_read_b128 v[{32+4*w}:{35+4*w}], v{V_SRX} offset:{w*1024}")
    for w in range(4): C(f"ds_read_b64 v[{V_KX+2*w}:{V_KX+2*w+1}], v{V_SRM} offset:{w*256}")
    for r in range(4): C(ad(32 + r, 32 + r, 36 + r))
    for r in range(4): C(ad(40 + r, 40 + r, 44 + r))
    for r in range(4): C(ad(32 + r, 32 + r, 40 + r))
    k = V_KX
    C("v_max3_f32 v38, v32, v33, v34")
    C(ad(k, k, k + 2)); C(ad(k + 1, k + 1, k + 3)); C(ad(k + 4, k + 4, k + 6)); C(ad(k + 5, k + 5, k + 7)); C(ad(36, k, k + 4)); C(ad(37, k + 1, k + 5))
    for kt in range(2):
        C(f"buffer_load_dwordx4 v[{V_KX+4*kt}:{V_KX+4*kt+3}], v{V_L16}, {WS}, s{S_KX} offen offset:{kt*1024} sc1")
    C("v_max3_f32 v38, v38, v35, v36"); C("v_max_f32 v38, v38, v37")
    C("v_max_f32_dpp v38, v38, v38 row_ror:8 row_mask:0xf bank_mask:0xf")
    C("v_mov_b32 v39, v38"); C("v_permlane16_swap_b32 v38, v39"); C("v_max_f32 v38, v38, v39")
    C("v_mov_b32 v39, v38"); C("v_permlane32_swap_b32 v38, v39"); C("v_max_f32 v38, v38, v39")
    C(f"v_mul_f32 v38, s{S_C}, v38")
    for r in range(6): C(f"v_fma_f32 v{32+r}, v{32+r}, s{S_C}, -v38")
    for r in range(6): C(f"v_exp_f32 v{32+r}, v{32+r}")
    C(cv(40, 32, 33)); C(cv(41, 34, 35)); C(cv(44, 36, 37))
    C("v_mov_b32_dpp v42, v40 row_ror:8 row_mask:0xf bank_mask:0xf"); C("v_mov_b32_dpp v43, v41 row_ror:8 row_mask:0xf bank_mask:0xf")
    C("v_mov_b32 v45, 0"); C("v_mov_b32 v46, 0"); C("v_mov_b32 v47, v44")
    for r in range(0, 4, 2): C(f"v_mov_b64 v[{36+r}:{37+r}], s[{S_ONES}:{S_ONES+1}]")
    C(("call", lambda: stamp(p, 6, first)))
    OA_, OB_, LL = 32, 52, 56
    rest = W.weave(crit, items, period=VPERIOD[0])
    W.raw(f"v_mfma_f32_16x16x32_bf16 v[{OA_}:{OA_+3}], v[{V_VX}:{V_VX+3}], v[40:43], 0")
    W.drain(rest)
    assert wv_state["b"] == 2
    W.raw(f"v_subrev_u32 v{V_WV}, 0x20000, v{V_WV}")
    W.raw(ad(VA, VA, VA + 2)); W.raw(ad(VA + 1, VA + 1, VA + 3)); W.raw(ad(VB, VB, VB + 2)); W.raw(ad(VB + 1, VB + 1, VB + 3))
    W.raw(cv(50, VA, VA + 1)); W.raw(cv(51, VB, VB + 1))
    stamp(p, 7, first)
    p.C("PV")
    crit = [f"v_mfma_f32_16x16x32_bf16 v[{LL}:{LL+3}], v[36:39], v[40:43], 0",
            f"v_mfma_f32_16x16x16_bf16 v[{LL}:{LL+3}], v[36:37], v[44:45], v[{LL}:{LL+3}]",
            f"v_mfma_f32_16x16x32_bf16 v[{OB_}:{OB_+3}], v[{V_VX+4}:{V_VX+7}], v[40:43], 0",
            f"v_mfma_f32_16x16x16_bf16 v[{OA_}:{OA_+3}], v[50:51], v[44:45], v[{OA_}:{OA_+3}]",
            f"v_mfma_f32_16x16x16_bf16 v[{OB_}:{OB_+3}], v[50:51], v[46:47], v[{OB_}:{OB_+3}]",
            f"v_rcp_f32 v{LL}, v{LL}"]
    for b in (OA_, OB_):
        for r in range(4): crit.append(f"v_mul_f32 v{b+r}, v{b+r}, v{LL}")
    crit += [cv(OA_, OA_, OA_ + 1), cv(OA_ + 1, OA_ + 2, OA_ + 3), cv(OB_, OB_, OB_ + 1), cv(OB_ + 1, OB_ + 2, OB_ + 3)]
    fill = [f"v_lshrrev_b32 v60, 1, v{V_L16}", f"buffer_store_dwordx2 v[50:51], v60, {WS}, s{S_VM} offen sc1",
            f"v_bfe_u32 v61, v{V_L16}, 4, 3", f"v_bfe_u32 v62, v{V_L16}, 9, 1", f"v_add_u32 v62, s{S_W4}, v62", "v_xor_b32 v62, v62, v61",
            "v_lshlrev_b32 v62, 4, v62", "v_lshl_add_u32 v62, v61, 8, v62", f"v_bfe_u32 v61, v{V_L16}, 8, 1", "v_lshl_add_u32 v62, v61, 3, v62", f"v_add_u32 v62, {OIMG}, v62", "v_xor_b32 v63, 32, v62"]
    fill += [f"v_mov_b64 v[{b}:{b+1}], 0" for b in (64, 66)] + [f"v_mov_b32 v71, s{S_TAG}"]
    rest = W.weave(crit, [[f] for f in fill]); W.drain(rest)
    W.raw(f"s_mov_b64 exec, s[{S_NLT8}:{S_NLT8+1}]"); W.raw(f"ds_write_b64 v62, v[{OA_}:{OA_+1}]"); W.raw(f"ds_write_b64 v63, v[{OB_}:{OB_+1}]"); W.raw("s_mov_b64 exec, -1")
    stamp(p, 8, first)
    OACC = [32 + 4 * j for j in range(9)]
    OAr = 72; G = 68
    zs = [b for b in range(34, 64, 2) if b not in (52,)]
    for b in zs:
        if b == 62: continue
        I(f"v_mov_b64 v[{b}:{b+1}], 0")
    p.waitw()
    I("s_barrier")
    I(f"ds_read_b128 v[{OAr}:{OAr+3}], v{V_OR}", "v_mov_b64 v[32:33], 0", "v_mov_b64 v[52:53], 0", f"ds_read_b128 v[{OAr+4}:{OAr+7}], v{V_OR} offset:128", "v_mov_b64 v[62:63], 0")
    stamp(p, 9, first)
    p.C("O-proj")
    W = Weaver(p)
    osm = lambda j, kb: SM(OACC[j], OAr + 4 * kb, frag(F_WO(j, kb)))
    seq = []
    for j in range(9): seq += [(j, 0), (j, 1)]
    seq = [(0, 0), (1, 0), (0, 1), (1, 1)] + [(j, kb) for j in range(2, 9) for kb in range(2)]
    def fin(j):
        b = OACC[j]
        ops = [ad(b, b, b + 2), ad(b + 1, b + 1, b + 3), cv(G + j % 3, b, b + 1)]
        if j % 3 == 2: ops.append(f"buffer_store_dwordx4 v[{G}:{G+3}], v{V_PS}, {WS}, s{S_PS + j // 3} offen{sc_st}")
        return ops
    done_at = {}
    pend = []
    for idx, (j, kb) in enumerate(seq):
        W.raw(osm(j, kb))
        if kb == 1: done_at[j] = idx
        for jj in list(done_at):
            if idx >= done_at[jj] + 2:
                pend += fin(jj); del done_at[jj]
        n = 2 if len(pend) > 2 else 1
        for _ in range(n):
            if pend: W.raw(pend.pop(0))
    for jj in sorted(done_at): pend += fin(jj)
    for o in pend: W.raw(o)
    stamp(p, 10, first)
    p.C("reduce")
    skip = p.newlabel("notask")
    I(f"s_cmp_eq_u32 s{S_HASTASK}, 0", f"s_cbranch_scc1 {skip}")
    RS = 64
    I(f"v_bfe_u32 v69, v{V_L16}, 4, 2", f"v_bfe_u32 v70, v{V_L16}, 6, 2", "v_lshlrev_b32 v71, 4, v69", "v_mov_b32 v68, 0x3f80", "v_lshlrev_b32 v68, v71, v68",
      "v_cmp_gt_u32 vcc, 2, v69", "v_cndmask_b32 v71, 0, v68, vcc")
    for r in range(3): I(f"v_cmp_eq_u32 vcc, {r}, v70", f"v_cndmask_b32 v{RS+r}, 0, v71, vcc")
    I(f"v_mov_b32 v{RS+3}, 0")
    I(f"v_bfe_u32 v68, v{V_L16}, 8, 2", "v_lshlrev_b32 v68, 10, v68", f"v_bfe_u32 v69, v{V_L16}, 4, 3", "v_lshl_add_u32 v68, v69, 1, v68")
    if DELAY1[0]:
        nd = p.newlabel("nodelay")
        I(f"s_cmp_eq_u32 s{S_ISW2}, 0", f"s_cbranch_scc1 {nd}")
        delay(p, DELAY1[0])
        p.L(nd)
    retry = p.newlabel("p_retry"); ok = p.newlabel("p_ok")
    p.L(retry)
    for i in range(4):
        I(f"buffer_load_dwordx4 v[{32+4*i}:{35+4*i}], v{V_L16}, {WS}, s{S_PL} offen offset:{i*1024} sc1")
    I(f"s_add_u32 s{S_TO2}, s{S_TO2}, 1")
    D = 72
    for i in range(4):
        I(f"s_waitcnt vmcnt({3-i})")
        c = "0" if i == 0 else f"v[{D}:{D+3}]"
        I(f"v_mfma_f32_16x16x32_bf16 v[{D}:{D+3}], v[{RS}:{RS+3}], v[{32+4*i}:{35+4*i}], {c}")
        if i == 2: I("v_min3_u32 v76, v35, v39, v43")
        if i == 3: I("v_min_u32 v76, v76, v47")
    I(f"v_cmp_ne_u32 vcc, s{S_TAG}, v76", f"s_cbranch_vccz {ok}", f"s_cmp_lt_u32 s{S_TO2}, 0x200000", f"s_cbranch_scc1 {retry}")
    p.L(ok)
    stamp(p, 11, first)
    p.fence()
    I(f"v_add_f32_dpp v{D}, v{D}, v{D} row_ror:8 row_mask:0xf bank_mask:0xf", f"v_add_f32_dpp v{D+1}, v{D+1}, v{D+1} row_ror:8 row_mask:0xf bank_mask:0xf")
    I(f"v_mov_b32_dpp v76, v{D} quad_perm:[1,0,3,2] row_mask:0xf bank_mask:0xf", f"v_mov_b32_dpp v77, v{D+1} quad_perm:[1,0,3,2] row_mask:0xf bank_mask:0xf")
    I(f"v_cvt_pk_bf16_f32 v76, v{D}, v76", f"v_cvt_pk_bf16_f32 v77, v{D+1}, v77")
    I(f"s_mov_b64 exec, s[{S_EXMS}:{S_EXMS+1}]", f"buffer_store_dword v76, v68, {WS}, s{S_MEMW} offen{sc_st}", f"buffer_store_dword v77, v68, {WS}, s{S_MEMW} offen offset:16{sc_st}", "s_mov_b64 exec, -1")
    p.L(skip)
    I(f"s_add_u32 s{S_MEMW}, s{S_MEMW}, {MEM_SLOT}", f"s_add_u32 s{S_VX}, s{S_VX}, {32*8192}", f"s_add_u32 s{S_KM}, s{S_KM}, {32*4096}", f"s_add_u32 s{S_VM}, s{S_VM}, {32*2048}", f"s_add_u32 s{S_KX}, s{S_KX}, {32*8192}", f"s_add_u32 s{S_STEP}, s{S_STEP}, 1")
    if BAR4[0]: I("s_barrier")
    stamp(p, 12, first)
    p.fence()
    p.reset_q()

def gen_chain(p, local=True, nsteps=64, stamps=False):
    I = p.I
    setup_chain(p, local)
    preload(p)
    chain_state(p)
    p.reset_q()
    if stamps: I(f"s_memtime s[{S_TS}:{S_TS+1}]", "s_waitcnt lgkmcnt(0)")
    loop = p.newlabel("chain_loop")
    p.fence()
    p.L(loop)
    for par in range(2): step(p, tag=(par + 1) & 1, local=local, first=(par == 0))
    I(f"s_cmp_lt_u32 s{S_STEP}, {nsteps}", f"s_cbranch_scc1 {loop}")
    if stamps:
        I("s_waitcnt vmcnt(0) lgkmcnt(0)", f"s_memtime s[{S_TS+2}:{S_TS+3}]", "s_waitcnt lgkmcnt(0)")
        I(f"s_sub_u32 s{S_TS}, s{S_TS+2}, s{S_TS}", f"v_mov_b32 v44, s{S_TS}")
        lab = p.newlabel("st")
        I(f"s_cmp_lg_u32 s{S_WV}, 0", f"s_cbranch_scc1 {lab}")
        I(f"s_lshl_b32 s{S_T0}, s{S_H}, 2", f"s_add_u32 s{S_T0}, s{S_T0}, 128", f"v_mov_b32 v45, s{S_T0}", "s_mov_b64 exec, 1", f"global_store_dword v45, v44, s[{S_DBG}:{S_DBG+1}]", "s_mov_b64 exec, -1")
        p.L(lab)
    if PROF[0]:
        I("s_waitcnt lgkmcnt(0)")
        I(f"s_lshl_b32 s{S_T0}, s{S_H}, 2", f"s_add_u32 s{S_T0}, s{S_T0}, s{S_WV}", f"s_lshl_b32 s{S_T0}, s{S_T0}, 6", f"s_add_u32 s{S_T0}, s{S_T0}, {0x9000000}")
        I("s_mov_b64 exec, 1", "v_mov_b32 v45, 0")
        for k in range(13):
            I(f"v_mov_b32 v44, s{S_ST+2*k}", f"buffer_store_dword v44, v45, s[{S_WS}:{S_WS+3}], s{S_T0} offen offset:{4*k}")
        I(f"v_mov_b32 v44, s{S_TO}", f"buffer_store_dword v44, v45, s[{S_WS}:{S_WS+3}], s{S_T0} offen offset:52")
        I(f"v_mov_b32 v44, s{S_TO2}", f"buffer_store_dword v44, v45, s[{S_WS}:{S_WS+3}], s{S_T0} offen offset:56")
        I("s_mov_b64 exec, -1")

def standalone(local=True, stamps=True, nsteps=64):
    name = "chain_kernel"
    p = AProg()
    p.raw(f"; @launch kernel={name} grid=(256,1,1) block=(256,1,1) lds=163840")
    p.raw('.amdgcn_target "amdgcn-amd-amdhsa--gfx950"\n.text')
    p.raw(f".globl {name}\n.p2align 8\n.type {name},@function\n{name}:")
    I = p.I
    I(f"s_cmp_ge_u32 s2, 256", "s_cbranch_scc1 L_end")
    I(f"s_load_dwordx2 s[{S_PTR}:{S_PTR+1}], s[0:1], {KARG['A_mem0']}")
    I(f"s_load_dwordx4 s[{S_PTR+2}:{S_PTR+5}], s[0:1], {KARG['A_Wq']}")
    I(f"s_load_dwordx2 s[{S_PTR+6}:{S_PTR+7}], s[0:1], {KARG['A_Wv']}")
    I(f"s_load_dwordx2 s[{S_PTR+8}:{S_PTR+9}], s[0:1], {KARG['A_Wo']}")
    I(f"s_load_dwordx2 s[{S_DBG}:{S_DBG+1}], s[0:1], {KARG['dbg']}")
    I(f"s_load_dwordx2 s[{S_PTR+10}:{S_PTR+11}], s[0:1], {KARG['ws']}")
    I("s_waitcnt lgkmcnt(0)")
    I(f"s_mov_b32 s{S_WS}, s{S_PTR+10}", f"s_and_b32 s{S_WS+1}, s{S_PTR+11}, 0xffff", f"s_mov_b32 s{S_WS+2}, {WS_BYTES}", f"s_mov_b32 s{S_WS+3}, 0x20000")
    I(f"s_mov_b32 s{S_MEM}, s{S_PTR}", f"s_and_b32 s{S_MEM+1}, s{S_PTR+1}, 0xffff", f"s_mov_b32 s{S_MEM+2}, 9216", f"s_mov_b32 s{S_MEM+3}, 0x20000")
    lane_consts(p)
    I(f"s_getreg_b32 s{S_T0}, hwreg(HW_REG_XCC_ID, 0, 4)")
    I(f"s_cmp_lg_u32 s{S_T0}, 0", "s_cbranch_scc1 L_end")
    lab = p.newlabel("role")
    I(f"s_cmp_lg_u32 s{S_WV}, 0", f"s_cbranch_scc1 {lab}")
    I("s_mov_b64 exec, 1", "v_mov_b32 v44, 1", "v_mov_b32 v45, 0", f"global_atomic_add v46, v45, v44, s[{S_DBG}:{S_DBG+1}] sc0", "s_waitcnt vmcnt(0)", "v_mov_b32 v45, 0", "ds_write_b32 v45, v46", "s_waitcnt lgkmcnt(0)", "s_mov_b64 exec, -1")
    p.L(lab)
    I("s_barrier", "v_mov_b32 v45, 0", "ds_read_b32 v46, v45", "s_waitcnt lgkmcnt(0)", f"v_readfirstlane_b32 s{S_H}, v46", "s_barrier")
    I(f"s_cmp_ge_u32 s{S_H}, 32", "s_cbranch_scc1 L_end")
    gen_chain(p, local=local, stamps=stamps, nsteps=nsteps)
    p.L("L_end")
    I("s_endpgm")
    p.raw(kd(name))
    return p.render()

if __name__ == "__main__":
    import sys
    for a in sys.argv[2:]:
        if a == "prof": PROF[0] = True
        if a == "rt": RT[0] = True
        if a.startswith("vp="): VPERIOD[0] = int(a[3:])
        if a == "nobar4": BAR4[0] = False
        if a.startswith("touch="): TOUCH[0] = int(a[6:])
        if a.startswith("d1="): DELAY1[0] = int(a[3:])
        if a.startswith("d2="): DELAY2[0] = int(a[3:])
    open(sys.argv[1], "w").write(standalone())
```

```python
KX_OFF   = 0x0000000
VX_OFF   = 0x1000000
QX_OFF   = 0x2000000
KM_OFF   = 0x3000000
VM_OFF   = 0x3800000
MEM_OFF  = 0x3C00000
PART_OFF = 0x3D00000
OX_OFF   = 0x4000000
WS_BYTES = 0x10000000
MEM_SLOT = 9216
KARG = dict(A_x=0, A_mem0=8, A_Wq=16, A_Wk=24, A_Wv=32, A_Wo=40, A_seg=48, B_x=56, B_wq=64, B_wk=72, B_wv=80, B_wo=88, out=96, dbg=104, ws=112)
HEADER = """; Kernarg layout: 15 pointers (see the starter file)
"""
def kd(name, vgpr=512, accum=256, sgpr=102):
    return f""".section .rodata,"a"
.p2align 6
.amdhsa_kernel {name}
  .amdhsa_next_free_vgpr {vgpr}
  .amdhsa_next_free_sgpr {sgpr}
  .amdhsa_accum_offset {accum}
  .amdhsa_group_segment_fixed_size 0
  .amdhsa_kernarg_size 120
  .amdhsa_user_sgpr_count 2
  .amdhsa_user_sgpr_kernarg_segment_ptr 1
  .amdhsa_system_sgpr_workgroup_id_x 1
.end_amdhsa_kernel
"""
FLAG_OFF = 0x3E00000
KVCNT, QCNT, ACNT, OCNT = FLAG_OFF, FLAG_OFF + 256, FLAG_OFF + 512, FLAG_OFF + 768
QB_OFF  = 0x5000000
OB_OFF  = 0x5300000
KB_OFF  = 0x5600000
VB_OFF  = 0x5640000
def load_ptrs(p, names, base):
    for i, n in enumerate(names): p.I(f"s_load_dwordx2 s[{base+2*i}:{base+2*i+1}], s[0:1], {KARG[n]}")
def srd(p, dst, ptr, nbytes):
    p.I(f"s_mov_b32 s{dst}, s{ptr}", f"s_and_b32 s{dst+1}, s{ptr+1}, 0xffff", f"s_mov_b32 s{dst+2}, {nbytes}", f"s_mov_b32 s{dst+3}, 0x20000")
def kernel_head(p, name):
    p.raw(f".globl {name}\n.p2align 8\n.type {name},@function\n{name}:")
```

```python
from asmlib2 import *
from common import *

G_WS   = 4
G_X    = 8
G_W    = 12
G_O    = 40
G_WV   = 19
G_T0, G_T1, G_T2, G_T3 = 28, 29, 30, 31
G_SEG, G_SEGSTEP, G_NSEG, G_IT = 20, 21, 22, 23
G_WCOL = 24
G_WSTR = 25
G_OB   = 26
G_FLG  = 27
G_XB   = 32
G_PREV = 33
G_BUF  = 34
G_DBG  = 16

XB0 = 0; XBUF = 36864

def wfrag(NT, t, ks):
    f = t * 18 + ks
    r = 4 * f
    return ("a", r) if r < 256 else ("v", 256 + 0 + (r - 256) - 256 + 128)

def frag4(idx):
    return f"a[{4*idx}:{4*idx+3}]" if idx < 64 else f"v[{128+4*(idx-64)}:{128+4*(idx-64)+3}]"
def frag4_sub(idx, off, n):
    k, b = ("a", 4*idx) if idx < 64 else ("v", 128 + 4*(idx-64))
    return f"{k}[{b+off}:{b+off+n-1}]"

def lane_common(p):
    I = p.I
    I("v_lshrrev_b32 v32, 6, v0", "v_and_b32 v33, 63, v0", f"v_readfirstlane_b32 s{G_WV}, v32")
    I("v_and_b32 v34, 15, v33", "v_lshrrev_b32 v35, 4, v33", "v_lshlrev_b32 v0, 4, v33")

def hswz(p, dst, src, tmp):
    p.I(f"v_lshrrev_b32 v{tmp}, 1, v{src}", f"v_xor_b32 v{dst}, v{src}, v{tmp}", f"v_and_b32 v{dst}, 1, v{dst}", f"v_lshl_or_b32 v{dst}, v{dst}, 1, v{tmp}")

def preload_w(p, NT):
    I = p.I
    I("v_lshrrev_b32 v40, 5, v33", "v_and_b32 v41, 31, v33")
    I(f"s_and_b32 s{G_T0}, s{G_WV}, 1", f"s_lshl_b32 s{G_T0}, s{G_T0}, 2")
    for jj in range(4):
        I(f"v_add_u32 v42, {2*jj}, v40", "v_and_b32 v43, 3, v42", f"v_or_b32 v43, s{G_T0}, v43", "v_lshlrev_b32 v43, 1, v43", "v_xor_b32 v43, v43, v41",
          "v_lshlrev_b32 v43, 4, v43", f"v_mul_lo_u32 v42, v42, s{G_WSTR}", f"v_add_u32 v{52+jj}, v42, v43")
    I("v_lshrrev_b32 v40, 2, v34", "v_and_b32 v41, 3, v34", "v_and_b32 v42, 1, v35", "v_lshl_or_b32 v42, v42, 2, v40")
    I("v_lshl_add_u32 v43, v35, 3, v40", "v_lshlrev_b32 v43, 9, v43", "v_lshl_add_u32 v43, v41, 3, v43")
    I(f"s_mul_i32 s{G_T0}, s{G_WV}, {NT}")
    for t in range(NT):
        I(f"s_add_u32 s{G_T1}, s{G_T0}, {t}", f"v_xor_b32 v44, s{G_T1}, v42", f"v_lshl_add_u32 v{56+t}, v44, 5, v43")
    NSL = 10
    issued = [0]
    def issue(c):
        I(f"s_lshl_b32 s{G_T0}, s{G_WV}, 3", f"s_add_u32 s{G_T0}, s{G_T0}, {32*c}", f"s_mul_i32 s{G_T0}, s{G_T0}, s{G_WSTR}", f"s_add_u32 s{G_T0}, s{G_T0}, s{G_WCOL}")
        I(f"s_lshl_b32 s{G_T1}, s{G_WV}, 12", f"s_add_u32 s{G_T1}, s{G_T1}, {(c % NSL) * 16384}")
        for jj in range(4):
            I(f"s_add_u32 m0, s{G_T1}, {jj*1024}", f"buffer_load_dwordx4 v{52+jj}, s[{G_W}:{G_W+3}], s{G_T0} offen lds")
        issued[0] = c + 1
    for c in range(NSL): issue(c)
    for c in range(18):
        I(f"s_waitcnt vmcnt({4*(issued[0]-1-c)})", "s_barrier")
        sb = (c % NSL) * 16384
        for t in range(NT):
            I(f"v_add_u32 v44, {sb}, v{56+t}")
            I(f"ds_read_b64_tr_b16 {frag4_sub(t*18+c, 0, 2)}, v44", f"ds_read_b64_tr_b16 {frag4_sub(t*18+c, 2, 2)}, v44 offset:2048")
        I("s_waitcnt lgkmcnt(0)", "s_barrier")
        if c + NSL < 18: issue(c + NSL)

def x_addrs(p):
    I = p.I
    I("v_lshrrev_b32 v40, 2, v33", "v_lshrrev_b32 v41, 4, v33")
    hswz(p, 42, 41, 43)
    I("v_and_b32 v43, 3, v33", "v_xor_b32 v42, v42, v43", "v_mul_u32_u24 v1, 1152, v40", "v_lshl_add_u32 v1, v42, 4, v1")
    I("v_lshrrev_b32 v41, 2, v34")
    hswz(p, 42, 41, 43)
    I("v_xor_b32 v42, v42, v35", "v_lshlrev_b32 v2, 6, v34", "v_lshl_add_u32 v2, v42, 4, v2")

def x_dma(p, segreg, bufbase_sreg):
    I = p.I
    I(f"s_mul_i32 s{G_T0}, s{segreg}, {32*1152}", f"s_lshr_b32 s{G_T1}, s{G_WV}, 1", f"s_mul_i32 s{G_T1}, s{G_T1}, {16*1152}", f"s_add_u32 s{G_T0}, s{G_T0}, s{G_T1}",
      f"s_and_b32 s{G_T1}, s{G_WV}, 1", f"s_mul_i32 s{G_T1}, s{G_T1}, 576", f"s_add_u32 s{G_T0}, s{G_T0}, s{G_T1}")
    I(f"s_mul_i32 s{G_T1}, s{G_WV}, 9216", f"s_add_u32 s{G_T1}, s{G_T1}, s{bufbase_sreg}")
    for j in range(9):
        I(f"s_add_u32 m0, s{G_T1}, {j*1024}")
        I(f"s_add_u32 s{G_T2}, s{G_T0}, {j*64}", f"buffer_load_dwordx4 v1, s[{G_X}:{G_X+3}], s{G_T2} offen lds")

def gemm_main(p, NT, epi, sc=" sc1"):
    I = p.I
    ACC = 64
    NS = {"kq": NT, "v": NT, "row": 2 * NT}[epi]
    I(f"s_mov_b32 s{G_IT}, 0", f"s_mov_b32 s{G_BUF}, {XB0}", f"s_mov_b32 s{G_PREV}, -1")
    x_dma(p, G_SEG, G_BUF)
    I("s_waitcnt vmcnt(0)")
    loop = p.newlabel("g_loop");
    p.fence(); p.reset_q()
    p.L(loop)
    I(f"s_waitcnt vmcnt({NS})", "s_barrier")
    if epi != "row":
        nosig = p.newlabel("nosig")
        I(f"s_cmp_lt_u32 s{G_IT}, 2", f"s_cbranch_scc1 {nosig}", f"s_cmp_lg_u32 s{G_WV}, 0", f"s_cbranch_scc1 {nosig}")
        I(f"s_lshl_b32 s{G_T0}, s{G_SEGSTEP}, 1", f"s_sub_u32 s{G_T0}, s{G_SEG}, s{G_T0}", f"s_lshl_b32 s{G_T0}, s{G_T0}, 2", f"s_add_u32 s{G_T0}, s{G_T0}, s{G_FLG}")
        I("s_mov_b64 exec, 1", "v_mov_b32 v48, 1", "v_mov_b32 v49, 0", f"buffer_atomic_add v48, v49, s[{G_WS}:{G_WS+3}], s{G_T0} offen", "s_mov_b64 exec, -1")
        p.L(nosig)
    nopf = p.newlabel("nopf")
    I(f"s_add_u32 s{G_T3}, s{G_IT}, 1", f"s_cmp_ge_u32 s{G_T3}, s{G_NSEG}", f"s_cbranch_scc1 {nopf}")
    I(f"s_add_u32 s{G_XB}, s{G_SEG}, s{G_SEGSTEP}", f"s_sub_u32 s{G_T3}, {XB0 + XBUF}, s{G_BUF}", f"s_add_u32 s{G_T3}, s{G_T3}, {XB0}")
    x_dma(p, G_XB, G_T3)
    p.L(nopf)
    p.reset_q()
    I(f"v_add_u32 v3, s{G_BUF}, v2")
    def xr(ks, st):
        return [f"ds_read_b128 v[{32+8*st}:{35+8*st}], v3 offset:{ks*1024}", f"ds_read_b128 v[{36+8*st}:{39+8*st}], v3 offset:{(18+ks)*1024}"]
    for st in range(2):
        for y in xr(st, st): I(y)
    for ks in range(18):
        st = ks % 2
        k = 0
        pend = xr(ks + 2, st) if ks + 2 < 18 else []
        for t in range(NT):
            for tt in range(2):
                d = ACC + 4 * (t * 2 + tt)
                c = "0" if ks == 0 else f"v[{d}:{d+3}]"
                x = f"v[{32+8*st+4*tt}:{35+8*st+4*tt}]"
                w = frag4(t * 18 + ks)
                if epi == "v": I(f"v_mfma_f32_16x16x32_bf16 v[{d}:{d+3}], {x}, {w}, {c}")
                else: I(f"v_mfma_f32_16x16x32_bf16 v[{d}:{d+3}], {w}, {x}, {c}")
        for y in pend: I(y)
    cv = lambda d, a, b: f"v_cvt_pk_bf16_f32 v{d}, v{a}, v{b}"
    if epi == "kq":
        I(f"s_mul_i32 s{G_T0}, s{G_SEG}, {32*8192}", f"s_add_u32 s{G_T0}, s{G_T0}, s{G_OB}")
        for pp in range(NT // 2):
            for tt in range(2):
                a = ACC + 4 * ((2 * pp) * 2 + tt); b = ACC + 4 * ((2 * pp + 1) * 2 + tt); o = 48 + 4 * ((pp * 2 + tt) % 2)
                I(cv(o, a, a + 1), cv(o + 1, a + 2, a + 3), cv(o + 2, b, b + 1), cv(o + 3, b + 2, b + 3))
                I(f"buffer_store_dwordx4 v[{o}:{o+3}], v0, s[{G_WS}:{G_WS+3}], s{G_T0} offen offset:{pp*2048+tt*1024}{sc}")
    elif epi == "v":
        I(f"s_mul_i32 s{G_T0}, s{G_SEG}, {32*8192}", f"s_add_u32 s{G_T0}, s{G_T0}, s{G_OB}")
        for t in range(NT):
            a = ACC + 4 * (t * 2); b = ACC + 4 * (t * 2 + 1); o = 48 + 4 * (t % 2)
            I(cv(o, a, a + 1), cv(o + 1, a + 2, a + 3), cv(o + 2, b, b + 1), cv(o + 3, b + 2, b + 3))
            I(f"buffer_store_dwordx4 v[{o}:{o+3}], v0, s[{G_WS}:{G_WS+3}], s{G_T0} offen offset:{t*1024}{sc}")
    else:
        for tt in range(2):
            I(f"s_lshl_b32 s{G_T0}, s{G_SEG}, 5", f"s_add_u32 s{G_T0}, s{G_T0}, {16*tt}", f"s_mul_i32 s{G_T0}, s{G_T0}, s35", f"s_add_u32 s{G_T0}, s{G_T0}, s{G_OB}")
            for t in range(NT):
                a = ACC + 4 * (t * 2 + tt); o = 48 + 2 * ((tt * NT + t) % 4)
                I(cv(o, a, a + 1), cv(o + 1, a + 2, a + 3))
                I(f"buffer_store_dwordx2 v[{o}:{o+1}], v4, s[{G_O}:{G_O+3}], s{G_T0} offen offset:{t*32}{sc}")
    I(f"s_add_u32 s{G_SEG}, s{G_SEG}, s{G_SEGSTEP}", f"s_sub_u32 s{G_T0}, {XB0 + XBUF}, s{G_BUF}", f"s_add_u32 s{G_BUF}, s{G_T0}, {XB0}", f"s_add_u32 s{G_IT}, s{G_IT}, 1")
    p.fence(); p.reset_q()
    I(f"s_cmp_lt_u32 s{G_IT}, s{G_NSEG}", f"s_cbranch_scc1 {loop}")
    I("s_waitcnt vmcnt(0)", "s_barrier")
    if epi != "row":
        nosig = p.newlabel("nosig")
        I(f"s_cmp_lg_u32 s{G_WV}, 0", f"s_cbranch_scc1 {nosig}")
        I("s_mov_b64 exec, 1", "v_mov_b32 v48, 1", "v_mov_b32 v49, 0")
        for back in (1, 2):
            I(f"s_mul_i32 s{G_T0}, s{G_SEGSTEP}, {back}", f"s_sub_u32 s{G_T0}, s{G_SEG}, s{G_T0}", f"s_lshl_b32 s{G_T0}, s{G_T0}, 2", f"s_add_u32 s{G_T0}, s{G_T0}, s{G_FLG}")
            I(f"buffer_atomic_add v48, v49, s[{G_WS}:{G_WS+3}], s{G_T0} offen")
        I("s_mov_b64 exec, -1")
        p.L(nosig)
```

```python
from asmlib2 import *
from common import *
from gemm576 import G_WS, G_W, G_O, G_WV, G_T0, G_T1, G_T2, G_T3, G_SEG, G_SEGSTEP, G_NSEG, G_IT, G_WCOL
def bfrag(i):
    return f"a[{4*i}:{4*i+3}]" if i < 64 else f"v[{128+4*(i-64)}:{128+4*(i-64)+3}]"
def bfrag_sub(i, off, n):
    k, b = ("a", 4*i) if i < 64 else ("v", 128 + 4*(i-64))
    return f"{k}[{b+off}:{b+off+n-1}]"
def oproj_preload(p):
    I = p.I
    I("v_lshrrev_b32 v40, 3, v33", "v_and_b32 v41, 7, v33")
    for jj in range(4):
        I(f"s_lshl_b32 s{G_T0}, s{G_WV}, 5", f"s_add_u32 s{G_T0}, s{G_T0}, {8*jj}", f"v_add_u32 v42, s{G_T0}, v40",
          "v_bfe_u32 v43, v42, 1, 2", "v_lshlrev_b32 v43, 1, v43", "v_xor_b32 v43, v43, v41", "v_mul_u32_u24 v42, 1152, v42", f"v_lshl_add_u32 v{52+jj}, v43, 4, v42")
    I("v_lshrrev_b32 v40, 2, v34", "v_and_b32 v41, 3, v34", "v_lshl_add_u32 v42, v35, 2, v40", "v_bfe_u32 v43, v42, 1, 2", "v_lshlrev_b32 v44, 7, v42", "v_lshl_add_u32 v44, v41, 3, v44")
    for t in range(3): I(f"v_xor_b32 v45, {t}, v43", f"v_lshl_add_u32 v{56+t}, v45, 5, v44")
    NSL = 10
    issued = [0]
    def issue(c):
        I(f"s_mov_b32 s{G_T0}, {c*128*1152}", f"s_add_u32 s{G_T0}, s{G_T0}, s{G_WCOL}")
        I(f"s_lshl_b32 s{G_T1}, s{G_WV}, 12", f"s_add_u32 s{G_T1}, s{G_T1}, {(c % NSL) * 16384}")
        for jj in range(4):
            I(f"s_add_u32 m0, s{G_T1}, {jj*1024}", f"buffer_load_dwordx4 v{52+jj}, s[{G_W}:{G_W+3}], s{G_T0} offen lds")
        issued[0] = c + 1
    for c in range(NSL): issue(c)
    for c in range(32):
        I(f"s_waitcnt vmcnt({4*(issued[0]-1-c)})", "s_barrier")
        sk = p.newlabel("op_sk")
        I(f"s_cmp_lg_u32 s{G_WV}, {c // 8}", f"s_cbranch_scc1 {sk}")
        sb = (c % NSL) * 16384
        j = c % 8
        for t in range(3):
            I(f"v_add_u32 v44, {sb}, v{56+t}")
            for pp in range(4):
                i = t * 32 + j * 4 + pp
                I(f"ds_read_b64_tr_b16 {bfrag_sub(i, 0, 2)}, v44 offset:{pp*32*128}", f"ds_read_b64_tr_b16 {bfrag_sub(i, 2, 2)}, v44 offset:{(pp*32+16)*128}")
        I("s_waitcnt lgkmcnt(0)")
        p.L(sk)
        I("s_barrier")
        if c + NSL < 32: issue(c + NSL)
def oproj_seg(p):
    I = p.I
    WS = f"s[{G_WS}:{G_WS+3}]"
    ACC = 96
    NB = 16
    I(f"s_lshl_b32 s{G_T0}, s{G_SEG}, 6", f"s_lshl_b32 s{G_T1}, s{G_WV}, 3", f"s_add_u32 s{G_T0}, s{G_T0}, s{G_T1}", f"s_lshl_b32 s{G_T0}, s{G_T0}, 12", f"s_add_u32 s{G_T0}, s{G_T0}, {OX_OFF}")
    order = [(tt, j, pp) for j in range(8) for pp in range(4) for tt in range(2)]
    def ld(idx):
        tt, j, pp = order[idx]; b = 32 + 4 * (idx % NB)
        I(f"s_add_u32 s{G_T1}, s{G_T0}, {(tt*32 + j)*4096}", f"buffer_load_dwordx4 v[{b}:{b+3}], v0, {WS}, s{G_T1} offen offset:{pp*1024} sc1")
    for idx in range(NB): ld(idx)
    for idx, (tt, j, pp) in enumerate(order):
        b = 32 + 4 * (idx % NB)
        for t in range(3):
            d = ACC + 4 * (tt * 3 + t)
            c = "0" if (j == 0 and pp == 0) else f"v[{d}:{d+3}]"
            I(f"v_mfma_f32_16x16x32_bf16 v[{d}:{d+3}], v[{b}:{b+3}], {bfrag(t*32 + j*4 + pp)}, {c}")
        if idx + NB < len(order): ld(idx + NB)
    I(f"s_mul_i32 s{G_T1}, s{G_WV}, 6144", f"v_add_u32 v1, s{G_T1}, v0")
    I("s_barrier")
    for i in range(6): I(f"ds_write_b128 v1, v[{ACC+4*i}:{ACC+4*i+3}] offset:{i*1024}")
    I("s_waitcnt lgkmcnt(0)", "s_barrier")
    for k in range(2):
        sk = p.newlabel("op_r")
        if k == 1: I(f"s_cmp_ge_u32 s{G_WV}, 2", f"s_cbranch_scc1 {sk}")
        I(f"s_add_u32 s{G_T1}, s{G_WV}, {4*k}", f"s_lshl_b32 s{G_T2}, s{G_T1}, 10", f"v_add_u32 v1, s{G_T2}, v0")
        for w in range(4): I(f"ds_read_b128 v[{32+4*w}:{35+4*w}], v1 offset:{w*6144}")
        for r in range(4): I(f"v_add_f32 v{32+r}, v{32+r}, v{36+r}", f"v_add_f32 v{40+r}, v{40+r}, v{44+r}", f"v_add_f32 v{32+r}, v{32+r}, v{40+r}")
        for r in range(4):
            I(f"v_mov_b32_dpp v{36+r}, v{32+r} quad_perm:[1,0,3,2] row_mask:0xf bank_mask:0xf", f"v_cvt_pk_bf16_f32 v{40+r}, v{32+r}, v{36+r}")
        I(f"s_cmp_ge_u32 s{G_T1}, 3", f"s_cselect_b32 s{G_T2}, 1, 0", f"s_mul_i32 s{G_T3}, s{G_T2}, 3", f"s_sub_u32 s{G_T3}, s{G_T1}, s{G_T3}")
        I(f"s_lshl_b32 s{G_T2}, s{G_T2}, 4", f"s_lshl_b32 s{G_T1}, s{G_SEG}, 5", f"s_add_u32 s{G_T1}, s{G_T1}, s{G_T2}", f"s_mul_i32 s{G_T1}, s{G_T1}, 2304",
          f"s_lshl_b32 s{G_T3}, s{G_T3}, 5", f"s_add_u32 s{G_T1}, s{G_T1}, s{G_T3}", f"s_add_u32 s{G_T1}, s{G_T1}, s{G_WCOL}")
        I("s_mov_b64 exec, s[70:71]")
        for r in range(4): I(f"buffer_store_dword v{40+r}, v2, s[{G_O}:{G_O+3}], s{G_T1} offen offset:{0}" if False else f"buffer_store_dword v{40+r}, v{4+r}, s[{G_O}:{G_O+3}], s{G_T1} offen")
        I("s_mov_b64 exec, -1")
        if k == 1: p.L(sk)
def oproj_setup(p):
    I = p.I
    for r in range(4): I(f"v_lshl_add_u32 v40, v35, 2, {r}", "v_mul_u32_u24 v40, 2304, v40", f"v_lshl_add_u32 v{4+r}, v34, 1, v40")
    I("s_mov_b32 s70, 0x55555555", "s_mov_b32 s71, 0x55555555")
```

```python
import sys
from gemm576 import *
from test_gemm import role_bq, k_init
from attnb import *
P = 46
def k_proj(p):
    kernel_head(p, "bproj_kernel"); I = p.I
    I("s_cmp_ge_u32 s2, 40", "s_cbranch_scc1 L_p_end")
    load_ptrs(p, ["B_x", "B_wq", "B_wk", "B_wv", "ws"], P); I("s_waitcnt lgkmcnt(0)")
    srd(p, G_WS, P + 8, WS_BYTES)
    lane_common(p)
    I("s_cmp_ge_u32 s2, 24", "s_cbranch_scc1 L_kv")
    I("s_mov_b32 s36, s2")
    role_bq(p, 36, P, P + 2)
    I("s_branch L_p_end")
    p.L("L_kv")
    srd(p, G_X, P, 2048 * 1152)
    I("s_sub_u32 s20, s2, 24", "s_lshl_b32 s20, s20, 2", f"s_add_u32 s20, s20, s{G_WV}", "s_mov_b32 s21, 64")
    kvproj(p, P + 4, P + 6, 1, 20)
    p.L("L_p_end"); I("s_endpgm")
def k_attn(p):
    kernel_head(p, "attnb_kernel"); I = p.I
    I("s_cmp_ge_u32 s2, 256", "s_cbranch_scc1 L_ab_end")
    load_ptrs(p, ["ws"], P); I("s_waitcnt lgkmcnt(0)"); srd(p, G_WS, P, WS_BYTES)
    lane_common(p); attnb_setup(p)
    I(f"s_lshl_b32 s{B_TASK}, s2, 2", f"s_add_u32 s{B_TASK}, s{B_TASK}, s{G_WV}")
    attnb_task(p)
    p.L("L_ab_end"); I("s_endpgm")
def role_bo(p, idreg, pWS, pW, pOut, prewait=None, xsc='', osc=''):
    I = p.I
    I(f"s_mul_hi_u32 s{G_SEG}, s{idreg}, {(1 << 32) // 3 + 1}", f"s_mul_i32 s{G_T0}, s{G_SEG}, 3", f"s_sub_u32 s37, s{idreg}, s{G_T0}")
    I(f"s_add_u32 s{G_T0}, s{pWS}, {OB_OFF}", f"s_addc_u32 s{G_T1}, s{pWS+1}, 0")
    srd(p, G_X, G_T0, 2048 * 1152)
    srd(p, G_W, pW, 576 * 1152)
    srd(p, G_O, pOut, 2048 * 2304)
    I(f"s_mul_i32 s{G_WCOL}, s37, 384", f"s_mov_b32 s{G_WSTR}, 1152", f"s_mov_b32 s{G_SEGSTEP}, 8", f"s_mov_b32 s{G_NSEG}, 8", "s_mov_b32 s35, 2304", f"s_mov_b32 s{G_JIT}, -1", f"s_mov_b32 s{G_JSEG}, 0", f"s_mov_b32 s{G_NIMM}, 0")
    I(f"s_mul_i32 s{G_OB}, s{G_WV}, 96", f"s_add_u32 s{G_OB}, s{G_OB}, s{G_WCOL}", f"s_add_u32 s{G_OB}, s{G_OB}, 1152")
    preload_w(p, 3)
    x_addrs(p)
    I("v_mul_u32_u24 v4, 2304, v34", "v_lshl_add_u32 v4, v35, 3, v4")
    gemm_main(p, 3, "row", sc=osc, prewait=prewait, xsc=xsc)
def k_out(p):
    kernel_head(p, "bout_kernel"); I = p.I
    I("s_cmp_ge_u32 s2, 24", "s_cbranch_scc1 L_bo_end")
    load_ptrs(p, ["ws", "B_wo", "out"], P); I("s_waitcnt lgkmcnt(0)")
    srd(p, G_WS, P, WS_BYTES)
    lane_common(p)
    I("s_mov_b32 s36, s2")
    role_bo(p, 36, P, P + 2, P + 4)
    p.L("L_bo_end"); I("s_endpgm")
if __name__ == "__main__":
    p = AProg()
    p.raw("; @launch kernel=bproj_kernel grid=(40,1,1) block=(256,1,1) lds=163840")
    p.raw("; @launch kernel=attnb_kernel grid=(256,1,1) block=(256,1,1) lds=0")
    p.raw("; @launch kernel=bout_kernel grid=(24,1,1) block=(256,1,1) lds=163840")
    p.raw('.amdgcn_target "amdgcn-amd-amdhsa--gfx950"\n.text')
    k_proj(p); k_attn(p); k_out(p)
    for k in ("bproj_kernel", "attnb_kernel", "bout_kernel"): p.raw(kd(k))
    open(sys.argv[1], "w").write(p.render())
```

```python
import sys
from gemm576 import *
P = 46
def k_init(p):
    kernel_head(p, "init_kernel")
    I = p.I
    I("s_cmp_ge_u32 s2, 1", "s_cbranch_scc1 L_init_end")
    load_ptrs(p, ["ws"], P); I("s_waitcnt lgkmcnt(0)"); srd(p, G_WS, P, WS_BYTES)
    I("v_lshlrev_b32 v1, 4, v0", "v_mov_b64 v[4:5], 0", "v_mov_b64 v[6:7], 0", f"s_mov_b32 s20, {FLAG_OFF}")
    I(f"buffer_store_dwordx4 v[4:7], v1, s[{G_WS}:{G_WS+3}], s20 offen")
    p.L("L_init_end"); I("s_endpgm")
def k_gemm(p):
    kernel_head(p, "gemm_kernel")
    I = p.I
    I("s_cmp_ge_u32 s2, 216", "s_cbranch_scc1 L_g_end")
    load_ptrs(p, ["A_x", "A_Wq", "A_Wk", "A_Wv", "B_x", "B_wq", "ws"], P)
    I("s_waitcnt lgkmcnt(0)")
    srd(p, G_WS, P + 12, WS_BYTES)
    lane_common(p)
    I("s_cmp_ge_u32 s2, 192", "s_cbranch_scc1 L_bq")
    role_gemm1(p, "s2", P, P + 2, P + 4, P + 6)
    I("s_branch L_g_end")
    p.L("L_bq")
    I("s_sub_u32 s36, s2, 192")
    role_bq(p, 36, P + 8, P + 10)
    p.L("L_g_end"); I("s_endpgm")

def role_gemm1(p, idreg, pX, pWq, pWk, pWv):
    I = p.I
    I(f"s_mul_hi_u32 s{G_SEG}, {idreg}, {(1 << 32) // 48 + 1}", f"s_mul_i32 s{G_T0}, s{G_SEG}, 48", f"s_sub_u32 s36, {idreg}, s{G_T0}")
    I(f"s_lshr_b32 s37, s36, 4", "s_and_b32 s38, s36, 15")
    srd(p, G_X, pX, 2048 * 1152)
    I(f"s_cmp_eq_u32 s37, 0", f"s_cselect_b32 s{G_T0}, s{pWk}, s{pWv}", f"s_cselect_b32 s{G_T1}, s{pWk+1}, s{pWv+1}")
    I(f"s_cmp_eq_u32 s37, 2", f"s_cselect_b32 s{G_T0}, s{pWq}, s{G_T0}", f"s_cselect_b32 s{G_T1}, s{pWq+1}, s{G_T1}")
    srd(p, G_W, G_T0, 576 * 8192)
    I(f"s_lshl_b32 s{G_WCOL}, s38, 9", f"s_mov_b32 s{G_WSTR}, 8192", f"s_mov_b32 s{G_SEGSTEP}, 4", f"s_mov_b32 s{G_NSEG}, 16")
    I(f"s_lshr_b32 s{G_T0}, s{G_WV}, 1", f"s_lshl_b32 s{G_T1}, s38, 1", f"s_add_u32 s{G_T0}, s{G_T0}, s{G_T1}", f"s_lshl_b32 s{G_OB}, s{G_T0}, 13",
      f"s_and_b32 s{G_T0}, s{G_WV}, 1", f"s_lshl_b32 s{G_T0}, s{G_T0}, 12", f"s_add_u32 s{G_OB}, s{G_OB}, s{G_T0}")
    I(f"s_mov_b32 s{G_T1}, {VX_OFF}", f"s_cmp_eq_u32 s37, 0", f"s_cselect_b32 s{G_T0}, {KX_OFF}, s{G_T1}", f"s_cmp_eq_u32 s37, 2", f"s_cselect_b32 s{G_T0}, {QX_OFF}, s{G_T0}", f"s_add_u32 s{G_OB}, s{G_OB}, s{G_T0}")
    I(f"s_mov_b32 s{G_T1}, {KVCNT}", f"s_cmp_eq_u32 s37, 2", f"s_cselect_b32 s{G_FLG}, {QCNT}, s{G_T1}")
    preload_w(p, 4)
    x_addrs(p)
    lv = p.newlabel("isv"); le = p.newlabel("g1done")
    I("s_cmp_eq_u32 s37, 1", f"s_cbranch_scc1 {lv}")
    gemm_main(p, 4, "kq")
    I(f"s_branch {le}")
    p.L(lv)
    gemm_main(p, 4, "v")
    p.L(le)

def role_bq(p, idreg, pX, pW, out_srd_ptr=None):
    I = p.I
    I(f"s_mul_hi_u32 s{G_SEG}, s{idreg}, {(1 << 32) // 3 + 1}", f"s_mul_i32 s{G_T0}, s{G_SEG}, 3", f"s_sub_u32 s37, s{idreg}, s{G_T0}")
    srd(p, G_X, pX, 2048 * 1152)
    srd(p, G_W, pW, 576 * 1152)
    I(f"s_mul_i32 s{G_WCOL}, s37, 384", f"s_mov_b32 s{G_WSTR}, 1152", f"s_mov_b32 s{G_SEGSTEP}, 8", f"s_mov_b32 s{G_NSEG}, 8", "s_mov_b32 s35, 1152")
    for k in range(4): I(f"s_mov_b32 s{G_O+k}, s{G_WS+k}")
    I(f"s_mul_i32 s{G_OB}, s{G_WV}, 96", f"s_add_u32 s{G_OB}, s{G_OB}, s{G_WCOL}", f"s_add_u32 s{G_OB}, s{G_OB}, {QB_OFF}")
    preload_w(p, 3)
    x_addrs(p)
    I("v_mul_u32_u24 v4, 1152, v34", "v_lshl_add_u32 v4, v35, 3, v4")
    gemm_main(p, 3, "row")

if __name__ == "__main__":
    p = AProg()
    p.raw("; @launch kernel=init_kernel grid=(1,1,1) block=(256,1,1) lds=0")
    p.raw("; @launch kernel=gemm_kernel grid=(216,1,1) block=(256,1,1) lds=163840")
    p.raw('.amdgcn_target "amdgcn-amd-amdhsa--gfx950"\n.text')
    k_init(p); k_gemm(p)
    p.raw(kd("init_kernel", vgpr=32, accum=32)); p.raw(kd("gemm_kernel"))
    open(sys.argv[1], "w").write(p.render())
```

```python
import sys
import chain3 as ch
from gemm576 import *
from test_gemm import role_gemm1, role_bq
from test_b import role_bo
from attna import *
from attnb import *
from oproja import *
P = 46
HEAD = open("concat_heads__memory_aug_recurrent_mem_tr__grouped_kv_mqa__prompt.s.ref").read().split("; Override launch geometry")[0]

def k1(p):
    kernel_head(p, "k1_kernel"); I = p.I
    I("s_cmp_ge_u32 s2, 232", "s_cbranch_scc1 L_k1_end")
    load_ptrs(p, ["A_x", "A_Wq", "A_Wk", "A_Wv", "B_x", "B_wq", "B_wk", "B_wv", "ws"], P + 2 - 2)
    I("s_waitcnt lgkmcnt(0)")
    srd(p, G_WS, P + 16, WS_BYTES)
    lane_common(p)
    I("s_cmp_ge_u32 s2, 192", "s_cbranch_scc1 L_k1_b")
    role_gemm1(p, "s2", P, P + 2, P + 4, P + 6)
    I("s_branch L_k1_end")
    p.L("L_k1_b")
    I("s_cmp_ge_u32 s2, 216", "s_cbranch_scc1 L_k1_kv")
    I("s_sub_u32 s36, s2, 192")
    role_bq(p, 36, P + 8, P + 10)
    I("s_branch L_k1_end")
    p.L("L_k1_kv")
    srd(p, G_X, P + 8, 2048 * 1152)
    I("s_sub_u32 s20, s2, 216", "s_lshl_b32 s20, s20, 2", f"s_add_u32 s20, s20, s{G_WV}", "s_mov_b32 s21, 64")
    kvproj(p, P + 12, P + 14, 1, 20)
    p.L("L_k1_end"); I("s_endpgm")

def k2(p):
    kernel_head(p, "k2_kernel"); I = p.I
    S_PTR, S_DBG, S_WS, S_MEM, S_WV, S_T0, S_H = ch.S_PTR, ch.S_DBG, ch.S_WS, ch.S_MEM, ch.S_WV, ch.S_T0, ch.S_H
    I("s_cmp_ge_u32 s2, 256", "s_cbranch_scc1 L_k2_end")
    I(f"s_load_dwordx2 s[{S_PTR}:{S_PTR+1}], s[0:1], {KARG['A_mem0']}")
    I(f"s_load_dwordx4 s[{S_PTR+2}:{S_PTR+5}], s[0:1], {KARG['A_Wq']}")
    I(f"s_load_dwordx2 s[{S_PTR+6}:{S_PTR+7}], s[0:1], {KARG['A_Wv']}")
    I(f"s_load_dwordx2 s[{S_PTR+8}:{S_PTR+9}], s[0:1], {KARG['A_Wo']}")
    I(f"s_load_dwordx2 s[{S_DBG}:{S_DBG+1}], s[0:1], {KARG['dbg']}")
    I(f"s_load_dwordx2 s[{S_PTR+10}:{S_PTR+11}], s[0:1], {KARG['ws']}")
    I("s_waitcnt lgkmcnt(0)")
    srd(p, S_WS, S_PTR + 10, WS_BYTES); srd(p, S_MEM, S_PTR, 9216)
    ch.lane_consts(p)
    I(f"s_getreg_b32 s24, hwreg(HW_REG_XCC_ID, 0, 4)")
    lab = p.newlabel("role")
    I(f"s_cmp_lg_u32 s{S_WV}, 0", f"s_cbranch_scc1 {lab}")
    I("s_mov_b64 exec, 1", "v_mov_b32 v44, 1", "s_lshl_b32 s25, s24, 2", "v_mov_b32 v45, s25", f"global_atomic_add v46, v45, v44, s[{S_DBG}:{S_DBG+1}] sc0", "s_waitcnt vmcnt(0)")
    I("v_readfirstlane_b32 s26, v46")
    I("s_cmp_eq_u32 s24, 0", "s_cselect_b32 s27, s26, 1000", "s_cmp_lt_u32 s27, 32", "s_cbranch_scc1 L_k2_isch")
    I("v_mov_b32 v45, 48", f"global_atomic_add v46, v45, v44, s[{S_DBG}:{S_DBG+1}] sc0", "s_waitcnt vmcnt(0)", "v_add_u32 v46, 32, v46")
    p.L("L_k2_isch")
    I("v_mov_b32 v45, 0", "ds_write_b32 v45, v46", "s_waitcnt lgkmcnt(0)", "s_mov_b64 exec, -1")
    p.L(lab)
    I("s_barrier", "v_mov_b32 v45, 0", "ds_read_b32 v46, v45", "s_waitcnt lgkmcnt(0)", f"v_readfirstlane_b32 s{S_H}, v46", "s_barrier")
    I(f"s_cmp_ge_u32 s{S_H}, 32", "s_cbranch_scc1 L_k2_b")
    ch.gen_chain(p, local=True, stamps=False, nsteps=64)
    I("s_branch L_k2_end")
    p.L("L_k2_b")
    I(f"s_sub_u32 s{B_TASK}, s{S_H}, 32", f"s_lshl_b32 s{B_TASK}, s{B_TASK}, 2", f"s_add_u32 s{B_TASK}, s{B_TASK}, s{G_WV}")
    attnb_setup(p)
    p.fence(); p.reset_q(); p.L("L_k2_bl")
    I(f"s_cmp_ge_u32 s{B_TASK}, 1024", "s_cbranch_scc1 L_k2_end")
    attnb_task(p)
    I(f"s_add_u32 s{B_TASK}, s{B_TASK}, 896")
    p.fence(); p.reset_q()
    I("s_branch L_k2_bl")
    p.L("L_k2_end"); I("s_endpgm")

def k3(p):
    kernel_head(p, "k3_kernel"); I = p.I
    I("s_cmp_ge_u32 s2, 256", "s_cbranch_scc1 L_k3_end")
    load_ptrs(p, ["ws", "B_wo", "out"], P); I("s_waitcnt lgkmcnt(0)"); srd(p, G_WS, P, WS_BYTES)
    lane_common(p)
    I("s_cmp_ge_u32 s2, 24", "s_cbranch_scc1 L_k3_a")
    I("s_mov_b32 s36, s2")
    role_bo(p, 36, P, P + 2, P + 4)
    I("s_branch L_k3_end")
    p.L("L_k3_a")
    attna_setup(p)
    I(f"s_sub_u32 s{A_TASK}, s2, 24", f"s_lshl_b32 s{A_TASK}, s{A_TASK}, 2", f"s_add_u32 s{A_TASK}, s{A_TASK}, s{G_WV}")
    p.fence(); p.reset_q(); p.L("L_k3_loop")
    attna_task(p)
    I(f"s_add_u32 s{A_TASK}, s{A_TASK}, 928")
    p.fence(); p.reset_q()
    I(f"s_cmp_lt_u32 s{A_TASK}, 2048", "s_cbranch_scc1 L_k3_loop")
    p.L("L_k3_end"); I("s_endpgm")

def k4(p):
    kernel_head(p, "k4_kernel"); I = p.I
    I("s_cmp_ge_u32 s2, 192", "s_cbranch_scc1 L_k4_end")
    load_ptrs(p, ["ws", "A_Wo", "out"], P); I("s_waitcnt lgkmcnt(0)")
    srd(p, G_WS, P, WS_BYTES); srd(p, G_W, P + 2, 4096 * 1152); srd(p, G_O, P + 4, 2048 * 2304)
    lane_common(p)
    I(f"s_mul_hi_u32 s{G_SEG}, s2, {(1 << 32) // 12 + 1}", f"s_mul_i32 s{G_T0}, s{G_SEG}, 12", f"s_sub_u32 s{G_T0}, s2, s{G_T0}", f"s_mul_i32 s{G_WCOL}, s{G_T0}, 96")
    oproj_setup(p); oproj_preload(p)
    p.fence(); p.reset_q(); p.L("L_k4_loop")
    oproj_seg(p)
    I(f"s_add_u32 s{G_SEG}, s{G_SEG}, 16")
    p.fence(); p.reset_q()
    I(f"s_cmp_lt_u32 s{G_SEG}, 64", "s_cbranch_scc1 L_k4_loop")
    p.L("L_k4_end"); I("s_endpgm")

def build():
    p = AProg()
    p.raw(HEAD.rstrip("\n"))
    p.raw("; @launch kernel=k1_kernel grid=(232,1,1) block=(256,1,1) lds=163840")
    p.raw("; @launch kernel=k2_kernel grid=(256,1,1) block=(256,1,1) lds=163840")
    p.raw("; @launch kernel=k3_kernel grid=(256,1,1) block=(256,1,1) lds=163840")
    p.raw("; @launch kernel=k4_kernel grid=(192,1,1) block=(256,1,1) lds=163840")
    p.raw('.amdgcn_target "amdgcn-amd-amdhsa--gfx950"\n.text')
    k1(p); k2(p); k3(p); k4(p)
    for k in ("k1_kernel", "k2_kernel", "k3_kernel", "k4_kernel"): p.raw(kd(k))
    return p.render()
if __name__ == "__main__":
    for a in sys.argv[2:]:
        if a.startswith("d1="): ch.DELAY1[0] = int(a[3:])
        if a.startswith("d2="): ch.DELAY2[0] = int(a[3:])
    open(sys.argv[1], "w").write(build())
```

```python
from asmlib import *

class AProg(Prog):
    def pseudo(self, name): self.items.append(("pseudo", name))
    def waitw(self): self.pseudo("WAITW")
    def reset_q(self): self.pseudo("RESETQ")
    def render(self):
        new_items = []
        lq, vq = [], []
        def emit_wait(nl, nv):
            nonlocal lq, vq
            parts = []
            if nv is not None:
                parts.append(f"vmcnt({min(nv,63)})"); vq = vq[len(vq) - nv:] if nv else []
            if nl is not None:
                parts.append(f"lgkmcnt({min(nl,15)})"); lq = lq[len(lq) - nl:] if nl else []
            new_items.append(("i", Ins("s_waitcnt " + " ".join(parts))))
        for kind, x in self.items:
            if kind == "pseudo":
                if x == "WAITW":
                    idx = [i for i, e in enumerate(lq) if e[1]]
                    if idx:
                        n = len(lq) - 1 - idx[-1]
                        emit_wait(min(n, 15), None)
                elif x == "RESETQ":
                    lq, vq = [], []
                continue
            if kind != "i":
                new_items.append((kind, x)); continue
            if x.mn == "s_waitcnt":
                t = x.text
                m = re.search(r"vmcnt\((\d+)\)", t)
                if m:
                    n = int(m.group(1)); vq = vq[len(vq) - n:] if (n and n < len(vq)) else ([] if n == 0 else vq)
                m = re.search(r"lgkmcnt\((\d+)\)", t)
                if m:
                    n = int(m.group(1)); lq = lq[len(lq) - n:] if (n and n < len(lq)) else ([] if n == 0 else lq)
                new_items.append((kind, x)); continue
            touched = vec(x.uses) | vec(x.defs)
            if "nodep" in x.text: touched = set()
            nl = nv = None
            for i in range(len(lq) - 1, -1, -1):
                if lq[i][0] & touched:
                    nl = len(lq) - 1 - i; break
            for i in range(len(vq) - 1, -1, -1):
                if vq[i][0] & touched:
                    nv = len(vq) - 1 - i; break
            if nl is not None and nl > 15: nl = 15
            if nl is not None or nv is not None: emit_wait(nl, nv)
            new_items.append((kind, x))
            if x.cls == "ds":
                lq.append((vec(x.defs), not x.defs))
            elif x.cls == "vmem":
                vq.append((set() if "nodep" in x.text else vec(x.defs), not x.defs))
        save = self.items
        self.items = new_items
        out = Prog.render(self)
        self.items = save
        return out


class Weaver:
    LDS_LAT = 72
    VM_LAT = 300
    def __init__(self, p):
        self.p = p
        self.t = 0
        self.ready = {}
        self.kind = {}
        self.mf_t = -100; self.mf_p = 4; self.mf_blk = 0
        self.ds_t = -100
        self.vm_t = -100
        self.war = {}
        self.mn = {}
    def cost(self, x):
        if x.cls == "permlane": return 9
        if x.cls == "valu": return 8 if x.trans else 5
        if x.cls == "vmem": return 24 if "store" in x.mn else 8
        if x.cls == "nop": return 4 * x.slots
        return 4
    def earliest(self, x):
        e = self.t
        if x.cls == "mfma": e = max(e, self.mf_t + 4 * self.mf_p)
        elif x.cls in ("valu", "permlane", "readlane"): e = max(e, self.mf_t + self.mf_blk)
        elif x.cls == "ds": e = max(e, self.ds_t + 16)
        elif x.cls == "vmem": e = max(e, self.vm_t + 16)
        if x.cls in ("valu", "permlane"):
            for r in vec(x.defs):
                if r in self.war: e = max(e, self.war[r])
        for r in vec(x.uses) | vec(x.defs):
            if r in self.ready:
                rt = self.ready[r]; k = self.kind[r]
                if k == "mfma" and x.cls == "mfma" and r in vec(x.srcC) and r not in vec(x.srcAB):
                    if self.mn.get(r) == x.mn: continue
                    rt -= 8
                if k == "valu":
                    if r in vec(x.uses) and (x.cls in ("mfma", "permlane") or x.dpp): rt += 8
                    else: continue
                e = max(e, rt)
        return e
    def issue(self, x):
        e = self.earliest(x)
        self.p.items.append(("i", x))
        if x.cls == "mfma":
            self.mf_t = e; self.mf_p = x.passes; self.mf_blk = 12 if x.mn.startswith("v_smfmac") else 8
            for r in vec(x.defs): self.ready[r] = e + 4 * ({2:5,4:8,8:12}[x.passes] + 2); self.kind[r] = "mfma"; self.mn[r] = x.mn
            if x.mn.startswith("v_smfmac"):
                for r in vec(x.srcAB): self.war[r] = e + 24
            self.t = e + 4
        elif x.cls == "ds":
            self.ds_t = e
            for r in vec(x.defs): self.ready[r] = e + self.LDS_LAT; self.kind[r] = "ds"
            self.t = e + 4
        elif x.cls == "vmem":
            self.vm_t = e
            for r in vec(x.defs): self.ready[r] = e + self.VM_LAT; self.kind[r] = "vm"
            self.t = e + self.cost(x)
        else:
            c = self.cost(x)
            for r in vec(x.defs): self.ready[r] = e + c; self.kind[r] = "valu"
            self.t = e + c
    def raw(self, s):
        self.issue(Ins(s))
    def passthru(self, fn):
        fn()
    def weave2(self, crit, fill, lead=0):
        fill = [Ins(f) if isinstance(f, str) else f for f in fill]
        hold = False
        def try_fill(limit):
            n = 0
            while fill:
                ef = self.earliest(fill[0])
                if ef <= limit: self.issue(fill.pop(0)); n += 1
                else: break
                limit = max(limit, self.t) if False else limit
                if self.t > limit + lead: break
            return n
        for c in crit:
            if isinstance(c, tuple):
                if c[0] == "call": c[1](); continue
                if c[0] == "gap":
                    target = self.t + c[1]
                    while fill and self.earliest(fill[0]) + 4 <= target: self.issue(fill.pop(0))
                    self.t = max(self.t, target); continue
                if c[0] == "atomic":
                    for y in c[1]: self.issue(Ins(y))
                    continue
                if c[0] == "hold": hold = c[1]; continue
                raise ValueError(c)
            x = Ins(c)
            if hold:
                self.issue(x); continue
            ec = self.earliest(x)
            while fill:
                f = fill[0]; ef = self.earliest(f)
                if ef > max(ec, self.t): break
                if f.cls == x.cls == "ds" and ef + 16 > ec + 2: break
                if f.cls == x.cls == "mfma" and ef + 4 * f.passes > ec + 2: break
                t_before = self.t
                self.issue(fill.pop(0))
                if self.t > max(ec, t_before) + lead: break
            self.issue(x)
        return fill
    def weave(self, crit, items, period=None, slack=2):
        items = [[Ins(f) if isinstance(f, str) else f for f in it] for it in items]
        last_item = self.t
        def icost(it):
            c = 0
            for f in it:
                if f.cls == "mfma": c = max(c + 4, 12 if f.mn.startswith("v_smfmac") else 8)
                else: c += self.cost(f)
            return c
        def put():
            nonlocal last_item
            it = items.pop(0)
            for f in it: self.issue(f)
            last_item = self.t
        for c in crit:
            if isinstance(c, tuple):
                if c[0] == "call": c[1](); continue
                if c[0] == "gap":
                    target = self.t + c[1]
                    while items and self.earliest(items[0][0]) + icost(items[0]) <= target + slack: put()
                    self.t = max(self.t, target)
                    continue
                if c[0] == "atomic":
                    for y in c[1]: self.issue(Ins(y))
                    continue
                raise ValueError(c)
            x = Ins(c)
            while items:
                ec = self.earliest(x)
                it = items[0]; ef = self.earliest(it[0])
                fits = ef + icost(it) <= ec + slack
                if fits and it[0].cls == "mfma" and x.cls == "mfma": fits = ef + 4 * it[0].passes <= ec + slack
                due = period is not None and ef <= self.t + slack and self.t - last_item >= period
                if fits or due: put()
                else: break
                if due and not fits: break
            self.issue(x)
        return items
    def drain(self, items):
        for it in items:
            if isinstance(it, (list, tuple)):
                for f in it: self.issue(Ins(f) if isinstance(f, str) else f)
            else: self.issue(Ins(it) if isinstance(it, str) else it)
```

```python
import struct
from asmlib2 import *
from common import *
import common, sys as _sys
if 'hot' in _sys.argv: MEM_SLOT = 0

MEMIMG, SEXM, SEXX, OIMG, WVL = 0, 9216, 10240, 14336, 16384
PART_BYTES = 48 * 8192
SCALE_LOG2E = 0.08838834764831845 * 1.4426950408889634

S_WS, S_MEM, S_W = 4, 8, 12
S_DBG = 16
S_H, S_WV, S_STEP = 18, 19, 20
S_MEMR, S_MEMW, S_KX, S_VX, S_KM, S_VM = 21, 22, 23, 24, 25, 26
S_TO, S_T0, S_T1, S_T2 = 27, 28, 29, 30
S_C = 31
S_NLT8 = 32
S_M8 = 34
S_PS = 36
S_PL, S_ISW2 = 41, 42
S_W1024, S_W256 = 43, 44
S_HASTASK = 45
S_PTR = 46
S_EXMS = 58
S_D8, S_L8, S_MEMR8, S_TAG = 64, 65, 66, 67
S_ONES, S_W4 = 68, 70
S_MEMR2 = 57
S_C2 = 62
S_TCH, S_TMASK = 98, 100
S_RDY, S_CHF = 96, 97
S_PUB = 94
FUSED = [False]
TOUCH = [2]
S_TO2 = 71
S_TS = 60
S_ST = 72

V_L16, V_IDX = 0, 1
V_SQA, V_SQB, V_SKA, V_SKB = 2, 4, 6, 8
V_KX, V_VX = 10, 18
V_WV, V_MP, V_PS, V_SRX, V_SRM, V_OR = 26, 27, 28, 29, 30, 31

def frag(f): return ar(8 * f, 8) if f < 32 else vr(80 + 8 * (f - 32), 8)
def fragb(f): return ("a", 8 * f) if f < 32 else ("v", 80 + 8 * (f - 32))
def frag_sub(f, off, n):
    k, b = fragb(f)
    return f"{k}[{b+off}:{b+off+n-1}]" if n > 1 else f"{k}{b+off}"
def F_QA(kb): return kb
def F_QB(kb): return 9 + kb
def F_KA(kb): return 18 + kb
F_KB0 = 27
VRES = [6, 7, 0, 1]
VSTR = [2, 3, 4, 5, 8]
def F_VS(tb, slot): return 28 + slot * 2 + tb
def F_WO(j, kb): return 36 + j * 2 + kb

PROF = [False]
RT = [False]
TAGALL = [False]
def stamp(p, k, on):
    if PROF[0] and on: p.I(f"{'s_memrealtime' if RT[0] else 's_memtime'} s[{S_ST+2*k}:{S_ST+2*k+1}]")

def lane_consts(p):
    I = p.I
    I("v_lshrrev_b32 v32, 6, v0", "v_and_b32 v33, 63, v0", f"v_readfirstlane_b32 s{S_WV}, v32")
    I("v_and_b32 v34, 15, v33", "v_lshrrev_b32 v35, 4, v33")
    I("v_and_b32 v36, 7, v33")
    I("v_bfe_u32 v37, v33, 3, 1")
    I(f"v_lshlrev_b32 v{V_L16}, 4, v33")
    I("v_lshrrev_b32 v38, 2, v34", "v_lshlrev_b32 v38, 1, v38", "v_and_b32 v39, 1, v34", "v_or_b32 v38, v38, v39", "v_bfe_u32 v39, v34, 1, 1")
    I("v_mov_b32 v40, 0x44444444", "v_mov_b32 v41, 0xeeeeeeee", "v_cmp_eq_u32 vcc, 0, v39", f"v_cndmask_b32 v{V_IDX}, v41, v40, vcc")

def setup_chain(p, local):
    I = p.I
    sc_st = "" if local else " sc1"
    I(f"s_lshl_b32 s{S_W1024}, s{S_WV}, 10", f"s_lshl_b32 s{S_W256}, s{S_WV}, 8")
    I(f"s_lshl_b32 s{S_T0}, s{S_WV}, 11", f"s_add_u32 s{S_T0}, s{S_T0}, {WVL}", f"v_add_u32 v{V_WV}, s{S_T0}, v{V_L16}")
    I(f"v_mul_u32_u24 v{V_MP}, 1152, v38", f"v_lshl_add_u32 v{V_MP}, v35, 5, v{V_MP}", f"v_lshl_add_u32 v{V_MP}, v39, 4, v{V_MP}",
      f"s_lshl_b32 s{S_T0}, s{S_WV}, 7", f"v_add_u32 v{V_MP}, s{S_T0}, v{V_MP}")
    I(f"v_lshlrev_b32 v{V_PS}, 13, v35", f"v_lshl_add_u32 v{V_PS}, v37, 12, v{V_PS}", f"v_lshl_add_u32 v{V_PS}, v36, 4, v{V_PS}")
    I("v_lshlrev_b32 v40, 7, v35", "v_lshl_add_u32 v40, v36, 4, v40", f"v_lshl_add_u32 v{V_SRX}, v37, 9, v40", f"v_add_u32 v{V_SRX}, {SEXX}, v{V_SRX}")
    I("v_lshrrev_b32 v40, 1, v40", f"v_add_u32 v{V_SRM}, {SEXM}, v40")
    I("v_lshl_add_u32 v40, v35, 1, v39", "v_xor_b32 v40, v40, v38", "v_lshlrev_b32 v40, 4, v40", "v_lshl_add_u32 v40, v38, 8, v40", f"v_add_u32 v{V_OR}, {OIMG}, v40")
    for src, ra, rb in ((36, V_SQA, V_SQB), (38, V_SKA, V_SKB)):
        I("v_lshlrev_b32 v40, 1, v35", f"v_sub_u32 v40, v{src}, v40", "v_mov_b32 v41, 0", "v_mov_b32 v42, 0x3f80", "v_mov_b32 v43, 0x3f800000")
        I("v_cmp_eq_u32 vcc, 0, v40", "v_cndmask_b32 v41, v41, v42, vcc", "v_cmp_eq_u32 vcc, 1, v40", f"v_cndmask_b32 v{ra}, v41, v43, vcc")
        I(f"v_mov_b32 v{ra+1}, 0", f"v_mov_b32 v{rb}, 0", f"v_mov_b32 v{rb+1}, v{ra}")
    I(f"s_mov_b32 s{S_NLT8}, 0x00ff00ff", f"s_mov_b32 s{S_NLT8+1}, 0x00ff00ff")
    I(f"s_mov_b32 s{S_ONES}, 0x3f803f80", f"s_mov_b32 s{S_ONES+1}, 0x3f803f80", f"s_lshl_b32 s{S_W4}, s{S_WV}, 2")
    cbits = struct.unpack("<I", struct.pack("<f", SCALE_LOG2E))[0]
    I(f"s_mov_b32 s{S_C}, 0x{cbits:08x}", f"s_mov_b32 s{S_C2}, 0x{cbits:08x}", f"s_mov_b32 s{S_C2+1}, 0x{cbits:08x}")
    p.C("init fills: PART zero (12288 B per WG), MEM sentinel (18432 B per WG)")
    I(f"s_mul_i32 s{S_T0}, s{S_H}, 12288", f"s_add_u32 s{S_T1}, s{S_T0}, s{S_W1024}", f"s_add_u32 s{S_T1}, s{S_T1}, {PART_OFF}")
    I(f"s_mul_i32 s{S_T0}, s{S_H}, 18432", f"s_add_u32 s{S_T2}, s{S_T0}, s{S_W1024}", f"s_add_u32 s{S_T2}, s{S_T2}, {MEM_OFF}")
    I("v_mov_b64 v[44:45], 0", "v_mov_b64 v[46:47], 0", "v_mov_b64 v[48:49], -1", "v_mov_b64 v[50:51], -1")
    for rnd in range(5):
        if rnd < 3: I(f"buffer_store_dwordx4 v[44:47], v{V_L16}, s[{S_WS}:{S_WS+3}], s{S_T1} offen{sc_st}")
        if rnd == 4:
            lab = p.newlabel("fill_skip")
            I(f"s_cmp_ge_u32 s{S_WV}, 2", f"s_cbranch_scc1 {lab}")
        I(f"buffer_store_dwordx4 v[48:51], v{V_L16}, s[{S_WS}:{S_WS+3}], s{S_T2} offen{sc_st}")
        if rnd == 4: p.L(lab)
        else: I(f"s_add_u32 s{S_T1}, s{S_T1}, 4096", f"s_add_u32 s{S_T2}, s{S_T2}, 4096")
    I("s_waitcnt vmcnt(0)", "s_barrier")
    lab = p.newlabel("no_m0")
    I(f"s_cmp_lg_u32 s{S_H}, 0", f"s_cbranch_scc1 {lab}")
    I(f"buffer_load_dwordx4 v[44:47], v{V_MP}, s[{S_MEM}:{S_MEM+3}], 0 offen", f"buffer_load_dwordx4 v[48:51], v{V_MP}, s[{S_MEM}:{S_MEM+3}], 0 offen offset:512")
    I(f"s_lshl_b32 s{S_T0}, s{S_WV}, 7", f"v_subrev_u32 v52, s{S_T0}, v{V_MP}", f"buffer_load_dwordx4 v[56:59], v52, s[{S_MEM}:{S_MEM+3}], 0 offen offset:1024")
    I(f"s_add_u32 s{S_T0}, s{S_W1024}, {MEM_OFF}", f"s_mov_b32 s{S_T1}, {MEM_OFF + 8192}", "s_waitcnt vmcnt(0)")
    I(f"buffer_store_dwordx4 v[44:47], v{V_L16}, s[{S_WS}:{S_WS+3}], s{S_T0} offen{sc_st}")
    I(f"s_add_u32 s{S_T0}, s{S_T0}, 4096", f"buffer_store_dwordx4 v[48:51], v{V_L16}, s[{S_WS}:{S_WS+3}], s{S_T0} offen{sc_st}")
    I(f"buffer_store_dwordx4 v[56:59], v{V_L16}, s[{S_WS}:{S_WS+3}], s{S_T1} offen{sc_st}")
    I("s_waitcnt vmcnt(0)")
    p.L(lab)
    I("s_barrier")
    lab = p.newlabel("init_arr")
    I(f"s_cmp_lg_u32 s{S_WV}, 0", f"s_cbranch_scc1 {lab}")
    I("s_mov_b64 exec, 1", "v_mov_b32 v44, 1", "v_mov_b32 v45, 40", f"global_atomic_add v45, v44, s[{S_DBG}:{S_DBG+1}]", "s_mov_b64 exec, -1")
    p.L(lab)

def preload(p):
    I = p.I
    p.C("weight preload")
    I("v_lshrrev_b32 v40, 4, v33", "v_lshlrev_b32 v41, 13, v40")
    I("v_and_b32 v42, 1, v40", "v_lshlrev_b32 v42, 1, v42", "v_xor_b32 v42, v42, v34", "v_lshlrev_b32 v42, 4, v42")
    for jj in range(4):
        I(f"v_xor_b32 v43, {64*jj}, v42", "v_add_u32 v43, v43, v41", f"v_add_u32 v{52+jj}, {jj*32768}, v43")
    I("v_lshrrev_b32 v40, 3, v33", "v_and_b32 v41, 7, v33", "v_lshrrev_b32 v42, 5, v33")
    for jj in range(4):
        I(f"v_add_u32 v43, {8*jj}, v40", "v_mul_u32_u24 v43, 1152, v43")
        I(f"v_add_u32 v44, {2*(jj&1)}, v42", "v_lshlrev_b32 v44, 1, v44", "v_xor_b32 v44, v44, v41", f"v_lshl_add_u32 v{56+jj}, v44, 4, v43")
    I("v_lshrrev_b32 v40, 2, v34", "v_and_b32 v41, 3, v34")
    I("v_lshrrev_b32 v42, 1, v35", "v_lshlrev_b32 v42, 4, v42", "v_and_b32 v43, 1, v35", "v_lshl_add_u32 v42, v43, 2, v42")
    I("v_and_b32 v44, 1, v40", "v_add_u32 v42, v42, v44", "v_lshrrev_b32 v45, 1, v40", "v_lshl_add_u32 v42, v45, 3, v42")
    I("v_lshl_add_u32 v46, v45, 1, v43")
    I("v_lshl_or_b32 v47, v46, 1, v44")
    I(f"s_lshl_b32 s{S_T0}, s{S_WV}, 1", f"v_xor_b32 v47, s{S_T0}, v47", "v_lshlrev_b32 v47, 5, v47", "v_lshl_add_u32 v47, v41, 3, v47", "v_lshl_add_u32 v60, v42, 8, v47", "v_xor_b32 v61, 32, v60")
    I(f"v_xor_b32 v46, s{S_WV}, v46", "v_lshlrev_b32 v46, 5, v46", "v_lshl_add_u32 v46, v41, 3, v46", "v_lshl_add_u32 v62, v42, 7, v46")
    chunks = [("q", kb) for kb in range(9)] + [("o", cc) for cc in range(9)] + [("k", kb) for kb in range(9)] + [("v", kb) for kb in VRES + VSTR]
    slot = lambda c: (c + 4) % 10
    ptr = {"q": S_PTR + 2, "k": S_PTR + 4, "v": S_PTR + 6, "o": S_PTR + 8}
    cur = [None]
    nissued = [0]
    def issue(c):
        kind, x = chunks[c]
        if cur[0] != kind:
            cur[0] = kind
            I(f"s_mov_b32 s{S_W}, s{ptr[kind]}", f"s_and_b32 s{S_W+1}, s{ptr[kind]+1}, 0xffff", f"s_mov_b32 s{S_W+2}, {576*8192 if kind != 'o' else 4096*1152}", f"s_mov_b32 s{S_W+3}, 0x20000")
        if kind != "o":
            I(f"s_lshl_b32 s{S_T0}, s{S_WV}, 17", f"s_lshl_b32 s{S_T1}, s{S_H}, 8", f"s_add_u32 s{S_T0}, s{S_T0}, s{S_T1}", f"s_add_u32 s{S_T0}, s{S_T0}, {x*524288}")
            vb = 52
        else:
            I(f"s_lshl_b32 s{S_T0}, s{S_H}, 7", f"s_lshl_b32 s{S_T1}, s{S_WV}, 5", f"s_add_u32 s{S_T0}, s{S_T0}, s{S_T1}", f"s_mul_i32 s{S_T0}, s{S_T0}, 1152", f"s_add_u32 s{S_T0}, s{S_T0}, {x*128}")
            vb = 56
        I(f"s_lshl_b32 s{S_T1}, s{S_WV}, 12", f"s_add_u32 s{S_T1}, s{S_T1}, {slot(c)*16384}")
        for jj in range(4):
            I(f"s_add_u32 m0, s{S_T1}, {jj*1024}")
            I(f"buffer_load_dwordx4 v{vb+jj}, s[{S_W}:{S_W+3}], s{S_T0} offen lds")
        nissued[0] = c + 1
    def tr(dst_of_t, areg, rowb, row0):
        for t in range(4):
            I(f"ds_read_b64_tr_b16 {dst_of_t(t)}, v{areg} offset:{(row0+32*(t//2)+2*(t%2))*rowb}")
    for c in range(10): issue(c)
    for c in range(36):
        kind, x = chunks[c]
        I(f"s_waitcnt vmcnt({4*(nissued[0]-1-c)})", "s_barrier")
        sb = slot(c) * 16384
        I(f"v_add_u32 v40, {sb}, v60", f"v_add_u32 v41, {sb}, v61", f"v_add_u32 v42, {sb}, v62")
        if kind == "q":
            tr(lambda t: frag_sub(F_QA(x), 2*t, 2), 40, 256, 0); tr(lambda t: frag_sub(F_QB(x), 2*t, 2), 41, 256, 0)
        elif kind == "k":
            fb = F_KB0 if x == 0 else F_VS((x-1) % 2, (x-1) // 2)
            tr(lambda t: frag_sub(F_KA(x), 2*t, 2), 40, 256, 0); tr(lambda t: frag_sub(fb, 2*t, 2), 41, 256, 0)
        elif kind == "o":
            for kb in range(2): tr(lambda t: frag_sub(F_WO(x, kb), 2*t, 2), 42, 128, 64*kb)
        else:
            for tb in range(2): tr(lambda t: f"v[{64+8*tb+2*t}:{65+8*tb+2*t}]", 40 + tb, 256, 0)
        I("s_waitcnt lgkmcnt(0)", "s_barrier")
        if kind == "v":
            pos = c - 27
            I(f"s_lshl_b32 s{S_T0}, s{S_WV}, 11", f"s_add_u32 s{S_T0}, s{S_T0}, {sb}", f"v_add_u32 v40, s{S_T0}, v{V_L16}")
            for sub in range(2):
                for half in range(2):
                    src = frag_sub(F_VS(sub, pos), 4*half, 4) if pos < 4 else f"v[{64+8*sub+4*half}:{67+8*sub+4*half}]"
                    I(f"ds_write_b128 v40, {src} offset:{sub*8192+half*1024}")
            I("s_waitcnt lgkmcnt(0)")
            if pos < 4:
                for tb in range(2):
                    k, b = fragb(F_VS(tb, pos))
                    for r in range(8):
                        I(f"v_accvgpr_write_b32 a{b+r}, v{64+8*tb+r}" if k == "a" else f"v_mov_b32 v{b+r}, v{64+8*tb+r}")
        if c + 10 < 36: issue(c + 10)
    I("s_barrier")

def chain_state(p):
    I = p.I
    lab = p.newlabel("initw"); lab2 = p.newlabel("initd")
    I(f"s_mov_b32 s{S_TO}, 0", "v_mov_b32 v45, 40")
    p.L(lab)
    I(f"global_load_dword v44, v45, s[{S_DBG}:{S_DBG+1}] sc1", "s_waitcnt vmcnt(0)", f"v_readfirstlane_b32 s{S_T0}, v44", f"s_add_u32 s{S_TO}, s{S_TO}, 1")
    I(f"s_cmp_ge_u32 s{S_T0}, 32", f"s_cbranch_scc1 {lab2}", f"s_cmp_lt_u32 s{S_TO}, 0x40000", f"s_cbranch_scc1 {lab}")
    p.L(lab2)
    I(f"s_mov_b32 s{S_STEP}, 0", f"s_mov_b32 s{S_TO}, 0", f"s_mov_b32 s{S_TO2}, 0", f"s_add_u32 s{S_MEMR}, s{S_W1024}, {MEM_OFF}")
    I(f"s_lshl_b32 s{S_T0}, s{S_WV}, 5", f"s_add_u32 s{S_T0}, s{S_T0}, s{S_H}")
    I(f"s_cmp_lt_u32 s{S_WV}, 3", f"s_cselect_b32 s{S_HASTASK}, 1, 0")
    I(f"s_lshl_b32 s{S_PL}, s{S_T0}, 12", f"s_add_u32 s{S_PL}, s{S_PL}, {PART_OFF}")
    I(f"s_mul_i32 s{S_MEMW}, s{S_WV}, 3072")
    I(f"s_lshr_b32 s{S_T1}, s{S_H}, 3", f"s_lshl_b32 s{S_T1}, s{S_T1}, 8", f"s_add_u32 s{S_MEMW}, s{S_MEMW}, s{S_T1}")
    I(f"s_bfe_u32 s{S_T1}, s{S_H}, 0x20001", f"s_lshl_b32 s{S_T1}, s{S_T1}, 6", f"s_add_u32 s{S_MEMW}, s{S_MEMW}, s{S_T1}")
    I(f"s_and_b32 s{S_T1}, s{S_H}, 1", f"s_lshl_b32 s{S_T1}, s{S_T1}, 5", f"s_add_u32 s{S_MEMW}, s{S_MEMW}, s{S_T1}", f"s_add_u32 s{S_MEMW}, s{S_MEMW}, {MEM_OFF + MEM_SLOT}")
    I(f"s_mov_b32 s{S_EXMS+1}, 0x00000055", f"s_mov_b32 s{S_EXMS}, 0x00550055")
    I(f"s_cmp_eq_u32 s{S_WV}, 2", f"s_cselect_b32 s{S_ISW2}, 1, 0")
    I(f"s_mul_i32 s{S_D8}, s{S_WV}, 768", f"s_sub_u32 s{S_D8}, 8192, s{S_D8}", f"s_add_u32 s{S_L8}, s{S_W256}, {MEMIMG + 8192}")
    I(f"s_mov_b32 s{S_M8}, 0xffff", f"s_mov_b32 s{S_M8+1}, 0")
    I(f"s_mul_i32 s{S_TCH}, s{S_H}, 384", f"s_add_u32 s{S_TCH}, s{S_TCH}, {MEM_OFF}")
    I(f"s_cmp_lt_u32 s{S_H}, 24", f"s_cselect_b32 s{S_TMASK}, 7, 0", f"s_cmp_eq_u32 s{S_WV}, 0", f"s_cselect_b32 s{S_TMASK}, s{S_TMASK}, 0", f"s_mov_b32 s{S_TMASK+1}, 0")
    I(f"s_lshl_b32 s{S_T0}, s{S_H}, 13", f"s_lshl_b32 s{S_T1}, s{S_WV}, 11", f"s_add_u32 s{S_T0}, s{S_T0}, s{S_T1}", f"s_add_u32 s{S_KX}, s{S_T0}, {KX_OFF}", f"s_add_u32 s{S_VX}, s{S_T0}, {VX_OFF}")
    I(f"s_lshr_b32 s{S_T1}, s{S_T0}, 1", f"s_add_u32 s{S_KM}, s{S_T1}, {KM_OFF}", f"s_lshr_b32 s{S_T1}, s{S_T0}, 2", f"s_add_u32 s{S_VM}, s{S_T1}, {VM_OFF}")
    I(f"s_lshl_b32 s{S_T0}, s{S_WV}, 15", f"s_lshl_b32 s{S_T1}, s{S_H}, 7", f"s_add_u32 s{S_T0}, s{S_T0}, s{S_T1}", f"s_add_u32 s{S_PS}, s{S_T0}, {PART_OFF}")
    for e in range(1, 3): I(f"s_add_u32 s{S_PS+e}, s{S_PS}, {e*131072}")
    I(f"s_add_u32 s{S_MEMR8}, s{S_MEMR}, s{S_D8}", f"s_add_u32 s{S_MEMR2}, s{S_MEMR}, 4096")
    if FUSED[0]:
        I(f"s_mov_b32 s{S_RDY}, 0", f"s_lshl_b32 s{S_CHF}, s{S_H}, 2", f"s_add_u32 s{S_CHF}, s{S_CHF}, {CHFLG}")
        I(f"s_cmp_eq_u32 s{S_WV}, 0", f"s_cselect_b32 s{S_PUB}, 1, 0", f"s_mov_b32 s{S_PUB+1}, 0")
        wait_init(p, S_DBG, tmpv=(52, 53))
        need_segment(p, 0)
    for kt in range(2):
        I(f"buffer_load_dwordx4 v[{V_KX+4*kt}:{V_KX+4*kt+3}], v{V_L16}, s[{S_WS}:{S_WS+3}], s{S_KX} offen offset:{kt*1024} sc1")
    I(f"s_add_u32 s{S_KX}, s{S_KX}, {32*8192}", "s_waitcnt vmcnt(0)")

SM = lambda d, a, b: f"v_smfmac_f32_16x16x64_bf16 v[{d}:{d+3}], v[{a}:{a+3}], {b}, v{V_IDX}"

class Stream:
    def __init__(self, p): self.p = p; self.q = []
    def add(self, *instrs): self.q.append(list(instrs))
    def emit(self, n=1):
        for _ in range(n):
            if not self.q: return
            for x in self.q.pop(0): self.p.I(x)
    def drain(self): self.emit(len(self.q))


VPERIOD = [24]
LEAD = [0]
HOLD = [0]
BAR4 = [True]
def delay(p, clks):
    n = clks // 4
    while n > 0:
        k = min(n, 16); p.raw(f"    s_nop {k-1}"); n -= k
DELAY0 = [0]
DELAY1 = [0]
DELAY2 = [0]
def need_segment(p, add):
    I = p.I
    lab = p.newlabel("rdy"); ok = p.newlabel("rdy_ok")
    I(f"s_add_u32 s{S_T1}, s{S_STEP}, {add}", f"s_min_u32 s{S_T1}, s{S_T1}, 63", f"s_cmp_lt_u32 s{S_T1}, s{S_RDY}", f"s_cbranch_scc1 {ok}")
    I(f"s_mov_b32 s{S_T2}, 0", f"v_lshrrev_b32 v52, 2, v{V_L16}", f"s_mov_b32 s{S_T0}, {KVCNT}")
    p.L(lab)
    I(f"buffer_load_dword v53, v52, s[{S_WS}:{S_WS+3}], s{S_T0} offen sc1", "s_waitcnt vmcnt(0)")
    I("v_cmp_ne_u32 vcc, 32, v53", f"s_ff1_i32_b64 s{S_RDY}, vcc", f"s_cmp_eq_u32 s{S_RDY}, -1", f"s_cselect_b32 s{S_RDY}, 64, s{S_RDY}")
    I(f"s_cmp_lt_u32 s{S_T1}, s{S_RDY}", f"s_cbranch_scc1 {ok}", "s_sleep 8", f"s_add_u32 s{S_T2}, s{S_T2}, 1", f"s_cmp_lt_u32 s{S_T2}, 0x80000", f"s_cbranch_scc1 {lab}")
    I(f"s_mov_b32 s{S_RDY}, 64")
    p.L(ok)

def step(p, tag, local, first):
    I = p.I
    sc_st = "" if local else " sc1"
    WS = f"s[{S_WS}:{S_WS+3}]"
    MEM = f"s[{S_MEM}:{S_MEM+3}]"
    QA, QB, KA, KB = 32, 36, 40, 44
    A0, A1, A2 = 56, 60, 48
    VA, VB = 48, 52
    W1, W2 = 64, 72
    wv_state = {"b": 0}
    def wread(u, buf):
        out = []
        blk = u // 8
        while wv_state["b"] < blk:
            out.append(f"v_add_u32 v{V_WV}, 0x10000, v{V_WV}"); wv_state["b"] += 1
        off = (u % 8) * 8192
        out.append(f"ds_read_b128 v[{buf}:{buf+3}], v{V_WV} offset:{off}")
        out.append(f"ds_read_b128 v[{buf+4}:{buf+7}], v{V_WV} offset:{off+1024}")
        return out
    aread = lambda kb, a: f"ds_read_b128 v[{a}:{a+3}], v{V_L16} offset:{MEMIMG+kb*1024}"
    pk = lambda d, a_, b_: f"v_pk_add_f32 v[{d}:{d+1}], v[{a_}:{a_+1}], v[{b_}:{b_+1}]"
    ad = lambda d, a_, b_: f"v_add_f32 v{d}, v{a_}, v{b_}"
    cv = lambda d, a_, b_: f"v_cvt_pk_bf16_f32 v{d}, v{a_}, v{b_}"
    p.C("==== step : acquire mem")
    stamp(p, 0, first)
    if FUSED[0]: need_segment(p, 1)
    I(f"v_add_u32 v55, s{S_W1024}, v{V_L16}", f"v_add_u32 v54, s{S_L8}, v{V_L16}")
    I("v_mov_b64 v[48:49], 0", "v_mov_b64 v[50:51], 0")
    for r in range(0, 16, 2): I(f"v_mov_b64 v[{QA+r}:{QA+r+1}], 0")
    I(*wread(0, W1)); I(*wread(1, W2))
    delay(p, DELAY2[0])
    loop = p.newlabel("mem_poll"); done = p.newlabel("mem_done")
    p.L(loop)
    a, b, c = 56, 60, 48
    I(f"buffer_load_dwordx4 v[{a}:{a+3}], v{V_L16}, {WS}, s{S_MEMR} offen sc1")
    I(f"buffer_load_dwordx4 v[{b}:{b+3}], v{V_L16}, {WS}, s{S_MEMR2} offen sc1")
    I(f"s_mov_b64 exec, s[{S_M8}:{S_M8+1}]")
    I(f"buffer_load_dwordx4 v[{c}:{c+3}], v{V_L16}, {WS}, s{S_MEMR8} offen sc1")
    I("s_mov_b64 exec, -1")
    I(f"s_add_u32 s{S_TO}, s{S_TO}, 1")
    I("s_waitcnt vmcnt(2)")
    I(f"ds_write_b128 v55, v[{a}:{a+3}] offset:{MEMIMG}")
    I(f"v_max3_u32 v52, v{a}, v{a+1}, v{a+2}")
    I("s_waitcnt vmcnt(1)")
    I(f"ds_write_b128 v55, v[{b}:{b+3}] offset:{MEMIMG+4096}")
    I(f"v_max3_u32 v52, v52, v{a+3}, v{b}", f"v_max3_u32 v52, v52, v{b+1}, v{b+2}")
    I("s_waitcnt vmcnt(0)")
    I(f"s_mov_b64 exec, s[{S_M8}:{S_M8+1}]", f"ds_write_b128 v54, v[{c}:{c+3}]", "s_mov_b64 exec, -1")
    I(f"v_max3_u32 v52, v52, v{b+3}, v{c}", f"v_max3_u32 v52, v52, v{c+1}, v{c+2}", f"v_max_u32 v52, v52, v{c+3}")
    I("v_cmp_eq_u32 vcc, -1, v52", f"s_cbranch_vccz {done}", f"s_cmp_lt_u32 s{S_TO}, 0x200000", f"s_cbranch_scc1 {loop}")
    p.L(done)
    stamp(p, 1, first)
    I("s_waitcnt lgkmcnt(0)")
    I("s_barrier")
    p.reset_q()
    stamp(p, 2, first)
    p.C("QK")
    W = Weaver(p)
    Ab = [A0, A1, A2]
    wb = [W1, W2]
    W.raw(aread(0, Ab[0])); W.raw(aread(1, Ab[1]))
    if TOUCH[0]:
        W.raw(f"s_add_u32 s{S_T0}, s{S_STEP}, {TOUCH[0]}"); W.raw(f"s_mul_i32 s{S_T0}, s{S_T0}, {MEM_SLOT}"); W.raw(f"s_add_u32 s{S_T0}, s{S_T0}, s{S_TCH}")
        W.raw(f"v_lshlrev_b32 v52, 3, v{V_L16}")
        W.raw(f"s_mov_b64 exec, s[{S_TMASK}:{S_TMASK+1}]")
        p.raw(f"    buffer_load_dword v{V_VX}, v52, {WS}, s{S_T0} offen")
        W.raw("s_mov_b64 exec, -1")
    for tb in range(2):
        W.raw(f"buffer_load_dwordx4 v[{V_VX+4*tb}:{V_VX+4*tb+3}], v{V_L16}, {WS}, s{S_VX} offen offset:{tb*1024} sc1")
    if FUSED[0]:
        W.raw(f"v_mov_b32 v52, s{S_STEP}"); W.raw(f"v_mov_b32 v53, 0"); W.raw(f"s_mov_b64 exec, s[{S_PUB}:{S_PUB+1}]")
        p.raw(f"    buffer_store_dword v52, v53, {WS}, s{S_CHF} offen sc1")
        W.raw("s_mov_b64 exec, -1")
    W.raw(f"s_add_u32 s{S_TAG}, s{S_STEP}, 1"); W.raw(f"s_add_u32 s{S_MEMR}, s{S_MEMR}, {MEM_SLOT}"); W.raw(f"s_add_u32 s{S_MEMR2}, s{S_MEMR}, 4096"); W.raw(f"s_add_u32 s{S_MEMR8}, s{S_MEMR}, s{S_D8}")
    for kb in range(9):
        a = Ab[kb % 3]
        kbsrc = frag(F_KB0) if kb == 0 else f"v[{wb[(kb-1)%2]}:{wb[(kb-1)%2]+7}]"
        X = []
        if kb + 2 < 9: X.append([aread(kb + 2, Ab[(kb + 2) % 3])])
        if kb >= 2:
            w = wread(kb, wb[(kb - 2) % 2])
            if len(w) == 3: X.append([w[0], w[1]]); X.append([w[2]])
            else: X.append([w[0]]); X.append([w[1]])
        ms = [SM(QA, a, frag(F_QA(kb))), SM(QB, a, frag(F_QB(kb))), SM(KA, a, frag(F_KA(kb))), SM(KB, a, kbsrc)]
        for i, m in enumerate(ms):
            W.raw(m)
            if i < 3 and X:
                for y in X.pop(0): W.raw(y)
        assert not X
    stamp(p, 3, first)
    p.C("post QK, V phase as filler")
    items = []
    items.append([f"v_mov_b64 v[{VA}:{VA+1}], 0", wread(9, wb[1])[0]])
    items.append([f"v_mov_b64 v[{VA+2}:{VA+3}], 0", f"ds_read_b128 v[{wb[1]+4}:{wb[1]+7}], v{V_WV} offset:{8192+1024}"])
    items.append([f"v_mov_b64 v[{VB}:{VB+1}], 0"]); items.append([f"v_mov_b64 v[{VB+2}:{VB+3}], 0"])
    vorder = VRES + VSTR
    vA = [A0, A1]
    ubuf = {8: wb[0], 9: wb[1]}
    for pos, kb in enumerate(vorder):
        a = vA[pos % 2]
        for tb in range(2):
            it = []
            if pos < 4:
                it.append(SM(VA + 4 * tb, a, frag(F_VS(tb, pos))))
            else:
                u = 8 + (pos - 4) * 2 + tb
                b = ubuf[u]
                it.append(SM(VA + 4 * tb, a, f"v[{b}:{b+7}]"))
                if u + 2 < 18:
                    it += wread(u + 2, b); ubuf[u + 2] = b
            if tb == 1 and pos + 2 < 9: it.append(aread(vorder[pos + 2], a))
            items.append(it)
    crit = []
    C = crit.append
    C(ad(32, 32, 34)); C(ad(33, 33, 35)); C(ad(36, 36, 38)); C(ad(37, 37, 39)); C(cv(34, 32, 33)); C(cv(35, 36, 37))
    C(ad(40, 40, 42)); C(ad(41, 41, 43)); C(ad(44, 44, 46)); C(ad(45, 45, 47)); C(cv(42, 40, 41)); C(cv(43, 44, 45))
    C(f"v_mfma_f32_16x16x16_bf16 v[36:39], v[34:35], v[{V_SQA}:{V_SQA+1}], 0")
    C(f"v_mfma_f32_16x16x16_bf16 v[32:35], v[34:35], v[{V_SQB}:{V_SQB+1}], 0")
    C(f"v_mfma_f32_16x16x16_bf16 v[44:47], v[42:43], v[{V_SKA}:{V_SKA+1}], 0")
    C(f"v_mfma_f32_16x16x16_bf16 v[40:43], v[42:43], v[{V_SKB}:{V_SKB+1}], 0")
    C(cv(36, 36, 37)); C(cv(37, 38, 39)); C(cv(38, 32, 33)); C(cv(39, 34, 35))
    C(f"v_mfma_f32_16x16x32_bf16 v[32:35], v[{V_KX}:{V_KX+3}], v[36:39], 0")
    C(cv(44, 44, 45)); C(cv(45, 46, 47))
    C(cv(46, 40, 41)); C(cv(47, 42, 43))
    C(f"v_mfma_f32_16x16x32_bf16 v[40:43], v[{V_KX+4}:{V_KX+7}], v[36:39], 0")
    C(f"buffer_store_dwordx4 v[44:47], v{V_L16}, {WS}, s{S_KM} offen sc1")
    C(f"v_mfma_f32_16x16x32_bf16 v[44:47], v[44:47], v[36:39], 0")
    C(f"v_add_u32 v36, s{S_W1024}, v{V_SRX}"); C(f"v_add_u32 v37, s{S_W256}, v{V_SRM}")
    C(("atomic", [f"s_mov_b64 exec, s[{S_NLT8}:{S_NLT8+1}]", "ds_write_b128 v36, v[32:35]", "ds_write_b128 v36, v[40:43] offset:512", "ds_write_b64 v37, v[44:45]", "s_mov_b64 exec, -1"]))
    C(("call", lambda: stamp(p, 4, first)))
    C(("gap", 60))
    C(("call", p.waitw)); C("s_barrier")
    C(("call", lambda: stamp(p, 5, first)))
    for w in range(4): C(f"ds_read_b128 v[{32+4*w}:{35+4*w}], v{V_SRX} offset:{w*1024}")
    for w in range(4): C(f"ds_read_b64 v[{V_KX+2*w}:{V_KX+2*w+1}], v{V_SRM} offset:{w*256}")
    for r in range(4): C(ad(32 + r, 32 + r, 36 + r))
    for r in range(4): C(ad(40 + r, 40 + r, 44 + r))
    for r in range(4): C(ad(32 + r, 32 + r, 40 + r))
    k = V_KX
    C("v_max3_f32 v38, v32, v33, v34")
    C(ad(k, k, k + 2)); C(ad(k + 1, k + 1, k + 3)); C(ad(k + 4, k + 4, k + 6)); C(ad(k + 5, k + 5, k + 7)); C(ad(36, k, k + 4)); C(ad(37, k + 1, k + 5))
    for kt in range(2):
        C(f"buffer_load_dwordx4 v[{V_KX+4*kt}:{V_KX+4*kt+3}], v{V_L16}, {WS}, s{S_KX} offen offset:{kt*1024} sc1")
    C("v_max3_f32 v38, v38, v35, v36"); C("v_max_f32 v38, v38, v37")
    C("v_max_f32_dpp v38, v38, v38 row_ror:8 row_mask:0xf bank_mask:0xf")
    C("v_mov_b32 v39, v38"); C("v_permlane16_swap_b32 v38, v39"); C("v_max_f32 v38, v38, v39")
    C("v_mov_b32 v39, v38"); C("v_permlane32_swap_b32 v38, v39"); C("v_max_f32 v38, v38, v39")
    C(f"v_mul_f32 v38, s{S_C}, v38")
    for r in range(6): C(f"v_fma_f32 v{32+r}, v{32+r}, s{S_C}, -v38")
    for r in range(6): C(f"v_exp_f32 v{32+r}, v{32+r}")
    C(cv(40, 32, 33)); C(cv(41, 34, 35)); C(cv(44, 36, 37))
    C("v_mov_b32_dpp v42, v40 row_ror:8 row_mask:0xf bank_mask:0xf"); C("v_mov_b32_dpp v43, v41 row_ror:8 row_mask:0xf bank_mask:0xf")
    C("v_mov_b32 v45, 0"); C("v_mov_b32 v46, 0"); C("v_mov_b32 v47, v44")
    for r in range(0, 4, 2): C(f"v_mov_b64 v[{36+r}:{37+r}], s[{S_ONES}:{S_ONES+1}]")
    C(("call", lambda: stamp(p, 6, first)))
    OA_, OB_, LL = 32, 52, 56
    rest = W.weave(crit, items, period=VPERIOD[0])
    W.raw(f"v_mfma_f32_16x16x32_bf16 v[{OA_}:{OA_+3}], v[{V_VX}:{V_VX+3}], v[40:43], 0")
    W.drain(rest)
    assert wv_state["b"] == 2
    W.raw(f"v_subrev_u32 v{V_WV}, 0x20000, v{V_WV}")
    W.raw(ad(VA, VA, VA + 2)); W.raw(ad(VA + 1, VA + 1, VA + 3)); W.raw(ad(VB, VB, VB + 2)); W.raw(ad(VB + 1, VB + 1, VB + 3))
    W.raw(cv(50, VA, VA + 1)); W.raw(cv(51, VB, VB + 1))
    stamp(p, 7, first)
    p.C("PV")
    crit = [f"v_mfma_f32_16x16x32_bf16 v[{LL}:{LL+3}], v[36:39], v[40:43], 0",
            f"v_mfma_f32_16x16x32_bf16 v[{OB_}:{OB_+3}], v[{V_VX+4}:{V_VX+7}], v[40:43], 0",
            f"v_mfma_f32_16x16x16_bf16 v[{OA_}:{OA_+3}], v[50:51], v[44:45], v[{OA_}:{OA_+3}]",
            f"v_mfma_f32_16x16x16_bf16 v[{LL}:{LL+3}], v[36:37], v[44:45], v[{LL}:{LL+3}]",
            f"v_mfma_f32_16x16x16_bf16 v[{OB_}:{OB_+3}], v[50:51], v[46:47], v[{OB_}:{OB_+3}]",
            f"v_rcp_f32 v{LL}, v{LL}"]
    for b in (OA_, OB_):
        for r in range(4): crit.append(f"v_mul_f32 v{b+r}, v{b+r}, v{LL}")
    crit += [cv(OA_, OA_, OA_ + 1), cv(OA_ + 1, OA_ + 2, OA_ + 3), cv(OB_, OB_, OB_ + 1), cv(OB_ + 1, OB_ + 2, OB_ + 3)]
    fill = [f"v_lshrrev_b32 v60, 1, v{V_L16}", f"buffer_store_dwordx2 v[50:51], v60, {WS}, s{S_VM} offen sc1",
            f"v_bfe_u32 v61, v{V_L16}, 4, 3", f"v_bfe_u32 v62, v{V_L16}, 9, 1", f"v_add_u32 v62, s{S_W4}, v62", "v_xor_b32 v62, v62, v61",
            "v_lshlrev_b32 v62, 4, v62", "v_lshl_add_u32 v62, v61, 8, v62", f"v_bfe_u32 v61, v{V_L16}, 8, 1", "v_lshl_add_u32 v62, v61, 3, v62", f"v_add_u32 v62, {OIMG}, v62", "v_xor_b32 v63, 32, v62"]
    fill += [f"v_mov_b64 v[{b}:{b+1}], 0" for b in (64, 66)] + [f"v_mov_b32 v71, s{S_TAG}"]
    rest = W.weave(crit, [[f] for f in fill]); W.drain(rest)
    W.raw(f"s_mov_b64 exec, s[{S_NLT8}:{S_NLT8+1}]"); W.raw(f"ds_write_b64 v62, v[{OA_}:{OA_+1}]"); W.raw(f"ds_write_b64 v63, v[{OB_}:{OB_+1}]"); W.raw("s_mov_b64 exec, -1")
    stamp(p, 8, first)
    OACC = [32 + 4 * j for j in range(9)]
    OAr = 72; G = 68
    zs = [b for b in range(34, 64, 2) if b not in (52,)]
    for b in zs:
        if b == 62: continue
        I(f"v_mov_b64 v[{b}:{b+1}], 0")
    p.waitw()
    I("s_barrier")
    I(f"ds_read_b128 v[{OAr}:{OAr+3}], v{V_OR}", "v_mov_b64 v[32:33], 0", "v_mov_b64 v[52:53], 0", f"ds_read_b128 v[{OAr+4}:{OAr+7}], v{V_OR} offset:128", "v_mov_b64 v[62:63], 0")
    stamp(p, 9, first)
    p.C("O-proj")
    W = Weaver(p)
    osm = lambda j, kb: SM(OACC[j], OAr + 4 * kb, frag(F_WO(j, kb)))
    seq = []
    for j in range(9): seq += [(j, 0), (j, 1)]
    seq = [(0, 0), (1, 0), (0, 1), (1, 1)] + [(j, kb) for j in range(2, 9) for kb in range(2)]
    def fin(j):
        b = OACC[j]
        ops = [ad(b, b, b + 2), ad(b + 1, b + 1, b + 3), cv(G + j % 3, b, b + 1)]
        if j % 3 == 2: ops.append(f"buffer_store_dwordx4 v[{G}:{G+3}], v{V_PS}, {WS}, s{S_PS + j // 3} offen{sc_st}")
        return ops
    done_at = {}
    pend = []
    for idx, (j, kb) in enumerate(seq):
        W.raw(osm(j, kb))
        if kb == 1: done_at[j] = idx
        for jj in list(done_at):
            if idx >= done_at[jj] + 2:
                pend += fin(jj); del done_at[jj]
        n = 2 if len(pend) > 2 else 1
        for _ in range(n):
            if pend: W.raw(pend.pop(0))
    for jj in sorted(done_at): pend += fin(jj)
    for o in pend: W.raw(o)
    stamp(p, 10, first)
    p.C("reduce")
    skip = p.newlabel("notask")
    I(f"s_cmp_eq_u32 s{S_HASTASK}, 0", f"s_cbranch_scc1 {skip}")
    RS = 64
    I(f"v_bfe_u32 v69, v{V_L16}, 4, 2", f"v_bfe_u32 v70, v{V_L16}, 6, 2", "v_lshlrev_b32 v71, 4, v69", "v_mov_b32 v68, 0x3f80", "v_lshlrev_b32 v68, v71, v68",
      "v_cmp_gt_u32 vcc, 2, v69", "v_cndmask_b32 v71, 0, v68, vcc")
    for r in range(3): I(f"v_cmp_eq_u32 vcc, {r}, v70", f"v_cndmask_b32 v{RS+r}, 0, v71, vcc")
    I(f"v_mov_b32 v{RS+3}, 0")
    I(f"v_bfe_u32 v68, v{V_L16}, 8, 2", "v_lshlrev_b32 v68, 10, v68", f"v_bfe_u32 v69, v{V_L16}, 4, 3", "v_lshl_add_u32 v68, v69, 1, v68")
    if DELAY1[0]:
        nd = p.newlabel("nodelay")
        I(f"s_cmp_eq_u32 s{S_ISW2}, 0", f"s_cbranch_scc1 {nd}")
        delay(p, DELAY1[0])
        p.L(nd)
    delay(p, DELAY0[0])
    retry = p.newlabel("p_retry"); ok = p.newlabel("p_ok")
    p.L(retry)
    for i in range(4):
        I(f"buffer_load_dwordx4 v[{32+4*i}:{35+4*i}], v{V_L16}, {WS}, s{S_PL} offen offset:{i*1024} sc1")
    I(f"s_add_u32 s{S_TO2}, s{S_TO2}, 1")
    D = 72
    for i in range(4):
        I(f"s_waitcnt vmcnt({3-i})")
        c = "0" if i == 0 else f"v[{D}:{D+3}]"
        I(f"v_mfma_f32_16x16x32_bf16 v[{D}:{D+3}], v[{RS}:{RS+3}], v[{32+4*i}:{35+4*i}], {c}")
        if i == 2: I("v_min3_u32 v76, v35, v39, v43")
        if i == 3: I("v_min_u32 v76, v76, v47")
    I(f"v_cmp_ne_u32 vcc, s{S_TAG}, v76", f"s_cbranch_vccz {ok}", f"s_cmp_lt_u32 s{S_TO2}, 0x200000", f"s_cbranch_scc1 {retry}")
    p.L(ok)
    stamp(p, 11, first)
    p.fence()
    I(f"v_add_f32_dpp v{D}, v{D}, v{D} row_ror:8 row_mask:0xf bank_mask:0xf", f"v_add_f32_dpp v{D+1}, v{D+1}, v{D+1} row_ror:8 row_mask:0xf bank_mask:0xf")
    I(f"v_mov_b32_dpp v76, v{D} quad_perm:[1,0,3,2] row_mask:0xf bank_mask:0xf", f"v_mov_b32_dpp v77, v{D+1} quad_perm:[1,0,3,2] row_mask:0xf bank_mask:0xf")
    I(f"v_cvt_pk_bf16_f32 v76, v{D}, v76", f"v_cvt_pk_bf16_f32 v77, v{D+1}, v77")
    I(f"s_mov_b64 exec, s[{S_EXMS}:{S_EXMS+1}]", f"buffer_store_dword v76, v68, {WS}, s{S_MEMW} offen{sc_st}", f"buffer_store_dword v77, v68, {WS}, s{S_MEMW} offen offset:16{sc_st}", "s_mov_b64 exec, -1")
    p.L(skip)
    I(f"s_add_u32 s{S_MEMW}, s{S_MEMW}, {MEM_SLOT}", f"s_add_u32 s{S_VX}, s{S_VX}, {32*8192}", f"s_add_u32 s{S_KM}, s{S_KM}, {32*4096}", f"s_add_u32 s{S_VM}, s{S_VM}, {32*2048}", f"s_add_u32 s{S_KX}, s{S_KX}, {32*8192}", f"s_add_u32 s{S_STEP}, s{S_STEP}, 1")
    if BAR4[0]: I("s_barrier")
    stamp(p, 12, first)
    p.fence()
    p.reset_q()

def chain_loop(p, local, nsteps=64):
    I = p.I
    p.reset_q()
    loop = p.newlabel("chain_loop")
    p.fence()
    p.L(loop)
    for par in range(2): step(p, tag=(par + 1) & 1, local=local, first=(par == 0))
    I(f"s_cmp_lt_u32 s{S_STEP}, {nsteps}", f"s_cbranch_scc1 {loop}")
    I("s_waitcnt vmcnt(0)", "s_barrier")
    I("v_mov_b32 v52, 64", "v_mov_b32 v53, 0", f"s_mov_b64 exec, s[{S_PUB}:{S_PUB+1}]", f"buffer_store_dword v52, v53, s[{S_WS}:{S_WS+3}], s{S_CHF} offen sc1", "s_mov_b64 exec, -1")

def gen_chain(p, local=True, nsteps=64, stamps=False):
    I = p.I
    setup_chain(p, local)
    preload(p)
    chain_state(p)
    p.reset_q()
    if stamps: I(f"s_memtime s[{S_TS}:{S_TS+1}]", "s_waitcnt lgkmcnt(0)")
    loop = p.newlabel("chain_loop")
    p.fence()
    p.L(loop)
    for par in range(2): step(p, tag=(par + 1) & 1, local=local, first=(par == 0))
    I(f"s_cmp_lt_u32 s{S_STEP}, {nsteps}", f"s_cbranch_scc1 {loop}")
    if stamps:
        I("s_waitcnt vmcnt(0) lgkmcnt(0)", f"s_memtime s[{S_TS+2}:{S_TS+3}]", "s_waitcnt lgkmcnt(0)")
        I(f"s_sub_u32 s{S_TS}, s{S_TS+2}, s{S_TS}", f"v_mov_b32 v44, s{S_TS}")
        lab = p.newlabel("st")
        I(f"s_cmp_lg_u32 s{S_WV}, 0", f"s_cbranch_scc1 {lab}")
        I(f"s_lshl_b32 s{S_T0}, s{S_H}, 2", f"s_add_u32 s{S_T0}, s{S_T0}, 128", f"v_mov_b32 v45, s{S_T0}", "s_mov_b64 exec, 1", f"global_store_dword v45, v44, s[{S_DBG}:{S_DBG+1}]", "s_mov_b64 exec, -1")
        p.L(lab)
    if PROF[0]:
        I("s_waitcnt lgkmcnt(0)")
        I(f"s_lshl_b32 s{S_T0}, s{S_H}, 2", f"s_add_u32 s{S_T0}, s{S_T0}, s{S_WV}", f"s_lshl_b32 s{S_T0}, s{S_T0}, 6", f"s_add_u32 s{S_T0}, s{S_T0}, {0x9000000}")
        I("s_mov_b64 exec, 1", "v_mov_b32 v45, 0")
        for k in range(13):
            I(f"v_mov_b32 v44, s{S_ST+2*k}", f"buffer_store_dword v44, v45, s[{S_WS}:{S_WS+3}], s{S_T0} offen offset:{4*k}")
        I(f"v_mov_b32 v44, s{S_TO}", f"buffer_store_dword v44, v45, s[{S_WS}:{S_WS+3}], s{S_T0} offen offset:52")
        I(f"v_mov_b32 v44, s{S_TO2}", f"buffer_store_dword v44, v45, s[{S_WS}:{S_WS+3}], s{S_T0} offen offset:56")
        I("s_mov_b64 exec, -1")

def standalone(local=True, stamps=True, nsteps=64):
    name = "chain_kernel"
    p = AProg()
    p.raw(f"; @launch kernel={name} grid=(256,1,1) block=(256,1,1) lds=163840")
    p.raw('.amdgcn_target "amdgcn-amd-amdhsa--gfx950"\n.text')
    p.raw(f".globl {name}\n.p2align 8\n.type {name},@function\n{name}:")
    I = p.I
    I(f"s_cmp_ge_u32 s2, 256", "s_cbranch_scc1 L_end")
    I(f"s_load_dwordx2 s[{S_PTR}:{S_PTR+1}], s[0:1], {KARG['A_mem0']}")
    I(f"s_load_dwordx4 s[{S_PTR+2}:{S_PTR+5}], s[0:1], {KARG['A_Wq']}")
    I(f"s_load_dwordx2 s[{S_PTR+6}:{S_PTR+7}], s[0:1], {KARG['A_Wv']}")
    I(f"s_load_dwordx2 s[{S_PTR+8}:{S_PTR+9}], s[0:1], {KARG['A_Wo']}")
    I(f"s_load_dwordx2 s[{S_DBG}:{S_DBG+1}], s[0:1], {KARG['dbg']}")
    I(f"s_load_dwordx2 s[{S_PTR+10}:{S_PTR+11}], s[0:1], {KARG['ws']}")
    I("s_waitcnt lgkmcnt(0)")
    I(f"s_mov_b32 s{S_WS}, s{S_PTR+10}", f"s_and_b32 s{S_WS+1}, s{S_PTR+11}, 0xffff", f"s_mov_b32 s{S_WS+2}, {WS_BYTES}", f"s_mov_b32 s{S_WS+3}, 0x20000")
    I(f"s_mov_b32 s{S_MEM}, s{S_PTR}", f"s_and_b32 s{S_MEM+1}, s{S_PTR+1}, 0xffff", f"s_mov_b32 s{S_MEM+2}, 9216", f"s_mov_b32 s{S_MEM+3}, 0x20000")
    lane_consts(p)
    I(f"s_getreg_b32 s{S_T0}, hwreg(HW_REG_XCC_ID, 0, 4)")
    I(f"s_cmp_lg_u32 s{S_T0}, 0", "s_cbranch_scc1 L_end")
    lab = p.newlabel("role")
    I(f"s_cmp_lg_u32 s{S_WV}, 0", f"s_cbranch_scc1 {lab}")
    I("s_mov_b64 exec, 1", "v_mov_b32 v44, 1", "v_mov_b32 v45, 0", f"global_atomic_add v46, v45, v44, s[{S_DBG}:{S_DBG+1}] sc0", "s_waitcnt vmcnt(0)", "v_mov_b32 v45, 0", "ds_write_b32 v45, v46", "s_waitcnt lgkmcnt(0)", "s_mov_b64 exec, -1")
    p.L(lab)
    I("s_barrier", "v_mov_b32 v45, 0", "ds_read_b32 v46, v45", "s_waitcnt lgkmcnt(0)", f"v_readfirstlane_b32 s{S_H}, v46", "s_barrier")
    I(f"s_cmp_ge_u32 s{S_H}, 32", "s_cbranch_scc1 L_end")
    gen_chain(p, local=local, stamps=stamps, nsteps=nsteps)
    p.L("L_end")
    I("s_endpgm")
    p.raw(kd(name))
    return p.render()

if __name__ == "__main__":
    import sys
    for a in sys.argv[2:]:
        if a == "prof": PROF[0] = True
        if a == "rt": RT[0] = True
        if a.startswith("hold="): HOLD[0] = int(a[5:])
        if a.startswith("lead="): LEAD[0] = int(a[5:])
        if a.startswith("lat="): Weaver.LDS_LAT = int(a[4:])
        if a.startswith("vp="): VPERIOD[0] = int(a[3:])
        if a == "nobar4": BAR4[0] = False
        if a.startswith("touch="): TOUCH[0] = int(a[6:])
        if a.startswith("d0="): DELAY0[0] = int(a[3:])
        if a.startswith("d1="): DELAY1[0] = int(a[3:])
        if a.startswith("d2="): DELAY2[0] = int(a[3:])
    open(sys.argv[1], "w").write(standalone())
```

```python
KX_OFF   = 0x0000000
VX_OFF   = 0x1000000
QX_OFF   = 0x2000000
KM_OFF   = 0x3000000
VM_OFF   = 0x3810000
MEM_OFF  = 0x3C80000
PART_OFF = 0x3D00000
OX_OFF   = 0x4000000
WS_BYTES = 0x10000000
MEM_SLOT = 9216
KARG = dict(A_x=0, A_mem0=8, A_Wq=16, A_Wk=24, A_Wv=32, A_Wo=40, A_seg=48, B_x=56, B_wq=64, B_wk=72, B_wv=80, B_wo=88, out=96, dbg=104, ws=112)
HEADER = """; Kernarg layout: 15 pointers (see the starter file)
"""
def kd(name, vgpr=512, accum=256, sgpr=102):
    return f""".section .rodata,"a"
.p2align 6
.amdhsa_kernel {name}
  .amdhsa_next_free_vgpr {vgpr}
  .amdhsa_next_free_sgpr {sgpr}
  .amdhsa_accum_offset {accum}
  .amdhsa_group_segment_fixed_size 0
  .amdhsa_kernarg_size 120
  .amdhsa_user_sgpr_count 2
  .amdhsa_user_sgpr_kernarg_segment_ptr 1
  .amdhsa_system_sgpr_workgroup_id_x 1
.end_amdhsa_kernel
"""
FLAG_OFF = 0x3E00000
KVCNT, QCNT, ACNT, OCNT = FLAG_OFF, FLAG_OFF + 256, FLAG_OFF + 512, FLAG_OFF + 768
QB_OFF  = 0x5000000
OB_OFF  = 0x5300000
KB_OFF  = 0x5600000
VB_OFF  = 0x5640000
def load_ptrs(p, names, base):
    for i, n in enumerate(names): p.I(f"s_load_dwordx2 s[{base+2*i}:{base+2*i+1}], s[0:1], {KARG[n]}")
def srd(p, dst, ptr, nbytes):
    p.I(f"s_mov_b32 s{dst}, s{ptr}", f"s_and_b32 s{dst+1}, s{ptr+1}, 0xffff", f"s_mov_b32 s{dst+2}, {nbytes}", f"s_mov_b32 s{dst+3}, 0x20000")
def kernel_head(p, name):
    p.raw(f".globl {name}\n.p2align 8\n.type {name},@function\n{name}:")

CHFLG  = FLAG_OFF + 1024
BQCNT  = FLAG_OFF + 1152
BKVCNT = FLAG_OFF + 1156
ATICK  = FLAG_OFF + 1280
BACNT  = FLAG_OFF + 1536
DBG_INIT = 52
DBG_WORK = 48
S_ABORT = 99
def poll_ge(p, srd_ws, off_sreg_or_imm, target, tmpv=(30, 31), tmps=28, imm=False):
    I = p.I
    lab = p.newlabel("pw"); done = p.newlabel("pd")
    a, b = tmpv
    I(f"s_cmp_lg_u32 s{S_ABORT}, 0", f"s_cbranch_scc1 {done}")
    if imm: I(f"s_mov_b32 s{tmps+1}, {off_sreg_or_imm}")
    else: I(f"s_mov_b32 s{tmps+1}, s{off_sreg_or_imm}")
    I(f"s_mov_b32 s{tmps+2}, 0", f"v_mov_b32 v{a}, 0")
    p.L(lab)
    I(f"buffer_load_dword v{b}, v{a}, s[{srd_ws}:{srd_ws+3}], s{tmps+1} offen sc1", "s_waitcnt vmcnt(0)", f"v_readfirstlane_b32 s{tmps}, v{b}")
    I(f"s_cmp_ge_u32 s{tmps}, {target}", f"s_cbranch_scc1 {done}", "s_sleep 4", f"s_add_u32 s{tmps+2}, s{tmps+2}, 1", f"s_cmp_lt_u32 s{tmps+2}, 0x100000", f"s_cbranch_scc1 {lab}", f"s_mov_b32 s{S_ABORT}, 1")
    p.L(done)
def wait_init(p, dbgpair, tmpv=(30, 31), tmps=28):
    I = p.I
    lab = p.newlabel("iw"); done = p.newlabel("id")
    a, b = tmpv
    I(f"s_mov_b32 s{tmps+2}, 0", f"v_mov_b32 v{a}, {DBG_INIT}")
    p.L(lab)
    I(f"global_load_dword v{b}, v{a}, s[{dbgpair}:{dbgpair+1}] sc1", "s_waitcnt vmcnt(0)", f"v_readfirstlane_b32 s{tmps}, v{b}")
    I(f"s_cmp_lg_u32 s{tmps}, 0", f"s_cbranch_scc1 {done}", "s_sleep 2", f"s_add_u32 s{tmps+2}, s{tmps+2}, 1", f"s_cmp_lt_u32 s{tmps+2}, 0x100000", f"s_cbranch_scc1 {lab}", f"s_mov_b32 s{S_ABORT}, 1")
    p.L(done)
def signal_add(p, srd_ws, off_sreg, tmpv=(30, 31)):
    a, b = tmpv
    p.I("s_mov_b64 exec, 1", f"v_mov_b32 v{a}, 1", f"v_mov_b32 v{b}, 0", f"buffer_atomic_add v{a}, v{b}, s[{srd_ws}:{srd_ws+3}], s{off_sreg} offen", "s_mov_b64 exec, -1")
```

```python
from asmlib2 import *
from common import *

G_WS   = 4
G_X    = 8
G_W    = 12
G_O    = 40
G_WV   = 19
G_T0, G_T1, G_T2, G_T3 = 28, 29, 30, 31
G_SEG, G_SEGSTEP, G_NSEG, G_IT = 20, 21, 22, 23
G_WCOL = 24
G_WSTR = 25
G_OB   = 26
G_FLG  = 27
G_XB   = 32
G_PREV = 33
G_BUF  = 34
G_DBG  = 16

XB0 = 0; XBUF = 36864

def wfrag(NT, t, ks):
    f = t * 18 + ks
    r = 4 * f
    return ("a", r) if r < 256 else ("v", 256 + 0 + (r - 256) - 256 + 128)

def frag4(idx):
    return f"a[{4*idx}:{4*idx+3}]" if idx < 64 else f"v[{128+4*(idx-64)}:{128+4*(idx-64)+3}]"
def frag4_sub(idx, off, n):
    k, b = ("a", 4*idx) if idx < 64 else ("v", 128 + 4*(idx-64))
    return f"{k}[{b+off}:{b+off+n-1}]"

def lane_common(p):
    I = p.I
    I("v_lshrrev_b32 v32, 6, v0", "v_and_b32 v33, 63, v0", f"v_readfirstlane_b32 s{G_WV}, v32")
    I("v_and_b32 v34, 15, v33", "v_lshrrev_b32 v35, 4, v33", "v_lshlrev_b32 v0, 4, v33")

def hswz(p, dst, src, tmp):
    p.I(f"v_lshrrev_b32 v{tmp}, 1, v{src}", f"v_xor_b32 v{dst}, v{src}, v{tmp}", f"v_and_b32 v{dst}, 1, v{dst}", f"v_lshl_or_b32 v{dst}, v{dst}, 1, v{tmp}")

def preload_w(p, NT):
    I = p.I
    I("v_lshrrev_b32 v40, 5, v33", "v_and_b32 v41, 31, v33")
    I(f"s_and_b32 s{G_T0}, s{G_WV}, 1", f"s_lshl_b32 s{G_T0}, s{G_T0}, 2")
    for jj in range(4):
        I(f"v_add_u32 v42, {2*jj}, v40", "v_and_b32 v43, 3, v42", f"v_or_b32 v43, s{G_T0}, v43", "v_lshlrev_b32 v43, 1, v43", "v_xor_b32 v43, v43, v41",
          "v_lshlrev_b32 v43, 4, v43", f"v_mul_lo_u32 v42, v42, s{G_WSTR}", f"v_add_u32 v{52+jj}, v42, v43")
    I("v_lshrrev_b32 v40, 2, v34", "v_and_b32 v41, 3, v34", "v_and_b32 v42, 1, v35", "v_lshl_or_b32 v42, v42, 2, v40")
    I("v_lshl_add_u32 v43, v35, 3, v40", "v_lshlrev_b32 v43, 9, v43", "v_lshl_add_u32 v43, v41, 3, v43")
    I(f"s_mul_i32 s{G_T0}, s{G_WV}, {NT}")
    for t in range(NT):
        I(f"s_add_u32 s{G_T1}, s{G_T0}, {t}", f"v_xor_b32 v44, s{G_T1}, v42", f"v_lshl_add_u32 v{56+t}, v44, 5, v43")
    NSL = 10
    issued = [0]
    def issue(c):
        I(f"s_lshl_b32 s{G_T0}, s{G_WV}, 3", f"s_add_u32 s{G_T0}, s{G_T0}, {32*c}", f"s_mul_i32 s{G_T0}, s{G_T0}, s{G_WSTR}", f"s_add_u32 s{G_T0}, s{G_T0}, s{G_WCOL}")
        I(f"s_lshl_b32 s{G_T1}, s{G_WV}, 12", f"s_add_u32 s{G_T1}, s{G_T1}, {(c % NSL) * 16384}")
        for jj in range(4):
            I(f"s_add_u32 m0, s{G_T1}, {jj*1024}", f"buffer_load_dwordx4 v{52+jj}, s[{G_W}:{G_W+3}], s{G_T0} offen lds")
        issued[0] = c + 1
    for c in range(NSL): issue(c)
    for c in range(18):
        I(f"s_waitcnt vmcnt({4*(issued[0]-1-c)})", "s_barrier")
        sb = (c % NSL) * 16384
        for t in range(NT):
            I(f"v_add_u32 v44, {sb}, v{56+t}")
            I(f"ds_read_b64_tr_b16 {frag4_sub(t*18+c, 0, 2)}, v44", f"ds_read_b64_tr_b16 {frag4_sub(t*18+c, 2, 2)}, v44 offset:2048")
        I("s_waitcnt lgkmcnt(0)", "s_barrier")
        if c + NSL < 18: issue(c + NSL)

def x_addrs(p):
    I = p.I
    I("v_lshrrev_b32 v40, 2, v33", "v_lshrrev_b32 v41, 4, v33")
    hswz(p, 42, 41, 43)
    I("v_and_b32 v43, 3, v33", "v_xor_b32 v42, v42, v43", "v_mul_u32_u24 v1, 1152, v40", "v_lshl_add_u32 v1, v42, 4, v1")
    I("v_lshrrev_b32 v41, 2, v34")
    hswz(p, 42, 41, 43)
    I("v_xor_b32 v42, v42, v35", "v_lshlrev_b32 v2, 6, v34", "v_lshl_add_u32 v2, v42, 4, v2")

def x_dma(p, segreg, bufbase_sreg, xsc=''):
    I = p.I
    I(f"s_mul_i32 s{G_T0}, s{segreg}, {32*1152}", f"s_lshr_b32 s{G_T1}, s{G_WV}, 1", f"s_mul_i32 s{G_T1}, s{G_T1}, {16*1152}", f"s_add_u32 s{G_T0}, s{G_T0}, s{G_T1}",
      f"s_and_b32 s{G_T1}, s{G_WV}, 1", f"s_mul_i32 s{G_T1}, s{G_T1}, 576", f"s_add_u32 s{G_T0}, s{G_T0}, s{G_T1}")
    I(f"s_mul_i32 s{G_T1}, s{G_WV}, 9216", f"s_add_u32 s{G_T1}, s{G_T1}, s{bufbase_sreg}")
    for j in range(9):
        I(f"s_add_u32 m0, s{G_T1}, {j*1024}")
        I(f"s_add_u32 s{G_T2}, s{G_T0}, {j*64}", f"buffer_load_dwordx4 v1, s[{G_X}:{G_X+3}], s{G_T2} offen{xsc} lds")

def gemm_main(p, NT, epi, sc=" sc1", prewait=None, xsc="", endsig=None):
    I = p.I
    ACC = 64
    NS = {"kq": NT, "v": NT, "row": 2 * NT}[epi]
    I(f"s_mov_b32 s{G_IT}, 0", f"s_mov_b32 s{G_BUF}, {XB0}", f"s_mov_b32 s{G_PREV}, -1")
    if prewait: prewait(p, G_SEG)
    x_dma(p, G_SEG, G_BUF, xsc)
    I("s_waitcnt vmcnt(0)")
    loop = p.newlabel("g_loop");
    p.fence(); p.reset_q()
    p.L(loop)
    I(f"s_waitcnt vmcnt({NS})", "s_barrier")
    if epi != "row":
        nosig = p.newlabel("nosig")
        I(f"s_cmp_lt_u32 s{G_IT}, 2", f"s_cbranch_scc1 {nosig}", f"s_cmp_lg_u32 s{G_WV}, 0", f"s_cbranch_scc1 {nosig}")
        I(f"s_lshl_b32 s{G_T0}, s{G_SEGSTEP}, 1", f"s_sub_u32 s{G_T0}, s{G_SEG}, s{G_T0}", f"s_lshl_b32 s{G_T0}, s{G_T0}, 2", f"s_add_u32 s{G_T0}, s{G_T0}, s{G_FLG}")
        I("s_mov_b64 exec, 1", "v_mov_b32 v48, 1", "v_mov_b32 v49, 0", f"buffer_atomic_add v48, v49, s[{G_WS}:{G_WS+3}], s{G_T0} offen", "s_mov_b64 exec, -1")
        p.L(nosig)
    nopf = p.newlabel("nopf")
    I(f"s_add_u32 s{G_T3}, s{G_IT}, 1", f"s_cmp_ge_u32 s{G_T3}, s{G_NSEG}", f"s_cbranch_scc1 {nopf}")
    I(f"s_add_u32 s{G_XB}, s{G_SEG}, s{G_SEGSTEP}", f"s_sub_u32 s{G_T3}, {XB0 + XBUF}, s{G_BUF}", f"s_add_u32 s{G_T3}, s{G_T3}, {XB0}")
    if prewait:
        I(f"s_mov_b32 s39, s{G_T3}")
        prewait(p, G_XB)
        I(f"s_mov_b32 s{G_T3}, s39")
    x_dma(p, G_XB, G_T3, xsc)
    p.L(nopf)
    p.reset_q()
    I(f"v_add_u32 v3, s{G_BUF}, v2")
    def xr(ks, st):
        return [f"ds_read_b128 v[{32+8*st}:{35+8*st}], v3 offset:{ks*1024}", f"ds_read_b128 v[{36+8*st}:{39+8*st}], v3 offset:{(18+ks)*1024}"]
    for st in range(2):
        for y in xr(st, st): I(y)
    for ks in range(18):
        st = ks % 2
        k = 0
        pend = xr(ks + 2, st) if ks + 2 < 18 else []
        for t in range(NT):
            for tt in range(2):
                d = ACC + 4 * (t * 2 + tt)
                c = "0" if ks == 0 else f"v[{d}:{d+3}]"
                x = f"v[{32+8*st+4*tt}:{35+8*st+4*tt}]"
                w = frag4(t * 18 + ks)
                if epi == "v": I(f"v_mfma_f32_16x16x32_bf16 v[{d}:{d+3}], {x}, {w}, {c}")
                else: I(f"v_mfma_f32_16x16x32_bf16 v[{d}:{d+3}], {w}, {x}, {c}")
        for y in pend: I(y)
    cv = lambda d, a, b: f"v_cvt_pk_bf16_f32 v{d}, v{a}, v{b}"
    if epi == "kq":
        I(f"s_mul_i32 s{G_T0}, s{G_SEG}, {32*8192}", f"s_add_u32 s{G_T0}, s{G_T0}, s{G_OB}")
        for pp in range(NT // 2):
            for tt in range(2):
                a = ACC + 4 * ((2 * pp) * 2 + tt); b = ACC + 4 * ((2 * pp + 1) * 2 + tt); o = 48 + 4 * ((pp * 2 + tt) % 2)
                I(cv(o, a, a + 1), cv(o + 1, a + 2, a + 3), cv(o + 2, b, b + 1), cv(o + 3, b + 2, b + 3))
                I(f"buffer_store_dwordx4 v[{o}:{o+3}], v0, s[{G_WS}:{G_WS+3}], s{G_T0} offen offset:{pp*2048+tt*1024}{sc}")
    elif epi == "v":
        I(f"s_mul_i32 s{G_T0}, s{G_SEG}, {32*8192}", f"s_add_u32 s{G_T0}, s{G_T0}, s{G_OB}")
        for t in range(NT):
            a = ACC + 4 * (t * 2); b = ACC + 4 * (t * 2 + 1); o = 48 + 4 * (t % 2)
            I(cv(o, a, a + 1), cv(o + 1, a + 2, a + 3), cv(o + 2, b, b + 1), cv(o + 3, b + 2, b + 3))
            I(f"buffer_store_dwordx4 v[{o}:{o+3}], v0, s[{G_WS}:{G_WS+3}], s{G_T0} offen offset:{t*1024}{sc}")
    else:
        for tt in range(2):
            I(f"s_lshl_b32 s{G_T0}, s{G_SEG}, 5", f"s_add_u32 s{G_T0}, s{G_T0}, {16*tt}", f"s_mul_i32 s{G_T0}, s{G_T0}, s35", f"s_add_u32 s{G_T0}, s{G_T0}, s{G_OB}")
            for t in range(NT):
                a = ACC + 4 * (t * 2 + tt); o = 48 + 2 * ((tt * NT + t) % 4)
                I(cv(o, a, a + 1), cv(o + 1, a + 2, a + 3))
                I(f"buffer_store_dwordx2 v[{o}:{o+1}], v4, s[{G_O}:{G_O+3}], s{G_T0} offen offset:{t*32}{sc}")
    I(f"s_add_u32 s{G_SEG}, s{G_SEG}, s{G_SEGSTEP}", f"s_sub_u32 s{G_T0}, {XB0 + XBUF}, s{G_BUF}", f"s_add_u32 s{G_BUF}, s{G_T0}, {XB0}", f"s_add_u32 s{G_IT}, s{G_IT}, 1")
    p.fence(); p.reset_q()
    I(f"s_cmp_lt_u32 s{G_IT}, s{G_NSEG}", f"s_cbranch_scc1 {loop}")
    I("s_waitcnt vmcnt(0)", "s_barrier")
    if epi != "row":
        nosig = p.newlabel("nosig")
        I(f"s_cmp_lg_u32 s{G_WV}, 0", f"s_cbranch_scc1 {nosig}")
        I("s_mov_b64 exec, 1", "v_mov_b32 v48, 1", "v_mov_b32 v49, 0")
        for back in (1, 2):
            I(f"s_mul_i32 s{G_T0}, s{G_SEGSTEP}, {back}", f"s_sub_u32 s{G_T0}, s{G_SEG}, s{G_T0}", f"s_lshl_b32 s{G_T0}, s{G_T0}, 2", f"s_add_u32 s{G_T0}, s{G_T0}, s{G_FLG}")
            I(f"buffer_atomic_add v48, v49, s[{G_WS}:{G_WS+3}], s{G_T0} offen")
        I("s_mov_b64 exec, -1")
        p.L(nosig)

    if endsig is not None:
        nosig = p.newlabel("nosig")
        I(f"s_cmp_lg_u32 s{G_WV}, 0", f"s_cbranch_scc1 {nosig}", f"s_mov_b32 s{G_T0}, {endsig}")
        signal_add(p, G_WS, G_T0, tmpv=(48, 49))
        p.L(nosig)
```

```python
import sys
from gemm576 import *
P = 46
def k_init(p):
    kernel_head(p, "init_kernel")
    I = p.I
    I("s_cmp_ge_u32 s2, 1", "s_cbranch_scc1 L_init_end")
    load_ptrs(p, ["ws"], P); I("s_waitcnt lgkmcnt(0)"); srd(p, G_WS, P, WS_BYTES)
    I("v_lshlrev_b32 v1, 4, v0", "v_mov_b64 v[4:5], 0", "v_mov_b64 v[6:7], 0", f"s_mov_b32 s20, {FLAG_OFF}")
    I(f"buffer_store_dwordx4 v[4:7], v1, s[{G_WS}:{G_WS+3}], s20 offen")
    p.L("L_init_end"); I("s_endpgm")
def k_gemm(p):
    kernel_head(p, "gemm_kernel")
    I = p.I
    I("s_cmp_ge_u32 s2, 216", "s_cbranch_scc1 L_g_end")
    load_ptrs(p, ["A_x", "A_Wq", "A_Wk", "A_Wv", "B_x", "B_wq", "ws"], P)
    I("s_waitcnt lgkmcnt(0)")
    srd(p, G_WS, P + 12, WS_BYTES)
    lane_common(p)
    I("s_cmp_ge_u32 s2, 192", "s_cbranch_scc1 L_bq")
    role_gemm1(p, "s2", P, P + 2, P + 4, P + 6)
    I("s_branch L_g_end")
    p.L("L_bq")
    I("s_sub_u32 s36, s2, 192")
    role_bq(p, 36, P + 8, P + 10)
    p.L("L_g_end"); I("s_endpgm")

def role_gemm1(p, idreg, pX, pWq, pWk, pWv, mid=None):
    I = p.I
    I(f"s_mul_hi_u32 s{G_SEG}, {idreg}, {(1 << 32) // 48 + 1}", f"s_mul_i32 s{G_T0}, s{G_SEG}, 48", f"s_sub_u32 s36, {idreg}, s{G_T0}")
    I(f"s_lshr_b32 s37, s36, 4", "s_and_b32 s38, s36, 15")
    srd(p, G_X, pX, 2048 * 1152)
    I(f"s_cmp_eq_u32 s37, 0", f"s_cselect_b32 s{G_T0}, s{pWk}, s{pWv}", f"s_cselect_b32 s{G_T1}, s{pWk+1}, s{pWv+1}")
    I(f"s_cmp_eq_u32 s37, 2", f"s_cselect_b32 s{G_T0}, s{pWq}, s{G_T0}", f"s_cselect_b32 s{G_T1}, s{pWq+1}, s{G_T1}")
    srd(p, G_W, G_T0, 576 * 8192)
    I(f"s_lshl_b32 s{G_WCOL}, s38, 9", f"s_mov_b32 s{G_WSTR}, 8192", f"s_mov_b32 s{G_SEGSTEP}, 4", f"s_mov_b32 s{G_NSEG}, 16")
    I(f"s_lshr_b32 s{G_T0}, s{G_WV}, 1", f"s_lshl_b32 s{G_T1}, s38, 1", f"s_add_u32 s{G_T0}, s{G_T0}, s{G_T1}", f"s_lshl_b32 s{G_OB}, s{G_T0}, 13",
      f"s_and_b32 s{G_T0}, s{G_WV}, 1", f"s_lshl_b32 s{G_T0}, s{G_T0}, 12", f"s_add_u32 s{G_OB}, s{G_OB}, s{G_T0}")
    I(f"s_mov_b32 s{G_T1}, {VX_OFF}", f"s_cmp_eq_u32 s37, 0", f"s_cselect_b32 s{G_T0}, {KX_OFF}, s{G_T1}", f"s_cmp_eq_u32 s37, 2", f"s_cselect_b32 s{G_T0}, {QX_OFF}, s{G_T0}", f"s_add_u32 s{G_OB}, s{G_OB}, s{G_T0}")
    I(f"s_mov_b32 s{G_T1}, {KVCNT}", f"s_cmp_eq_u32 s37, 2", f"s_cselect_b32 s{G_FLG}, {QCNT}, s{G_T1}")
    preload_w(p, 4)
    x_addrs(p)
    if mid: mid(p)
    lv = p.newlabel("isv"); le = p.newlabel("g1done")
    I("s_cmp_eq_u32 s37, 1", f"s_cbranch_scc1 {lv}")
    gemm_main(p, 4, "kq")
    I(f"s_branch {le}")
    p.L(lv)
    gemm_main(p, 4, "v")
    p.L(le)

def role_bq(p, idreg, pX, pW, out_srd_ptr=None, endsig=None, mid=None):
    I = p.I
    I(f"s_mul_hi_u32 s{G_SEG}, s{idreg}, {(1 << 32) // 3 + 1}", f"s_mul_i32 s{G_T0}, s{G_SEG}, 3", f"s_sub_u32 s37, s{idreg}, s{G_T0}")
    srd(p, G_X, pX, 2048 * 1152)
    srd(p, G_W, pW, 576 * 1152)
    I(f"s_mul_i32 s{G_WCOL}, s37, 384", f"s_mov_b32 s{G_WSTR}, 1152", f"s_mov_b32 s{G_SEGSTEP}, 8", f"s_mov_b32 s{G_NSEG}, 8", "s_mov_b32 s35, 1152")
    for k in range(4): I(f"s_mov_b32 s{G_O+k}, s{G_WS+k}")
    I(f"s_mul_i32 s{G_OB}, s{G_WV}, 96", f"s_add_u32 s{G_OB}, s{G_OB}, s{G_WCOL}", f"s_add_u32 s{G_OB}, s{G_OB}, {QB_OFF}")
    preload_w(p, 3)
    x_addrs(p)
    I("v_mul_u32_u24 v4, 1152, v34", "v_lshl_add_u32 v4, v35, 3, v4")
    if mid: mid(p)
    gemm_main(p, 3, "row", endsig=endsig)

if __name__ == "__main__":
    p = AProg()
    p.raw("; @launch kernel=init_kernel grid=(1,1,1) block=(256,1,1) lds=0")
    p.raw("; @launch kernel=gemm_kernel grid=(216,1,1) block=(256,1,1) lds=163840")
    p.raw('.amdgcn_target "amdgcn-amd-amdhsa--gfx950"\n.text')
    k_init(p); k_gemm(p)
    p.raw(kd("init_kernel", vgpr=32, accum=32)); p.raw(kd("gemm_kernel"))
    open(sys.argv[1], "w").write(p.render())
```

```python
import sys
import chain3 as ch
from gemm576 import *
from test_gemm import role_gemm1, role_bq
from test_b import role_bo
from attna import *
from attnb import *
from oproja import *
NAME = "concat_heads__memory_aug_recurrent_mem_tr__grouped_kv_mqa__prompt_kernel"
HEAD = open("concat_heads__memory_aug_recurrent_mem_tr__grouped_kv_mqa__prompt.s.ref").read().split("; Override launch geometry")[0]
PT = 72
PN = ["A_x", "A_mem0", "A_Wq", "A_Wk", "A_Wv", "A_Wo", "B_x", "B_wq", "B_wk", "B_wv", "B_wo", "out"]
def ptr(n): return PT + 2 * PN.index(n)
S_ROLE = 44
N_OPROJ, N_BO0, N_BOUT = 48, 48, 24
ATTNB0 = 96

def build(opts):
    ch.FUSED[0] = True
    p = AProg(); I = p.I
    p.raw(HEAD.rstrip("\n"))
    p.raw("; Override launch geometry by editing the next line.")
    p.raw("; @launch grid=(256,1,1) block=(256,1,1) lds=163840")
    p.raw('.amdgcn_target "amdgcn-amd-amdhsa--gfx950"\n.text')
    kernel_head(p, NAME)
    S_DBG, S_WS, S_MEM, S_WV, S_H = ch.S_DBG, ch.S_WS, ch.S_MEM, ch.S_WV, ch.S_H
    I("s_cmp_ge_u32 s2, 256", "s_cbranch_scc1 L_end")
    load_ptrs(p, PN, PT)
    I(f"s_load_dwordx2 s[{S_DBG}:{S_DBG+1}], s[0:1], {KARG['dbg']}", f"s_load_dwordx2 s[46:47], s[0:1], {KARG['ws']}")
    I("s_waitcnt lgkmcnt(0)")
    srd(p, S_WS, 46, WS_BYTES)
    I(f"s_mov_b32 s{S_ABORT}, 0")
    ch.lane_consts(p)
    I("s_getreg_b32 s24, hwreg(HW_REG_XCC_ID, 0, 4)", "s_and_b32 s24, s24, 7")
    lab = p.newlabel("role")
    I(f"s_cmp_lg_u32 s{S_WV}, 0", f"s_cbranch_scc1 {lab}")
    I("s_mov_b64 exec, 1", "v_mov_b32 v44, 1", "s_lshl_b32 s25, s24, 2", "v_mov_b32 v45, s25", f"global_atomic_add v46, v45, v44, s[{S_DBG}:{S_DBG+1}] sc0", "s_waitcnt vmcnt(0)")
    I("v_readfirstlane_b32 s26, v46")
    I(f"s_cmp_eq_u32 s24, {opts.get('chx', 0)}", "s_cselect_b32 s27, s26, 1000", "s_cmp_lt_u32 s27, 32", "s_cbranch_scc1 L_isch")
    I(f"v_mov_b32 v45, {DBG_WORK}", f"global_atomic_add v46, v45, v44, s[{S_DBG}:{S_DBG+1}] sc0", "s_waitcnt vmcnt(0)", "v_add_u32 v46, 32, v46")
    p.L("L_isch")
    I("v_mov_b32 v45, 0", "ds_write_b32 v45, v46", "s_waitcnt lgkmcnt(0)", "s_mov_b64 exec, -1")
    p.L(lab)
    I("s_barrier", "v_mov_b32 v45, 0", "ds_read_b32 v46, v45", "s_waitcnt lgkmcnt(0)", f"v_readfirstlane_b32 s{S_H}, v46", "s_barrier")
    I("s_mov_b32 s98, 0")
    I(f"s_cmp_lt_u32 s{S_H}, 256", "s_cbranch_scc1 L_notx", f"s_sub_u32 s{S_H}, 287, s{S_H}", "s_mov_b32 s98, 1")
    p.L("L_notx")
    I(f"s_cmp_ge_u32 s{S_H}, 32", "s_cbranch_scc1 L_worker")
    I("s_mov_b32 s45, s98")
    chain_role(p, opts)
    I("s_branch L_end")
    p.L("L_worker")
    I(f"s_sub_u32 s{S_ROLE}, s{S_H}, 32")
    worker(p, opts)
    p.L("L_end"); I("s_endpgm")
    p.raw(kd(NAME))
    return p.render()

def chain_role(p, opts):
    I = p.I
    S_PTR = ch.S_PTR
    for i, n in enumerate(["A_mem0", "A_Wq", "A_Wk", "A_Wv", "A_Wo"]):
        I(f"s_mov_b32 s{S_PTR+2*i}, s{ptr(n)}", f"s_mov_b32 s{S_PTR+2*i+1}, s{ptr(n)+1}")
    I("s_mov_b32 s92, s45")
    srd(p, ch.S_MEM, S_PTR, 9216)
    ch.setup_chain(p, local=False)
    ch.preload(p)
    lab = p.newlabel("mode"); dec = p.newlabel("mode_d")
    I("s_cmp_lg_u32 s92, 0", f"s_cbranch_scc1 {dec}", f"s_mov_b32 s{ch.S_T2}, 0")
    p.L(lab)
    I(f"v_mov_b32 v45, {4*opts.get('chx', 0)}", f"global_load_dword v44, v45, s[{ch.S_DBG}:{ch.S_DBG+1}] sc1", f"v_mov_b32 v45, {DBG_WORK}", f"global_load_dword v46, v45, s[{ch.S_DBG}:{ch.S_DBG+1}] sc1", "s_waitcnt vmcnt(0)")
    I(f"v_readfirstlane_b32 s{ch.S_T0}, v44", f"v_readfirstlane_b32 s{ch.S_T1}, v46")
    I(f"s_cmp_ge_u32 s{ch.S_T0}, 32", f"s_cbranch_scc1 {dec}", f"s_cmp_gt_u32 s{ch.S_T1}, 224", "s_cselect_b32 s92, 1, 0", f"s_cbranch_scc1 {dec}")
    I("s_sleep 4", f"s_add_u32 s{ch.S_T2}, s{ch.S_T2}, 1", f"s_cmp_lt_u32 s{ch.S_T2}, 0x100000", f"s_cbranch_scc1 {lab}")
    p.L(dec)
    if opts.get("forceglobal"): I("s_mov_b32 s92, 1")
    ch.chain_state(p)
    I("s_cmp_lg_u32 s92, 0", "s_cbranch_scc1 L_chain_global")
    ch.chain_loop(p, local=True)
    I("s_branch L_end")
    p.L("L_chain_global")
    ch.chain_loop(p, local=False)

def worker(p, opts):
    I = p.I
    S_DBG = ch.S_DBG
    lab = p.newlabel("noinit")
    I(f"s_cmp_lg_u32 s{S_ROLE}, 0", f"s_cbranch_scc1 {lab}")
    I("v_mov_b64 v[44:45], 0", "v_mov_b64 v[46:47], 0", f"s_lshl_b32 s{G_T0}, s{G_WV}, 10", f"s_add_u32 s{G_T0}, s{G_T0}, {FLAG_OFF}")
    I(f"buffer_store_dwordx4 v[44:47], v0, s[{G_WS}:{G_WS+3}], s{G_T0} offen sc1", "s_waitcnt vmcnt(0)", "s_barrier")
    lab2 = p.newlabel("ini2")
    I(f"s_cmp_lg_u32 s{G_WV}, 0", f"s_cbranch_scc1 {lab2}")
    I("s_mov_b64 exec, 1", "v_mov_b32 v44, 1", f"v_mov_b32 v45, {DBG_INIT}", f"global_store_dword v45, v44, s[{S_DBG}:{S_DBG+1}] sc1", "s_mov_b64 exec, -1")
    p.L(lab2); p.L(lab)
    mid = lambda p: wait_init(p, S_DBG, tmpv=(48, 49))
    I(f"s_cmp_ge_u32 s{S_ROLE}, 192", "s_cbranch_scc1 L_p1b")
    role_gemm1(p, f"s{S_ROLE}", ptr("A_x"), ptr("A_Wq"), ptr("A_Wk"), ptr("A_Wv"), mid=mid)
    I("s_branch L_p2")
    p.L("L_p1b")
    I(f"s_cmp_ge_u32 s{S_ROLE}, 216", "s_cbranch_scc1 L_p1c")
    I(f"s_sub_u32 s36, s{S_ROLE}, 192")
    role_bq(p, 36, ptr("B_x"), ptr("B_wq"), endsig=BQCNT, mid=mid)
    I("s_branch L_p2")
    p.L("L_p1c")
    srd(p, G_X, ptr("B_x"), 2048 * 1152)
    I(f"s_sub_u32 s20, s{S_ROLE}, 216", "s_lshl_b32 s20, s20, 2", f"s_add_u32 s20, s20, s{G_WV}", "s_mov_b32 s21, 32")
    kvproj(p, ptr("B_wk"), ptr("B_wv"), 2, 20)
    I("s_waitcnt vmcnt(0)")
    wait_init(p, S_DBG, tmpv=(30, 31))
    I(f"s_mov_b32 s{G_T0}, {BKVCNT}")
    signal_add(p, G_WS, G_T0)
    p.L("L_p2")
    p.fence(); p.reset_q()
    I("s_barrier")
    relane(p)
    I(f"s_cmp_lt_u32 s{S_ROLE}, {N_OPROJ}", "s_cbranch_scc1 L_oproj")
    I(f"s_cmp_lt_u32 s{S_ROLE}, {ATTNB0}", "s_cbranch_scc1 L_attna")
    poll_ge(p, G_WS, BQCNT, 24, imm=True); poll_ge(p, G_WS, BKVCNT, 32, imm=True)
    attnb_setup(p)
    I(f"s_sub_u32 s{B_TASK}, s{S_ROLE}, {ATTNB0}", f"s_lshl_b32 s{B_TASK}, s{B_TASK}, 2", f"s_add_u32 s{B_TASK}, s{B_TASK}, s{G_WV}")
    p.fence(); p.reset_q(); p.L("L_bl")
    attnb_task(p)
    I("s_waitcnt vmcnt(0)", f"s_and_b32 s{G_T0}, s{B_TASK}, 31", f"s_lshl_b32 s{G_T0}, s{G_T0}, 2", f"s_add_u32 s{G_T0}, s{G_T0}, {BACNT}")
    signal_add(p, G_WS, G_T0)
    I(f"s_add_u32 s{B_TASK}, s{B_TASK}, 512")
    p.fence(); p.reset_q()
    I(f"s_cmp_lt_u32 s{B_TASK}, 1024", "s_cbranch_scc1 L_bl")
    I("s_barrier")
    I(f"s_cmp_ge_u32 s{S_ROLE}, {ATTNB0 + N_BOUT}", "s_cbranch_scc1 L_attna")
    def bo_wait(p, segreg):
        I(f"s_lshr_b32 s{G_T0}, s{segreg}, 1", f"s_lshl_b32 s{G_T0}, s{G_T0}, 2", f"s_add_u32 s{G_T0}, s{G_T0}, {BACNT}", f"s_mov_b32 s45, s{G_T0}")
        poll_ge(p, G_WS, 45, 32, tmpv=(48, 49))
    I(f"s_sub_u32 s36, s{S_ROLE}, {ATTNB0}")
    relane(p)
    role_bo(p, 36, 46, ptr("B_wo"), ptr("out"), prewait=bo_wait, xsc=" sc1")
    p.fence(); p.reset_q()
    I("s_barrier")
    relane(p)
    p.L("L_attna")
    relane(p)
    attna_setup(p)
    p.fence(); p.reset_q(); p.L("L_al")
    I("s_mov_b64 exec, 1", "v_mov_b32 v30, 1", "v_mov_b32 v31, 0", f"s_mov_b32 s{G_T0}, {ATICK}", f"buffer_atomic_add v30, v31, s[{G_WS}:{G_WS+3}], s{G_T0} offen sc0", "s_waitcnt vmcnt(0)", "s_mov_b64 exec, -1")
    I(f"v_readfirstlane_b32 s{A_TASK}, v30")
    I(f"s_cmp_ge_u32 s{A_TASK}, 2048", "s_cbranch_scc1 L_end")
    I(f"s_lshr_b32 s36, s{A_TASK}, 5", "s_lshl_b32 s37, s36, 2")
    I(f"s_and_b32 s38, s{A_TASK}, 31", "s_lshl_b32 s38, s38, 2", f"s_add_u32 s38, s38, {CHFLG}", "s_add_u32 s39, s36, 1")
    poll_ge(p, G_WS, 38, "s39")
    I(f"s_add_u32 s38, s37, {QCNT}"); poll_ge(p, G_WS, 38, 16)
    I(f"s_add_u32 s38, s37, {KVCNT}"); poll_ge(p, G_WS, 38, 32)
    attna_task(p)
    I("s_waitcnt vmcnt(0)", f"s_lshr_b32 s{G_T0}, s{A_TASK}, 5", f"s_lshl_b32 s{G_T0}, s{G_T0}, 2", f"s_add_u32 s{G_T0}, s{G_T0}, {ACNT}")
    signal_add(p, G_WS, G_T0)
    p.fence(); p.reset_q()
    I("s_branch L_al")
    p.L("L_oproj")
    srd(p, G_W, ptr("A_Wo"), 4096 * 1152); srd(p, G_O, ptr("out"), 2048 * 2304)
    I(f"s_mul_hi_u32 s{G_SEG}, s{S_ROLE}, {(1 << 32) // 12 + 1}", f"s_mul_i32 s{G_T0}, s{G_SEG}, 12", f"s_sub_u32 s{G_T0}, s{S_ROLE}, s{G_T0}", f"s_mul_i32 s{G_WCOL}, s{G_T0}, 96")
    oproj_setup(p); oproj_preload(p)
    p.fence(); p.reset_q(); p.L("L_ol")
    I(f"s_lshl_b32 s38, s{G_SEG}, 2", f"s_add_u32 s38, s38, {ACNT}")
    poll_ge(p, G_WS, 38, 32, tmpv=(30, 31))
    oproj_seg(p)
    I(f"s_add_u32 s{G_SEG}, s{G_SEG}, {N_OPROJ // 12}")
    p.fence(); p.reset_q()
    I(f"s_cmp_lt_u32 s{G_SEG}, 64", "s_cbranch_scc1 L_ol")
    I("s_branch L_end")

def relane(p):
    p.I("v_lshrrev_b32 v33, 4, v0", "v_and_b32 v34, 15, v33", "v_lshrrev_b32 v35, 4, v33")

if __name__ == "__main__":
    opts = {}
    for a in sys.argv[2:]:
        if a.startswith("d0="): ch.DELAY0[0] = int(a[3:])
        elif a.startswith("d1="): ch.DELAY1[0] = int(a[3:])
        elif a.startswith("d2="): ch.DELAY2[0] = int(a[3:])
        elif "=" in a: k, v = a.split("="); opts[k] = int(v)
        else: opts[a] = 1
    open(sys.argv[1], "w").write(build(opts))
```

```python
import struct
from asmlib2 import *
from common import *
from gemm576 import G_WS, G_WV, G_T0, G_T1, G_T2, G_T3
SCALE_LOG2E = 0.08838834764831845 * 1.4426950408889634
A_TASK, A_STEP, A_END = 20, 21, 22
A_C = 23
A_MASK = 60
A_ONES = 68
def attna_setup(p):
    I = p.I
    cbits = struct.unpack("<I", struct.pack("<f", SCALE_LOG2E))[0]
    I(f"s_mov_b32 s{A_C}, 0x{cbits:08x}", f"s_mov_b32 s{A_ONES}, 0x3f803f80", f"s_mov_b32 s{A_ONES+1}, 0x3f803f80")
    for r in range(4):
        I(f"v_lshl_add_u32 v40, v35, 2, {r}", f"v_cmp_le_u32 s[{A_MASK+2*r}:{A_MASK+2*r+1}], v40, v34")
def attna_task(p, signal=None, midwait=None):
    I = p.I
    WS = f"s[{G_WS}:{G_WS+3}]"
    Q, KX, KM, VX, VM = 32, 64, 96, 112, 144
    S00, S01, S11, M0, M1 = 152, 156, 160, 164, 168
    I(f"s_lshl_b32 s{G_T0}, s{A_TASK}, 13")
    I(f"s_add_u32 s{G_T1}, s{G_T0}, {QX_OFF}", f"s_add_u32 s{G_T2}, s{G_T1}, 4096")
    for i in range(8): I(f"buffer_load_dwordx4 v[{Q+4*i}:{Q+4*i+3}], v0, {WS}, s{G_T1 if i < 4 else G_T2} offen offset:{(i%4)*1024} sc1")
    I(f"s_add_u32 s{G_T1}, s{G_T0}, {KX_OFF}", f"s_add_u32 s{G_T2}, s{G_T1}, 4096")
    for i in range(8): I(f"buffer_load_dwordx4 v[{KX+4*i}:{KX+4*i+3}], v0, {WS}, s{G_T1 if i < 4 else G_T2} offen offset:{(i%4)*1024} sc1")
    I(f"s_add_u32 s{G_T1}, s{G_T0}, {VX_OFF}", f"s_add_u32 s{G_T2}, s{G_T1}, 4096")
    for i in range(8): I(f"buffer_load_dwordx4 v[{VX+4*i}:{VX+4*i+3}], v0, {WS}, s{G_T1 if i < 4 else G_T2} offen offset:{(i%4)*1024} sc1")
    if midwait:
        midwait(p)
        I(f"s_lshl_b32 s{G_T0}, s{A_TASK}, 13")
    I(f"s_lshr_b32 s{G_T3}, s{G_T0}, 1", f"s_add_u32 s{G_T1}, s{G_T3}, {KM_OFF}")
    for i in range(4): I(f"buffer_load_dwordx4 v[{KM+4*i}:{KM+4*i+3}], v0, {WS}, s{G_T1} offen offset:{i*1024} sc1")
    I(f"s_lshr_b32 s{G_T3}, s{G_T0}, 2", f"s_add_u32 s{G_T1}, s{G_T3}, {VM_OFF}", "v_lshrrev_b32 v31, 1, v0")
    for i in range(4): I(f"buffer_load_dwordx2 v[{VM+2*i}:{VM+2*i+1}], v31, {WS}, s{G_T1} offen offset:{i*512} sc1")
    mf = lambda d, a, b, c: f"v_mfma_f32_16x16x32_bf16 v[{d}:{d+3}], v[{a}:{a+3}], v[{b}:{b+3}], {c}"
    for pp in range(4):
        cc = lambda d: "0" if pp == 0 else f"v[{d}:{d+3}]"
        q0, q1 = Q + 8 * pp, Q + 8 * pp + 4
        k0, k1 = KX + 8 * pp, KX + 8 * pp + 4
        I(mf(S00, k0, q0, cc(S00)), mf(S01, k0, q1, cc(S01)), mf(S11, k1, q1, cc(S11)), mf(M0, KM + 4 * pp, q0, cc(M0)), mf(M1, KM + 4 * pp, q1, cc(M1)))
    I("v_mov_b32 v172, 0xf149f2ca")
    for r in range(4):
        I(f"v_cndmask_b32_e64 v{S00+r}, v172, v{S00+r}, s[{A_MASK+2*r}:{A_MASK+2*r+1}]", f"v_cndmask_b32_e64 v{S11+r}, v172, v{S11+r}, s[{A_MASK+2*r}:{A_MASK+2*r+1}]")
    I(f"v_max3_f32 v173, v{S00}, v{S00+1}, v{S00+2}", f"v_max3_f32 v173, v173, v{S00+3}, v{M0}", f"v_max_f32 v173, v173, v{M0+1}")
    I(f"v_max3_f32 v174, v{S01}, v{S01+1}, v{S01+2}", f"v_max3_f32 v174, v174, v{S01+3}, v{S11}", f"v_max3_f32 v174, v174, v{S11+1}, v{S11+2}", f"v_max3_f32 v174, v174, v{S11+3}, v{M1}", f"v_max_f32 v174, v174, v{M1+1}")
    for sw in ("v_permlane16_swap_b32", "v_permlane32_swap_b32"):
        I("v_mov_b32 v175, v173", "v_mov_b32 v176, v174", f"{sw} v173, v175", f"{sw} v174, v176", "v_max_f32 v173, v173, v175", "v_max_f32 v174, v174, v176")
    I(f"v_mul_f32 v173, s{A_C}, v173", f"v_mul_f32 v174, s{A_C}, v174")
    vals0 = [S00 + r for r in range(4)] + [M0, M0 + 1]
    vals1 = [S01 + r for r in range(4)] + [S11 + r for r in range(4)] + [M1, M1 + 1]
    for v in vals0: I(f"v_fma_f32 v{v}, v{v}, s{A_C}, -v173")
    for v in vals1: I(f"v_fma_f32 v{v}, v{v}, s{A_C}, -v174")
    for v in vals0 + vals1: I(f"v_exp_f32 v{v}, v{v}")
    cv = lambda d, a, b: f"v_cvt_pk_bf16_f32 v{d}, v{a}, v{b}"
    B0, B1, PA0, PB0, PA1, PB1, ON = 176, 180, 184, 186, 188, 190, 192
    I(cv(B0, S00, S00 + 1), cv(B0 + 1, S00 + 2, S00 + 3), f"v_mov_b64 v[{B0+2}:{B0+3}], 0")
    I(cv(B1, S01, S01 + 1), cv(B1 + 1, S01 + 2, S01 + 3), cv(B1 + 2, S11, S11 + 1), cv(B1 + 3, S11 + 2, S11 + 3))
    I(cv(PA0, M0, M0 + 1), f"v_mov_b32 v{PA0+1}, 0", f"v_mov_b32 v{PB0}, 0", f"v_mov_b32 v{PB0+1}, v{PA0}")
    I(cv(PA1, M1, M1 + 1), f"v_mov_b32 v{PA1+1}, 0", f"v_mov_b32 v{PB1}, 0", f"v_mov_b32 v{PB1+1}, v{PA1}")
    I(f"v_mov_b64 v[{ON}:{ON+1}], s[{A_ONES}:{A_ONES+1}]", f"v_mov_b64 v[{ON+2}:{ON+3}], s[{A_ONES}:{A_ONES+1}]")
    L0, L1 = 196, 200
    m16 = lambda d, a, b: f"v_mfma_f32_16x16x16_bf16 v[{d}:{d+3}], v[{a}:{a+1}], v[{b}:{b+1}], v[{d}:{d+3}]"
    I(mf(L0, ON, B0, "0"), mf(L1, ON, B1, "0"), m16(L0, ON, PA0), m16(L1, ON, PA1))
    O = 32
    for dt in range(8):
        for tt in range(2):
            I(mf(O + 4 * (dt * 2 + tt), VX + 4 * dt, B0 if tt == 0 else B1, "0"))
    for dt in range(8):
        for tt in range(2):
            pb = (PA0, PB0, PA1, PB1)[tt * 2 + dt % 2]
            I(m16(O + 4 * (dt * 2 + tt), VM + 2 * (dt // 2), pb))
    I(f"v_rcp_f32 v{L0}, v{L0}", f"v_rcp_f32 v{L1}, v{L1}")
    I(f"s_lshr_b32 s{G_T0}, s{A_TASK}, 5", f"s_and_b32 s{G_T1}, s{A_TASK}, 31", f"s_lshl_b32 s{G_T0}, s{G_T0}, 6", f"s_add_u32 s{G_T0}, s{G_T0}, s{G_T1}", f"s_lshl_b32 s{G_T0}, s{G_T0}, 12", f"s_add_u32 s{G_T0}, s{G_T0}, {OX_OFF}",
      f"s_add_u32 s{G_T1}, s{G_T0}, {32*4096}")
    for tt in range(2):
        for pp in range(4):
            a = O + 4 * ((2 * pp) * 2 + tt); b = O + 4 * ((2 * pp + 1) * 2 + tt); o = 204 + 4 * (pp % 2)
            for r in range(4): I(f"v_mul_f32 v{a+r}, v{a+r}, v{L0 if tt == 0 else L1}", f"v_mul_f32 v{b+r}, v{b+r}, v{L0 if tt == 0 else L1}")
            I(cv(o, a, a + 1), cv(o + 1, a + 2, a + 3), cv(o + 2, b, b + 1), cv(o + 3, b + 2, b + 3))
            I(f"buffer_store_dwordx4 v[{o}:{o+3}], v0, {WS}, s{G_T0 if tt == 0 else G_T1} offen offset:{pp*1024} sc1")
```

```python
import struct
from asmlib2 import *
from common import *
import common, sys as _sys
if 'hot' in _sys.argv: MEM_SLOT = 0

MEMIMG, SEXM, SEXX, OIMG, WVL = 0, 9216, 10240, 14336, 16384
PART_BYTES = 48 * 8192
SCALE_LOG2E = 0.08838834764831845 * 1.4426950408889634

S_WS, S_MEM, S_W = 4, 8, 12
S_DBG = 16
S_H, S_WV, S_STEP = 18, 19, 20
S_MEMR, S_MEMW, S_KX, S_VX, S_KM, S_VM = 21, 22, 23, 24, 25, 26
S_TO, S_T0, S_T1, S_T2 = 27, 28, 29, 30
S_C = 31
S_NLT8 = 32
S_M8 = 34
S_PS = 36
S_PL, S_ISW2 = 41, 42
S_W1024, S_W256 = 43, 44
S_HASTASK = 45
S_PTR = 46
S_EXMS = 58
S_D8, S_L8, S_MEMR8, S_TAG = 64, 65, 66, 67
S_ONES, S_W4 = 68, 70
S_MEMR2 = 57
S_B01, S_TO3, S_MEMEND, S_MEMZ, S_MEMWEND = 57, 61, 60, 39, 40
SLOW = []
VPLACE = [2, 4, 3, 2, 2, 2, 3]
V_DUM = 27
ST2_ISSUE = [1]
ST2_CHECK = [4]
S_C2 = 62
S_TCH, S_TMASK = 98, 100
S_RDY, S_CHF = 10, 11
S_PUBV = 13
S_PFM, S_W2048 = 46, 48
PREF = [True]
STEPTS = [False]
S_PUB = 8
FUSED = [False]
TOUCH = [2]
S_TO2 = 71
S_TS = 50
PNST = 14
S_ST = 72

V_L16, V_IDX = 0, 1
V_SQA, V_SQB, V_SKA, V_SKB = 2, 4, 6, 8
V_KX, V_VX = 10, 18
V_WV, V_MP, V_PY, V_PS, V_OR = 26, 27, 28, 30, 31

def frag(f): return ar(8 * f, 8) if f < 32 else vr(80 + 8 * (f - 32), 8)
def fragb(f): return ("a", 8 * f) if f < 32 else ("v", 80 + 8 * (f - 32))
def frag_sub(f, off, n):
    k, b = fragb(f)
    return f"{k}[{b+off}:{b+off+n-1}]" if n > 1 else f"{k}{b+off}"
def F_QA(kb): return kb
def F_QB(kb): return 9 + kb
def F_KA(kb): return 18 + kb
F_KB0 = 27
VRES = [6, 7, 0, 1]
VSTR = [2, 3, 4, 5, 8]
def F_VS(tb, slot): return 28 + slot * 2 + tb
def F_WO(j, kb): return 36 + j * 2 + kb

PROF = [False]
RT = [False]
TAGALL = [False]
def stamp(p, k, on):
    r = S_ST + 2 * k if k < 13 else 14
    if PROF[0] and on: p.I(f"{'s_memrealtime' if RT[0] else 's_memtime'} s[{r}:{r+1}]")

def lane_consts(p):
    I = p.I
    I("v_lshrrev_b32 v32, 6, v0", "v_and_b32 v33, 63, v0", f"v_readfirstlane_b32 s{S_WV}, v32")
    I("v_and_b32 v34, 15, v33", "v_lshrrev_b32 v35, 4, v33")
    I("v_and_b32 v36, 7, v33")
    I("v_bfe_u32 v37, v33, 3, 1")
    I(f"v_lshlrev_b32 v{V_L16}, 4, v33")
    I("v_lshrrev_b32 v38, 2, v34", "v_lshlrev_b32 v38, 1, v38", "v_and_b32 v39, 1, v34", "v_or_b32 v38, v38, v39", "v_bfe_u32 v39, v34, 1, 1")
    I("v_mov_b32 v40, 0x44444444", "v_mov_b32 v41, 0xeeeeeeee", "v_cmp_eq_u32 vcc, 0, v39", f"v_cndmask_b32 v{V_IDX}, v41, v40, vcc")

def setup_chain(p, local):
    I = p.I
    sc_st = "" if local else " sc1"
    I(f"s_lshl_b32 s{S_W1024}, s{S_WV}, 10", f"s_lshl_b32 s{S_W256}, s{S_WV}, 8")
    I(f"s_lshl_b32 s{S_T0}, s{S_WV}, 11", f"s_add_u32 s{S_T0}, s{S_T0}, {WVL}", f"v_add_u32 v{V_WV}, s{S_T0}, v{V_L16}")
    I(f"v_mul_u32_u24 v{V_MP}, 1152, v38", f"v_lshl_add_u32 v{V_MP}, v35, 5, v{V_MP}", f"v_lshl_add_u32 v{V_MP}, v39, 4, v{V_MP}",
      f"s_lshl_b32 s{S_T0}, s{S_WV}, 7", f"v_add_u32 v{V_MP}, s{S_T0}, v{V_MP}")
    I(f"v_lshlrev_b32 v{V_PS}, 13, v35", f"v_lshl_add_u32 v{V_PS}, v37, 12, v{V_PS}", f"v_lshl_add_u32 v{V_PS}, v36, 4, v{V_PS}")
    I("v_lshl_add_u32 v40, v35, 1, v39", "v_xor_b32 v40, v40, v38", "v_lshlrev_b32 v40, 4, v40", "v_lshl_add_u32 v40, v38, 8, v40", f"v_add_u32 v{V_OR}, {OIMG}, v40")
    for src, ra, rb in ((36, V_SQA, V_SQB), (38, V_SKA, V_SKB)):
        I("v_lshlrev_b32 v40, 1, v35", f"v_sub_u32 v40, v{src}, v40", "v_mov_b32 v41, 0", "v_mov_b32 v42, 0x3f80", "v_mov_b32 v43, 0x3f800000")
        I("v_cmp_eq_u32 vcc, 0, v40", "v_cndmask_b32 v41, v41, v42, vcc", "v_cmp_eq_u32 vcc, 1, v40", f"v_cndmask_b32 v{ra}, v41, v43, vcc")
        I(f"v_mov_b32 v{ra+1}, 0", f"v_mov_b32 v{rb}, 0", f"v_mov_b32 v{rb+1}, v{ra}")
    I(f"s_mov_b32 s{S_NLT8}, 0x00ff00ff", f"s_mov_b32 s{S_NLT8+1}, 0x00ff00ff")
    I(f"s_mov_b32 s{S_ONES}, 0x3f803f80", f"s_mov_b32 s{S_ONES+1}, 0x3f803f80", f"s_lshl_b32 s{S_W4}, s{S_WV}, 2")
    cbits = struct.unpack("<I", struct.pack("<f", SCALE_LOG2E))[0]
    I(f"s_mov_b32 s{S_C}, 0x{cbits:08x}", f"s_mov_b32 s{S_C2}, 0x{cbits:08x}", f"s_mov_b32 s{S_C2+1}, 0x{cbits:08x}")
    p.C("init fills: PART zero (12288 B per WG), MEM ring sentinel (slots 1..3 : 27648 B = 27 KB by WG 1..7)")
    I(f"s_mul_i32 s{S_T0}, s{S_H}, 12288", f"s_add_u32 s{S_T1}, s{S_T0}, s{S_W1024}", f"s_add_u32 s{S_T1}, s{S_T1}, {PART_OFF}")
    I("v_mov_b64 v[44:45], 0", "v_mov_b64 v[46:47], 0", "v_mov_b64 v[48:49], -1", "v_mov_b64 v[50:51], -1")
    for rnd in range(3):
        I(f"buffer_store_dwordx4 v[44:47], v{V_L16}, s[{S_WS}:{S_WS+3}], s{S_T1} offen{sc_st}")
        if rnd < 2: I(f"s_add_u32 s{S_T1}, s{S_T1}, 4096")
    lab = p.newlabel("fill_skip")
    I(f"s_lshl_b32 s{S_T0}, s{S_H}, 2", f"s_add_u32 s{S_T0}, s{S_T0}, s{S_WV}", f"s_sub_u32 s{S_T0}, s{S_T0}, 4", f"s_cmp_ge_u32 s{S_T0}, 27", f"s_cbranch_scc1 {lab}")
    I(f"s_lshl_b32 s{S_T0}, s{S_T0}, 10", f"s_add_u32 s{S_T2}, s{S_T0}, {MEM_OFF + MEM_SLOT}", f"buffer_store_dwordx4 v[48:51], v{V_L16}, s[{S_WS}:{S_WS+3}], s{S_T2} offen{sc_st}")
    p.L(lab)
    I("s_waitcnt vmcnt(0)", "s_barrier")
    lab = p.newlabel("no_m0")
    I(f"s_cmp_lg_u32 s{S_H}, 0", f"s_cbranch_scc1 {lab}")
    I(f"buffer_load_dwordx4 v[44:47], v{V_MP}, s[{S_MEM}:{S_MEM+3}], 0 offen", f"buffer_load_dwordx4 v[48:51], v{V_MP}, s[{S_MEM}:{S_MEM+3}], 0 offen offset:512")
    I(f"s_lshl_b32 s{S_T0}, s{S_WV}, 7", f"v_subrev_u32 v52, s{S_T0}, v{V_MP}", f"buffer_load_dwordx4 v[56:59], v52, s[{S_MEM}:{S_MEM+3}], 0 offen offset:1024")
    I(f"s_add_u32 s{S_T0}, s{S_W1024}, {MEM_OFF}", f"s_mov_b32 s{S_T1}, {MEM_OFF + 8192}", "s_waitcnt vmcnt(0)")
    I(f"buffer_store_dwordx4 v[44:47], v{V_L16}, s[{S_WS}:{S_WS+3}], s{S_T0} offen{sc_st}")
    I(f"s_add_u32 s{S_T0}, s{S_T0}, 4096", f"buffer_store_dwordx4 v[48:51], v{V_L16}, s[{S_WS}:{S_WS+3}], s{S_T0} offen{sc_st}")
    I(f"buffer_store_dwordx4 v[56:59], v{V_L16}, s[{S_WS}:{S_WS+3}], s{S_T1} offen{sc_st}")
    I("s_waitcnt vmcnt(0)")
    p.L(lab)
    I("s_barrier")
    lab = p.newlabel("init_arr")
    I(f"s_cmp_lg_u32 s{S_WV}, 0", f"s_cbranch_scc1 {lab}")
    I("s_mov_b64 exec, 1", "v_mov_b32 v44, 1", "v_mov_b32 v45, 40", f"global_atomic_add v45, v44, s[{S_DBG}:{S_DBG+1}]", "s_mov_b64 exec, -1")
    p.L(lab)

def preload(p):
    I = p.I
    p.C("weight preload")
    I("v_lshrrev_b32 v40, 4, v33", "v_lshlrev_b32 v41, 13, v40")
    I("v_and_b32 v42, 1, v40", "v_lshlrev_b32 v42, 1, v42", "v_xor_b32 v42, v42, v34", "v_lshlrev_b32 v42, 4, v42")
    for jj in range(4):
        I(f"v_xor_b32 v43, {64*jj}, v42", "v_add_u32 v43, v43, v41", f"v_add_u32 v{52+jj}, {jj*32768}, v43")
    I("v_lshrrev_b32 v40, 3, v33", "v_and_b32 v41, 7, v33", "v_lshrrev_b32 v42, 5, v33")
    for jj in range(4):
        I(f"v_add_u32 v43, {8*jj}, v40", "v_mul_u32_u24 v43, 1152, v43")
        I(f"v_add_u32 v44, {2*(jj&1)}, v42", "v_lshlrev_b32 v44, 1, v44", "v_xor_b32 v44, v44, v41", f"v_lshl_add_u32 v{56+jj}, v44, 4, v43")
    I("v_lshrrev_b32 v40, 2, v34", "v_and_b32 v41, 3, v34")
    I("v_lshrrev_b32 v42, 1, v35", "v_lshlrev_b32 v42, 4, v42", "v_and_b32 v43, 1, v35", "v_lshl_add_u32 v42, v43, 2, v42")
    I("v_and_b32 v44, 1, v40", "v_add_u32 v42, v42, v44", "v_lshrrev_b32 v45, 1, v40", "v_lshl_add_u32 v42, v45, 3, v42")
    I("v_lshl_add_u32 v46, v45, 1, v43")
    I("v_lshl_or_b32 v47, v46, 1, v44")
    I(f"s_lshl_b32 s{S_T0}, s{S_WV}, 1", f"v_xor_b32 v47, s{S_T0}, v47", "v_lshlrev_b32 v47, 5, v47", "v_lshl_add_u32 v47, v41, 3, v47", "v_lshl_add_u32 v60, v42, 8, v47", "v_xor_b32 v61, 32, v60")
    I(f"v_xor_b32 v46, s{S_WV}, v46", "v_lshlrev_b32 v46, 5, v46", "v_lshl_add_u32 v46, v41, 3, v46", "v_lshl_add_u32 v62, v42, 7, v46")
    chunks = [("q", kb) for kb in range(9)] + [("o", cc) for cc in range(9)] + [("k", kb) for kb in range(9)] + [("v", kb) for kb in VRES + VSTR]
    slot = lambda c: (c + 4) % 10
    ptr = {"q": S_PTR + 2, "k": S_PTR + 4, "v": S_PTR + 6, "o": S_PTR + 8}
    cur = [None]
    nissued = [0]
    def issue(c):
        kind, x = chunks[c]
        if cur[0] != kind:
            cur[0] = kind
            I(f"s_mov_b32 s{S_W}, s{ptr[kind]}", f"s_and_b32 s{S_W+1}, s{ptr[kind]+1}, 0xffff", f"s_mov_b32 s{S_W+2}, {576*8192 if kind != 'o' else 4096*1152}", f"s_mov_b32 s{S_W+3}, 0x20000")
        if kind != "o":
            I(f"s_lshl_b32 s{S_T0}, s{S_WV}, 17", f"s_lshl_b32 s{S_T1}, s{S_H}, 8", f"s_add_u32 s{S_T0}, s{S_T0}, s{S_T1}", f"s_add_u32 s{S_T0}, s{S_T0}, {x*524288}")
            vb = 52
        else:
            I(f"s_lshl_b32 s{S_T0}, s{S_H}, 7", f"s_lshl_b32 s{S_T1}, s{S_WV}, 5", f"s_add_u32 s{S_T0}, s{S_T0}, s{S_T1}", f"s_mul_i32 s{S_T0}, s{S_T0}, 1152", f"s_add_u32 s{S_T0}, s{S_T0}, {x*128}")
            vb = 56
        I(f"s_lshl_b32 s{S_T1}, s{S_WV}, 12", f"s_add_u32 s{S_T1}, s{S_T1}, {slot(c)*16384}")
        for jj in range(4):
            I(f"s_add_u32 m0, s{S_T1}, {jj*1024}")
            I(f"buffer_load_dwordx4 v{vb+jj}, s[{S_W}:{S_W+3}], s{S_T0} offen lds")
        nissued[0] = c + 1
    def tr(dst_of_t, areg, rowb, row0):
        for t in range(4):
            I(f"ds_read_b64_tr_b16 {dst_of_t(t)}, v{areg} offset:{(row0+32*(t//2)+2*(t%2))*rowb}")
    for c in range(10): issue(c)
    for c in range(36):
        kind, x = chunks[c]
        I(f"s_waitcnt vmcnt({4*(nissued[0]-1-c)})", "s_barrier")
        sb = slot(c) * 16384
        I(f"v_add_u32 v40, {sb}, v60", f"v_add_u32 v41, {sb}, v61", f"v_add_u32 v42, {sb}, v62")
        if kind == "q":
            tr(lambda t: frag_sub(F_QA(x), 2*t, 2), 40, 256, 0); tr(lambda t: frag_sub(F_QB(x), 2*t, 2), 41, 256, 0)
        elif kind == "k":
            fb = F_KB0 if x == 0 else F_VS((x-1) % 2, (x-1) // 2)
            tr(lambda t: frag_sub(F_KA(x), 2*t, 2), 40, 256, 0); tr(lambda t: frag_sub(fb, 2*t, 2), 41, 256, 0)
        elif kind == "o":
            for kb in range(2): tr(lambda t: frag_sub(F_WO(x, kb), 2*t, 2), 42, 128, 64*kb)
        else:
            for tb in range(2): tr(lambda t: f"v[{64+8*tb+2*t}:{65+8*tb+2*t}]", 40 + tb, 256, 0)
        I("s_waitcnt lgkmcnt(0)", "s_barrier")
        if kind == "v":
            pos = c - 27
            I(f"s_lshl_b32 s{S_T0}, s{S_WV}, 11", f"s_add_u32 s{S_T0}, s{S_T0}, {sb}", f"v_add_u32 v40, s{S_T0}, v{V_L16}")
            for sub in range(2):
                for half in range(2):
                    src = frag_sub(F_VS(sub, pos), 4*half, 4) if pos < 4 else f"v[{64+8*sub+4*half}:{67+8*sub+4*half}]"
                    I(f"ds_write_b128 v40, {src} offset:{sub*8192+half*1024}")
            I("s_waitcnt lgkmcnt(0)")
            if pos < 4:
                for tb in range(2):
                    k, b = fragb(F_VS(tb, pos))
                    for r in range(8):
                        I(f"v_accvgpr_write_b32 a{b+r}, v{64+8*tb+r}" if k == "a" else f"v_mov_b32 v{b+r}, v{64+8*tb+r}")
        if c + 10 < 36: issue(c + 10)
    I("s_barrier")

def chain_state(p):
    I = p.I
    lab = p.newlabel("initw"); lab2 = p.newlabel("initd")
    I(f"s_mov_b32 s{S_TO}, 0", "v_mov_b32 v45, 40")
    p.L(lab)
    I(f"global_load_dword v44, v45, s[{S_DBG}:{S_DBG+1}] sc1", "s_waitcnt vmcnt(0)", f"v_readfirstlane_b32 s{S_T0}, v44", f"s_add_u32 s{S_TO}, s{S_TO}, 1")
    I(f"s_cmp_ge_u32 s{S_T0}, 32", f"s_cbranch_scc1 {lab2}", f"s_cmp_lt_u32 s{S_TO}, 0x40000", f"s_cbranch_scc1 {lab}")
    p.L(lab2)
    I(f"s_mov_b32 s{S_STEP}, 0", f"s_mov_b32 s{S_TO}, 0", f"s_mov_b32 s{S_TO2}, 0", f"s_mov_b32 s{S_TO3}, 0")
    I(f"s_min_u32 s{S_T0}, s{S_WV}, 2", f"s_lshl_b32 s{S_B01}, s{S_T0}, 11", f"s_add_u32 s{S_MEMR}, s{S_B01}, {MEM_OFF}", f"s_add_u32 s{S_MEMEND}, s{S_MEMR}, {4*MEM_SLOT}")
    I(f"s_lshl_b32 s{S_T0}, s{S_WV}, 5", f"s_add_u32 s{S_T0}, s{S_T0}, s{S_H}")
    I(f"s_cmp_lt_u32 s{S_WV}, 3", f"s_cselect_b32 s{S_HASTASK}, 1, 0")
    I(f"s_lshl_b32 s{S_PL}, s{S_T0}, 12", f"s_add_u32 s{S_PL}, s{S_PL}, {PART_OFF}")
    I(f"s_mul_i32 s{S_MEMW}, s{S_WV}, 3072")
    I(f"s_lshr_b32 s{S_T1}, s{S_H}, 3", f"s_lshl_b32 s{S_T1}, s{S_T1}, 8", f"s_add_u32 s{S_MEMW}, s{S_MEMW}, s{S_T1}")
    I(f"s_bfe_u32 s{S_T1}, s{S_H}, 0x20001", f"s_lshl_b32 s{S_T1}, s{S_T1}, 6", f"s_add_u32 s{S_MEMW}, s{S_MEMW}, s{S_T1}")
    I(f"s_and_b32 s{S_T1}, s{S_H}, 1", f"s_lshl_b32 s{S_T1}, s{S_T1}, 5", f"s_add_u32 s{S_MEMW}, s{S_MEMW}, s{S_T1}", f"s_add_u32 s{S_MEMW}, s{S_MEMW}, {MEM_OFF + MEM_SLOT}")
    I(f"s_mov_b32 s{S_EXMS+1}, 0x00000055", f"s_mov_b32 s{S_EXMS}, 0x00550055")
    I(f"s_cmp_eq_u32 s{S_WV}, 2", f"s_cselect_b32 s{S_ISW2}, 1, 0")
    I(f"s_mul_i32 s{S_L8}, s{S_WV}, 768", f"s_add_u32 s{S_L8}, s{S_L8}, {MEMIMG + 6144}", f"s_sub_u32 s{S_D8}, s{S_L8}, s{S_B01}")
    I(f"s_mov_b32 s{S_M8}, -1", f"s_mov_b32 s{S_M8+1}, 0xffff")
    I(f"s_cmp_eq_u32 s{S_WV}, 3", f"s_cselect_b32 s{S_PFM}, -1, 0", f"s_mov_b32 s{S_PFM+1}, s{S_PFM}", f"s_lshl_b32 s{S_W2048}, s{S_WV}, 11")
    I(f"s_add_u32 s{S_MEMZ}, s{S_MEMW}, {2*MEM_SLOT}", f"s_add_u32 s{S_MEMWEND}, s{S_MEMW}, {3*MEM_SLOT}")
    I(f"s_lshl_b32 s{S_T0}, s{S_H}, 13", f"s_lshl_b32 s{S_T1}, s{S_WV}, 11", f"s_add_u32 s{S_T0}, s{S_T0}, s{S_T1}", f"s_add_u32 s{S_KX}, s{S_T0}, {KX_OFF}", f"s_add_u32 s{S_VX}, s{S_T0}, {VX_OFF}")
    I(f"s_lshr_b32 s{S_T1}, s{S_T0}, 1", f"s_add_u32 s{S_KM}, s{S_T1}, {KM_OFF}", f"s_lshr_b32 s{S_T1}, s{S_T0}, 2", f"s_add_u32 s{S_VM}, s{S_T1}, {VM_OFF - 32*2048}")
    I(f"s_lshl_b32 s{S_T0}, s{S_WV}, 15", f"s_lshl_b32 s{S_T1}, s{S_H}, 7", f"s_add_u32 s{S_T0}, s{S_T0}, s{S_T1}", f"s_add_u32 s{S_PS}, s{S_T0}, {PART_OFF}")
    for e in range(1, 3): I(f"s_add_u32 s{S_PS+e}, s{S_PS}, {e*131072}")
    I(f"s_add_u32 s{S_MEMR8}, s{S_MEMR}, s{S_D8}")
    if FUSED[0]:
        I(f"s_mov_b32 s{S_RDY}, 0", f"s_lshl_b32 s{S_CHF}, s{S_H}, 2", f"s_add_u32 s{S_CHF}, s{S_CHF}, {CHFLG}")
        I(f"s_cmp_eq_u32 s{S_WV}, 0", f"s_cselect_b32 s{S_PUB}, 1, 0", f"s_mov_b32 s{S_PUB+1}, 0")
        wait_init(p, S_DBG, tmpv=(52, 53))
        need_segment(p, 0)
    for kt in range(2):
        I(f"buffer_load_dwordx4 v[{V_KX+4*kt}:{V_KX+4*kt+3}], v{V_L16}, s[{S_WS}:{S_WS+3}], s{S_KX} offen offset:{kt*1024} sc1")
    I(f"s_add_u32 s{S_KX}, s{S_KX}, {32*8192}", "s_waitcnt vmcnt(0)")

SM = lambda d, a, b: f"v_smfmac_f32_16x16x64_bf16 v[{d}:{d+3}], v[{a}:{a+3}], {b}, v{V_IDX}"

class Stream:
    def __init__(self, p): self.p = p; self.q = []
    def add(self, *instrs): self.q.append(list(instrs))
    def emit(self, n=1):
        for _ in range(n):
            if not self.q: return
            for x in self.q.pop(0): self.p.I(x)
    def drain(self): self.emit(len(self.q))


VPERIOD = [24]
LEAD = [0]
HOLD = [0]
BAR4 = [True]
def delay(p, clks):
    n = clks // 4
    while n > 0:
        k = min(n, 16); p.raw(f"    s_nop {k-1}"); n -= k
DELAYG1 = [0]
DELAY3 = [0]
DELAY0 = [0]
DELAY1 = [0]
DELAY2 = [0]
def need_segment(p, add):
    I = p.I
    lab = p.newlabel("rdy"); ok = p.newlabel("rdy_ok")
    I(f"s_add_u32 s{S_T1}, s{S_STEP}, {add}", f"s_min_u32 s{S_T1}, s{S_T1}, 63", f"s_cmp_lt_u32 s{S_T1}, s{S_RDY}", f"s_cbranch_scc1 {ok}")
    I(f"s_mov_b32 s{S_T2}, 0", f"v_lshrrev_b32 v52, 2, v{V_L16}", f"s_mov_b32 s{S_T0}, {KVCNT}")
    p.L(lab)
    I(f"buffer_load_dword v53, v52, s[{S_WS}:{S_WS+3}], s{S_T0} offen sc1", "s_waitcnt vmcnt(0)")
    I("v_cmp_ne_u32 vcc, 32, v53", f"s_ff1_i32_b64 s{S_RDY}, vcc", f"s_cmp_eq_u32 s{S_RDY}, -1", f"s_cselect_b32 s{S_RDY}, 64, s{S_RDY}")
    I(f"s_cmp_lt_u32 s{S_T1}, s{S_RDY}", f"s_cbranch_scc1 {ok}", "s_sleep 8", f"s_add_u32 s{S_T2}, s{S_T2}, 1", f"s_cmp_lt_u32 s{S_T2}, 0x80000", f"s_cbranch_scc1 {lab}")
    I(f"s_mov_b32 s{S_RDY}, 64")
    p.L(ok)

def step(p, local, first=True, last=False):
    I = p.I
    sc_st = "" if local else " sc1"
    WS = f"s[{S_WS}:{S_WS+3}]"
    QA, QB, KA, KB = 32, 36, 40, 44
    A0, A1, A2 = 56, 60, 48
    VA, VB = 48, 52
    W1, W2 = 64, 72
    wv_state = {"b": 0}
    def wread(u, buf):
        out = []
        blk = u // 8
        while wv_state["b"] < blk:
            out.append(f"v_add_u32 v{V_WV}, 0x10000, v{V_WV}"); wv_state["b"] += 1
        off = (u % 8) * 8192
        out.append(f"ds_read_b128 v[{buf}:{buf+3}], v{V_WV} offset:{off}")
        out.append(f"ds_read_b128 v[{buf+4}:{buf+7}], v{V_WV} offset:{off+1024}")
        return out
    aread = lambda kb, a: f"ds_read_b128 v[{a}:{a+3}], v{V_L16} offset:{MEMIMG+kb*1024}"
    ad = lambda d, a_, b_: f"v_add_f32 v{d}, v{a_}, v{b_}"
    cv = lambda d, a_, b_: f"v_cvt_pk_bf16_f32 v{d}, v{a_}, v{b_}"
    p.C("==== step : acquire mem blocks 0..5 (waves 0,1,3)")
    stamp(p, 0, first)
    if STEPTS[0]:
        lab = p.newlabel("sts")
        I(f"s_cmp_lg_u32 s{S_WV}, 3", f"s_cbranch_scc1 {lab}")
        I("s_memrealtime s[2:3]", "s_waitcnt lgkmcnt(0)", f"s_lshl_b32 s3, s{S_H}, 9", f"s_lshl_b32 s{S_T0}, s{S_STEP}, 2", f"s_add_u32 s3, s3, s{S_T0}", f"s_add_u32 s3, s3, {0x9200000}")
        I("s_mov_b64 exec, 1", "v_mov_b32 v52, s2", f"buffer_store_dword v52, v{V_SQA+1}, {WS}, s3 offen", "s_mov_b64 exec, -1")
        p.L(lab)
    if FUSED[0]: need_segment(p, 2 if PREF[0] else 1)
    I(*wread(0, W1)); I(*wread(1, W2))
    for r in range(0, 16, 2): I(f"v_mov_b64 v[{QA+r}:{QA+r+1}], 0")
    skipa = p.newlabel("skip01"); loop = p.newlabel("mem_poll"); done = p.newlabel("mem_done")
    I(f"s_cmp_eq_u32 s{S_WV}, 2", f"s_cbranch_scc1 {skipa}")
    I(f"v_add_u32 v55, s{S_B01}, v{V_L16}")
    if DELAY3[0]:
        nd = p.newlabel("nd3")
        I(f"s_cmp_lg_u32 s{S_WV}, 3", f"s_cbranch_scc1 {nd}")
        delay(p, DELAY3[0])
        p.L(nd)
    delay(p, DELAY2[0])
    p.L(loop)
    a, b = 56, 60
    I(f"buffer_load_dwordx4 v[{a}:{a+3}], v{V_L16}, {WS}, s{S_MEMR} offen sc1")
    I(f"buffer_load_dwordx4 v[{b}:{b+3}], v{V_L16}, {WS}, s{S_MEMR} offen offset:1024 sc1")
    I(f"s_add_u32 s{S_TO}, s{S_TO}, 1")
    I("s_waitcnt vmcnt(1)")
    I(f"ds_write_b128 v55, v[{a}:{a+3}] offset:{MEMIMG}")
    I(f"v_max3_u32 v52, v{a}, v{a+1}, v{a+2}")
    I("s_waitcnt vmcnt(0)")
    I(f"ds_write_b128 v55, v[{b}:{b+3}] offset:{MEMIMG+1024}")
    I(f"v_max3_u32 v52, v52, v{a+3}, v{b}", f"v_max3_u32 v52, v52, v{b+1}, v{b+2}", f"v_max_u32 v52, v52, v{b+3}")
    I("v_cmp_eq_u32 vcc, -1, v52", f"s_cbranch_vccz {done}", f"s_cmp_lt_u32 s{S_TO}, 0x200000", f"s_cbranch_scc1 {loop}")
    p.L(done)
    p.L(skipa)
    stamp(p, 1, first)
    I("s_waitcnt lgkmcnt(0)")
    I("s_barrier")
    p.reset_q()
    stamp(p, 2, first)
    p.C("QK")
    W = Weaver(p)
    Ab = [A0, A1, A2]
    wb = [W1, W2]
    M48 = f"s[{S_M8}:{S_M8+1}]"
    ld2 = f"buffer_load_dwordx4 v[52:55], v{V_L16}, {WS}, s{S_MEMR8} offen sc1"
    W.raw(aread(0, Ab[0])); W.raw(aread(1, Ab[1]))
    W.raw(f"s_mov_b64 exec, {M48}"); W.raw(ld2); W.raw("s_mov_b64 exec, -1")
    W.raw(f"s_add_u32 s{S_TAG}, s{S_STEP}, 1")
    if FUSED[0]: W.raw(f"s_max_u32 s{S_PUBV}, s{S_STEP}, 1"); W.raw(f"s_sub_u32 s{S_PUBV}, s{S_PUBV}, 1")
    def group(kb, extra, areads=True):
        a = Ab[kb % 3]
        kbsrc = frag(F_KB0) if kb == 0 else f"v[{wb[(kb-1)%2]}:{wb[(kb-1)%2]+7}]"
        X = []
        if kb + 2 < 6: X.append([aread(kb + 2, Ab[(kb + 2) % 3])])
        if kb >= 2:
            w = wread(kb, wb[(kb - 2) % 2])
            if len(w) == 3: X.append([w[1], w[0]] if False else [w[0], w[1]]); X.append([w[2]])
            else: X.append([w[0]]); X.append([w[1]])
        ms = [SM(QA, a, frag(F_QA(kb))), SM(QB, a, frag(F_QB(kb))), SM(KA, a, frag(F_KA(kb))), SM(KB, a, kbsrc)]
        for i, m in enumerate(ms):
            W.raw(m)
            if X:
                for y in X.pop(0): W.raw(y)
            for y in extra.get(i, []): W.raw(y)
        assert not X, X
    group(0, {1: [f"v_add_u32 v{V_VX}, s{S_L8}, v{V_L16}"]}); group(1, {}); group(2, {})
    group(3, {3: ["s_waitcnt vmcnt(0)", f"s_mov_b64 exec, {M48}", f"ds_write_b128 v{V_VX}, v[52:55]", "s_mov_b64 exec, -1"]})
    slow = p.newlabel("st2_slow"); back = p.newlabel("st2_back")
    group(4, {2: [f"v_max3_u32 v{V_VX+1}, v52, v53, v54"], 3: [f"v_max_u32 v{V_VX+1}, v{V_VX+1}, v55"]})
    I(f"s_mov_b64 exec, {M48}", f"v_cmp_eq_u32 vcc, -1, v{V_VX+1}", "s_mov_b64 exec, -1", f"s_cbranch_vccnz {slow}")
    p.L(back)
    p.waitw()
    I("s_barrier")
    stamp(p, 13, first)
    W.raw(aread(6, Ab[0])); W.raw(aread(7, Ab[1]))
    vxl = [f"buffer_load_dwordx4 v[{V_VX+4*tb}:{V_VX+4*tb+3}], v{V_L16}, {WS}, s{S_VX} offen offset:{tb*1024} sc1" for tb in range(2)]
    io = []
    io_vm = [f"v_lshrrev_b32 v{V_VX+1}, 1, v{V_L16}", f"buffer_store_dwordx2 v[{V_PY}:{V_PY+1}], v{V_VX+1}, {WS}, s{S_VM} offen sc1"]
    group(5, {2: [f"s_add_u32 s{S_MEMR}, s{S_MEMR}, {MEM_SLOT}", f"s_cmp_ge_u32 s{S_MEMR}, s{S_MEMEND}"], 3: [aread(8, Ab[2])]})
    group(6, {2: [f"s_cselect_b32 s{S_T0}, {4*MEM_SLOT}, 0", f"s_sub_u32 s{S_MEMR}, s{S_MEMR}, s{S_T0}"], 3: [vxl[0]]})
    group(7, {2: [f"s_add_u32 s{S_MEMR8}, s{S_MEMR}, s{S_D8}"], 3: [vxl[1]]})
    pf = []
    if PREF[0]:
        pf = [[f"s_sub_u32 s{S_T0}, s{S_VX}, s{S_W2048}", f"s_add_u32 s{S_T0}, s{S_T0}, {32*8192}", f"v_lshlrev_b32 v{V_MP}, 3, v{V_L16}"],
              [f"s_sub_u32 s{S_T1}, s{S_KX}, s{S_W2048}", f"s_add_u32 s{S_T1}, s{S_T1}, {32*8192}"],
              [f"s_mov_b64 exec, s[{S_PFM}:{S_PFM+1}]", f"buffer_load_dword v{V_DUM}, v{V_MP}, {WS}, s{S_T0} offen ; nodep"],
              [f"buffer_load_dword v{V_DUM}, v{V_MP}, {WS}, s{S_T1} offen ; nodep", "s_mov_b64 exec, -1"]]
        group(8, {0: pf[0], 1: pf[1], 2: pf[2], 3: pf[3]})
    else:
        group(8, {})
    W.raw(f"v_lshrrev_b32 v{V_MP}, 1, v{V_L16}") if False else None
    EXPORT = [f"v_lshrrev_b32 v52, 1, v{V_L16}", f"buffer_store_dwordx2 v[{V_PY}:{V_PY+1}], v52, {WS}, s{S_VM} offen sc1"]
    if FUSED[0]:
        EXPORT += [f"v_mov_b32 v52, s{S_PUBV}", f"s_mov_b64 exec, s[{S_PUB}:{S_PUB+1}]", f"buffer_store_dword v52, v{V_SQA+1}, {WS}, s{S_CHF} offen sc1", "s_mov_b64 exec, -1"]
    for y in EXPORT: W.raw(y)
    SLOW.append((slow, back, ld2, M48, V_VX))
    stamp(p, 3, first)
    p.C("post QK, V phase as filler")
    items = []
    w9 = wread(9, wb[1])
    vorder = VRES + VSTR
    vA = [A0, A1]
    ubuf = {8: wb[0], 9: wb[1]}
    for pos, kb in enumerate(vorder):
        a = vA[pos % 2]
        for tb in range(2):
            it = []
            if pos < 4:
                it.append(SM(VA + 4 * tb, a, frag(F_VS(tb, pos))))
                if pos == 0: it.append(w9[tb])
            else:
                u = 8 + (pos - 4) * 2 + tb
                b = ubuf[u]
                it.append(SM(VA + 4 * tb, a, f"v[{b}:{b+7}]"))
                if u + 2 < 18:
                    it += wread(u + 2, b); ubuf[u + 2] = b
            if tb == 1 and pos + 2 < 9: it.append(aread(vorder[pos + 2], a))
            items.append(it)
    def VI(n):
        return ("call", lambda n=n: [W.raw(y) for _ in range(n) if items for y in items.pop(0)])
    crit = []
    C = crit.append
    zero = [f"v_mov_b64 v[{VA}:{VA+1}], 0", f"v_mov_b64 v[{VA+2}:{VA+3}], 0", f"v_mov_b64 v[{VB}:{VB+1}], 0", f"v_mov_b64 v[{VB+2}:{VB+3}], 0"]
    if not last:
        C(ad(32, 32, 34)); C(ad(33, 33, 35)); C(ad(36, 36, 38)); C(ad(37, 37, 39)); C(cv(34, 32, 33)); C(cv(35, 36, 37))
    C(ad(40, 40, 42)); C(ad(41, 41, 43)); C(zero[2]); C(zero[3]); C(ad(44, 44, 46)); C(ad(45, 45, 47)); C(cv(42, 40, 41)); C(cv(43, 44, 45))
    if not last:
        C(f"v_mfma_f32_16x16x16_bf16 v[36:39], v[34:35], v[{V_SQA}:{V_SQA+1}], 0")
        C(zero[0]); C(zero[1])
        C(f"v_mfma_f32_16x16x16_bf16 v[32:35], v[34:35], v[{V_SQB}:{V_SQB+1}], 0")
    else:
        C(zero[0]); C(zero[1])
    C(f"v_mfma_f32_16x16x16_bf16 v[44:47], v[42:43], v[{V_SKA}:{V_SKA+1}], 0")
    C(f"v_mfma_f32_16x16x16_bf16 v[40:43], v[42:43], v[{V_SKB}:{V_SKB+1}], 0")
    KMST = f"buffer_store_dwordx4 v[44:47], v{V_L16}, {WS}, s{S_KM} offen sc1"
    OA_, OB_, LL = 32, 52, 56
    VMST = [f"v_lshrrev_b32 v60, 1, v{V_L16}", f"buffer_store_dwordx2 v[50:51], v60, {WS}, s{S_VM} offen sc1"]
    if last:
        C(cv(44, 44, 45)); C(cv(45, 46, 47)); C(cv(46, 40, 41)); C(cv(47, 42, 43)); C(KMST)
        W.weave(crit, []); W.drain(items)
        W.raw(f"v_subrev_u32 v{V_WV}, 0x20000, v{V_WV}")
        W.raw(ad(VA, VA, VA + 2)); W.raw(ad(VA + 1, VA + 1, VA + 3)); W.raw(ad(VB, VB, VB + 2)); W.raw(ad(VB + 1, VB + 1, VB + 3))
        W.raw(cv(50, VA, VA + 1)); W.raw(cv(51, VB, VB + 1))
        W.raw(f"s_add_u32 s{S_VM}, s{S_VM}, {32*2048}")
        for y in VMST: W.raw(y)
        p.fence(); p.reset_q()
        return
    V1, V2, V3, V4, V5, V6, V7 = VPLACE
    C(cv(36, 36, 37)); C(cv(37, 38, 39)); C(cv(38, 32, 33)); C(cv(39, 34, 35))
    C(f"v_mfma_f32_16x16x32_bf16 v[32:35], v[{V_KX}:{V_KX+3}], v[36:39], 0")
    C(cv(44, 44, 45)); C(cv(45, 46, 47)); C(cv(46, 40, 41)); C(cv(47, 42, 43))
    C(f"v_mfma_f32_16x16x32_bf16 v[40:43], v[{V_KX+4}:{V_KX+7}], v[36:39], 0")
    C(f"v_mfma_f32_16x16x32_bf16 v[36:39], v[44:47], v[36:39], 0")
    k = V_KX
    C(f"v_and_b32 v{k+6}, 0x70, v{V_L16}"); C(f"v_lshrrev_b32 v{k+7}, 1, v{V_L16}"); C(f"v_and_b32 v{k+7}, 0x180, v{k+7}"); C(f"v_or_b32 v{k+6}, v{k+6}, v{k+7}")
    C(f"v_lshrrev_b32 v{k+7}, 1, v{k+6}"); C(f"v_and_b32 v{k}, 0x80, v{V_L16}"); C(f"v_lshl_add_u32 v{k+6}, v{k}, 2, v{k+6}")
    C(VI(V1))
    C(f"v_add_u32 v{k+6}, {SEXX}, v{k+6}"); C(f"v_add_u32 v{k+7}, {SEXM}, v{k+7}")
    C(f"v_add_u32 v{k}, s{S_W1024}, v{k+6}"); C(f"v_add_u32 v{k+1}, s{S_W256}, v{k+7}")
    for r in range(4): C(f"v_cndmask_b32_e64 v{32+r}, v{40+r}, v{32+r}, s[{S_NLT8}:{S_NLT8+1}]")
    C(f"ds_write_b128 v{k}, v[32:35]"); C(f"ds_write_b64 v{k+1}, v[36:37]")
    C(("call", lambda: stamp(p, 4, first)))
    C(VI(V2))
    C(KMST)
    C(("call", p.waitw)); C("s_barrier")
    C(("call", lambda: stamp(p, 5, first)))
    for w in range(4): C(f"ds_read_b128 v[{32+4*w}:{35+4*w}], v{k+6} offset:{w*1024}")
    C(f"ds_read2_b64 v[{k}:{k+3}], v{k+7} offset0:0 offset1:32"); C(f"ds_read2_b64 v[{k+4}:{k+7}], v{k+7} offset0:64 offset1:96")
    C(VI(V3))
    for r in range(4): C(ad(32 + r, 32 + r, 36 + r))
    for r in range(4): C(ad(40 + r, 40 + r, 44 + r))
    for r in range(4): C(ad(32 + r, 32 + r, 40 + r))
    C("v_max3_f32 v38, v32, v33, v34")
    C(VI(V4))
    C(ad(k, k, k + 2)); C(ad(k + 1, k + 1, k + 3)); C(ad(k + 4, k + 4, k + 6)); C(ad(k + 5, k + 5, k + 7)); C(ad(36, k, k + 4)); C(ad(37, k + 1, k + 5))
    for kt in range(2):
        C(f"buffer_load_dwordx4 v[{V_KX+4*kt}:{V_KX+4*kt+3}], v{V_L16}, {WS}, s{S_KX} offen offset:{kt*1024} sc1")
    C("v_max3_f32 v38, v38, v35, v36"); C("v_max_f32 v38, v38, v37")
    C(VI(V5))
    C("v_max_f32_dpp v38, v38, v38 row_ror:8 row_mask:0xf bank_mask:0xf")
    C("v_mov_b32 v39, v38"); C("v_mov_b32 v45, 0"); C("v_mov_b32 v46, 0"); C("v_permlane16_swap_b32 v38, v39"); C("v_max_f32 v38, v38, v39")
    C("v_mov_b32 v39, v38"); C(VI(V6)); C("v_permlane32_swap_b32 v38, v39"); C("v_max_f32 v38, v38, v39")
    C(f"v_mul_f32 v38, s{S_C}, v38")
    for r in range(6): C(f"v_fma_f32 v{32+r}, v{32+r}, s{S_C}, -v38")
    C(VI(V7))
    for r in range(6): C(f"v_exp_f32 v{32+r}, v{32+r}")
    C(cv(40, 32, 33)); C(cv(41, 34, 35)); C(cv(44, 36, 37))
    for r in range(0, 4, 2): C(f"v_mov_b64 v[{36+r}:{37+r}], s[{S_ONES}:{S_ONES+1}]")
    C("v_mov_b32_dpp v42, v40 row_ror:8 row_mask:0xf bank_mask:0xf"); C("v_mov_b32_dpp v43, v41 row_ror:8 row_mask:0xf bank_mask:0xf")
    C("v_mov_b32 v47, v44")
    C(("call", lambda: stamp(p, 6, first)))
    W.weave(crit, [])
    rest = items
    W.raw(f"v_mfma_f32_16x16x32_bf16 v[{OA_}:{OA_+3}], v[{V_VX}:{V_VX+3}], v[40:43], 0")
    W.drain(rest)
    assert wv_state["b"] == 2
    W.raw(f"v_subrev_u32 v{V_WV}, 0x20000, v{V_WV}")
    W.raw(ad(VA, VA, VA + 2)); W.raw(ad(VA + 1, VA + 1, VA + 3)); W.raw(ad(VB, VB, VB + 2)); W.raw(ad(VB + 1, VB + 1, VB + 3))
    W.raw(cv(50, VA, VA + 1)); W.raw(cv(51, VB, VB + 1))
    stamp(p, 7, first)
    p.C("PV")
    crit = [f"v_mfma_f32_16x16x32_bf16 v[{LL}:{LL+3}], v[36:39], v[40:43], 0",
            f"v_mfma_f32_16x16x32_bf16 v[{OB_}:{OB_+3}], v[{V_VX+4}:{V_VX+7}], v[40:43], 0",
            f"v_mfma_f32_16x16x16_bf16 v[{OA_}:{OA_+3}], v[50:51], v[44:45], v[{OA_}:{OA_+3}]",
            f"v_mfma_f32_16x16x16_bf16 v[{LL}:{LL+3}], v[36:37], v[44:45], v[{LL}:{LL+3}]",
            f"v_mfma_f32_16x16x16_bf16 v[{OB_}:{OB_+3}], v[50:51], v[46:47], v[{OB_}:{OB_+3}]",
            f"v_rcp_f32 v{LL}, v{LL}"]
    for b in (OA_, OB_):
        for r in range(4): crit.append(f"v_mul_f32 v{b+r}, v{b+r}, v{LL}")
    crit += [cv(OA_, OA_, OA_ + 1), cv(OA_ + 1, OA_ + 2, OA_ + 3), cv(OB_, OB_, OB_ + 1), cv(OB_ + 1, OB_ + 2, OB_ + 3)]
    fill = [f"v_mov_b64 v[{V_PY}:{V_PY+1}], v[50:51]", f"v_bfe_u32 v61, v{V_L16}, 4, 3", f"v_bfe_u32 v62, v{V_L16}, 9, 1", f"v_add_u32 v62, s{S_W4}, v62", "v_xor_b32 v62, v62, v61",
            "v_lshlrev_b32 v62, 4, v62", "v_lshl_add_u32 v62, v61, 8, v62", f"v_bfe_u32 v61, v{V_L16}, 8, 1", "v_lshl_add_u32 v62, v61, 3, v62", f"v_add_u32 v62, {OIMG}, v62", "v_xor_b32 v63, 32, v62"]
    rest = W.weave(crit, [[f] for f in fill]); W.drain(rest)
    W.raw(f"s_mov_b64 exec, s[{S_NLT8}:{S_NLT8+1}]"); W.raw(f"ds_write_b64 v62, v[{OA_}:{OA_+1}]"); W.raw(f"ds_write_b64 v63, v[{OB_}:{OB_+1}]"); W.raw("s_mov_b64 exec, -1")
    stamp(p, 8, first)
    OACC = [32 + 4 * j for j in range(9)]
    OAr = 72; G = 68
    I(f"v_mov_b32 v71, s{S_TAG}")
    for b in range(34, 68, 2):
        if b in (52, 62): continue
        I(f"v_mov_b64 v[{b}:{b+1}], 0")
    p.waitw()
    I("s_barrier")
    I(f"ds_read_b128 v[{OAr}:{OAr+3}], v{V_OR}", f"ds_read_b128 v[{OAr+4}:{OAr+7}], v{V_OR} offset:128")
    for b in (32, 52, 62): I(f"v_mov_b64 v[{b}:{b+1}], 0")
    stamp(p, 9, first)
    p.C("O-proj")
    W = Weaver(p)
    osm = lambda j, kb: SM(OACC[j], OAr + 4 * kb, frag(F_WO(j, kb)))
    seq = [(0, 0), (1, 0), (0, 1), (1, 1)] + [(j, kb) for j in range(2, 9) for kb in range(2)]
    def fin(j):
        b = OACC[j]
        ops = [ad(b, b, b + 2), ad(b + 1, b + 1, b + 3), cv(G + j % 3, b, b + 1)]
        if j % 3 == 2: ops.append(f"buffer_store_dwordx4 v[{G}:{G+3}], v{V_PS}, {WS}, s{S_PS + j // 3} offen{sc_st}")
        return ops
    done_at = {}
    pend = []
    for idx, (j, kb) in enumerate(seq):
        W.raw(osm(j, kb))
        if kb == 1: done_at[j] = idx
        for jj in list(done_at):
            if idx >= done_at[jj] + 2:
                pend += fin(jj); del done_at[jj]
        n = 2 if len(pend) > 2 else 1
        for _ in range(n):
            if pend: W.raw(pend.pop(0))
    for jj in sorted(done_at): pend += fin(jj)
    for o in pend: W.raw(o)
    stamp(p, 10, first)
    p.C("reduce")
    skip = p.newlabel("notask")
    I(f"s_cmp_eq_u32 s{S_HASTASK}, 0", f"s_cbranch_scc1 {skip}")
    RS = 64
    if DELAY1[0]:
        nd = p.newlabel("nodelay")
        I(f"s_cmp_eq_u32 s{S_ISW2}, 0", f"s_cbranch_scc1 {nd}")
        delay(p, DELAY1[0])
        p.L(nd)
    if DELAYG1[0]:
        nd = p.newlabel("nodelay1")
        I(f"s_cmp_lg_u32 s{S_WV}, 1", f"s_cbranch_scc1 {nd}")
        delay(p, DELAYG1[0])
        p.L(nd)
    delay(p, DELAY0[0])
    retry = p.newlabel("p_retry"); ok = p.newlabel("p_ok")
    p.L(retry)
    for i in range(4):
        I(f"buffer_load_dwordx4 v[{32+4*i}:{35+4*i}], v{V_L16}, {WS}, s{S_PL} offen offset:{i*1024} sc1")
    I(f"s_add_u32 s{S_TO2}, s{S_TO2}, 1")
    I(f"v_bfe_u32 v69, v{V_L16}, 4, 2", f"v_bfe_u32 v70, v{V_L16}, 6, 2", "v_lshlrev_b32 v71, 4, v69", "v_mov_b32 v68, 0x3f80", "v_lshlrev_b32 v68, v71, v68",
      "v_cmp_gt_u32 vcc, 2, v69", "v_cndmask_b32 v71, 0, v68, vcc")
    for r in range(3): I(f"v_cmp_eq_u32 vcc, {r}, v70", f"v_cndmask_b32 v{RS+r}, 0, v71, vcc")
    I(f"v_mov_b32 v{RS+3}, 0")
    I(f"v_bfe_u32 v68, v{V_L16}, 8, 2", "v_lshlrev_b32 v68, 10, v68", f"v_bfe_u32 v69, v{V_L16}, 4, 3", "v_lshl_add_u32 v68, v69, 1, v68")
    D = 72
    for i in range(4):
        I(f"s_waitcnt vmcnt({3-i})")
        c = "0" if i == 0 else f"v[{D}:{D+3}]"
        I(f"v_mfma_f32_16x16x32_bf16 v[{D}:{D+3}], v[{RS}:{RS+3}], v[{32+4*i}:{35+4*i}], {c}")
        if i == 2: I("v_min3_u32 v76, v35, v39, v43")
        if i == 3: I("v_min_u32 v76, v76, v47")
    I(f"v_cmp_ne_u32 vcc, s{S_TAG}, v76", f"s_cbranch_vccz {ok}", f"s_cmp_lt_u32 s{S_TO2}, 0x200000", f"s_cbranch_scc1 {retry}")
    p.L(ok)
    stamp(p, 11, first)
    p.fence()
    I(f"v_add_f32_dpp v{D}, v{D}, v{D} row_ror:8 row_mask:0xf bank_mask:0xf", f"v_add_f32_dpp v{D+1}, v{D+1}, v{D+1} row_ror:8 row_mask:0xf bank_mask:0xf")
    I(f"v_mov_b32_dpp v76, v{D} quad_perm:[1,0,3,2] row_mask:0xf bank_mask:0xf", f"v_mov_b32_dpp v77, v{D+1} quad_perm:[1,0,3,2] row_mask:0xf bank_mask:0xf")
    I(f"v_cvt_pk_bf16_f32 v76, v{D}, v76", f"v_cvt_pk_bf16_f32 v77, v{D+1}, v77", "v_mov_b32 v78, -1")
    I(f"s_mov_b64 exec, s[{S_EXMS}:{S_EXMS+1}]", f"buffer_store_dword v76, v68, {WS}, s{S_MEMW} offen{sc_st}", f"buffer_store_dword v77, v68, {WS}, s{S_MEMW} offen offset:16{sc_st}")
    I(f"buffer_store_dword v78, v68, {WS}, s{S_MEMZ} offen{sc_st}", f"buffer_store_dword v78, v68, {WS}, s{S_MEMZ} offen offset:16{sc_st}", "s_mov_b64 exec, -1")
    p.L(skip)
    for r_ in (S_MEMW, S_MEMZ):
        I(f"s_add_u32 s{r_}, s{r_}, {MEM_SLOT}", f"s_cmp_ge_u32 s{r_}, s{S_MEMWEND}", f"s_cselect_b32 s{S_T0}, {4*MEM_SLOT}, 0", f"s_sub_u32 s{r_}, s{r_}, s{S_T0}")
    I(f"s_add_u32 s{S_VX}, s{S_VX}, {32*8192}", f"s_add_u32 s{S_KM}, s{S_KM}, {32*4096}", f"s_add_u32 s{S_VM}, s{S_VM}, {32*2048}", f"s_add_u32 s{S_KX}, s{S_KX}, {32*8192}", f"s_add_u32 s{S_STEP}, s{S_STEP}, 1")
    stamp(p, 12, first)
    p.fence()
    p.reset_q()

def emit_slow(p):
    I = p.I
    WS = f"s[{S_WS}:{S_WS+3}]"
    while SLOW:
        slow, back, ld2, M48, areg = SLOW.pop(0)
        p.fence(); p.reset_q()
        p.L(slow)
        lp = p.newlabel("st2_lp")
        I(f"s_mov_b64 exec, {M48}")
        p.L(lp)
        I(ld2, "s_waitcnt vmcnt(0)", f"v_max3_u32 v{V_VX+1}, v52, v53, v54", f"v_max_u32 v{V_VX+1}, v{V_VX+1}, v55", f"v_cmp_eq_u32 vcc, -1, v{V_VX+1}", f"s_add_u32 s{S_TO3}, s{S_TO3}, 1")
        ok = p.newlabel("st2_ok")
        I(f"s_cbranch_vccz {ok}", f"s_cmp_lt_u32 s{S_TO3}, 0x200000", f"s_cbranch_scc1 {lp}")
        p.L(ok)
        I(f"ds_write_b128 v{areg}, v[52:55]", "s_mov_b64 exec, -1", "s_waitcnt lgkmcnt(0)", f"s_branch {back}")
        p.reset_q()

def chain_loop(p, local, nsteps=64):
    I = p.I
    p.reset_q()
    loop = p.newlabel("chain_loop")
    p.fence()
    p.L(loop)
    step(p, local=local)
    I(f"s_cmp_lt_u32 s{S_STEP}, {nsteps-1}", f"s_cbranch_scc1 {loop}")
    step(p, local=local, first=False, last=True)
    I("s_waitcnt vmcnt(0)", "s_barrier")
    if FUSED[0]:
        I("v_mov_b32 v52, 64", "v_mov_b32 v53, 0", f"s_mov_b64 exec, s[{S_PUB}:{S_PUB+1}]", f"buffer_store_dword v52, v53, s[{S_WS}:{S_WS+3}], s{S_CHF} offen sc1", "s_mov_b64 exec, -1")
    over = p.newlabel("over_slow")
    I(f"s_branch {over}")
    emit_slow(p)
    p.L(over)

def gen_chain(p, local=True, nsteps=64, stamps=False):
    I = p.I
    setup_chain(p, local)
    preload(p)
    chain_state(p)
    if stamps: I(f"s_memtime s[{S_TS}:{S_TS+1}]", "s_waitcnt lgkmcnt(0)")
    chain_loop(p, local, nsteps)
    if stamps:
        I("s_waitcnt vmcnt(0) lgkmcnt(0)", f"s_memtime s[{S_TS+2}:{S_TS+3}]", "s_waitcnt lgkmcnt(0)")
        I(f"s_sub_u32 s{S_TS}, s{S_TS+2}, s{S_TS}", f"v_mov_b32 v44, s{S_TS}")
        lab = p.newlabel("st")
        I(f"s_cmp_lg_u32 s{S_WV}, 0", f"s_cbranch_scc1 {lab}")
        I(f"s_lshl_b32 s{S_T0}, s{S_H}, 2", f"s_add_u32 s{S_T0}, s{S_T0}, 128", f"v_mov_b32 v45, s{S_T0}", "s_mov_b64 exec, 1", f"global_store_dword v45, v44, s[{S_DBG}:{S_DBG+1}]", "s_mov_b64 exec, -1")
        p.L(lab)
    prof_dump(p)

def prof_dump(p):
    I = p.I
    if PROF[0]:
        I("s_waitcnt lgkmcnt(0)")
        I(f"s_lshl_b32 s{S_T0}, s{S_H}, 2", f"s_add_u32 s{S_T0}, s{S_T0}, s{S_WV}", f"s_lshl_b32 s{S_T0}, s{S_T0}, 7", f"s_add_u32 s{S_T0}, s{S_T0}, {0x9000000}")
        I("s_mov_b64 exec, 1", "v_mov_b32 v45, 0")
        for k in range(PNST):
            I(f"v_mov_b32 v44, s{S_ST+2*k if k < 13 else 14}", f"buffer_store_dword v44, v45, s[{S_WS}:{S_WS+3}], s{S_T0} offen offset:{4*k}")
        for k, r_ in enumerate((S_TO, S_TO2, S_TO3)):
            I(f"v_mov_b32 v44, s{r_}", f"buffer_store_dword v44, v45, s[{S_WS}:{S_WS+3}], s{S_T0} offen offset:{64+4*k}")
        I("s_mov_b64 exec, -1")

def standalone(local=True, stamps=True, nsteps=64):
    name = "chain_kernel"
    p = AProg()
    p.raw(f"; @launch kernel={name} grid=(256,1,1) block=(256,1,1) lds=163840")
    p.raw('.amdgcn_target "amdgcn-amd-amdhsa--gfx950"\n.text')
    p.raw(f".globl {name}\n.p2align 8\n.type {name},@function\n{name}:")
    I = p.I
    I(f"s_cmp_ge_u32 s2, 256", "s_cbranch_scc1 L_end")
    I(f"s_load_dwordx2 s[{S_PTR}:{S_PTR+1}], s[0:1], {KARG['A_mem0']}")
    I(f"s_load_dwordx4 s[{S_PTR+2}:{S_PTR+5}], s[0:1], {KARG['A_Wq']}")
    I(f"s_load_dwordx2 s[{S_PTR+6}:{S_PTR+7}], s[0:1], {KARG['A_Wv']}")
    I(f"s_load_dwordx2 s[{S_PTR+8}:{S_PTR+9}], s[0:1], {KARG['A_Wo']}")
    I(f"s_load_dwordx2 s[{S_DBG}:{S_DBG+1}], s[0:1], {KARG['dbg']}")
    I(f"s_load_dwordx2 s[{S_PTR+10}:{S_PTR+11}], s[0:1], {KARG['ws']}")
    I("s_waitcnt lgkmcnt(0)")
    I(f"s_mov_b32 s{S_WS}, s{S_PTR+10}", f"s_and_b32 s{S_WS+1}, s{S_PTR+11}, 0xffff", f"s_mov_b32 s{S_WS+2}, {WS_BYTES}", f"s_mov_b32 s{S_WS+3}, 0x20000")
    I(f"s_mov_b32 s{S_MEM}, s{S_PTR}", f"s_and_b32 s{S_MEM+1}, s{S_PTR+1}, 0xffff", f"s_mov_b32 s{S_MEM+2}, 9216", f"s_mov_b32 s{S_MEM+3}, 0x20000")
    lane_consts(p)
    I(f"s_getreg_b32 s{S_T0}, hwreg(HW_REG_XCC_ID, 0, 4)")
    I(f"s_cmp_lg_u32 s{S_T0}, 0", "s_cbranch_scc1 L_end")
    lab = p.newlabel("role")
    I(f"s_cmp_lg_u32 s{S_WV}, 0", f"s_cbranch_scc1 {lab}")
    I("s_mov_b64 exec, 1", "v_mov_b32 v44, 1", "v_mov_b32 v45, 0", f"global_atomic_add v46, v45, v44, s[{S_DBG}:{S_DBG+1}] sc0", "s_waitcnt vmcnt(0)", "v_mov_b32 v45, 0", "ds_write_b32 v45, v46", "s_waitcnt lgkmcnt(0)", "s_mov_b64 exec, -1")
    p.L(lab)
    I("s_barrier", "v_mov_b32 v45, 0", "ds_read_b32 v46, v45", "s_waitcnt lgkmcnt(0)", f"v_readfirstlane_b32 s{S_H}, v46", "s_barrier")
    I(f"s_cmp_ge_u32 s{S_H}, 32", "s_cbranch_scc1 L_end")
    gen_chain(p, local=local, stamps=stamps, nsteps=nsteps)
    p.L("L_end")
    I("s_endpgm")
    p.raw(kd(name))
    return p.render()

if __name__ == "__main__":
    import sys
    for a in sys.argv[2:]:
        if a == "prof": PROF[0] = True
        if a == "rt": RT[0] = True
        if a.startswith("hold="): HOLD[0] = int(a[5:])
        if a.startswith("lead="): LEAD[0] = int(a[5:])
        if a.startswith("lat="): Weaver.LDS_LAT = int(a[4:])
        if a.startswith("vp="): VPERIOD[0] = int(a[3:])
        if a == "nobar4": BAR4[0] = False
        if a.startswith("touch="): TOUCH[0] = int(a[6:])
        if a.startswith("s2i="): ST2_ISSUE[0] = int(a[4:])
        if a.startswith("s2c="): ST2_CHECK[0] = int(a[4:])
        if a.startswith("g1="): DELAYG1[0] = int(a[3:])
        if a == "nopref": PREF[0] = False
        if a.startswith("vpl="): VPLACE[:] = [int(c) for c in a[4:]]
        if a.startswith("d3="): DELAY3[0] = int(a[3:])
        if a.startswith("d0="): DELAY0[0] = int(a[3:])
        if a.startswith("d1="): DELAY1[0] = int(a[3:])
        if a.startswith("d2="): DELAY2[0] = int(a[3:])
    open(sys.argv[1], "w").write(standalone())
```

```python
import sys
import chain4 as ch
from gemm576 import *
from test_gemm import role_gemm1, role_bq
from test_b import role_bo
from attna import *
from attnb import *
from oproja import *
NAME = "concat_heads__memory_aug_recurrent_mem_tr__grouped_kv_mqa__prompt_kernel"
HEAD = open("concat_heads__memory_aug_recurrent_mem_tr__grouped_kv_mqa__prompt.s.ref").read().split("; Override launch geometry")[0]
PT = 72
PN = ["A_x", "A_mem0", "A_Wq", "A_Wk", "A_Wv", "A_Wo", "B_x", "B_wq", "B_wk", "B_wv", "B_wo", "out"]
def ptr(n): return PT + 2 * PN.index(n)
S_ROLE = 44
N_OPROJ, N_BO0, N_BOUT = 48, 48, 24
ATTNB0 = 96

TL = [False]
def ts(p, k, rolereg, a=30, b=31):
    if not TL[0]: return
    I = p.I
    lab = p.newlabel("ts")
    I(f"s_cmp_lg_u32 s19, 0", f"s_cbranch_scc1 {lab}")
    I("s_memrealtime s[2:3]", "s_waitcnt lgkmcnt(0)", f"s_lshl_b32 s3, s{rolereg}, 6", f"s_add_u32 s3, s3, {0x9100000 + 4*k}")
    I("s_mov_b64 exec, 1", f"v_mov_b32 v{a}, s2", f"v_mov_b32 v{b}, 0", f"buffer_store_dword v{a}, v{b}, s[4:7], s3 offen", "s_mov_b64 exec, -1", "s_nop 1")
    p.L(lab)

def tc(p, k, rolereg, a=30, b=31):
    if not TL[0]: return
    I = p.I
    lab = p.newlabel("tc")
    I(f"s_cmp_lg_u32 s19, 0", f"s_cbranch_scc1 {lab}")
    I("s_memtime s[2:3]", "s_waitcnt lgkmcnt(0)", f"s_lshl_b32 s3, s{rolereg}, 6", f"s_add_u32 s3, s3, {0x9100000 + 4*k}")
    I("s_mov_b64 exec, 1", f"v_mov_b32 v{a}, s2", f"v_mov_b32 v{b}, 0", f"buffer_store_dword v{a}, v{b}, s[4:7], s3 offen", "s_mov_b64 exec, -1", "s_nop 1")
    p.L(lab)

def build(opts):
    TL[0] = bool(opts.get("tl"))
    ch.PROF[0] = bool(opts.get("prof"))
    ch.PREF[0] = not opts.get("nopref")
    ch.STEPTS[0] = bool(opts.get("sts"))
    ch.FUSED[0] = True
    p = AProg(); I = p.I
    p.raw(HEAD.rstrip("\n"))
    p.raw("; Override launch geometry by editing the next line.")
    p.raw("; @launch grid=(256,1,1) block=(256,1,1) lds=163840")
    p.raw('.amdgcn_target "amdgcn-amd-amdhsa--gfx950"\n.text')
    kernel_head(p, NAME)
    S_DBG, S_WS, S_MEM, S_WV, S_H = ch.S_DBG, ch.S_WS, ch.S_MEM, ch.S_WV, ch.S_H
    I("s_cmp_ge_u32 s2, 256", "s_cbranch_scc1 L_end")
    load_ptrs(p, PN, PT)
    I(f"s_load_dwordx2 s[{S_DBG}:{S_DBG+1}], s[0:1], {KARG['dbg']}", f"s_load_dwordx2 s[46:47], s[0:1], {KARG['ws']}")
    I("s_waitcnt lgkmcnt(0)")
    srd(p, S_WS, 46, WS_BYTES)
    I(f"s_mov_b32 s{S_ABORT}, 0")
    ch.lane_consts(p)
    I("s_getreg_b32 s24, hwreg(HW_REG_XCC_ID, 0, 4)", "s_and_b32 s24, s24, 7")
    lab = p.newlabel("role")
    I(f"s_cmp_lg_u32 s{S_WV}, 0", f"s_cbranch_scc1 {lab}")
    I("s_mov_b64 exec, 1", "v_mov_b32 v44, 1", "s_lshl_b32 s25, s24, 2", "v_mov_b32 v45, s25", f"global_atomic_add v46, v45, v44, s[{S_DBG}:{S_DBG+1}] sc0", "s_waitcnt vmcnt(0)")
    I("v_readfirstlane_b32 s26, v46")
    I(f"s_cmp_eq_u32 s24, {opts.get('chx', 0)}", "s_cselect_b32 s27, s26, 1000", "s_cmp_lt_u32 s27, 32", "s_cbranch_scc1 L_isch")
    I(f"v_mov_b32 v45, {DBG_WORK}", f"global_atomic_add v46, v45, v44, s[{S_DBG}:{S_DBG+1}] sc0", "s_waitcnt vmcnt(0)", "v_add_u32 v46, 32, v46")
    p.L("L_isch")
    I("v_mov_b32 v45, 0", "ds_write_b32 v45, v46", "s_waitcnt lgkmcnt(0)", "s_mov_b64 exec, -1")
    p.L(lab)
    I("s_barrier", "v_mov_b32 v45, 0", "ds_read_b32 v46, v45", "s_waitcnt lgkmcnt(0)", f"v_readfirstlane_b32 s{S_H}, v46", "s_barrier")
    I("s_mov_b32 s98, 0")
    I(f"s_cmp_lt_u32 s{S_H}, 256", "s_cbranch_scc1 L_notx", f"s_sub_u32 s{S_H}, 287, s{S_H}", "s_mov_b32 s98, 1")
    p.L("L_notx")
    I(f"s_cmp_ge_u32 s{S_H}, 32", "s_cbranch_scc1 L_worker")
    I("s_mov_b32 s45, s98")
    ts(p, 0, S_H, 52, 53)
    chain_role(p, opts)
    I("s_branch L_end")
    p.L("L_worker")
    I(f"s_sub_u32 s{S_ROLE}, s{S_H}, 32")
    ts(p, 0, S_H)
    worker(p, opts)
    p.L("L_end"); I("s_endpgm")
    p.raw(kd(NAME))
    return p.render()

def chain_role(p, opts):
    I = p.I
    S_PTR = ch.S_PTR
    for i, n in enumerate(["A_mem0", "A_Wq", "A_Wk", "A_Wv", "A_Wo"]):
        I(f"s_mov_b32 s{S_PTR+2*i}, s{ptr(n)}", f"s_mov_b32 s{S_PTR+2*i+1}, s{ptr(n)+1}")
    srd(p, ch.S_MEM, S_PTR, 9216)
    ch.setup_chain(p, local=False)
    ts(p, 1, ch.S_H, 66, 67)
    ch.preload(p)
    ts(p, 2, ch.S_H, 52, 53)
    lab = p.newlabel("mode"); dec = p.newlabel("mode_d")
    I("s_cmp_lg_u32 s45, 0", f"s_cbranch_scc1 {dec}", f"s_mov_b32 s{ch.S_T2}, 0")
    p.L(lab)
    I(f"v_mov_b32 v45, {4*opts.get('chx', 0)}", f"global_load_dword v44, v45, s[{ch.S_DBG}:{ch.S_DBG+1}] sc1", f"v_mov_b32 v45, {DBG_WORK}", f"global_load_dword v46, v45, s[{ch.S_DBG}:{ch.S_DBG+1}] sc1", "s_waitcnt vmcnt(0)")
    I(f"v_readfirstlane_b32 s{ch.S_T0}, v44", f"v_readfirstlane_b32 s{ch.S_T1}, v46")
    I(f"s_cmp_ge_u32 s{ch.S_T0}, 32", f"s_cbranch_scc1 {dec}", f"s_cmp_gt_u32 s{ch.S_T1}, 224", "s_cselect_b32 s45, 1, 0", f"s_cbranch_scc1 {dec}")
    I("s_sleep 4", f"s_add_u32 s{ch.S_T2}, s{ch.S_T2}, 1", f"s_cmp_lt_u32 s{ch.S_T2}, 0x100000", f"s_cbranch_scc1 {lab}")
    p.L(dec)
    if opts.get("forceglobal"): I("s_mov_b32 s45, 1")
    I("s_mov_b32 s12, s45")
    ch.chain_state(p)
    ts(p, 3, ch.S_H, 52, 53); tc(p, 8, ch.S_H, 52, 53)
    I("s_cmp_lg_u32 s12, 0", "s_cbranch_scc1 L_chain_global")
    ch.chain_loop(p, local=True)
    ts(p, 4, ch.S_H, 52, 53); tc(p, 9, ch.S_H, 52, 53)
    ch.prof_dump(p)
    I("s_branch L_end")
    p.L("L_chain_global")
    ch.chain_loop(p, local=False)

def worker(p, opts):
    I = p.I
    S_DBG = ch.S_DBG
    lab = p.newlabel("noinit")
    I(f"s_cmp_lg_u32 s{S_ROLE}, 0", f"s_cbranch_scc1 {lab}")
    I("v_mov_b64 v[44:45], 0", "v_mov_b64 v[46:47], 0", f"s_lshl_b32 s{G_T0}, s{G_WV}, 10", f"s_add_u32 s{G_T0}, s{G_T0}, {FLAG_OFF}")
    I(f"buffer_store_dwordx4 v[44:47], v0, s[{G_WS}:{G_WS+3}], s{G_T0} offen sc1", "s_waitcnt vmcnt(0)", "s_barrier")
    lab2 = p.newlabel("ini2")
    I(f"s_cmp_lg_u32 s{G_WV}, 0", f"s_cbranch_scc1 {lab2}")
    I("s_mov_b64 exec, 1", "v_mov_b32 v44, 1", f"v_mov_b32 v45, {DBG_INIT}", f"global_store_dword v45, v44, s[{S_DBG}:{S_DBG+1}] sc1", "s_mov_b64 exec, -1")
    p.L(lab2); p.L(lab)
    mid = lambda p: wait_init(p, S_DBG, tmpv=(48, 49))
    I(f"s_cmp_ge_u32 s{S_ROLE}, 192", "s_cbranch_scc1 L_p1b")
    role_gemm1(p, f"s{S_ROLE}", ptr("A_x"), ptr("A_Wq"), ptr("A_Wk"), ptr("A_Wv"), mid=mid)
    I("s_branch L_p2")
    p.L("L_p1b")
    I(f"s_cmp_ge_u32 s{S_ROLE}, 216", "s_cbranch_scc1 L_p1c")
    I(f"s_sub_u32 s36, s{S_ROLE}, 192")
    role_bq(p, 36, ptr("B_x"), ptr("B_wq"), endsig=BQCNT, mid=mid)
    I("s_branch L_p2")
    p.L("L_p1c")
    srd(p, G_X, ptr("B_x"), 2048 * 1152)
    I(f"s_sub_u32 s20, s{S_ROLE}, 216", "s_lshl_b32 s20, s20, 2", f"s_add_u32 s20, s20, s{G_WV}", "s_mov_b32 s21, 32")
    kvproj(p, ptr("B_wk"), ptr("B_wv"), 2, 20)
    I("s_waitcnt vmcnt(0)")
    wait_init(p, S_DBG, tmpv=(30, 31))
    I(f"s_mov_b32 s{G_T0}, {BKVCNT}")
    signal_add(p, G_WS, G_T0)
    p.L("L_p2")
    p.fence(); p.reset_q()
    I("s_barrier")
    ts(p, 1, ch.S_H)
    relane(p)
    I(f"s_cmp_lt_u32 s{S_ROLE}, {N_OPROJ}", "s_cbranch_scc1 L_oproj")
    I(f"s_cmp_lt_u32 s{S_ROLE}, {ATTNB0}", "s_cbranch_scc1 L_attna")
    poll_ge(p, G_WS, BQCNT, 24, imm=True); poll_ge(p, G_WS, BKVCNT, 32, imm=True)
    attnb_setup(p)
    I(f"s_sub_u32 s{B_TASK}, s{S_ROLE}, {ATTNB0}", f"s_lshl_b32 s{B_TASK}, s{B_TASK}, 2", f"s_add_u32 s{B_TASK}, s{B_TASK}, s{G_WV}")
    p.fence(); p.reset_q(); p.L("L_bl")
    attnb_task(p)
    I("s_waitcnt vmcnt(0)", f"s_and_b32 s{G_T0}, s{B_TASK}, 31", f"s_lshl_b32 s{G_T0}, s{G_T0}, 2", f"s_add_u32 s{G_T0}, s{G_T0}, {BACNT}")
    signal_add(p, G_WS, G_T0)
    I(f"s_add_u32 s{B_TASK}, s{B_TASK}, 512")
    p.fence(); p.reset_q()
    I(f"s_cmp_lt_u32 s{B_TASK}, 1024", "s_cbranch_scc1 L_bl")
    I("s_barrier")
    ts(p, 2, ch.S_H)
    I(f"s_cmp_ge_u32 s{S_ROLE}, {ATTNB0 + N_BOUT}", "s_cbranch_scc1 L_attna")
    def bo_wait(p, segreg):
        I(f"s_lshr_b32 s{G_T0}, s{segreg}, 1", f"s_lshl_b32 s{G_T0}, s{G_T0}, 2", f"s_add_u32 s{G_T0}, s{G_T0}, {BACNT}", f"s_mov_b32 s45, s{G_T0}")
        poll_ge(p, G_WS, 45, 32, tmpv=(48, 49))
    I(f"s_sub_u32 s36, s{S_ROLE}, {ATTNB0}")
    relane(p)
    role_bo(p, 36, 46, ptr("B_wo"), ptr("out"), prewait=bo_wait, xsc=" sc1")
    p.fence(); p.reset_q()
    I("s_barrier")
    relane(p)
    p.L("L_attna")
    ts(p, 3, ch.S_H)
    relane(p)
    attna_setup(p)
    p.fence(); p.reset_q(); p.L("L_al")
    I("s_mov_b64 exec, 1", "v_mov_b32 v30, 1", "v_mov_b32 v31, 0", f"s_mov_b32 s{G_T0}, {ATICK}", f"buffer_atomic_add v30, v31, s[{G_WS}:{G_WS+3}], s{G_T0} offen sc0", "s_waitcnt vmcnt(0)", "s_mov_b64 exec, -1")
    I(f"v_readfirstlane_b32 s{A_TASK}, v30")
    I(f"s_cmp_ge_u32 s{A_TASK}, 2048", "s_cbranch_scc1 L_aend")
    I(f"s_lshr_b32 s36, s{A_TASK}, 5", "s_lshl_b32 s37, s36, 2")
    I(f"s_add_u32 s38, s37, {QCNT}"); poll_ge(p, G_WS, 38, 16)
    I(f"s_add_u32 s38, s37, {KVCNT}"); poll_ge(p, G_WS, 38, 32)
    def chwait(p):
        I(f"s_and_b32 s38, s{A_TASK}, 31", "s_lshl_b32 s38, s38, 2", f"s_add_u32 s38, s38, {CHFLG}", "s_add_u32 s39, s36, 1")
        poll_ge(p, G_WS, 38, "s39", tmpv=(29, 30))
    attna_task(p, midwait=chwait)
    I("s_waitcnt vmcnt(0)", f"s_lshr_b32 s{G_T0}, s{A_TASK}, 5", f"s_lshl_b32 s{G_T0}, s{G_T0}, 2", f"s_add_u32 s{G_T0}, s{G_T0}, {ACNT}")
    signal_add(p, G_WS, G_T0)
    p.fence(); p.reset_q()
    I("s_branch L_al")
    p.L("L_aend")
    ts(p, 4, ch.S_H)
    I("s_branch L_end")
    p.L("L_oproj")
    srd(p, G_W, ptr("A_Wo"), 4096 * 1152); srd(p, G_O, ptr("out"), 2048 * 2304)
    I(f"s_mul_hi_u32 s{G_SEG}, s{S_ROLE}, {(1 << 32) // 12 + 1}", f"s_mul_i32 s{G_T0}, s{G_SEG}, 12", f"s_sub_u32 s{G_T0}, s{S_ROLE}, s{G_T0}", f"s_mul_i32 s{G_WCOL}, s{G_T0}, 96")
    oproj_setup(p); oproj_preload(p)
    ts(p, 2, ch.S_H)
    p.fence(); p.reset_q(); p.L("L_ol")
    I(f"s_lshl_b32 s38, s{G_SEG}, 2", f"s_add_u32 s38, s38, {ACNT}")
    poll_ge(p, G_WS, 38, 32, tmpv=(30, 31))
    oproj_seg(p)
    I(f"s_add_u32 s{G_SEG}, s{G_SEG}, {N_OPROJ // 12}")
    p.fence(); p.reset_q()
    I(f"s_cmp_lt_u32 s{G_SEG}, 64", "s_cbranch_scc1 L_ol")
    I("s_waitcnt vmcnt(0)")
    ts(p, 4, ch.S_H)
    I("s_branch L_end")

def relane(p):
    p.I("v_lshrrev_b32 v33, 4, v0", "v_and_b32 v34, 15, v33", "v_lshrrev_b32 v35, 4, v33")

if __name__ == "__main__":
    opts = {}
    for a in sys.argv[2:]:
        if a.startswith("g1="): ch.DELAYG1[0] = int(a[3:])
        elif a.startswith("d3="): ch.DELAY3[0] = int(a[3:])
        elif a.startswith("d0="): ch.DELAY0[0] = int(a[3:])
        elif a.startswith("d1="): ch.DELAY1[0] = int(a[3:])
        elif a.startswith("d2="): ch.DELAY2[0] = int(a[3:])
        elif "=" in a: k, v = a.split("="); opts[k] = int(v)
        else: opts[a] = 1
    open(sys.argv[1], "w").write(build(opts))
```

```python
import struct
from asmlib2 import *
from common import *
import common, sys as _sys
if 'hot' in _sys.argv: MEM_SLOT = 0

MEMIMG, SEXM, SEXX, OIMG, WVL = 0, 9216, 10240, 14336, 16384
PART_BYTES = 48 * 8192
SCALE_LOG2E = 0.08838834764831845 * 1.4426950408889634

S_WS, S_MEM, S_W = 4, 8, 12
S_DBG = 16
S_H, S_WV, S_STEP = 18, 19, 20
S_MEMR, S_MEMW, S_KX, S_VX, S_KM, S_VM = 21, 22, 23, 24, 25, 26
S_TO, S_T0, S_T1, S_T2 = 27, 28, 29, 30
S_C = 31
S_NLT8 = 32
S_M8 = 34
S_PS = 36
S_PL, S_ISW2 = 41, 42
S_W1024, S_W256 = 43, 44
S_HASTASK = 45
S_PTR = 46
S_EXMS = 58
S_D8, S_L8, S_MEMR8, S_TAG = 64, 65, 66, 67
S_ONES, S_W4 = 68, 70
S_MEMR2 = 57
S_B01, S_TO3, S_MEMEND, S_MEMZ, S_MEMWEND = 57, 61, 60, 39, 40
SLOW = []
VPLACE = [2, 4, 3, 2, 2, 2, 3]
V_DUM = 27
ST2_ISSUE = [1]
ST2_CHECK = [4]
S_C2 = 62
S_TCH, S_TMASK = 98, 100
S_RDY, S_CHF = 10, 11
S_PUBV = 13
S_PFM, S_W2048 = 46, 48
PREF = [True]
STEPTS = [False]
S_PUB = 8
FUSED = [False]
TOUCH = [2]
S_TO2 = 71
S_TS = 50
PNST = 14
S_ST = 72

V_L16, V_IDX = 0, 1
V_SQA, V_SQB, V_SKA, V_SKB = 2, 4, 6, 8
V_KX, V_VX = 10, 18
V_WV, V_MP, V_PY, V_PS, V_OR = 26, 27, 28, 30, 31

def frag(f): return ar(8 * f, 8) if f < 32 else vr(80 + 8 * (f - 32), 8)
def fragb(f): return ("a", 8 * f) if f < 32 else ("v", 80 + 8 * (f - 32))
def frag_sub(f, off, n):
    k, b = fragb(f)
    return f"{k}[{b+off}:{b+off+n-1}]" if n > 1 else f"{k}{b+off}"
def F_QA(kb): return kb
def F_QB(kb): return 9 + kb
def F_KA(kb): return 18 + kb
F_KB0 = 27
VRES = [6, 7, 0, 1]
VSTR = [2, 3, 4, 5, 8]
def F_VS(tb, slot): return 28 + slot * 2 + tb
def F_WO(j, kb): return 36 + j * 2 + kb

PROF = [False]
RT = [False]
TAGALL = [False]
def stamp(p, k, on):
    r = S_ST + 2 * k if k < 13 else 14
    if PROF[0] and on: p.I(f"{'s_memrealtime' if RT[0] else 's_memtime'} s[{r}:{r+1}]")

def lane_consts(p):
    I = p.I
    I("v_lshrrev_b32 v32, 6, v0", "v_and_b32 v33, 63, v0", f"v_readfirstlane_b32 s{S_WV}, v32")
    I("v_and_b32 v34, 15, v33", "v_lshrrev_b32 v35, 4, v33")
    I("v_and_b32 v36, 7, v33")
    I("v_bfe_u32 v37, v33, 3, 1")
    I(f"v_lshlrev_b32 v{V_L16}, 4, v33")
    I("v_lshrrev_b32 v38, 2, v34", "v_lshlrev_b32 v38, 1, v38", "v_and_b32 v39, 1, v34", "v_or_b32 v38, v38, v39", "v_bfe_u32 v39, v34, 1, 1")
    I("v_mov_b32 v40, 0x44444444", "v_mov_b32 v41, 0xeeeeeeee", "v_cmp_eq_u32 vcc, 0, v39", f"v_cndmask_b32 v{V_IDX}, v41, v40, vcc")

def setup_chain(p, local):
    I = p.I
    sc_st = "" if local else " sc1"
    I(f"s_lshl_b32 s{S_W1024}, s{S_WV}, 10", f"s_lshl_b32 s{S_W256}, s{S_WV}, 8")
    I(f"s_lshl_b32 s{S_T0}, s{S_WV}, 11", f"s_add_u32 s{S_T0}, s{S_T0}, {WVL}", f"v_add_u32 v{V_WV}, s{S_T0}, v{V_L16}")
    I(f"v_mul_u32_u24 v{V_MP}, 1152, v38", f"v_lshl_add_u32 v{V_MP}, v35, 5, v{V_MP}", f"v_lshl_add_u32 v{V_MP}, v39, 4, v{V_MP}",
      f"s_lshl_b32 s{S_T0}, s{S_WV}, 7", f"v_add_u32 v{V_MP}, s{S_T0}, v{V_MP}")
    I(f"v_lshlrev_b32 v{V_PS}, 13, v35", f"v_lshl_add_u32 v{V_PS}, v37, 12, v{V_PS}", f"v_lshl_add_u32 v{V_PS}, v36, 4, v{V_PS}")
    I("v_lshl_add_u32 v40, v35, 1, v39", "v_xor_b32 v40, v40, v38", "v_lshlrev_b32 v40, 4, v40", "v_lshl_add_u32 v40, v38, 8, v40", f"v_add_u32 v{V_OR}, {OIMG}, v40")
    for src, ra, rb in ((36, V_SQA, V_SQB), (38, V_SKA, V_SKB)):
        I("v_lshlrev_b32 v40, 1, v35", f"v_sub_u32 v40, v{src}, v40", "v_mov_b32 v41, 0", "v_mov_b32 v42, 0x3f80", "v_mov_b32 v43, 0x3f800000")
        I("v_cmp_eq_u32 vcc, 0, v40", "v_cndmask_b32 v41, v41, v42, vcc", "v_cmp_eq_u32 vcc, 1, v40", f"v_cndmask_b32 v{ra}, v41, v43, vcc")
        I(f"v_mov_b32 v{ra+1}, 0", f"v_mov_b32 v{rb}, 0", f"v_mov_b32 v{rb+1}, v{ra}")
    I(f"s_mov_b32 s{S_NLT8}, 0x00ff00ff", f"s_mov_b32 s{S_NLT8+1}, 0x00ff00ff")
    I(f"s_mov_b32 s{S_ONES}, 0x3f803f80", f"s_mov_b32 s{S_ONES+1}, 0x3f803f80", f"s_lshl_b32 s{S_W4}, s{S_WV}, 2")
    cbits = struct.unpack("<I", struct.pack("<f", SCALE_LOG2E))[0]
    I(f"s_mov_b32 s{S_C}, 0x{cbits:08x}", f"s_mov_b32 s{S_C2}, 0x{cbits:08x}", f"s_mov_b32 s{S_C2+1}, 0x{cbits:08x}")
    p.C("init fills: PART zero (12288 B per WG), MEM ring sentinel (slots 1..3 : 27648 B = 27 KB by WG 1..7)")
    I(f"s_mul_i32 s{S_T0}, s{S_H}, 12288", f"s_add_u32 s{S_T1}, s{S_T0}, s{S_W1024}", f"s_add_u32 s{S_T1}, s{S_T1}, {PART_OFF}")
    I("v_mov_b64 v[44:45], 0", "v_mov_b64 v[46:47], 0", "v_mov_b64 v[48:49], -1", "v_mov_b64 v[50:51], -1")
    for rnd in range(3):
        I(f"buffer_store_dwordx4 v[44:47], v{V_L16}, s[{S_WS}:{S_WS+3}], s{S_T1} offen{sc_st}")
        if rnd < 2: I(f"s_add_u32 s{S_T1}, s{S_T1}, 4096")
    lab = p.newlabel("fill_skip")
    I(f"s_lshl_b32 s{S_T0}, s{S_H}, 2", f"s_add_u32 s{S_T0}, s{S_T0}, s{S_WV}", f"s_sub_u32 s{S_T0}, s{S_T0}, 4", f"s_cmp_ge_u32 s{S_T0}, 27", f"s_cbranch_scc1 {lab}")
    I(f"s_lshl_b32 s{S_T0}, s{S_T0}, 10", f"s_add_u32 s{S_T2}, s{S_T0}, {MEM_OFF + MEM_SLOT}", f"buffer_store_dwordx4 v[48:51], v{V_L16}, s[{S_WS}:{S_WS+3}], s{S_T2} offen{sc_st}")
    p.L(lab)
    I("s_waitcnt vmcnt(0)", "s_barrier")
    lab = p.newlabel("no_m0")
    I(f"s_cmp_lg_u32 s{S_H}, 0", f"s_cbranch_scc1 {lab}")
    I(f"buffer_load_dwordx4 v[44:47], v{V_MP}, s[{S_MEM}:{S_MEM+3}], 0 offen", f"buffer_load_dwordx4 v[48:51], v{V_MP}, s[{S_MEM}:{S_MEM+3}], 0 offen offset:512")
    I(f"s_lshl_b32 s{S_T0}, s{S_WV}, 7", f"v_subrev_u32 v52, s{S_T0}, v{V_MP}", f"buffer_load_dwordx4 v[56:59], v52, s[{S_MEM}:{S_MEM+3}], 0 offen offset:1024")
    I(f"s_add_u32 s{S_T0}, s{S_W1024}, {MEM_OFF}", f"s_mov_b32 s{S_T1}, {MEM_OFF + 8192}", "s_waitcnt vmcnt(0)")
    I(f"buffer_store_dwordx4 v[44:47], v{V_L16}, s[{S_WS}:{S_WS+3}], s{S_T0} offen{sc_st}")
    I(f"s_add_u32 s{S_T0}, s{S_T0}, 4096", f"buffer_store_dwordx4 v[48:51], v{V_L16}, s[{S_WS}:{S_WS+3}], s{S_T0} offen{sc_st}")
    I(f"buffer_store_dwordx4 v[56:59], v{V_L16}, s[{S_WS}:{S_WS+3}], s{S_T1} offen{sc_st}")
    I("s_waitcnt vmcnt(0)")
    p.L(lab)
    I("s_barrier")
    lab = p.newlabel("init_arr")
    I(f"s_cmp_lg_u32 s{S_WV}, 0", f"s_cbranch_scc1 {lab}")
    I("s_mov_b64 exec, 1", "v_mov_b32 v44, 1", "v_mov_b32 v45, 40", f"global_atomic_add v45, v44, s[{S_DBG}:{S_DBG+1}]", "s_mov_b64 exec, -1")
    p.L(lab)

def preload(p):
    I = p.I
    p.C("weight preload")
    I("v_lshrrev_b32 v40, 4, v33", "v_lshlrev_b32 v41, 13, v40")
    I("v_and_b32 v42, 1, v40", "v_lshlrev_b32 v42, 1, v42", "v_xor_b32 v42, v42, v34", "v_lshlrev_b32 v42, 4, v42")
    for jj in range(4):
        I(f"v_xor_b32 v43, {64*jj}, v42", "v_add_u32 v43, v43, v41", f"v_add_u32 v{52+jj}, {jj*32768}, v43")
    I("v_lshrrev_b32 v40, 3, v33", "v_and_b32 v41, 7, v33", "v_lshrrev_b32 v42, 5, v33")
    for jj in range(4):
        I(f"v_add_u32 v43, {8*jj}, v40", "v_mul_u32_u24 v43, 1152, v43")
        I(f"v_add_u32 v44, {2*(jj&1)}, v42", "v_lshlrev_b32 v44, 1, v44", "v_xor_b32 v44, v44, v41", f"v_lshl_add_u32 v{56+jj}, v44, 4, v43")
    I("v_lshrrev_b32 v40, 2, v34", "v_and_b32 v41, 3, v34")
    I("v_lshrrev_b32 v42, 1, v35", "v_lshlrev_b32 v42, 4, v42", "v_and_b32 v43, 1, v35", "v_lshl_add_u32 v42, v43, 2, v42")
    I("v_and_b32 v44, 1, v40", "v_add_u32 v42, v42, v44", "v_lshrrev_b32 v45, 1, v40", "v_lshl_add_u32 v42, v45, 3, v42")
    I("v_lshl_add_u32 v46, v45, 1, v43")
    I("v_lshl_or_b32 v47, v46, 1, v44")
    I(f"s_lshl_b32 s{S_T0}, s{S_WV}, 1", f"v_xor_b32 v47, s{S_T0}, v47", "v_lshlrev_b32 v47, 5, v47", "v_lshl_add_u32 v47, v41, 3, v47", "v_lshl_add_u32 v60, v42, 8, v47", "v_xor_b32 v61, 32, v60")
    I(f"v_xor_b32 v46, s{S_WV}, v46", "v_lshlrev_b32 v46, 5, v46", "v_lshl_add_u32 v46, v41, 3, v46", "v_lshl_add_u32 v62, v42, 7, v46")
    chunks = [("q", kb) for kb in range(9)] + [("o", cc) for cc in range(9)] + [("k", kb) for kb in range(9)] + [("v", kb) for kb in VRES + VSTR]
    slot = lambda c: (c + 4) % 10
    ptr = {"q": S_PTR + 2, "k": S_PTR + 4, "v": S_PTR + 6, "o": S_PTR + 8}
    cur = [None]
    nissued = [0]
    def issue(c):
        kind, x = chunks[c]
        if cur[0] != kind:
            cur[0] = kind
            I(f"s_mov_b32 s{S_W}, s{ptr[kind]}", f"s_and_b32 s{S_W+1}, s{ptr[kind]+1}, 0xffff", f"s_mov_b32 s{S_W+2}, {576*8192 if kind != 'o' else 4096*1152}", f"s_mov_b32 s{S_W+3}, 0x20000")
        if kind != "o":
            I(f"s_lshl_b32 s{S_T0}, s{S_WV}, 17", f"s_lshl_b32 s{S_T1}, s{S_H}, 8", f"s_add_u32 s{S_T0}, s{S_T0}, s{S_T1}", f"s_add_u32 s{S_T0}, s{S_T0}, {x*524288}")
            vb = 52
        else:
            I(f"s_lshl_b32 s{S_T0}, s{S_H}, 7", f"s_lshl_b32 s{S_T1}, s{S_WV}, 5", f"s_add_u32 s{S_T0}, s{S_T0}, s{S_T1}", f"s_mul_i32 s{S_T0}, s{S_T0}, 1152", f"s_add_u32 s{S_T0}, s{S_T0}, {x*128}")
            vb = 56
        I(f"s_lshl_b32 s{S_T1}, s{S_WV}, 12", f"s_add_u32 s{S_T1}, s{S_T1}, {slot(c)*16384}")
        for jj in range(4):
            I(f"s_add_u32 m0, s{S_T1}, {jj*1024}")
            I(f"buffer_load_dwordx4 v{vb+jj}, s[{S_W}:{S_W+3}], s{S_T0} offen lds")
        nissued[0] = c + 1
    def tr(dst_of_t, areg, rowb, row0):
        for t in range(4):
            I(f"ds_read_b64_tr_b16 {dst_of_t(t)}, v{areg} offset:{(row0+32*(t//2)+2*(t%2))*rowb}")
    for c in range(10): issue(c)
    for c in range(36):
        kind, x = chunks[c]
        I(f"s_waitcnt vmcnt({4*(nissued[0]-1-c)})", "s_barrier")
        sb = slot(c) * 16384
        I(f"v_add_u32 v40, {sb}, v60", f"v_add_u32 v41, {sb}, v61", f"v_add_u32 v42, {sb}, v62")
        if kind == "q":
            tr(lambda t: frag_sub(F_QA(x), 2*t, 2), 40, 256, 0); tr(lambda t: frag_sub(F_QB(x), 2*t, 2), 41, 256, 0)
        elif kind == "k":
            fb = F_KB0 if x == 0 else F_VS((x-1) % 2, (x-1) // 2)
            tr(lambda t: frag_sub(F_KA(x), 2*t, 2), 40, 256, 0); tr(lambda t: frag_sub(fb, 2*t, 2), 41, 256, 0)
        elif kind == "o":
            for kb in range(2): tr(lambda t: frag_sub(F_WO(x, kb), 2*t, 2), 42, 128, 64*kb)
        else:
            for tb in range(2): tr(lambda t: f"v[{64+8*tb+2*t}:{65+8*tb+2*t}]", 40 + tb, 256, 0)
        I("s_waitcnt lgkmcnt(0)", "s_barrier")
        if kind == "v":
            pos = c - 27
            I(f"s_lshl_b32 s{S_T0}, s{S_WV}, 11", f"s_add_u32 s{S_T0}, s{S_T0}, {sb}", f"v_add_u32 v40, s{S_T0}, v{V_L16}")
            for sub in range(2):
                for half in range(2):
                    src = frag_sub(F_VS(sub, pos), 4*half, 4) if pos < 4 else f"v[{64+8*sub+4*half}:{67+8*sub+4*half}]"
                    I(f"ds_write_b128 v40, {src} offset:{sub*8192+half*1024}")
            I("s_waitcnt lgkmcnt(0)")
            if pos < 4:
                for tb in range(2):
                    k, b = fragb(F_VS(tb, pos))
                    for r in range(8):
                        I(f"v_accvgpr_write_b32 a{b+r}, v{64+8*tb+r}" if k == "a" else f"v_mov_b32 v{b+r}, v{64+8*tb+r}")
        if c + 10 < 36: issue(c + 10)
    I("s_barrier")

def chain_state(p):
    I = p.I
    lab = p.newlabel("initw"); lab2 = p.newlabel("initd")
    I(f"s_mov_b32 s{S_TO}, 0", "v_mov_b32 v45, 40")
    p.L(lab)
    I(f"global_load_dword v44, v45, s[{S_DBG}:{S_DBG+1}] sc1", "s_waitcnt vmcnt(0)", f"v_readfirstlane_b32 s{S_T0}, v44", f"s_add_u32 s{S_TO}, s{S_TO}, 1")
    I(f"s_cmp_ge_u32 s{S_T0}, 32", f"s_cbranch_scc1 {lab2}", f"s_cmp_lt_u32 s{S_TO}, 0x40000", f"s_cbranch_scc1 {lab}")
    p.L(lab2)
    I(f"s_mov_b32 s{S_STEP}, 0", f"s_mov_b32 s{S_TO}, 0", f"s_mov_b32 s{S_TO2}, 0", f"s_mov_b32 s{S_TO3}, 0")
    I(f"s_min_u32 s{S_T0}, s{S_WV}, 2", f"s_lshl_b32 s{S_B01}, s{S_T0}, 11", f"s_add_u32 s{S_MEMR}, s{S_B01}, {MEM_OFF}", f"s_add_u32 s{S_MEMEND}, s{S_MEMR}, {4*MEM_SLOT}")
    I(f"s_lshl_b32 s{S_T0}, s{S_WV}, 5", f"s_add_u32 s{S_T0}, s{S_T0}, s{S_H}")
    I(f"s_cmp_lt_u32 s{S_WV}, 3", f"s_cselect_b32 s{S_HASTASK}, 1, 0")
    I(f"s_lshl_b32 s{S_PL}, s{S_T0}, 12", f"s_add_u32 s{S_PL}, s{S_PL}, {PART_OFF}")
    I(f"s_mul_i32 s{S_MEMW}, s{S_WV}, 3072")
    I(f"s_lshr_b32 s{S_T1}, s{S_H}, 3", f"s_lshl_b32 s{S_T1}, s{S_T1}, 8", f"s_add_u32 s{S_MEMW}, s{S_MEMW}, s{S_T1}")
    I(f"s_bfe_u32 s{S_T1}, s{S_H}, 0x20001", f"s_lshl_b32 s{S_T1}, s{S_T1}, 6", f"s_add_u32 s{S_MEMW}, s{S_MEMW}, s{S_T1}")
    I(f"s_and_b32 s{S_T1}, s{S_H}, 1", f"s_lshl_b32 s{S_T1}, s{S_T1}, 5", f"s_add_u32 s{S_MEMW}, s{S_MEMW}, s{S_T1}", f"s_add_u32 s{S_MEMW}, s{S_MEMW}, {MEM_OFF + MEM_SLOT}")
    I(f"s_mov_b32 s{S_EXMS+1}, 0x00000055", f"s_mov_b32 s{S_EXMS}, 0x00550055")
    I(f"s_cmp_eq_u32 s{S_WV}, 2", f"s_cselect_b32 s{S_ISW2}, 1, 0")
    I(f"s_mul_i32 s{S_L8}, s{S_WV}, 768", f"s_add_u32 s{S_L8}, s{S_L8}, {MEMIMG + 6144}", f"s_sub_u32 s{S_D8}, s{S_L8}, s{S_B01}")
    I(f"s_mov_b32 s{S_M8}, -1", f"s_mov_b32 s{S_M8+1}, 0xffff")
    I(f"s_cmp_eq_u32 s{S_WV}, 3", f"s_cselect_b32 s{S_PFM}, -1, 0", f"s_mov_b32 s{S_PFM+1}, s{S_PFM}", f"s_lshl_b32 s{S_W2048}, s{S_WV}, 11")
    I(f"s_add_u32 s{S_MEMZ}, s{S_MEMW}, {2*MEM_SLOT}", f"s_add_u32 s{S_MEMWEND}, s{S_MEMW}, {3*MEM_SLOT}")
    I(f"s_lshl_b32 s{S_T0}, s{S_H}, 13", f"s_lshl_b32 s{S_T1}, s{S_WV}, 11", f"s_add_u32 s{S_T0}, s{S_T0}, s{S_T1}", f"s_add_u32 s{S_KX}, s{S_T0}, {KX_OFF}", f"s_add_u32 s{S_VX}, s{S_T0}, {VX_OFF}")
    I(f"s_lshr_b32 s{S_T1}, s{S_T0}, 1", f"s_add_u32 s{S_KM}, s{S_T1}, {KM_OFF}", f"s_lshr_b32 s{S_T1}, s{S_T0}, 2", f"s_add_u32 s{S_VM}, s{S_T1}, {VM_OFF - 32*2048}")
    I(f"s_lshl_b32 s{S_T0}, s{S_WV}, 15", f"s_lshl_b32 s{S_T1}, s{S_H}, 7", f"s_add_u32 s{S_T0}, s{S_T0}, s{S_T1}", f"s_add_u32 s{S_PS}, s{S_T0}, {PART_OFF}")
    for e in range(1, 3): I(f"s_add_u32 s{S_PS+e}, s{S_PS}, {e*131072}")
    I(f"s_add_u32 s{S_MEMR8}, s{S_MEMR}, s{S_D8}")
    if FUSED[0]:
        I(f"s_mov_b32 s{S_RDY}, 0", f"s_lshl_b32 s{S_CHF}, s{S_H}, 8", f"s_add_u32 s{S_CHF}, s{S_CHF}, {CHFLG}")
        I(f"s_cmp_eq_u32 s{S_WV}, 0", f"s_cselect_b32 s{S_PUB}, 1, 0", f"s_mov_b32 s{S_PUB+1}, 0")
        wait_init(p, S_DBG, tmpv=(52, 53))
        need_segment(p, 2)
        I(f"v_lshlrev_b32 v52, 3, v{V_L16}", f"s_lshl_b32 s{S_T0}, s{S_H}, 13")
        I(f"s_and_b32 s{S_T1}, s{S_WV}, 1", f"s_lshr_b32 s{S_T2}, s{S_WV}, 1", f"s_add_u32 s{S_T1}, s{S_T1}, s{S_T2}", f"s_lshl_b32 s{S_T1}, s{S_T1}, 18", f"s_add_u32 s{S_T0}, s{S_T0}, s{S_T1}")
        I(f"s_cmp_ge_u32 s{S_WV}, 2", f"s_cselect_b32 s{S_T1}, {KX_OFF + 0}, {0}", f"s_cselect_b32 s{S_T2}, 0, {VX_OFF}", f"s_add_u32 s{S_T0}, s{S_T0}, s{S_T1}", f"s_add_u32 s{S_T0}, s{S_T0}, s{S_T2}")
        I(f"buffer_load_dword v53, v52, s[{S_WS}:{S_WS+3}], s{S_T0} offen")
    for kt in range(2):
        I(f"buffer_load_dwordx4 v[{V_KX+4*kt}:{V_KX+4*kt+3}], v{V_L16}, s[{S_WS}:{S_WS+3}], s{S_KX} offen offset:{kt*1024} sc1")
    I(f"s_add_u32 s{S_KX}, s{S_KX}, {32*8192}", "s_waitcnt vmcnt(0)")

SM = lambda d, a, b: f"v_smfmac_f32_16x16x64_bf16 v[{d}:{d+3}], v[{a}:{a+3}], {b}, v{V_IDX}"

class Stream:
    def __init__(self, p): self.p = p; self.q = []
    def add(self, *instrs): self.q.append(list(instrs))
    def emit(self, n=1):
        for _ in range(n):
            if not self.q: return
            for x in self.q.pop(0): self.p.I(x)
    def drain(self): self.emit(len(self.q))


VPERIOD = [24]
LEAD = [0]
HOLD = [0]
BAR4 = [True]
def delay(p, clks):
    n = clks // 4
    while n > 0:
        k = min(n, 16); p.raw(f"    s_nop {k-1}"); n -= k
DELAYG1 = [0]
DELAY3 = [0]
DELAY0 = [0]
DELAY1 = [0]
DELAY2 = [0]
def need_segment(p, add):
    I = p.I
    lab = p.newlabel("rdy"); ok = p.newlabel("rdy_ok")
    I(f"s_add_u32 s{S_T1}, s{S_STEP}, {add}", f"s_min_u32 s{S_T1}, s{S_T1}, 63", f"s_cmp_lt_u32 s{S_T1}, s{S_RDY}", f"s_cbranch_scc1 {ok}")
    I(f"s_mov_b32 s{S_T2}, 0", f"v_lshrrev_b32 v52, 2, v{V_L16}", f"s_mov_b32 s{S_T0}, {KVCNT}")
    p.L(lab)
    I(f"buffer_load_dword v53, v52, s[{S_WS}:{S_WS+3}], s{S_T0} offen sc1", "s_waitcnt vmcnt(0)")
    I("v_cmp_ne_u32 vcc, 32, v53", f"s_ff1_i32_b64 s{S_RDY}, vcc", f"s_cmp_eq_u32 s{S_RDY}, -1", f"s_cselect_b32 s{S_RDY}, 64, s{S_RDY}")
    I(f"s_cmp_lt_u32 s{S_T1}, s{S_RDY}", f"s_cbranch_scc1 {ok}", "s_sleep 8", f"s_add_u32 s{S_T2}, s{S_T2}, 1", f"s_cmp_lt_u32 s{S_T2}, 0x80000", f"s_cbranch_scc1 {lab}")
    I(f"s_mov_b32 s{S_RDY}, 64")
    p.L(ok)

def step(p, local, first=True, last=False):
    I = p.I
    sc_st = "" if local else " sc1"
    WS = f"s[{S_WS}:{S_WS+3}]"
    QA, QB, KA, KB = 32, 36, 40, 44
    A0, A1, A2 = 56, 60, 48
    VA, VB = 48, 52
    W1, W2 = 64, 72
    wv_state = {"b": 0}
    def wread(u, buf):
        out = []
        blk = u // 8
        while wv_state["b"] < blk:
            out.append(f"v_add_u32 v{V_WV}, 0x10000, v{V_WV}"); wv_state["b"] += 1
        off = (u % 8) * 8192
        out.append(f"ds_read_b128 v[{buf}:{buf+3}], v{V_WV} offset:{off}")
        out.append(f"ds_read_b128 v[{buf+4}:{buf+7}], v{V_WV} offset:{off+1024}")
        return out
    aread = lambda kb, a: f"ds_read_b128 v[{a}:{a+3}], v{V_L16} offset:{MEMIMG+kb*1024}"
    ad = lambda d, a_, b_: f"v_add_f32 v{d}, v{a_}, v{b_}"
    cv = lambda d, a_, b_: f"v_cvt_pk_bf16_f32 v{d}, v{a_}, v{b_}"
    p.C("==== step : acquire mem blocks 0..5 (waves 0,1,3)")
    stamp(p, 0, first)
    if STEPTS[0]:
        lab = p.newlabel("sts")
        I(f"s_cmp_lg_u32 s{S_WV}, 3", f"s_cbranch_scc1 {lab}")
        I("s_memrealtime s[2:3]", "s_waitcnt lgkmcnt(0)", f"s_lshl_b32 s3, s{S_H}, 9", f"s_lshl_b32 s{S_T0}, s{S_STEP}, 2", f"s_add_u32 s3, s3, s{S_T0}", f"s_add_u32 s3, s3, {0x9200000}")
        I("s_mov_b64 exec, 1", "v_mov_b32 v52, s2", f"buffer_store_dword v52, v{V_SQA+1}, {WS}, s3 offen", "s_mov_b64 exec, -1")
        p.L(lab)
    if FUSED[0]: need_segment(p, 2 if PREF[0] else 1)
    I(*wread(0, W1)); I(*wread(1, W2))
    for r in range(0, 16, 2): I(f"v_mov_b64 v[{QA+r}:{QA+r+1}], 0")
    skipa = p.newlabel("skip01"); loop = p.newlabel("mem_poll"); done = p.newlabel("mem_done")
    I(f"s_cmp_eq_u32 s{S_WV}, 2", f"s_cbranch_scc1 {skipa}")
    I(f"v_add_u32 v55, s{S_B01}, v{V_L16}")
    if DELAY3[0]:
        nd = p.newlabel("nd3")
        I(f"s_cmp_lg_u32 s{S_WV}, 3", f"s_cbranch_scc1 {nd}")
        delay(p, DELAY3[0])
        p.L(nd)
    delay(p, DELAY2[0])
    p.L(loop)
    a, b = 56, 60
    I(f"buffer_load_dwordx4 v[{a}:{a+3}], v{V_L16}, {WS}, s{S_MEMR} offen sc1")
    I(f"buffer_load_dwordx4 v[{b}:{b+3}], v{V_L16}, {WS}, s{S_MEMR} offen offset:1024 sc1")
    I(f"s_add_u32 s{S_TO}, s{S_TO}, 1")
    I("s_waitcnt vmcnt(1)")
    I(f"ds_write_b128 v55, v[{a}:{a+3}] offset:{MEMIMG}")
    I(f"v_max3_u32 v52, v{a}, v{a+1}, v{a+2}")
    I("s_waitcnt vmcnt(0)")
    I(f"ds_write_b128 v55, v[{b}:{b+3}] offset:{MEMIMG+1024}")
    I(f"v_max3_u32 v52, v52, v{a+3}, v{b}", f"v_max3_u32 v52, v52, v{b+1}, v{b+2}", f"v_max_u32 v52, v52, v{b+3}")
    I("v_cmp_eq_u32 vcc, -1, v52", f"s_cbranch_vccz {done}", f"s_cmp_lt_u32 s{S_TO}, 0x200000", f"s_cbranch_scc1 {loop}")
    p.L(done)
    p.L(skipa)
    stamp(p, 1, first)
    I("s_waitcnt lgkmcnt(0)")
    I("s_barrier")
    p.reset_q()
    stamp(p, 2, first)
    p.C("QK")
    W = Weaver(p)
    Ab = [A0, A1, A2]
    wb = [W1, W2]
    M48 = f"s[{S_M8}:{S_M8+1}]"
    ld2 = f"buffer_load_dwordx4 v[52:55], v{V_L16}, {WS}, s{S_MEMR8} offen sc1"
    W.raw(aread(0, Ab[0])); W.raw(aread(1, Ab[1]))
    W.raw(f"s_mov_b64 exec, {M48}"); W.raw(ld2); W.raw("s_mov_b64 exec, -1")
    W.raw(f"s_add_u32 s{S_TAG}, s{S_STEP}, 1")
    if FUSED[0]: W.raw(f"s_max_u32 s{S_PUBV}, s{S_STEP}, 1"); W.raw(f"s_sub_u32 s{S_PUBV}, s{S_PUBV}, 1")
    def group(kb, extra, areads=True):
        a = Ab[kb % 3]
        kbsrc = frag(F_KB0) if kb == 0 else f"v[{wb[(kb-1)%2]}:{wb[(kb-1)%2]+7}]"
        X = []
        if kb + 2 < 6: X.append([aread(kb + 2, Ab[(kb + 2) % 3])])
        if kb >= 2:
            w = wread(kb, wb[(kb - 2) % 2])
            if len(w) == 3: X.append([w[1], w[0]] if False else [w[0], w[1]]); X.append([w[2]])
            else: X.append([w[0]]); X.append([w[1]])
        ms = [SM(QA, a, frag(F_QA(kb))), SM(QB, a, frag(F_QB(kb))), SM(KA, a, frag(F_KA(kb))), SM(KB, a, kbsrc)]
        for i, m in enumerate(ms):
            W.raw(m)
            if X:
                for y in X.pop(0): W.raw(y)
            for y in extra.get(i, []): W.raw(y)
        assert not X, X
    group(0, {1: [f"v_add_u32 v{V_VX}, s{S_L8}, v{V_L16}"]}); group(1, {}); group(2, {})
    group(3, {3: ["s_waitcnt vmcnt(0)", f"s_mov_b64 exec, {M48}", f"ds_write_b128 v{V_VX}, v[52:55]", "s_mov_b64 exec, -1"]})
    slow = p.newlabel("st2_slow"); back = p.newlabel("st2_back")
    group(4, {2: [f"v_max3_u32 v{V_VX+1}, v52, v53, v54"], 3: [f"v_max_u32 v{V_VX+1}, v{V_VX+1}, v55"]})
    I(f"s_mov_b64 exec, {M48}", f"v_cmp_eq_u32 vcc, -1, v{V_VX+1}", "s_mov_b64 exec, -1", f"s_cbranch_vccnz {slow}")
    p.L(back)
    p.waitw()
    I("s_barrier")
    stamp(p, 13, first)
    W.raw(aread(6, Ab[0])); W.raw(aread(7, Ab[1]))
    vxl = [f"buffer_load_dwordx4 v[{V_VX+4*tb}:{V_VX+4*tb+3}], v{V_L16}, {WS}, s{S_VX} offen offset:{tb*1024} sc1" for tb in range(2)]
    io = []
    io_vm = [f"v_lshrrev_b32 v{V_VX+1}, 1, v{V_L16}", f"buffer_store_dwordx2 v[{V_PY}:{V_PY+1}], v{V_VX+1}, {WS}, s{S_VM} offen sc1"]
    group(5, {2: [f"s_add_u32 s{S_MEMR}, s{S_MEMR}, {MEM_SLOT}", f"s_cmp_ge_u32 s{S_MEMR}, s{S_MEMEND}"], 3: [aread(8, Ab[2])]})
    group(6, {2: [f"s_cselect_b32 s{S_T0}, {4*MEM_SLOT}, 0", f"s_sub_u32 s{S_MEMR}, s{S_MEMR}, s{S_T0}"], 3: [vxl[0]]})
    group(7, {2: [f"s_add_u32 s{S_MEMR8}, s{S_MEMR}, s{S_D8}"], 3: [vxl[1]]})
    pf = []
    if PREF[0]:
        pf = [[f"s_sub_u32 s{S_T0}, s{S_VX}, s{S_W2048}", f"s_add_u32 s{S_T0}, s{S_T0}, {32*8192}", f"v_lshlrev_b32 v{V_MP}, 3, v{V_L16}"],
              [f"s_sub_u32 s{S_T1}, s{S_KX}, s{S_W2048}", f"s_add_u32 s{S_T1}, s{S_T1}, {32*8192}"],
              [f"s_mov_b64 exec, s[{S_PFM}:{S_PFM+1}]", f"buffer_load_dword v{V_DUM}, v{V_MP}, {WS}, s{S_T0} offen ; nodep"],
              [f"buffer_load_dword v{V_DUM}, v{V_MP}, {WS}, s{S_T1} offen ; nodep", "s_mov_b64 exec, -1"]]
        group(8, {0: pf[0], 1: pf[1], 2: pf[2], 3: pf[3]})
    else:
        group(8, {})
    W.raw(f"v_lshrrev_b32 v{V_MP}, 1, v{V_L16}") if False else None
    EXPORT = [f"v_lshrrev_b32 v52, 1, v{V_L16}", f"buffer_store_dwordx2 v[{V_PY}:{V_PY+1}], v52, {WS}, s{S_VM} offen sc1"]
    if FUSED[0]:
        EXPORT += [f"v_mov_b32 v52, s{S_PUBV}", f"s_mov_b64 exec, s[{S_PUB}:{S_PUB+1}]", f"buffer_store_dword v52, v{V_SQA+1}, {WS}, s{S_CHF} offen sc1", "s_mov_b64 exec, -1"]
    for y in EXPORT: W.raw(y)
    SLOW.append((slow, back, ld2, M48, V_VX))
    stamp(p, 3, first)
    p.C("post QK, V phase as filler")
    items = []
    w9 = wread(9, wb[1])
    vorder = VRES + VSTR
    vA = [A0, A1]
    ubuf = {8: wb[0], 9: wb[1]}
    for pos, kb in enumerate(vorder):
        a = vA[pos % 2]
        for tb in range(2):
            it = []
            if pos < 4:
                it.append(SM(VA + 4 * tb, a, frag(F_VS(tb, pos))))
                if pos == 0: it.append(w9[tb])
            else:
                u = 8 + (pos - 4) * 2 + tb
                b = ubuf[u]
                it.append(SM(VA + 4 * tb, a, f"v[{b}:{b+7}]"))
                if u + 2 < 18:
                    it += wread(u + 2, b); ubuf[u + 2] = b
            if tb == 1 and pos + 2 < 9: it.append(aread(vorder[pos + 2], a))
            items.append(it)
    def VI(n):
        return ("call", lambda n=n: [W.raw(y) for _ in range(n) if items for y in items.pop(0)])
    crit = []
    C = crit.append
    zero = [f"v_mov_b64 v[{VA}:{VA+1}], 0", f"v_mov_b64 v[{VA+2}:{VA+3}], 0", f"v_mov_b64 v[{VB}:{VB+1}], 0", f"v_mov_b64 v[{VB+2}:{VB+3}], 0"]
    if not last:
        C(ad(32, 32, 34)); C(ad(33, 33, 35)); C(ad(36, 36, 38)); C(ad(37, 37, 39)); C(cv(34, 32, 33)); C(cv(35, 36, 37))
    C(ad(40, 40, 42)); C(ad(41, 41, 43)); C(zero[2]); C(zero[3]); C(ad(44, 44, 46)); C(ad(45, 45, 47)); C(cv(42, 40, 41)); C(cv(43, 44, 45))
    if not last:
        C(f"v_mfma_f32_16x16x16_bf16 v[36:39], v[34:35], v[{V_SQA}:{V_SQA+1}], 0")
        C(zero[0]); C(zero[1])
        C(f"v_mfma_f32_16x16x16_bf16 v[32:35], v[34:35], v[{V_SQB}:{V_SQB+1}], 0")
    else:
        C(zero[0]); C(zero[1])
    C(f"v_mfma_f32_16x16x16_bf16 v[44:47], v[42:43], v[{V_SKA}:{V_SKA+1}], 0")
    C(f"v_mfma_f32_16x16x16_bf16 v[40:43], v[42:43], v[{V_SKB}:{V_SKB+1}], 0")
    KMST = f"buffer_store_dwordx4 v[44:47], v{V_L16}, {WS}, s{S_KM} offen sc1"
    OA_, OB_, LL = 32, 52, 56
    VMST = [f"v_lshrrev_b32 v60, 1, v{V_L16}", f"buffer_store_dwordx2 v[50:51], v60, {WS}, s{S_VM} offen sc1"]
    if last:
        C(cv(44, 44, 45)); C(cv(45, 46, 47)); C(cv(46, 40, 41)); C(cv(47, 42, 43)); C(KMST)
        W.weave(crit, []); W.drain(items)
        W.raw(f"v_subrev_u32 v{V_WV}, 0x20000, v{V_WV}")
        W.raw(ad(VA, VA, VA + 2)); W.raw(ad(VA + 1, VA + 1, VA + 3)); W.raw(ad(VB, VB, VB + 2)); W.raw(ad(VB + 1, VB + 1, VB + 3))
        W.raw(cv(50, VA, VA + 1)); W.raw(cv(51, VB, VB + 1))
        W.raw(f"s_add_u32 s{S_VM}, s{S_VM}, {32*2048}")
        for y in VMST: W.raw(y)
        p.fence(); p.reset_q()
        return
    V1, V2, V3, V4, V5, V6, V7 = VPLACE
    C(cv(36, 36, 37)); C(cv(37, 38, 39)); C(cv(38, 32, 33)); C(cv(39, 34, 35))
    C(f"v_mfma_f32_16x16x32_bf16 v[32:35], v[{V_KX}:{V_KX+3}], v[36:39], 0")
    C(cv(44, 44, 45)); C(cv(45, 46, 47)); C(cv(46, 40, 41)); C(cv(47, 42, 43))
    C(f"v_mfma_f32_16x16x32_bf16 v[40:43], v[{V_KX+4}:{V_KX+7}], v[36:39], 0")
    C(f"v_mfma_f32_16x16x32_bf16 v[36:39], v[44:47], v[36:39], 0")
    k = V_KX
    C(f"v_and_b32 v{k+6}, 0x70, v{V_L16}"); C(f"v_lshrrev_b32 v{k+7}, 1, v{V_L16}"); C(f"v_and_b32 v{k+7}, 0x180, v{k+7}"); C(f"v_or_b32 v{k+6}, v{k+6}, v{k+7}")
    C(f"v_lshrrev_b32 v{k+7}, 1, v{k+6}"); C(f"v_and_b32 v{k}, 0x80, v{V_L16}"); C(f"v_lshl_add_u32 v{k+6}, v{k}, 2, v{k+6}")
    C(VI(V1))
    C(f"v_add_u32 v{k+6}, {SEXX}, v{k+6}"); C(f"v_add_u32 v{k+7}, {SEXM}, v{k+7}")
    C(f"v_add_u32 v{k}, s{S_W1024}, v{k+6}"); C(f"v_add_u32 v{k+1}, s{S_W256}, v{k+7}")
    for r in range(4): C(f"v_cndmask_b32_e64 v{32+r}, v{40+r}, v{32+r}, s[{S_NLT8}:{S_NLT8+1}]")
    C(f"ds_write_b128 v{k}, v[32:35]"); C(f"ds_write_b64 v{k+1}, v[36:37]")
    C(("call", lambda: stamp(p, 4, first)))
    C(VI(V2))
    C(KMST)
    C(("call", p.waitw)); C("s_barrier")
    C(("call", lambda: stamp(p, 5, first)))
    for w in range(4): C(f"ds_read_b128 v[{32+4*w}:{35+4*w}], v{k+6} offset:{w*1024}")
    C(f"ds_read2_b64 v[{k}:{k+3}], v{k+7} offset0:0 offset1:32"); C(f"ds_read2_b64 v[{k+4}:{k+7}], v{k+7} offset0:64 offset1:96")
    C(VI(V3))
    for r in range(4): C(ad(32 + r, 32 + r, 36 + r))
    for r in range(4): C(ad(40 + r, 40 + r, 44 + r))
    for r in range(4): C(ad(32 + r, 32 + r, 40 + r))
    C("v_max3_f32 v38, v32, v33, v34")
    C(VI(V4))
    C(ad(k, k, k + 2)); C(ad(k + 1, k + 1, k + 3)); C(ad(k + 4, k + 4, k + 6)); C(ad(k + 5, k + 5, k + 7)); C(ad(36, k, k + 4)); C(ad(37, k + 1, k + 5))
    for kt in range(2):
        C(f"buffer_load_dwordx4 v[{V_KX+4*kt}:{V_KX+4*kt+3}], v{V_L16}, {WS}, s{S_KX} offen offset:{kt*1024} sc1")
    C("v_max3_f32 v38, v38, v35, v36"); C("v_max_f32 v38, v38, v37")
    C(VI(V5))
    C("v_max_f32_dpp v38, v38, v38 row_ror:8 row_mask:0xf bank_mask:0xf")
    C("v_mov_b32 v39, v38"); C("v_mov_b32 v45, 0"); C("v_mov_b32 v46, 0"); C("v_permlane16_swap_b32 v38, v39"); C("v_max_f32 v38, v38, v39")
    C("v_mov_b32 v39, v38"); C(VI(V6)); C("v_permlane32_swap_b32 v38, v39"); C("v_max_f32 v38, v38, v39")
    C(f"v_mul_f32 v38, s{S_C}, v38")
    for r in range(6): C(f"v_fma_f32 v{32+r}, v{32+r}, s{S_C}, -v38")
    C(VI(V7))
    for r in range(6): C(f"v_exp_f32 v{32+r}, v{32+r}")
    C(cv(40, 32, 33)); C(cv(41, 34, 35)); C(cv(44, 36, 37))
    for r in range(0, 4, 2): C(f"v_mov_b64 v[{36+r}:{37+r}], s[{S_ONES}:{S_ONES+1}]")
    C("v_mov_b32_dpp v42, v40 row_ror:8 row_mask:0xf bank_mask:0xf"); C("v_mov_b32_dpp v43, v41 row_ror:8 row_mask:0xf bank_mask:0xf")
    C("v_mov_b32 v47, v44")
    C(("call", lambda: stamp(p, 6, first)))
    W.weave(crit, [])
    rest = items
    W.raw(f"v_mfma_f32_16x16x32_bf16 v[{OA_}:{OA_+3}], v[{V_VX}:{V_VX+3}], v[40:43], 0")
    W.drain(rest)
    assert wv_state["b"] == 2
    W.raw(f"v_subrev_u32 v{V_WV}, 0x20000, v{V_WV}")
    W.raw(ad(VA, VA, VA + 2)); W.raw(ad(VA + 1, VA + 1, VA + 3)); W.raw(ad(VB, VB, VB + 2)); W.raw(ad(VB + 1, VB + 1, VB + 3))
    W.raw(cv(50, VA, VA + 1)); W.raw(cv(51, VB, VB + 1))
    stamp(p, 7, first)
    p.C("PV")
    crit = [f"v_mfma_f32_16x16x32_bf16 v[{LL}:{LL+3}], v[36:39], v[40:43], 0",
            f"v_mfma_f32_16x16x32_bf16 v[{OB_}:{OB_+3}], v[{V_VX+4}:{V_VX+7}], v[40:43], 0",
            f"v_mfma_f32_16x16x16_bf16 v[{OA_}:{OA_+3}], v[50:51], v[44:45], v[{OA_}:{OA_+3}]",
            f"v_mfma_f32_16x16x16_bf16 v[{LL}:{LL+3}], v[36:37], v[44:45], v[{LL}:{LL+3}]",
            f"v_mfma_f32_16x16x16_bf16 v[{OB_}:{OB_+3}], v[50:51], v[46:47], v[{OB_}:{OB_+3}]",
            f"v_rcp_f32 v{LL}, v{LL}"]
    for b in (OA_, OB_):
        for r in range(4): crit.append(f"v_mul_f32 v{b+r}, v{b+r}, v{LL}")
    crit += [cv(OA_, OA_, OA_ + 1), cv(OA_ + 1, OA_ + 2, OA_ + 3), cv(OB_, OB_, OB_ + 1), cv(OB_ + 1, OB_ + 2, OB_ + 3)]
    fill = [f"v_mov_b64 v[{V_PY}:{V_PY+1}], v[50:51]", f"v_bfe_u32 v61, v{V_L16}, 4, 3", f"v_bfe_u32 v62, v{V_L16}, 9, 1", f"v_add_u32 v62, s{S_W4}, v62", "v_xor_b32 v62, v62, v61",
            "v_lshlrev_b32 v62, 4, v62", "v_lshl_add_u32 v62, v61, 8, v62", f"v_bfe_u32 v61, v{V_L16}, 8, 1", "v_lshl_add_u32 v62, v61, 3, v62", f"v_add_u32 v62, {OIMG}, v62", "v_xor_b32 v63, 32, v62"]
    rest = W.weave(crit, [[f] for f in fill]); W.drain(rest)
    W.raw(f"s_mov_b64 exec, s[{S_NLT8}:{S_NLT8+1}]"); W.raw(f"ds_write_b64 v62, v[{OA_}:{OA_+1}]"); W.raw(f"ds_write_b64 v63, v[{OB_}:{OB_+1}]"); W.raw("s_mov_b64 exec, -1")
    stamp(p, 8, first)
    OACC = [32 + 4 * j for j in range(9)]
    OAr = 72; G = 68
    I(f"v_mov_b32 v71, s{S_TAG}")
    for b in range(34, 68, 2):
        if b in (52, 62): continue
        I(f"v_mov_b64 v[{b}:{b+1}], 0")
    p.waitw()
    I("s_barrier")
    I(f"ds_read_b128 v[{OAr}:{OAr+3}], v{V_OR}", f"ds_read_b128 v[{OAr+4}:{OAr+7}], v{V_OR} offset:128")
    for b in (32, 52, 62): I(f"v_mov_b64 v[{b}:{b+1}], 0")
    stamp(p, 9, first)
    p.C("O-proj")
    W = Weaver(p)
    osm = lambda j, kb: SM(OACC[j], OAr + 4 * kb, frag(F_WO(j, kb)))
    seq = [(0, 0), (1, 0), (0, 1), (1, 1)] + [(j, kb) for j in range(2, 9) for kb in range(2)]
    def fin(j):
        b = OACC[j]
        ops = [ad(b, b, b + 2), ad(b + 1, b + 1, b + 3), cv(G + j % 3, b, b + 1)]
        if j % 3 == 2: ops.append(f"buffer_store_dwordx4 v[{G}:{G+3}], v{V_PS}, {WS}, s{S_PS + j // 3} offen{sc_st}")
        return ops
    done_at = {}
    pend = []
    for idx, (j, kb) in enumerate(seq):
        W.raw(osm(j, kb))
        if kb == 1: done_at[j] = idx
        for jj in list(done_at):
            if idx >= done_at[jj] + 2:
                pend += fin(jj); del done_at[jj]
        n = 2 if len(pend) > 2 else 1
        for _ in range(n):
            if pend: W.raw(pend.pop(0))
    for jj in sorted(done_at): pend += fin(jj)
    for o in pend: W.raw(o)
    stamp(p, 10, first)
    p.C("reduce")
    skip = p.newlabel("notask")
    I(f"s_cmp_eq_u32 s{S_HASTASK}, 0", f"s_cbranch_scc1 {skip}")
    RS = 64
    if DELAY1[0]:
        nd = p.newlabel("nodelay")
        I(f"s_cmp_eq_u32 s{S_ISW2}, 0", f"s_cbranch_scc1 {nd}")
        delay(p, DELAY1[0])
        p.L(nd)
    if DELAYG1[0]:
        nd = p.newlabel("nodelay1")
        I(f"s_cmp_lg_u32 s{S_WV}, 1", f"s_cbranch_scc1 {nd}")
        delay(p, DELAYG1[0])
        p.L(nd)
    delay(p, DELAY0[0])
    retry = p.newlabel("p_retry"); ok = p.newlabel("p_ok")
    p.L(retry)
    for i in range(4):
        I(f"buffer_load_dwordx4 v[{32+4*i}:{35+4*i}], v{V_L16}, {WS}, s{S_PL} offen offset:{i*1024} sc1")
    I(f"s_add_u32 s{S_TO2}, s{S_TO2}, 1")
    I(f"v_bfe_u32 v69, v{V_L16}, 4, 2", f"v_bfe_u32 v70, v{V_L16}, 6, 2", "v_lshlrev_b32 v71, 4, v69", "v_mov_b32 v68, 0x3f80", "v_lshlrev_b32 v68, v71, v68",
      "v_cmp_gt_u32 vcc, 2, v69", "v_cndmask_b32 v71, 0, v68, vcc")
    for r in range(3): I(f"v_cmp_eq_u32 vcc, {r}, v70", f"v_cndmask_b32 v{RS+r}, 0, v71, vcc")
    I(f"v_mov_b32 v{RS+3}, 0")
    I(f"v_bfe_u32 v68, v{V_L16}, 8, 2", "v_lshlrev_b32 v68, 10, v68", f"v_bfe_u32 v69, v{V_L16}, 4, 3", "v_lshl_add_u32 v68, v69, 1, v68")
    D = 72
    for i in range(4):
        I(f"s_waitcnt vmcnt({3-i})")
        c = "0" if i == 0 else f"v[{D}:{D+3}]"
        I(f"v_mfma_f32_16x16x32_bf16 v[{D}:{D+3}], v[{RS}:{RS+3}], v[{32+4*i}:{35+4*i}], {c}")
        if i == 2: I("v_min3_u32 v76, v35, v39, v43")
        if i == 3: I("v_min_u32 v76, v76, v47")
    I(f"v_cmp_ne_u32 vcc, s{S_TAG}, v76", f"s_cbranch_vccz {ok}", f"s_cmp_lt_u32 s{S_TO2}, 0x200000", f"s_cbranch_scc1 {retry}")
    p.L(ok)
    stamp(p, 11, first)
    p.fence()
    I(f"v_add_f32_dpp v{D}, v{D}, v{D} row_ror:8 row_mask:0xf bank_mask:0xf", f"v_add_f32_dpp v{D+1}, v{D+1}, v{D+1} row_ror:8 row_mask:0xf bank_mask:0xf")
    I(f"v_mov_b32_dpp v76, v{D} quad_perm:[1,0,3,2] row_mask:0xf bank_mask:0xf", f"v_mov_b32_dpp v77, v{D+1} quad_perm:[1,0,3,2] row_mask:0xf bank_mask:0xf")
    I(f"v_cvt_pk_bf16_f32 v76, v{D}, v76", f"v_cvt_pk_bf16_f32 v77, v{D+1}, v77", "v_mov_b32 v78, -1")
    I(f"s_mov_b64 exec, s[{S_EXMS}:{S_EXMS+1}]", f"buffer_store_dword v76, v68, {WS}, s{S_MEMW} offen{sc_st}", f"buffer_store_dword v77, v68, {WS}, s{S_MEMW} offen offset:16{sc_st}")
    I(f"buffer_store_dword v78, v68, {WS}, s{S_MEMZ} offen{sc_st}", f"buffer_store_dword v78, v68, {WS}, s{S_MEMZ} offen offset:16{sc_st}", "s_mov_b64 exec, -1")
    p.L(skip)
    for r_ in (S_MEMW, S_MEMZ):
        I(f"s_add_u32 s{r_}, s{r_}, {MEM_SLOT}", f"s_cmp_ge_u32 s{r_}, s{S_MEMWEND}", f"s_cselect_b32 s{S_T0}, {4*MEM_SLOT}, 0", f"s_sub_u32 s{r_}, s{r_}, s{S_T0}")
    I(f"s_add_u32 s{S_VX}, s{S_VX}, {32*8192}", f"s_add_u32 s{S_KM}, s{S_KM}, {32*4096}", f"s_add_u32 s{S_VM}, s{S_VM}, {32*2048}", f"s_add_u32 s{S_KX}, s{S_KX}, {32*8192}", f"s_add_u32 s{S_STEP}, s{S_STEP}, 1")
    stamp(p, 12, first)
    p.fence()
    p.reset_q()

def emit_slow(p):
    I = p.I
    WS = f"s[{S_WS}:{S_WS+3}]"
    while SLOW:
        slow, back, ld2, M48, areg = SLOW.pop(0)
        p.fence(); p.reset_q()
        p.L(slow)
        lp = p.newlabel("st2_lp")
        I(f"s_mov_b64 exec, {M48}")
        p.L(lp)
        I(ld2, "s_waitcnt vmcnt(0)", f"v_max3_u32 v{V_VX+1}, v52, v53, v54", f"v_max_u32 v{V_VX+1}, v{V_VX+1}, v55", f"v_cmp_eq_u32 vcc, -1, v{V_VX+1}", f"s_add_u32 s{S_TO3}, s{S_TO3}, 1")
        ok = p.newlabel("st2_ok")
        I(f"s_cbranch_vccz {ok}", f"s_cmp_lt_u32 s{S_TO3}, 0x200000", f"s_cbranch_scc1 {lp}")
        p.L(ok)
        I(f"ds_write_b128 v{areg}, v[52:55]", "s_mov_b64 exec, -1", "s_waitcnt lgkmcnt(0)", f"s_branch {back}")
        p.reset_q()

def chain_loop(p, local, nsteps=64):
    I = p.I
    p.reset_q()
    loop = p.newlabel("chain_loop")
    p.fence()
    p.L(loop)
    step(p, local=local)
    I(f"s_cmp_lt_u32 s{S_STEP}, {nsteps-1}", f"s_cbranch_scc1 {loop}")
    step(p, local=local, first=False, last=True)
    I("s_waitcnt vmcnt(0)", "s_barrier")
    if FUSED[0]:
        I("v_mov_b32 v52, 64", "v_mov_b32 v53, 0", f"s_mov_b64 exec, s[{S_PUB}:{S_PUB+1}]", f"buffer_store_dword v52, v53, s[{S_WS}:{S_WS+3}], s{S_CHF} offen sc1", "s_mov_b64 exec, -1")
    over = p.newlabel("over_slow")
    I(f"s_branch {over}")
    emit_slow(p)
    p.L(over)

def gen_chain(p, local=True, nsteps=64, stamps=False):
    I = p.I
    setup_chain(p, local)
    preload(p)
    chain_state(p)
    if stamps: I(f"s_memtime s[{S_TS}:{S_TS+1}]", "s_waitcnt lgkmcnt(0)")
    chain_loop(p, local, nsteps)
    if stamps:
        I("s_waitcnt vmcnt(0) lgkmcnt(0)", f"s_memtime s[{S_TS+2}:{S_TS+3}]", "s_waitcnt lgkmcnt(0)")
        I(f"s_sub_u32 s{S_TS}, s{S_TS+2}, s{S_TS}", f"v_mov_b32 v44, s{S_TS}")
        lab = p.newlabel("st")
        I(f"s_cmp_lg_u32 s{S_WV}, 0", f"s_cbranch_scc1 {lab}")
        I(f"s_lshl_b32 s{S_T0}, s{S_H}, 2", f"s_add_u32 s{S_T0}, s{S_T0}, 128", f"v_mov_b32 v45, s{S_T0}", "s_mov_b64 exec, 1", f"global_store_dword v45, v44, s[{S_DBG}:{S_DBG+1}]", "s_mov_b64 exec, -1")
        p.L(lab)
    prof_dump(p)

def prof_dump(p):
    I = p.I
    if PROF[0]:
        I("s_waitcnt lgkmcnt(0)")
        I(f"s_lshl_b32 s{S_T0}, s{S_H}, 2", f"s_add_u32 s{S_T0}, s{S_T0}, s{S_WV}", f"s_lshl_b32 s{S_T0}, s{S_T0}, 7", f"s_add_u32 s{S_T0}, s{S_T0}, {0x9000000}")
        I("s_mov_b64 exec, 1", "v_mov_b32 v45, 0")
        for k in range(PNST):
            I(f"v_mov_b32 v44, s{S_ST+2*k if k < 13 else 14}", f"buffer_store_dword v44, v45, s[{S_WS}:{S_WS+3}], s{S_T0} offen offset:{4*k}")
        for k, r_ in enumerate((S_TO, S_TO2, S_TO3)):
            I(f"v_mov_b32 v44, s{r_}", f"buffer_store_dword v44, v45, s[{S_WS}:{S_WS+3}], s{S_T0} offen offset:{64+4*k}")
        I("s_mov_b64 exec, -1")

def standalone(local=True, stamps=True, nsteps=64):
    name = "chain_kernel"
    p = AProg()
    p.raw(f"; @launch kernel={name} grid=(256,1,1) block=(256,1,1) lds=163840")
    p.raw('.amdgcn_target "amdgcn-amd-amdhsa--gfx950"\n.text')
    p.raw(f".globl {name}\n.p2align 8\n.type {name},@function\n{name}:")
    I = p.I
    I(f"s_cmp_ge_u32 s2, 256", "s_cbranch_scc1 L_end")
    I(f"s_load_dwordx2 s[{S_PTR}:{S_PTR+1}], s[0:1], {KARG['A_mem0']}")
    I(f"s_load_dwordx4 s[{S_PTR+2}:{S_PTR+5}], s[0:1], {KARG['A_Wq']}")
    I(f"s_load_dwordx2 s[{S_PTR+6}:{S_PTR+7}], s[0:1], {KARG['A_Wv']}")
    I(f"s_load_dwordx2 s[{S_PTR+8}:{S_PTR+9}], s[0:1], {KARG['A_Wo']}")
    I(f"s_load_dwordx2 s[{S_DBG}:{S_DBG+1}], s[0:1], {KARG['dbg']}")
    I(f"s_load_dwordx2 s[{S_PTR+10}:{S_PTR+11}], s[0:1], {KARG['ws']}")
    I("s_waitcnt lgkmcnt(0)")
    I(f"s_mov_b32 s{S_WS}, s{S_PTR+10}", f"s_and_b32 s{S_WS+1}, s{S_PTR+11}, 0xffff", f"s_mov_b32 s{S_WS+2}, {WS_BYTES}", f"s_mov_b32 s{S_WS+3}, 0x20000")
    I(f"s_mov_b32 s{S_MEM}, s{S_PTR}", f"s_and_b32 s{S_MEM+1}, s{S_PTR+1}, 0xffff", f"s_mov_b32 s{S_MEM+2}, 9216", f"s_mov_b32 s{S_MEM+3}, 0x20000")
    lane_consts(p)
    I(f"s_getreg_b32 s{S_T0}, hwreg(HW_REG_XCC_ID, 0, 4)")
    I(f"s_cmp_lg_u32 s{S_T0}, 0", "s_cbranch_scc1 L_end")
    lab = p.newlabel("role")
    I(f"s_cmp_lg_u32 s{S_WV}, 0", f"s_cbranch_scc1 {lab}")
    I("s_mov_b64 exec, 1", "v_mov_b32 v44, 1", "v_mov_b32 v45, 0", f"global_atomic_add v46, v45, v44, s[{S_DBG}:{S_DBG+1}] sc0", "s_waitcnt vmcnt(0)", "v_mov_b32 v45, 0", "ds_write_b32 v45, v46", "s_waitcnt lgkmcnt(0)", "s_mov_b64 exec, -1")
    p.L(lab)
    I("s_barrier", "v_mov_b32 v45, 0", "ds_read_b32 v46, v45", "s_waitcnt lgkmcnt(0)", f"v_readfirstlane_b32 s{S_H}, v46", "s_barrier")
    I(f"s_cmp_ge_u32 s{S_H}, 32", "s_cbranch_scc1 L_end")
    gen_chain(p, local=local, stamps=stamps, nsteps=nsteps)
    p.L("L_end")
    I("s_endpgm")
    p.raw(kd(name))
    return p.render()

if __name__ == "__main__":
    import sys
    for a in sys.argv[2:]:
        if a == "prof": PROF[0] = True
        if a == "rt": RT[0] = True
        if a.startswith("hold="): HOLD[0] = int(a[5:])
        if a.startswith("lead="): LEAD[0] = int(a[5:])
        if a.startswith("lat="): Weaver.LDS_LAT = int(a[4:])
        if a.startswith("vp="): VPERIOD[0] = int(a[3:])
        if a == "nobar4": BAR4[0] = False
        if a.startswith("touch="): TOUCH[0] = int(a[6:])
        if a.startswith("s2i="): ST2_ISSUE[0] = int(a[4:])
        if a.startswith("s2c="): ST2_CHECK[0] = int(a[4:])
        if a.startswith("g1="): DELAYG1[0] = int(a[3:])
        if a == "nopref": PREF[0] = False
        if a.startswith("vpl="): VPLACE[:] = [int(c) for c in a[4:]]
        if a.startswith("d3="): DELAY3[0] = int(a[3:])
        if a.startswith("d0="): DELAY0[0] = int(a[3:])
        if a.startswith("d1="): DELAY1[0] = int(a[3:])
        if a.startswith("d2="): DELAY2[0] = int(a[3:])
    open(sys.argv[1], "w").write(standalone())
```

```python
KX_OFF   = 0x0000000
VX_OFF   = 0x1000000
QX_OFF   = 0x2000000
KM_OFF   = 0x3000000
VM_OFF   = 0x3810000
MEM_OFF  = 0x3C80000
PART_OFF = 0x3D00000
OX_OFF   = 0x4000000
WS_BYTES = 0x10000000
MEM_SLOT = 9216
KARG = dict(A_x=0, A_mem0=8, A_Wq=16, A_Wk=24, A_Wv=32, A_Wo=40, A_seg=48, B_x=56, B_wq=64, B_wk=72, B_wv=80, B_wo=88, out=96, dbg=104, ws=112)
HEADER = """; Kernarg layout: 15 pointers (see the starter file)
"""
def kd(name, vgpr=512, accum=256, sgpr=102):
    return f""".section .rodata,"a"
.p2align 6
.amdhsa_kernel {name}
  .amdhsa_next_free_vgpr {vgpr}
  .amdhsa_next_free_sgpr {sgpr}
  .amdhsa_accum_offset {accum}
  .amdhsa_group_segment_fixed_size 0
  .amdhsa_kernarg_size 120
  .amdhsa_user_sgpr_count 2
  .amdhsa_user_sgpr_kernarg_segment_ptr 1
  .amdhsa_system_sgpr_workgroup_id_x 1
.end_amdhsa_kernel
"""
FLAG_OFF = 0x3E00000
KVCNT, QCNT, ACNT, OCNT = FLAG_OFF, FLAG_OFF + 256, FLAG_OFF + 512, FLAG_OFF + 768
QB_OFF  = 0x5000000
OB_OFF  = 0x5300000
KB_OFF  = 0x5600000
VB_OFF  = 0x5640000
def load_ptrs(p, names, base):
    for i, n in enumerate(names): p.I(f"s_load_dwordx2 s[{base+2*i}:{base+2*i+1}], s[0:1], {KARG[n]}")
def srd(p, dst, ptr, nbytes):
    p.I(f"s_mov_b32 s{dst}, s{ptr}", f"s_and_b32 s{dst+1}, s{ptr+1}, 0xffff", f"s_mov_b32 s{dst+2}, {nbytes}", f"s_mov_b32 s{dst+3}, 0x20000")
def kernel_head(p, name):
    p.raw(f".globl {name}\n.p2align 8\n.type {name},@function\n{name}:")

CHFLG  = FLAG_OFF + 4096
BQCNT  = FLAG_OFF + 1152
BKVCNT = FLAG_OFF + 1156
ATICK  = FLAG_OFF + 1280
BACNT  = FLAG_OFF + 1536
DBG_INIT = 52
DBG_WORK = 48
S_ABORT = 99
def poll_ge(p, srd_ws, off_sreg_or_imm, target, tmpv=(30, 31), tmps=28, imm=False, sleep=4):
    I = p.I
    lab = p.newlabel("pw"); done = p.newlabel("pd")
    a, b = tmpv
    I(f"s_cmp_lg_u32 s{S_ABORT}, 0", f"s_cbranch_scc1 {done}")
    if imm: I(f"s_mov_b32 s{tmps+1}, {off_sreg_or_imm}")
    else: I(f"s_mov_b32 s{tmps+1}, s{off_sreg_or_imm}")
    I(f"s_mov_b32 s{tmps+2}, 0", f"v_mov_b32 v{a}, 0")
    p.L(lab)
    I(f"buffer_load_dword v{b}, v{a}, s[{srd_ws}:{srd_ws+3}], s{tmps+1} offen sc1", "s_waitcnt vmcnt(0)", f"v_readfirstlane_b32 s{tmps}, v{b}")
    I(f"s_cmp_ge_u32 s{tmps}, {target}", f"s_cbranch_scc1 {done}", f"s_sleep {sleep}", f"s_add_u32 s{tmps+2}, s{tmps+2}, 1", f"s_cmp_lt_u32 s{tmps+2}, 0x100000", f"s_cbranch_scc1 {lab}", f"s_mov_b32 s{S_ABORT}, 1")
    p.L(done)
def wait_init(p, dbgpair, tmpv=(30, 31), tmps=28):
    I = p.I
    lab = p.newlabel("iw"); done = p.newlabel("id")
    a, b = tmpv
    I(f"s_mov_b32 s{tmps+2}, 0", f"v_mov_b32 v{a}, {DBG_INIT}")
    p.L(lab)
    I(f"global_load_dword v{b}, v{a}, s[{dbgpair}:{dbgpair+1}] sc1", "s_waitcnt vmcnt(0)", f"v_readfirstlane_b32 s{tmps}, v{b}")
    I(f"s_cmp_lg_u32 s{tmps}, 0", f"s_cbranch_scc1 {done}", "s_sleep 2", f"s_add_u32 s{tmps+2}, s{tmps+2}, 1", f"s_cmp_lt_u32 s{tmps+2}, 0x100000", f"s_cbranch_scc1 {lab}", f"s_mov_b32 s{S_ABORT}, 1")
    p.L(done)
def signal_add(p, srd_ws, off_sreg, tmpv=(30, 31)):
    a, b = tmpv
    p.I("s_mov_b64 exec, 1", f"v_mov_b32 v{a}, 1", f"v_mov_b32 v{b}, 0", f"buffer_atomic_add v{a}, v{b}, s[{srd_ws}:{srd_ws+3}], s{off_sreg} offen", "s_mov_b64 exec, -1")

def poll_ge_far(p, srd_ws, off_sreg, target_sreg, tmpv=(30, 31), tmps=28):
    I = p.I
    lab = p.newlabel("pw"); done = p.newlabel("pd"); near = p.newlabel("pn"); slp = p.newlabel("ps")
    a, b = tmpv
    I(f"s_cmp_lg_u32 s{S_ABORT}, 0", f"s_cbranch_scc1 {done}")
    I(f"s_mov_b32 s{tmps+1}, s{off_sreg}", f"s_mov_b32 s{tmps+2}, 0", f"v_mov_b32 v{a}, 0")
    p.L(lab)
    I(f"buffer_load_dword v{b}, v{a}, s[{srd_ws}:{srd_ws+3}], s{tmps+1} offen sc1", "s_waitcnt vmcnt(0)", f"v_readfirstlane_b32 s{tmps}, v{b}")
    I(f"s_cmp_ge_u32 s{tmps}, s{target_sreg}", f"s_cbranch_scc1 {done}")
    I(f"s_sub_u32 s{tmps}, s{target_sreg}, s{tmps}", f"s_cmp_le_u32 s{tmps}, 1", f"s_cbranch_scc1 {near}", f"s_min_u32 s{tmps}, s{tmps}, 9", f"s_sub_u32 s{tmps}, s{tmps}, 1")
    p.L(slp)
    I("s_sleep 60", f"s_sub_u32 s{tmps}, s{tmps}, 1", f"s_cmp_gt_u32 s{tmps}, 0", f"s_cbranch_scc1 {slp}")
    p.L(near)
    I("s_sleep 6", f"s_add_u32 s{tmps+2}, s{tmps+2}, 1", f"s_cmp_lt_u32 s{tmps+2}, 0x40000", f"s_cbranch_scc1 {lab}", f"s_mov_b32 s{S_ABORT}, 1")
    p.L(done)
```

```python
import sys
import chain4 as ch
from gemm576 import *
from test_gemm import role_gemm1, role_bq
from test_b import role_bo
from attna import *
from attnb import *
from oproja import *
NAME = "concat_heads__memory_aug_recurrent_mem_tr__grouped_kv_mqa__prompt_kernel"
HEAD = open("concat_heads__memory_aug_recurrent_mem_tr__grouped_kv_mqa__prompt.s.ref").read().split("; Override launch geometry")[0]
PT = 72
PN = ["A_x", "A_mem0", "A_Wq", "A_Wk", "A_Wv", "A_Wo", "B_x", "B_wq", "B_wk", "B_wv", "B_wo", "out"]
def ptr(n): return PT + 2 * PN.index(n)
S_ROLE = 44
N_OPROJ, N_BO0, N_BOUT = 48, 48, 24
ATTNB0 = 96

TL = [False]
def ts(p, k, rolereg, a=30, b=31):
    if not TL[0]: return
    I = p.I
    lab = p.newlabel("ts")
    I(f"s_cmp_lg_u32 s19, 0", f"s_cbranch_scc1 {lab}")
    I("s_memrealtime s[2:3]", "s_waitcnt lgkmcnt(0)", f"s_lshl_b32 s3, s{rolereg}, 6", f"s_add_u32 s3, s3, {0x9100000 + 4*k}")
    I("s_mov_b64 exec, 1", f"v_mov_b32 v{a}, s2", f"v_mov_b32 v{b}, 0", f"buffer_store_dword v{a}, v{b}, s[4:7], s3 offen", "s_mov_b64 exec, -1", "s_nop 1")
    p.L(lab)

def tc(p, k, rolereg, a=30, b=31):
    if not TL[0]: return
    I = p.I
    lab = p.newlabel("tc")
    I(f"s_cmp_lg_u32 s19, 0", f"s_cbranch_scc1 {lab}")
    I("s_memtime s[2:3]", "s_waitcnt lgkmcnt(0)", f"s_lshl_b32 s3, s{rolereg}, 6", f"s_add_u32 s3, s3, {0x9100000 + 4*k}")
    I("s_mov_b64 exec, 1", f"v_mov_b32 v{a}, s2", f"v_mov_b32 v{b}, 0", f"buffer_store_dword v{a}, v{b}, s[4:7], s3 offen", "s_mov_b64 exec, -1", "s_nop 1")
    p.L(lab)

DT = [False]
def dts(p, idx, op="umax", a=52, b=53):
    if not DT[0]: return
    I = p.I
    lab = p.newlabel("dts")
    I("s_cmp_lg_u32 s19, 0", f"s_cbranch_scc1 {lab}")
    I("s_memrealtime s[2:3]", "s_waitcnt lgkmcnt(0)")
    if op == "umin": I("s_not_b32 s2, s2")
    I("s_mov_b64 exec, 1", f"v_mov_b32 v{a}, s2", f"v_mov_b32 v{b}, {4*idx}", f"global_atomic_umax v{b}, v{a}, s[16:17]", "s_mov_b64 exec, -1", "s_nop 1")
    p.L(lab)

def build(opts):
    DT[0] = bool(opts.get("dt"))
    TL[0] = bool(opts.get("tl"))
    ch.PROF[0] = bool(opts.get("prof"))
    ch.PREF[0] = not opts.get("nopref")
    ch.STEPTS[0] = bool(opts.get("sts"))
    ch.FUSED[0] = True
    p = AProg(); I = p.I
    p.raw(HEAD.rstrip("\n"))
    p.raw("; Override launch geometry by editing the next line.")
    p.raw("; @launch grid=(256,1,1) block=(256,1,1) lds=163840")
    p.raw('.amdgcn_target "amdgcn-amd-amdhsa--gfx950"\n.text')
    kernel_head(p, NAME)
    S_DBG, S_WS, S_MEM, S_WV, S_H = ch.S_DBG, ch.S_WS, ch.S_MEM, ch.S_WV, ch.S_H
    I("s_cmp_ge_u32 s2, 256", "s_cbranch_scc1 L_end")
    load_ptrs(p, PN, PT)
    I(f"s_load_dwordx2 s[{S_DBG}:{S_DBG+1}], s[0:1], {KARG['dbg']}", f"s_load_dwordx2 s[46:47], s[0:1], {KARG['ws']}")
    I("s_waitcnt lgkmcnt(0)")
    srd(p, S_WS, 46, WS_BYTES)
    I(f"s_mov_b32 s{S_ABORT}, 0")
    ch.lane_consts(p)
    dts(p, 9, "umin", 60, 61); dts(p, 11, "umax", 60, 61)
    I("s_getreg_b32 s24, hwreg(HW_REG_XCC_ID, 0, 4)", "s_and_b32 s24, s24, 7")
    lab = p.newlabel("role")
    I(f"s_cmp_lg_u32 s{S_WV}, 0", f"s_cbranch_scc1 {lab}")
    I("s_mov_b64 exec, 1", "v_mov_b32 v44, 1", "s_lshl_b32 s25, s24, 2", "v_mov_b32 v45, s25", f"global_atomic_add v46, v45, v44, s[{S_DBG}:{S_DBG+1}] sc0", "s_waitcnt vmcnt(0)")
    I("v_readfirstlane_b32 s26, v46")
    I(f"s_cmp_eq_u32 s24, {opts.get('chx', 0)}", "s_cselect_b32 s27, s26, 1000", "s_cmp_lt_u32 s27, 32", "s_cbranch_scc1 L_isch")
    I(f"v_mov_b32 v45, {DBG_WORK}", f"global_atomic_add v46, v45, v44, s[{S_DBG}:{S_DBG+1}] sc0", "s_waitcnt vmcnt(0)", "v_add_u32 v46, 32, v46")
    p.L("L_isch")
    I("v_mov_b32 v45, 0", "ds_write_b32 v45, v46", "s_waitcnt lgkmcnt(0)", "s_mov_b64 exec, -1")
    p.L(lab)
    I("s_barrier", "v_mov_b32 v45, 0", "ds_read_b32 v46, v45", "s_waitcnt lgkmcnt(0)", f"v_readfirstlane_b32 s{S_H}, v46", "s_barrier")
    I("s_mov_b32 s98, 0")
    I(f"s_cmp_lt_u32 s{S_H}, 256", "s_cbranch_scc1 L_notx", f"s_sub_u32 s{S_H}, 287, s{S_H}", "s_mov_b32 s98, 1")
    p.L("L_notx")
    I(f"s_cmp_ge_u32 s{S_H}, 32", "s_cbranch_scc1 L_worker")
    I("s_mov_b32 s45, s98")
    ts(p, 0, S_H, 52, 53)
    chain_role(p, opts)
    I("s_branch L_end")
    p.L("L_worker")
    I(f"s_sub_u32 s{S_ROLE}, s{S_H}, 32")
    ts(p, 0, S_H)
    worker(p, opts)
    p.L("L_end"); I("s_endpgm")
    p.raw(kd(NAME))
    return p.render()

def chain_role(p, opts):
    I = p.I
    S_PTR = ch.S_PTR
    for i, n in enumerate(["A_mem0", "A_Wq", "A_Wk", "A_Wv", "A_Wo"]):
        I(f"s_mov_b32 s{S_PTR+2*i}, s{ptr(n)}", f"s_mov_b32 s{S_PTR+2*i+1}, s{ptr(n)+1}")
    srd(p, ch.S_MEM, S_PTR, 9216)
    ch.setup_chain(p, local=False)
    ts(p, 1, ch.S_H, 66, 67)
    ch.preload(p)
    ts(p, 2, ch.S_H, 52, 53)
    lab = p.newlabel("mode"); dec = p.newlabel("mode_d")
    I("s_cmp_lg_u32 s45, 0", f"s_cbranch_scc1 {dec}", f"s_mov_b32 s{ch.S_T2}, 0")
    p.L(lab)
    I(f"v_mov_b32 v45, {4*opts.get('chx', 0)}", f"global_load_dword v44, v45, s[{ch.S_DBG}:{ch.S_DBG+1}] sc1", f"v_mov_b32 v45, {DBG_WORK}", f"global_load_dword v46, v45, s[{ch.S_DBG}:{ch.S_DBG+1}] sc1", "s_waitcnt vmcnt(0)")
    I(f"v_readfirstlane_b32 s{ch.S_T0}, v44", f"v_readfirstlane_b32 s{ch.S_T1}, v46")
    I(f"s_cmp_ge_u32 s{ch.S_T0}, 32", f"s_cbranch_scc1 {dec}", f"s_cmp_gt_u32 s{ch.S_T1}, 224", "s_cselect_b32 s45, 1, 0", f"s_cbranch_scc1 {dec}")
    I("s_sleep 4", f"s_add_u32 s{ch.S_T2}, s{ch.S_T2}, 1", f"s_cmp_lt_u32 s{ch.S_T2}, 0x100000", f"s_cbranch_scc1 {lab}")
    p.L(dec)
    if opts.get("forceglobal"): I("s_mov_b32 s45, 1")
    I("s_mov_b32 s12, s45")
    ch.chain_state(p)
    ts(p, 3, ch.S_H, 52, 53); tc(p, 8, ch.S_H, 52, 53); dts(p, 8, "umax")
    I("s_cmp_lg_u32 s12, 0", "s_cbranch_scc1 L_chain_global")
    ch.chain_loop(p, local=True)
    ts(p, 4, ch.S_H, 52, 53); tc(p, 9, ch.S_H, 52, 53); dts(p, 14, "umax")
    ch.prof_dump(p)
    I("s_branch L_end")
    p.L("L_chain_global")
    ch.chain_loop(p, local=False)

def worker(p, opts):
    I = p.I
    S_DBG = ch.S_DBG
    lab = p.newlabel("noinit")
    I(f"s_cmp_lg_u32 s{S_ROLE}, 0", f"s_cbranch_scc1 {lab}")
    I("v_mov_b64 v[44:45], 0", "v_mov_b64 v[46:47], 0", f"s_lshl_b32 s{G_T0}, s{G_WV}, 10", f"s_add_u32 s{G_T0}, s{G_T0}, {FLAG_OFF}")
    for rnd in range(4):
        I(f"buffer_store_dwordx4 v[44:47], v0, s[{G_WS}:{G_WS+3}], s{G_T0} offen sc1", f"s_add_u32 s{G_T0}, s{G_T0}, 4096")
    I("s_waitcnt vmcnt(0)", "s_barrier")
    lab2 = p.newlabel("ini2")
    I(f"s_cmp_lg_u32 s{G_WV}, 0", f"s_cbranch_scc1 {lab2}")
    I("s_mov_b64 exec, 1", "v_mov_b32 v44, 1", f"v_mov_b32 v45, {DBG_INIT}", f"global_store_dword v45, v44, s[{S_DBG}:{S_DBG+1}] sc1", "s_mov_b64 exec, -1")
    p.L(lab2); p.L(lab)
    mid = lambda p: wait_init(p, S_DBG, tmpv=(48, 49))
    I(f"s_cmp_ge_u32 s{S_ROLE}, 192", "s_cbranch_scc1 L_p1b")
    role_gemm1(p, f"s{S_ROLE}", ptr("A_x"), ptr("A_Wq"), ptr("A_Wk"), ptr("A_Wv"), mid=mid)
    I("s_branch L_p2")
    p.L("L_p1b")
    I(f"s_cmp_ge_u32 s{S_ROLE}, 216", "s_cbranch_scc1 L_p1c")
    I(f"s_sub_u32 s36, s{S_ROLE}, 192")
    role_bq(p, 36, ptr("B_x"), ptr("B_wq"), endsig=BQCNT, mid=mid)
    I("s_branch L_p2")
    p.L("L_p1c")
    srd(p, G_X, ptr("B_x"), 2048 * 1152)
    I(f"s_sub_u32 s20, s{S_ROLE}, 216", "s_lshl_b32 s20, s20, 2", f"s_add_u32 s20, s20, s{G_WV}", "s_mov_b32 s21, 32")
    kvproj(p, ptr("B_wk"), ptr("B_wv"), 2, 20)
    I("s_waitcnt vmcnt(0)")
    wait_init(p, S_DBG, tmpv=(30, 31))
    I(f"s_mov_b32 s{G_T0}, {BKVCNT}")
    signal_add(p, G_WS, G_T0)
    p.L("L_p2")
    p.fence(); p.reset_q()
    I("s_barrier")
    ts(p, 1, ch.S_H)
    relane(p)
    I(f"s_cmp_lt_u32 s{S_ROLE}, {N_OPROJ}", "s_cbranch_scc1 L_oproj")
    I(f"s_cmp_lt_u32 s{S_ROLE}, {ATTNB0}", "s_cbranch_scc1 L_attna")
    poll_ge(p, G_WS, BQCNT, 24, imm=True, sleep=32); poll_ge(p, G_WS, BKVCNT, 32, imm=True, sleep=32)
    attnb_setup(p)
    I(f"s_sub_u32 s{B_TASK}, s{S_ROLE}, {ATTNB0}", f"s_lshl_b32 s{B_TASK}, s{B_TASK}, 2", f"s_add_u32 s{B_TASK}, s{B_TASK}, s{G_WV}")
    p.fence(); p.reset_q(); p.L("L_bl")
    attnb_task(p)
    I("s_waitcnt vmcnt(0)", f"s_and_b32 s{G_T0}, s{B_TASK}, 31", f"s_lshl_b32 s{G_T0}, s{G_T0}, 2", f"s_add_u32 s{G_T0}, s{G_T0}, {BACNT}")
    signal_add(p, G_WS, G_T0)
    I(f"s_add_u32 s{B_TASK}, s{B_TASK}, 512")
    p.fence(); p.reset_q()
    I(f"s_cmp_lt_u32 s{B_TASK}, 1024", "s_cbranch_scc1 L_bl")
    I("s_barrier")
    ts(p, 2, ch.S_H)
    I(f"s_cmp_ge_u32 s{S_ROLE}, {ATTNB0 + N_BOUT}", "s_cbranch_scc1 L_attna")
    def bo_wait(p, segreg):
        I(f"s_lshr_b32 s{G_T0}, s{segreg}, 1", f"s_lshl_b32 s{G_T0}, s{G_T0}, 2", f"s_add_u32 s{G_T0}, s{G_T0}, {BACNT}", f"s_mov_b32 s45, s{G_T0}")
        poll_ge(p, G_WS, 45, 32, tmpv=(48, 49), sleep=32)
    I(f"s_sub_u32 s36, s{S_ROLE}, {ATTNB0}")
    relane(p)
    role_bo(p, 36, 46, ptr("B_wo"), ptr("out"), prewait=bo_wait, xsc=" sc1")
    p.fence(); p.reset_q()
    I("s_barrier")
    relane(p)
    p.L("L_attna")
    ts(p, 3, ch.S_H)
    relane(p)
    attna_setup(p)
    p.fence(); p.reset_q(); p.L("L_al")
    I("s_mov_b64 exec, 1", "v_mov_b32 v30, 1", "v_mov_b32 v31, 0", f"s_mov_b32 s{G_T0}, {ATICK}", f"buffer_atomic_add v30, v31, s[{G_WS}:{G_WS+3}], s{G_T0} offen sc0", "s_waitcnt vmcnt(0)", "s_mov_b64 exec, -1")
    I(f"v_readfirstlane_b32 s{A_TASK}, v30")
    I(f"s_cmp_ge_u32 s{A_TASK}, 2048", "s_cbranch_scc1 L_aend")
    I(f"s_lshr_b32 s36, s{A_TASK}, 5", "s_lshl_b32 s37, s36, 2")
    I(f"s_add_u32 s38, s37, {QCNT}"); poll_ge(p, G_WS, 38, 16, sleep=32)
    I(f"s_add_u32 s38, s37, {KVCNT}"); poll_ge(p, G_WS, 38, 32, sleep=32)
    def chwait(p):
        I(f"s_and_b32 s38, s{A_TASK}, 31", "s_lshl_b32 s38, s38, 8", f"s_add_u32 s38, s38, {CHFLG}", "s_add_u32 s39, s36, 1")
        poll_ge_far(p, G_WS, 38, 39, tmpv=(29, 30))
    attna_task(p, midwait=chwait)
    I("s_waitcnt vmcnt(0)", f"s_lshr_b32 s{G_T0}, s{A_TASK}, 5", f"s_lshl_b32 s{G_T0}, s{G_T0}, 2", f"s_add_u32 s{G_T0}, s{G_T0}, {ACNT}")
    signal_add(p, G_WS, G_T0)
    p.fence(); p.reset_q()
    I("s_branch L_al")
    p.L("L_aend")
    ts(p, 4, ch.S_H)
    I("s_branch L_end")
    p.L("L_oproj")
    srd(p, G_W, ptr("A_Wo"), 4096 * 1152); srd(p, G_O, ptr("out"), 2048 * 2304)
    I(f"s_mul_hi_u32 s{G_SEG}, s{S_ROLE}, {(1 << 32) // 12 + 1}", f"s_mul_i32 s{G_T0}, s{G_SEG}, 12", f"s_sub_u32 s{G_T0}, s{S_ROLE}, s{G_T0}", f"s_mul_i32 s{G_WCOL}, s{G_T0}, 96")
    oproj_setup(p); oproj_preload(p)
    ts(p, 2, ch.S_H)
    p.fence(); p.reset_q(); p.L("L_ol")
    I(f"s_lshl_b32 s38, s{G_SEG}, 2", f"s_add_u32 s38, s38, {ACNT}")
    nw = p.newlabel("op_nw")
    I(f"s_cmp_lg_u32 s{G_WV}, 0", f"s_cbranch_scc1 {nw}")
    poll_ge(p, G_WS, 38, 32, tmpv=(30, 31), sleep=12)
    p.L(nw)
    I("s_barrier")
    oproj_seg(p)
    I(f"s_add_u32 s{G_SEG}, s{G_SEG}, {N_OPROJ // 12}")
    p.fence(); p.reset_q()
    I(f"s_cmp_lt_u32 s{G_SEG}, 64", "s_cbranch_scc1 L_ol")
    I("s_waitcnt vmcnt(0)")
    ts(p, 4, ch.S_H); dts(p, 15, "umax", 30, 31)
    I("s_branch L_end")

def relane(p):
    p.I("v_lshrrev_b32 v33, 4, v0", "v_and_b32 v34, 15, v33", "v_lshrrev_b32 v35, 4, v33")

if __name__ == "__main__":
    opts = {}
    for a in sys.argv[2:]:
        if a.startswith("g1="): ch.DELAYG1[0] = int(a[3:])
        elif a.startswith("d3="): ch.DELAY3[0] = int(a[3:])
        elif a.startswith("d0="): ch.DELAY0[0] = int(a[3:])
        elif a.startswith("d1="): ch.DELAY1[0] = int(a[3:])
        elif a.startswith("d2="): ch.DELAY2[0] = int(a[3:])
        elif "=" in a: k, v = a.split("="); opts[k] = int(v)
        else: opts[a] = 1
    open(sys.argv[1], "w").write(build(opts))
```

```python
import sys
import chain4 as ch
from gemm576 import *
from test_gemm import role_gemm1, role_bq
from test_b import role_bo
from attna import *
from attnb import *
from oproja import *
NAME = "concat_heads__memory_aug_recurrent_mem_tr__grouped_kv_mqa__prompt_kernel"
HEAD = open("concat_heads__memory_aug_recurrent_mem_tr__grouped_kv_mqa__prompt.s.ref").read().split("; Override launch geometry")[0]
PT = 72
PN = ["A_x", "A_mem0", "A_Wq", "A_Wk", "A_Wv", "A_Wo", "B_x", "B_wq", "B_wk", "B_wv", "B_wo", "out"]
def ptr(n): return PT + 2 * PN.index(n)
S_ROLE = 44
N_OPROJ, N_BO0, N_BOUT = 48, 48, 24
ATTNB0 = 96

TL = [False]
def ts(p, k, rolereg, a=30, b=31):
    if not TL[0]: return
    I = p.I
    lab = p.newlabel("ts")
    I(f"s_cmp_lg_u32 s19, 0", f"s_cbranch_scc1 {lab}")
    I("s_memrealtime s[2:3]", "s_waitcnt lgkmcnt(0)", f"s_lshl_b32 s3, s{rolereg}, 6", f"s_add_u32 s3, s3, {0x9100000 + 4*k}")
    I("s_mov_b64 exec, 1", f"v_mov_b32 v{a}, s2", f"v_mov_b32 v{b}, 0", f"buffer_store_dword v{a}, v{b}, s[4:7], s3 offen", "s_mov_b64 exec, -1", "s_nop 1")
    p.L(lab)

def tc(p, k, rolereg, a=30, b=31):
    if not TL[0]: return
    I = p.I
    lab = p.newlabel("tc")
    I(f"s_cmp_lg_u32 s19, 0", f"s_cbranch_scc1 {lab}")
    I("s_memtime s[2:3]", "s_waitcnt lgkmcnt(0)", f"s_lshl_b32 s3, s{rolereg}, 6", f"s_add_u32 s3, s3, {0x9100000 + 4*k}")
    I("s_mov_b64 exec, 1", f"v_mov_b32 v{a}, s2", f"v_mov_b32 v{b}, 0", f"buffer_store_dword v{a}, v{b}, s[4:7], s3 offen", "s_mov_b64 exec, -1", "s_nop 1")
    p.L(lab)

DT = [False]
def dts(p, idx, op="umax", a=52, b=53):
    if not DT[0]: return
    I = p.I
    lab = p.newlabel("dts")
    I("s_cmp_lg_u32 s19, 0", f"s_cbranch_scc1 {lab}")
    I("s_memrealtime s[2:3]", "s_waitcnt lgkmcnt(0)")
    if op == "umin": I("s_not_b32 s2, s2")
    I("s_mov_b64 exec, 1", f"v_mov_b32 v{a}, s2", f"v_mov_b32 v{b}, {4*idx}", f"global_atomic_umax v{b}, v{a}, s[16:17]", "s_mov_b64 exec, -1", "s_nop 1")
    p.L(lab)

def build(opts):
    DT[0] = bool(opts.get("dt"))
    TL[0] = bool(opts.get("tl"))
    ch.PROF[0] = bool(opts.get("prof"))
    ch.PREF[0] = not opts.get("nopref")
    ch.STEPTS[0] = bool(opts.get("sts"))
    ch.FUSED[0] = True
    p = AProg(); I = p.I
    p.raw(HEAD.rstrip("\n"))
    p.raw("; Override launch geometry by editing the next line.")
    p.raw("; @launch grid=(256,1,1) block=(256,1,1) lds=163840")
    p.raw('.amdgcn_target "amdgcn-amd-amdhsa--gfx950"\n.text')
    kernel_head(p, NAME)
    S_DBG, S_WS, S_MEM, S_WV, S_H = ch.S_DBG, ch.S_WS, ch.S_MEM, ch.S_WV, ch.S_H
    I("s_cmp_ge_u32 s2, 256", "s_cbranch_scc1 L_end")
    load_ptrs(p, PN, PT)
    I(f"s_load_dwordx2 s[{S_DBG}:{S_DBG+1}], s[0:1], {KARG['dbg']}", f"s_load_dwordx2 s[46:47], s[0:1], {KARG['ws']}")
    I("s_waitcnt lgkmcnt(0)")
    srd(p, S_WS, 46, WS_BYTES)
    I(f"s_mov_b32 s{S_ABORT}, 0")
    ch.lane_consts(p)
    dts(p, 9, "umin", 60, 61); dts(p, 11, "umax", 60, 61) if opts.get("dt") == 1 else None
    I("s_getreg_b32 s24, hwreg(HW_REG_XCC_ID, 0, 4)", "s_and_b32 s24, s24, 7")
    lab = p.newlabel("role")
    I(f"s_cmp_lg_u32 s{S_WV}, 0", f"s_cbranch_scc1 {lab}")
    I("s_mov_b64 exec, 1", "v_mov_b32 v44, 1", "s_lshl_b32 s25, s24, 2", "v_mov_b32 v45, s25", f"global_atomic_add v46, v45, v44, s[{S_DBG}:{S_DBG+1}] sc0", "s_waitcnt vmcnt(0)")
    I("v_readfirstlane_b32 s26, v46")
    I(f"s_cmp_eq_u32 s24, {opts.get('chx', 0)}", "s_cselect_b32 s27, s26, 1000", "s_cmp_lt_u32 s27, 32", "s_cbranch_scc1 L_isch")
    I(f"v_mov_b32 v45, {DBG_WORK}", f"global_atomic_add v46, v45, v44, s[{S_DBG}:{S_DBG+1}] sc0", "s_waitcnt vmcnt(0)", "v_add_u32 v46, 32, v46")
    p.L("L_isch")
    I("v_mov_b32 v45, 0", "ds_write_b32 v45, v46", "s_waitcnt lgkmcnt(0)", "s_mov_b64 exec, -1")
    p.L(lab)
    I("s_barrier", "v_mov_b32 v45, 0", "ds_read_b32 v46, v45", "s_waitcnt lgkmcnt(0)", f"v_readfirstlane_b32 s{S_H}, v46", "s_barrier")
    I("s_mov_b32 s98, 0")
    I(f"s_cmp_lt_u32 s{S_H}, 256", "s_cbranch_scc1 L_notx", f"s_sub_u32 s{S_H}, 287, s{S_H}", "s_mov_b32 s98, 1")
    p.L("L_notx")
    I(f"s_cmp_ge_u32 s{S_H}, 32", "s_cbranch_scc1 L_worker")
    I("s_mov_b32 s45, s98")
    ts(p, 0, S_H, 52, 53)
    chain_role(p, opts)
    I("s_branch L_end")
    p.L("L_worker")
    I(f"s_sub_u32 s{S_ROLE}, s{S_H}, 32")
    ts(p, 0, S_H)
    worker(p, opts)
    p.L("L_end"); I("s_endpgm")
    p.raw(kd(NAME))
    return p.render()

def chain_role(p, opts):
    I = p.I
    S_PTR = ch.S_PTR
    for i, n in enumerate(["A_mem0", "A_Wq", "A_Wk", "A_Wv", "A_Wo"]):
        I(f"s_mov_b32 s{S_PTR+2*i}, s{ptr(n)}", f"s_mov_b32 s{S_PTR+2*i+1}, s{ptr(n)+1}")
    srd(p, ch.S_MEM, S_PTR, 9216)
    ch.setup_chain(p, local=False)
    ts(p, 1, ch.S_H, 66, 67); dts(p, 11, "umax", 66, 67) if opts.get("dt") == 2 else None
    ch.preload(p)
    ts(p, 2, ch.S_H, 52, 53); dts(p, 15, "umax") if opts.get("dt") == 2 else None
    lab = p.newlabel("mode"); dec = p.newlabel("mode_d")
    I("s_cmp_lg_u32 s45, 0", f"s_cbranch_scc1 {dec}", f"s_mov_b32 s{ch.S_T2}, 0")
    p.L(lab)
    I(f"v_mov_b32 v45, {4*opts.get('chx', 0)}", f"global_load_dword v44, v45, s[{ch.S_DBG}:{ch.S_DBG+1}] sc1", f"v_mov_b32 v45, {DBG_WORK}", f"global_load_dword v46, v45, s[{ch.S_DBG}:{ch.S_DBG+1}] sc1", "s_waitcnt vmcnt(0)")
    I(f"v_readfirstlane_b32 s{ch.S_T0}, v44", f"v_readfirstlane_b32 s{ch.S_T1}, v46")
    I(f"s_cmp_ge_u32 s{ch.S_T0}, 32", f"s_cbranch_scc1 {dec}", f"s_cmp_gt_u32 s{ch.S_T1}, 224", "s_cselect_b32 s45, 1, 0", f"s_cbranch_scc1 {dec}")
    I("s_sleep 4", f"s_add_u32 s{ch.S_T2}, s{ch.S_T2}, 1", f"s_cmp_lt_u32 s{ch.S_T2}, 0x100000", f"s_cbranch_scc1 {lab}")
    p.L(dec)
    if opts.get("forceglobal"): I("s_mov_b32 s45, 1")
    I("s_mov_b32 s12, s45")
    ch.chain_state(p)
    ts(p, 3, ch.S_H, 52, 53); tc(p, 8, ch.S_H, 52, 53); dts(p, 8, "umax")
    I("s_cmp_lg_u32 s12, 0", "s_cbranch_scc1 L_chain_global")
    ch.chain_loop(p, local=True)
    ts(p, 4, ch.S_H, 52, 53); tc(p, 9, ch.S_H, 52, 53); dts(p, 14, "umax")
    ch.prof_dump(p)
    I("s_branch L_end")
    p.L("L_chain_global")
    ch.chain_loop(p, local=False)

def worker(p, opts):
    I = p.I
    S_DBG = ch.S_DBG
    lab = p.newlabel("noinit")
    I(f"s_cmp_lg_u32 s{S_ROLE}, 0", f"s_cbranch_scc1 {lab}")
    I("v_mov_b64 v[44:45], 0", "v_mov_b64 v[46:47], 0", f"s_lshl_b32 s{G_T0}, s{G_WV}, 10", f"s_add_u32 s{G_T0}, s{G_T0}, {FLAG_OFF}")
    for rnd in range(4):
        I(f"buffer_store_dwordx4 v[44:47], v0, s[{G_WS}:{G_WS+3}], s{G_T0} offen sc1", f"s_add_u32 s{G_T0}, s{G_T0}, 4096")
    I("s_waitcnt vmcnt(0)", "s_barrier")
    lab2 = p.newlabel("ini2")
    I(f"s_cmp_lg_u32 s{G_WV}, 0", f"s_cbranch_scc1 {lab2}")
    I("s_mov_b64 exec, 1", "v_mov_b32 v44, 1", f"v_mov_b32 v45, {DBG_INIT}", f"global_store_dword v45, v44, s[{S_DBG}:{S_DBG+1}] sc1", "s_mov_b64 exec, -1")
    p.L(lab2); p.L(lab)
    mid = lambda p: wait_init(p, S_DBG, tmpv=(48, 49))
    I(f"s_cmp_ge_u32 s{S_ROLE}, 192", "s_cbranch_scc1 L_p1b")
    role_gemm1(p, f"s{S_ROLE}", ptr("A_x"), ptr("A_Wq"), ptr("A_Wk"), ptr("A_Wv"), mid=mid)
    I("s_branch L_p2")
    p.L("L_p1b")
    I(f"s_cmp_ge_u32 s{S_ROLE}, 216", "s_cbranch_scc1 L_p1c")
    I(f"s_sub_u32 s36, s{S_ROLE}, 192")
    role_bq(p, 36, ptr("B_x"), ptr("B_wq"), endsig=BQCNT, mid=mid)
    I("s_branch L_p2")
    p.L("L_p1c")
    srd(p, G_X, ptr("B_x"), 2048 * 1152)
    I(f"s_sub_u32 s20, s{S_ROLE}, 216", "s_lshl_b32 s20, s20, 2", f"s_add_u32 s20, s20, s{G_WV}", "s_mov_b32 s21, 32")
    kvproj(p, ptr("B_wk"), ptr("B_wv"), 2, 20)
    I("s_waitcnt vmcnt(0)")
    wait_init(p, S_DBG, tmpv=(30, 31))
    I(f"s_mov_b32 s{G_T0}, {BKVCNT}")
    signal_add(p, G_WS, G_T0)
    p.L("L_p2")
    p.fence(); p.reset_q()
    I("s_barrier")
    ts(p, 1, ch.S_H)
    relane(p)
    I(f"s_cmp_lt_u32 s{S_ROLE}, {N_OPROJ}", "s_cbranch_scc1 L_oproj")
    I(f"s_cmp_lt_u32 s{S_ROLE}, {ATTNB0}", "s_cbranch_scc1 L_attna")
    poll_ge(p, G_WS, BQCNT, 24, imm=True, sleep=32); poll_ge(p, G_WS, BKVCNT, 32, imm=True, sleep=32)
    attnb_setup(p)
    I(f"s_sub_u32 s{B_TASK}, s{S_ROLE}, {ATTNB0}", f"s_lshl_b32 s{B_TASK}, s{B_TASK}, 2", f"s_add_u32 s{B_TASK}, s{B_TASK}, s{G_WV}")
    p.fence(); p.reset_q(); p.L("L_bl")
    attnb_task(p)
    I("s_waitcnt vmcnt(0)", f"s_and_b32 s{G_T0}, s{B_TASK}, 31", f"s_lshl_b32 s{G_T0}, s{G_T0}, 2", f"s_add_u32 s{G_T0}, s{G_T0}, {BACNT}")
    signal_add(p, G_WS, G_T0)
    I(f"s_add_u32 s{B_TASK}, s{B_TASK}, 512")
    p.fence(); p.reset_q()
    I(f"s_cmp_lt_u32 s{B_TASK}, 1024", "s_cbranch_scc1 L_bl")
    I("s_barrier")
    ts(p, 2, ch.S_H)
    I(f"s_cmp_ge_u32 s{S_ROLE}, {ATTNB0 + N_BOUT}", "s_cbranch_scc1 L_attna")
    def bo_wait(p, segreg):
        I(f"s_lshr_b32 s{G_T0}, s{segreg}, 1", f"s_lshl_b32 s{G_T0}, s{G_T0}, 2", f"s_add_u32 s{G_T0}, s{G_T0}, {BACNT}", f"s_mov_b32 s45, s{G_T0}")
        poll_ge(p, G_WS, 45, 32, tmpv=(48, 49), sleep=32)
    I(f"s_sub_u32 s36, s{S_ROLE}, {ATTNB0}")
    relane(p)
    role_bo(p, 36, 46, ptr("B_wo"), ptr("out"), prewait=bo_wait, xsc=" sc1")
    p.fence(); p.reset_q()
    I("s_barrier")
    relane(p)
    p.L("L_attna")
    ts(p, 3, ch.S_H)
    relane(p)
    attna_setup(p)
    p.fence(); p.reset_q(); p.L("L_al")
    I("s_mov_b64 exec, 1", "v_mov_b32 v30, 1", "v_mov_b32 v31, 0", f"s_mov_b32 s{G_T0}, {ATICK}", f"buffer_atomic_add v30, v31, s[{G_WS}:{G_WS+3}], s{G_T0} offen sc0", "s_waitcnt vmcnt(0)", "s_mov_b64 exec, -1")
    I(f"v_readfirstlane_b32 s{A_TASK}, v30")
    I(f"s_cmp_ge_u32 s{A_TASK}, 2048", "s_cbranch_scc1 L_aend")
    I(f"s_lshr_b32 s36, s{A_TASK}, 5", "s_lshl_b32 s37, s36, 2")
    I(f"s_add_u32 s38, s37, {QCNT}"); poll_ge(p, G_WS, 38, 16, sleep=32)
    I(f"s_add_u32 s38, s37, {KVCNT}"); poll_ge(p, G_WS, 38, 32, sleep=32)
    def chwait(p):
        I(f"s_and_b32 s38, s{A_TASK}, 31", "s_lshl_b32 s38, s38, 8", f"s_add_u32 s38, s38, {CHFLG}", "s_add_u32 s39, s36, 1")
        poll_ge_far(p, G_WS, 38, 39, tmpv=(29, 30))
    attna_task(p, midwait=chwait)
    I("s_waitcnt vmcnt(0)", f"s_lshr_b32 s{G_T0}, s{A_TASK}, 5", f"s_lshl_b32 s{G_T0}, s{G_T0}, 2", f"s_add_u32 s{G_T0}, s{G_T0}, {ACNT}")
    signal_add(p, G_WS, G_T0)
    p.fence(); p.reset_q()
    I("s_branch L_al")
    p.L("L_aend")
    ts(p, 4, ch.S_H)
    I("s_branch L_end")
    p.L("L_oproj")
    srd(p, G_W, ptr("A_Wo"), 4096 * 1152); srd(p, G_O, ptr("out"), 2048 * 2304)
    I(f"s_mul_hi_u32 s{G_SEG}, s{S_ROLE}, {(1 << 32) // 12 + 1}", f"s_mul_i32 s{G_T0}, s{G_SEG}, 12", f"s_sub_u32 s{G_T0}, s{S_ROLE}, s{G_T0}", f"s_mul_i32 s{G_WCOL}, s{G_T0}, 96")
    oproj_setup(p); oproj_preload(p)
    ts(p, 2, ch.S_H)
    p.fence(); p.reset_q(); p.L("L_ol")
    I(f"s_lshl_b32 s38, s{G_SEG}, 2", f"s_add_u32 s38, s38, {ACNT}")
    nw = p.newlabel("op_nw")
    I(f"s_cmp_lg_u32 s{G_WV}, 0", f"s_cbranch_scc1 {nw}")
    poll_ge(p, G_WS, 38, 32, tmpv=(30, 31), sleep=12)
    p.L(nw)
    I("s_barrier")
    oproj_seg(p)
    I(f"s_add_u32 s{G_SEG}, s{G_SEG}, {N_OPROJ // 12}")
    p.fence(); p.reset_q()
    I(f"s_cmp_lt_u32 s{G_SEG}, 64", "s_cbranch_scc1 L_ol")
    I("s_waitcnt vmcnt(0)")
    ts(p, 4, ch.S_H); dts(p, 15, "umax", 30, 31) if opts.get("dt") == 1 else None
    I("s_branch L_end")

def relane(p):
    p.I("v_lshrrev_b32 v33, 4, v0", "v_and_b32 v34, 15, v33", "v_lshrrev_b32 v35, 4, v33")

if __name__ == "__main__":
    opts = {}
    for a in sys.argv[2:]:
        if a.startswith("g1="): ch.DELAYG1[0] = int(a[3:])
        elif a.startswith("d3="): ch.DELAY3[0] = int(a[3:])
        elif a.startswith("d0="): ch.DELAY0[0] = int(a[3:])
        elif a.startswith("d1="): ch.DELAY1[0] = int(a[3:])
        elif a.startswith("d2="): ch.DELAY2[0] = int(a[3:])
        elif "=" in a: k, v = a.split("="); opts[k] = int(v)
        else: opts[a] = 1
    open(sys.argv[1], "w").write(build(opts))
```

```python
import struct
from asmlib2 import *
from common import *
import common, sys as _sys
if 'hot' in _sys.argv: MEM_SLOT = 0

MEMIMG, SEXM, SEXX, OIMG, WVL = 0, 9216, 10240, 14336, 16384
PART_BYTES = 48 * 8192
SCALE_LOG2E = 0.08838834764831845 * 1.4426950408889634

S_WS, S_MEM, S_W = 4, 8, 12
S_DBG = 16
S_H, S_WV, S_STEP = 18, 19, 20
S_MEMR, S_MEMW, S_KX, S_VX, S_KM, S_VM = 21, 22, 23, 24, 25, 26
S_TO, S_T0, S_T1, S_T2 = 27, 28, 29, 30
S_C = 31
S_NLT8 = 32
S_M8 = 34
S_PS = 36
S_PL, S_ISW2 = 41, 42
S_W1024, S_W256 = 43, 44
S_HASTASK = 45
S_PTR = 46
S_EXMS = 58
S_D8, S_L8, S_MEMR8, S_TAG = 64, 65, 66, 67
S_ONES, S_W4 = 68, 70
S_MEMR2 = 57
S_B01, S_TO3, S_MEMEND, S_MEMZ, S_MEMWEND = 57, 61, 60, 39, 40
SLOW = []
VPLACE = [2, 4, 3, 2, 2, 2, 3]
V_DUM = 27
ST2_ISSUE = [1]
ST2_CHECK = [4]
S_C2 = 62
S_TCH, S_TMASK = 98, 100
S_RDY, S_CHF = 10, 11
S_PUBV = 13
S_PFM, S_W2048 = 46, 48
PREF = [True]
STEPTS = [False]
S_PUB = 8
FUSED = [False]
TOUCH = [2]
S_TO2 = 71
S_TS = 50
PNST = 14
S_ST = 72

V_L16, V_IDX = 0, 1
V_SQA, V_SQB, V_SKA, V_SKB = 2, 4, 6, 8
V_KX, V_VX = 10, 18
V_WV, V_MP, V_PY, V_PS, V_OR = 26, 27, 28, 30, 31

def frag(f): return ar(8 * f, 8) if f < 32 else vr(80 + 8 * (f - 32), 8)
def fragb(f): return ("a", 8 * f) if f < 32 else ("v", 80 + 8 * (f - 32))
def frag_sub(f, off, n):
    k, b = fragb(f)
    return f"{k}[{b+off}:{b+off+n-1}]" if n > 1 else f"{k}{b+off}"
def F_QA(kb): return kb
def F_QB(kb): return 9 + kb
def F_KA(kb): return 18 + kb
F_KB0 = 27
VRES = [6, 7, 0, 1]
VSTR = [2, 3, 4, 5, 8]
def F_VS(tb, slot): return 28 + slot * 2 + tb
def F_WO(j, kb): return 36 + j * 2 + kb

PROF = [False]
RT = [False]
TAGALL = [False]
def stamp(p, k, on):
    r = S_ST + 2 * k if k < 13 else 14
    if PROF[0] and on: p.I(f"{'s_memrealtime' if RT[0] else 's_memtime'} s[{r}:{r+1}]")

def lane_consts(p):
    I = p.I
    I("v_lshrrev_b32 v32, 6, v0", "v_and_b32 v33, 63, v0", f"v_readfirstlane_b32 s{S_WV}, v32")
    I("v_and_b32 v34, 15, v33", "v_lshrrev_b32 v35, 4, v33")
    I("v_and_b32 v36, 7, v33")
    I("v_bfe_u32 v37, v33, 3, 1")
    I(f"v_lshlrev_b32 v{V_L16}, 4, v33")
    I("v_lshrrev_b32 v38, 2, v34", "v_lshlrev_b32 v38, 1, v38", "v_and_b32 v39, 1, v34", "v_or_b32 v38, v38, v39", "v_bfe_u32 v39, v34, 1, 1")
    I("v_mov_b32 v40, 0x44444444", "v_mov_b32 v41, 0xeeeeeeee", "v_cmp_eq_u32 vcc, 0, v39", f"v_cndmask_b32 v{V_IDX}, v41, v40, vcc")

def setup_chain(p, local, part=3):
    I = p.I
    sc_st = "" if local else " sc1"
    if part & 1: setup_regs(p)
    if part & 2: init_fills(p, sc_st)

def setup_regs(p):
    I = p.I
    I(f"s_lshl_b32 s{S_W1024}, s{S_WV}, 10", f"s_lshl_b32 s{S_W256}, s{S_WV}, 8")
    I(f"s_lshl_b32 s{S_T0}, s{S_WV}, 11", f"s_add_u32 s{S_T0}, s{S_T0}, {WVL}", f"v_add_u32 v{V_WV}, s{S_T0}, v{V_L16}")
    I(f"v_mul_u32_u24 v{V_MP}, 1152, v38", f"v_lshl_add_u32 v{V_MP}, v35, 5, v{V_MP}", f"v_lshl_add_u32 v{V_MP}, v39, 4, v{V_MP}",
      f"s_lshl_b32 s{S_T0}, s{S_WV}, 7", f"v_add_u32 v{V_MP}, s{S_T0}, v{V_MP}")
    I(f"v_lshlrev_b32 v{V_PS}, 13, v35", f"v_lshl_add_u32 v{V_PS}, v37, 12, v{V_PS}", f"v_lshl_add_u32 v{V_PS}, v36, 4, v{V_PS}")
    I("v_lshl_add_u32 v40, v35, 1, v39", "v_xor_b32 v40, v40, v38", "v_lshlrev_b32 v40, 4, v40", "v_lshl_add_u32 v40, v38, 8, v40", f"v_add_u32 v{V_OR}, {OIMG}, v40")
    for src, ra, rb in ((36, V_SQA, V_SQB), (38, V_SKA, V_SKB)):
        I("v_lshlrev_b32 v40, 1, v35", f"v_sub_u32 v40, v{src}, v40", "v_mov_b32 v41, 0", "v_mov_b32 v42, 0x3f80", "v_mov_b32 v43, 0x3f800000")
        I("v_cmp_eq_u32 vcc, 0, v40", "v_cndmask_b32 v41, v41, v42, vcc", "v_cmp_eq_u32 vcc, 1, v40", f"v_cndmask_b32 v{ra}, v41, v43, vcc")
        I(f"v_mov_b32 v{ra+1}, 0", f"v_mov_b32 v{rb}, 0", f"v_mov_b32 v{rb+1}, v{ra}")
    I(f"s_mov_b32 s{S_NLT8}, 0x00ff00ff", f"s_mov_b32 s{S_NLT8+1}, 0x00ff00ff")
    I(f"s_mov_b32 s{S_ONES}, 0x3f803f80", f"s_mov_b32 s{S_ONES+1}, 0x3f803f80", f"s_lshl_b32 s{S_W4}, s{S_WV}, 2")
    cbits = struct.unpack("<I", struct.pack("<f", SCALE_LOG2E))[0]
    I(f"s_mov_b32 s{S_C}, 0x{cbits:08x}", f"s_mov_b32 s{S_C2}, 0x{cbits:08x}", f"s_mov_b32 s{S_C2+1}, 0x{cbits:08x}")
def init_fills(p, sc_st):
    I = p.I
    p.C("init fills: PART zero (12288 B per WG), MEM ring sentinel (slots 1..3), slot 0 = mem0 in fragment order")
    I(f"s_mul_i32 s{S_T0}, s{S_H}, 12288", f"s_add_u32 s{S_T1}, s{S_T0}, s{S_W1024}", f"s_add_u32 s{S_T1}, s{S_T1}, {PART_OFF}")
    I("v_mov_b64 v[64:65], 0", "v_mov_b64 v[66:67], 0", "v_mov_b64 v[68:69], -1", "v_mov_b64 v[70:71], -1")
    for rnd in range(3):
        I(f"buffer_store_dwordx4 v[64:67], v{V_L16}, s[{S_WS}:{S_WS+3}], s{S_T1} offen{sc_st}")
        if rnd < 2: I(f"s_add_u32 s{S_T1}, s{S_T1}, 4096")
    lab = p.newlabel("fill_skip")
    I(f"s_lshl_b32 s{S_T0}, s{S_H}, 2", f"s_add_u32 s{S_T0}, s{S_T0}, s{S_WV}", f"s_sub_u32 s{S_T0}, s{S_T0}, 4", f"s_cmp_ge_u32 s{S_T0}, 27", f"s_cbranch_scc1 {lab}")
    I(f"s_lshl_b32 s{S_T0}, s{S_T0}, 10", f"s_add_u32 s{S_T2}, s{S_T0}, {MEM_OFF + MEM_SLOT}", f"buffer_store_dwordx4 v[68:71], v{V_L16}, s[{S_WS}:{S_WS+3}], s{S_T2} offen{sc_st}")
    p.L(lab)
    lab = p.newlabel("no_m0")
    I(f"s_cmp_lg_u32 s{S_H}, 0", f"s_cbranch_scc1 {lab}")
    I(f"buffer_load_dwordx4 v[64:67], v{V_MP}, s[{S_MEM}:{S_MEM+3}], 0 offen", f"buffer_load_dwordx4 v[68:71], v{V_MP}, s[{S_MEM}:{S_MEM+3}], 0 offen offset:512")
    I(f"s_lshl_b32 s{S_T0}, s{S_WV}, 7", f"v_subrev_u32 v72, s{S_T0}, v{V_MP}", f"buffer_load_dwordx4 v[76:79], v72, s[{S_MEM}:{S_MEM+3}], 0 offen offset:1024")
    I(f"s_add_u32 s{S_T0}, s{S_W1024}, {MEM_OFF}", f"s_mov_b32 s{S_T1}, {MEM_OFF + 8192}", "s_waitcnt vmcnt(0)")
    I(f"buffer_store_dwordx4 v[64:67], v{V_L16}, s[{S_WS}:{S_WS+3}], s{S_T0} offen{sc_st}")
    I(f"s_add_u32 s{S_T0}, s{S_T0}, 4096", f"buffer_store_dwordx4 v[68:71], v{V_L16}, s[{S_WS}:{S_WS+3}], s{S_T0} offen{sc_st}")
    I(f"buffer_store_dwordx4 v[76:79], v{V_L16}, s[{S_WS}:{S_WS+3}], s{S_T1} offen{sc_st}")
    p.L(lab)
    I("s_waitcnt vmcnt(0)", "s_barrier")
    lab = p.newlabel("init_arr")
    I(f"s_cmp_lg_u32 s{S_WV}, 0", f"s_cbranch_scc1 {lab}")
    I("s_mov_b64 exec, 1", "v_mov_b32 v64, 1", "v_mov_b32 v65, 40", f"global_atomic_add v65, v64, s[{S_DBG}:{S_DBG+1}]", "s_mov_b64 exec, -1")
    p.L(lab)

def preload(p, mid=None):
    I = p.I
    p.C("weight preload")
    I("v_lshrrev_b32 v40, 4, v33", "v_lshlrev_b32 v41, 13, v40")
    I("v_and_b32 v42, 1, v40", "v_lshlrev_b32 v42, 1, v42", "v_xor_b32 v42, v42, v34", "v_lshlrev_b32 v42, 4, v42")
    for jj in range(4):
        I(f"v_xor_b32 v43, {64*jj}, v42", "v_add_u32 v43, v43, v41", f"v_add_u32 v{52+jj}, {jj*32768}, v43")
    I("v_lshrrev_b32 v40, 3, v33", "v_and_b32 v41, 7, v33", "v_lshrrev_b32 v42, 5, v33")
    for jj in range(4):
        I(f"v_add_u32 v43, {8*jj}, v40", "v_mul_u32_u24 v43, 1152, v43")
        I(f"v_add_u32 v44, {2*(jj&1)}, v42", "v_lshlrev_b32 v44, 1, v44", "v_xor_b32 v44, v44, v41", f"v_lshl_add_u32 v{56+jj}, v44, 4, v43")
    I("v_lshrrev_b32 v40, 2, v34", "v_and_b32 v41, 3, v34")
    I("v_lshrrev_b32 v42, 1, v35", "v_lshlrev_b32 v42, 4, v42", "v_and_b32 v43, 1, v35", "v_lshl_add_u32 v42, v43, 2, v42")
    I("v_and_b32 v44, 1, v40", "v_add_u32 v42, v42, v44", "v_lshrrev_b32 v45, 1, v40", "v_lshl_add_u32 v42, v45, 3, v42")
    I("v_lshl_add_u32 v46, v45, 1, v43")
    I("v_lshl_or_b32 v47, v46, 1, v44")
    I(f"s_lshl_b32 s{S_T0}, s{S_WV}, 1", f"v_xor_b32 v47, s{S_T0}, v47", "v_lshlrev_b32 v47, 5, v47", "v_lshl_add_u32 v47, v41, 3, v47", "v_lshl_add_u32 v60, v42, 8, v47", "v_xor_b32 v61, 32, v60")
    I(f"v_xor_b32 v46, s{S_WV}, v46", "v_lshlrev_b32 v46, 5, v46", "v_lshl_add_u32 v46, v41, 3, v46", "v_lshl_add_u32 v62, v42, 7, v46")
    chunks = [("q", kb) for kb in range(9)] + [("o", cc) for cc in range(9)] + [("k", kb) for kb in range(9)] + [("v", kb) for kb in VRES + VSTR]
    slot = lambda c: (c + 4) % 10
    ptr = {"q": S_PTR + 2, "k": S_PTR + 4, "v": S_PTR + 6, "o": S_PTR + 8}
    cur = [None]
    nissued = [0]
    def issue(c):
        kind, x = chunks[c]
        if cur[0] != kind:
            cur[0] = kind
            I(f"s_mov_b32 s{S_W}, s{ptr[kind]}", f"s_and_b32 s{S_W+1}, s{ptr[kind]+1}, 0xffff", f"s_mov_b32 s{S_W+2}, {576*8192 if kind != 'o' else 4096*1152}", f"s_mov_b32 s{S_W+3}, 0x20000")
        if kind != "o":
            I(f"s_lshl_b32 s{S_T0}, s{S_WV}, 17", f"s_lshl_b32 s{S_T1}, s{S_H}, 8", f"s_add_u32 s{S_T0}, s{S_T0}, s{S_T1}", f"s_add_u32 s{S_T0}, s{S_T0}, {x*524288}")
            vb = 52
        else:
            I(f"s_lshl_b32 s{S_T0}, s{S_H}, 7", f"s_lshl_b32 s{S_T1}, s{S_WV}, 5", f"s_add_u32 s{S_T0}, s{S_T0}, s{S_T1}", f"s_mul_i32 s{S_T0}, s{S_T0}, 1152", f"s_add_u32 s{S_T0}, s{S_T0}, {x*128}")
            vb = 56
        I(f"s_lshl_b32 s{S_T1}, s{S_WV}, 12", f"s_add_u32 s{S_T1}, s{S_T1}, {slot(c)*16384}")
        for jj in range(4):
            I(f"s_add_u32 m0, s{S_T1}, {jj*1024}")
            I(f"buffer_load_dwordx4 v{vb+jj}, s[{S_W}:{S_W+3}], s{S_T0} offen lds")
        nissued[0] = c + 1
    def tr(dst_of_t, areg, rowb, row0):
        for t in range(4):
            I(f"ds_read_b64_tr_b16 {dst_of_t(t)}, v{areg} offset:{(row0+32*(t//2)+2*(t%2))*rowb}")
    for c in range(10): issue(c)
    if mid: mid(p)
    for c in range(36):
        kind, x = chunks[c]
        I(f"s_waitcnt vmcnt({4*(nissued[0]-1-c)})", "s_barrier")
        sb = slot(c) * 16384
        I(f"v_add_u32 v40, {sb}, v60", f"v_add_u32 v41, {sb}, v61", f"v_add_u32 v42, {sb}, v62")
        if kind == "q":
            tr(lambda t: frag_sub(F_QA(x), 2*t, 2), 40, 256, 0); tr(lambda t: frag_sub(F_QB(x), 2*t, 2), 41, 256, 0)
        elif kind == "k":
            fb = F_KB0 if x == 0 else F_VS((x-1) % 2, (x-1) // 2)
            tr(lambda t: frag_sub(F_KA(x), 2*t, 2), 40, 256, 0); tr(lambda t: frag_sub(fb, 2*t, 2), 41, 256, 0)
        elif kind == "o":
            for kb in range(2): tr(lambda t: frag_sub(F_WO(x, kb), 2*t, 2), 42, 128, 64*kb)
        else:
            for tb in range(2): tr(lambda t: f"v[{64+8*tb+2*t}:{65+8*tb+2*t}]", 40 + tb, 256, 0)
        I("s_waitcnt lgkmcnt(0)", "s_barrier")
        if kind == "v":
            pos = c - 27
            I(f"s_lshl_b32 s{S_T0}, s{S_WV}, 11", f"s_add_u32 s{S_T0}, s{S_T0}, {sb}", f"v_add_u32 v40, s{S_T0}, v{V_L16}")
            for sub in range(2):
                for half in range(2):
                    src = frag_sub(F_VS(sub, pos), 4*half, 4) if pos < 4 else f"v[{64+8*sub+4*half}:{67+8*sub+4*half}]"
                    I(f"ds_write_b128 v40, {src} offset:{sub*8192+half*1024}")
            I("s_waitcnt lgkmcnt(0)")
            if pos < 4:
                for tb in range(2):
                    k, b = fragb(F_VS(tb, pos))
                    for r in range(8):
                        I(f"v_accvgpr_write_b32 a{b+r}, v{64+8*tb+r}" if k == "a" else f"v_mov_b32 v{b+r}, v{64+8*tb+r}")
        if c + 10 < 36: issue(c + 10)
    I("s_barrier")

def chain_state(p):
    I = p.I
    lab = p.newlabel("initw"); lab2 = p.newlabel("initd")
    I(f"s_mov_b32 s{S_TO}, 0", f"v_lshrrev_b32 v45, 4, v{V_L16}", f"v_mul_u32_u24 v45, {DBG_INIT - 40}, v45", "v_add_u32 v45, 40, v45", "s_mov_b64 exec, 3")
    p.L(lab)
    I(f"global_load_dword v44, v45, s[{S_DBG}:{S_DBG+1}] sc1", "s_waitcnt vmcnt(0)", f"v_readlane_b32 s{S_T0}, v44, 0", f"v_readlane_b32 s{S_T1}, v44, 1", f"s_add_u32 s{S_TO}, s{S_TO}, 1")
    if FUSED[0]: I(f"s_cmp_eq_u32 s{S_T1}, 0", f"s_cselect_b32 s{S_T0}, 0, s{S_T0}")
    I(f"s_cmp_ge_u32 s{S_T0}, 32", f"s_cbranch_scc1 {lab2}", f"s_cmp_lt_u32 s{S_TO}, 0x40000", f"s_cbranch_scc1 {lab}")
    p.L(lab2)
    I("s_mov_b64 exec, -1")
    I(f"s_mov_b32 s{S_STEP}, 0", f"s_mov_b32 s{S_TO}, 0", f"s_mov_b32 s{S_TO2}, 0", f"s_mov_b32 s{S_TO3}, 0")
    I(f"s_min_u32 s{S_T0}, s{S_WV}, 2", f"s_lshl_b32 s{S_B01}, s{S_T0}, 11", f"s_add_u32 s{S_MEMR}, s{S_B01}, {MEM_OFF}", f"s_add_u32 s{S_MEMEND}, s{S_MEMR}, {4*MEM_SLOT}")
    I(f"s_lshl_b32 s{S_T0}, s{S_WV}, 5", f"s_add_u32 s{S_T0}, s{S_T0}, s{S_H}")
    I(f"s_cmp_lt_u32 s{S_WV}, 3", f"s_cselect_b32 s{S_HASTASK}, 1, 0")
    I(f"s_lshl_b32 s{S_PL}, s{S_T0}, 12", f"s_add_u32 s{S_PL}, s{S_PL}, {PART_OFF}")
    I(f"s_mul_i32 s{S_MEMW}, s{S_WV}, 3072")
    I(f"s_lshr_b32 s{S_T1}, s{S_H}, 3", f"s_lshl_b32 s{S_T1}, s{S_T1}, 8", f"s_add_u32 s{S_MEMW}, s{S_MEMW}, s{S_T1}")
    I(f"s_bfe_u32 s{S_T1}, s{S_H}, 0x20001", f"s_lshl_b32 s{S_T1}, s{S_T1}, 6", f"s_add_u32 s{S_MEMW}, s{S_MEMW}, s{S_T1}")
    I(f"s_and_b32 s{S_T1}, s{S_H}, 1", f"s_lshl_b32 s{S_T1}, s{S_T1}, 5", f"s_add_u32 s{S_MEMW}, s{S_MEMW}, s{S_T1}", f"s_add_u32 s{S_MEMW}, s{S_MEMW}, {MEM_OFF + MEM_SLOT}")
    I(f"s_mov_b32 s{S_EXMS+1}, 0x00000055", f"s_mov_b32 s{S_EXMS}, 0x00550055")
    I(f"s_cmp_eq_u32 s{S_WV}, 2", f"s_cselect_b32 s{S_ISW2}, 1, 0")
    I(f"s_mul_i32 s{S_L8}, s{S_WV}, 768", f"s_add_u32 s{S_L8}, s{S_L8}, {MEMIMG + 6144}", f"s_sub_u32 s{S_D8}, s{S_L8}, s{S_B01}")
    I(f"s_mov_b32 s{S_M8}, -1", f"s_mov_b32 s{S_M8+1}, 0xffff")
    I(f"s_cmp_eq_u32 s{S_WV}, 3", f"s_cselect_b32 s{S_PFM}, -1, 0", f"s_mov_b32 s{S_PFM+1}, s{S_PFM}", f"s_lshl_b32 s{S_W2048}, s{S_WV}, 11")
    I(f"s_add_u32 s{S_MEMZ}, s{S_MEMW}, {2*MEM_SLOT}", f"s_add_u32 s{S_MEMWEND}, s{S_MEMW}, {3*MEM_SLOT}")
    I(f"s_lshl_b32 s{S_T0}, s{S_H}, 13", f"s_lshl_b32 s{S_T1}, s{S_WV}, 11", f"s_add_u32 s{S_T0}, s{S_T0}, s{S_T1}", f"s_add_u32 s{S_KX}, s{S_T0}, {KX_OFF}", f"s_add_u32 s{S_VX}, s{S_T0}, {VX_OFF}")
    I(f"s_lshr_b32 s{S_T1}, s{S_T0}, 1", f"s_add_u32 s{S_KM}, s{S_T1}, {KM_OFF}", f"s_lshr_b32 s{S_T1}, s{S_T0}, 2", f"s_add_u32 s{S_VM}, s{S_T1}, {VM_OFF - 32*2048}")
    I(f"s_lshl_b32 s{S_T0}, s{S_WV}, 15", f"s_lshl_b32 s{S_T1}, s{S_H}, 7", f"s_add_u32 s{S_T0}, s{S_T0}, s{S_T1}", f"s_add_u32 s{S_PS}, s{S_T0}, {PART_OFF}")
    for e in range(1, 3): I(f"s_add_u32 s{S_PS+e}, s{S_PS}, {e*131072}")
    I(f"s_add_u32 s{S_MEMR8}, s{S_MEMR}, s{S_D8}")
    if FUSED[0]:
        I(f"s_mov_b32 s{S_RDY}, 0", f"s_lshl_b32 s{S_CHF}, s{S_H}, 8", f"s_add_u32 s{S_CHF}, s{S_CHF}, {CHFLG}")
        I(f"s_cmp_eq_u32 s{S_WV}, 0", f"s_cselect_b32 s{S_PUB}, 1, 0", f"s_mov_b32 s{S_PUB+1}, 0")
        need_segment(p, 2)
        I(f"v_lshlrev_b32 v52, 3, v{V_L16}", f"s_lshl_b32 s{S_T0}, s{S_H}, 13")
        I(f"s_and_b32 s{S_T1}, s{S_WV}, 1", f"s_lshr_b32 s{S_T2}, s{S_WV}, 1", f"s_add_u32 s{S_T1}, s{S_T1}, s{S_T2}", f"s_lshl_b32 s{S_T1}, s{S_T1}, 18", f"s_add_u32 s{S_T0}, s{S_T0}, s{S_T1}")
        I(f"s_cmp_ge_u32 s{S_WV}, 2", f"s_cselect_b32 s{S_T1}, {KX_OFF + 0}, {0}", f"s_cselect_b32 s{S_T2}, 0, {VX_OFF}", f"s_add_u32 s{S_T0}, s{S_T0}, s{S_T1}", f"s_add_u32 s{S_T0}, s{S_T0}, s{S_T2}")
        I(f"buffer_load_dword v53, v52, s[{S_WS}:{S_WS+3}], s{S_T0} offen")
    for kt in range(2):
        I(f"buffer_load_dwordx4 v[{V_KX+4*kt}:{V_KX+4*kt+3}], v{V_L16}, s[{S_WS}:{S_WS+3}], s{S_KX} offen offset:{kt*1024} sc1")
    I(f"s_add_u32 s{S_KX}, s{S_KX}, {32*8192}", "s_waitcnt vmcnt(0)")

SM = lambda d, a, b: f"v_smfmac_f32_16x16x64_bf16 v[{d}:{d+3}], v[{a}:{a+3}], {b}, v{V_IDX}"

class Stream:
    def __init__(self, p): self.p = p; self.q = []
    def add(self, *instrs): self.q.append(list(instrs))
    def emit(self, n=1):
        for _ in range(n):
            if not self.q: return
            for x in self.q.pop(0): self.p.I(x)
    def drain(self): self.emit(len(self.q))


VPERIOD = [24]
LEAD = [0]
HOLD = [0]
BAR4 = [True]
def delay(p, clks):
    n = clks // 4
    while n > 0:
        k = min(n, 16); p.raw(f"    s_nop {k-1}"); n -= k
DELAYG1 = [0]
DELAY3 = [0]
DELAY0 = [0]
DELAY1 = [0]
DELAY2 = [0]
def need_segment(p, add):
    I = p.I
    lab = p.newlabel("rdy"); ok = p.newlabel("rdy_ok")
    I(f"s_add_u32 s{S_T1}, s{S_STEP}, {add}", f"s_min_u32 s{S_T1}, s{S_T1}, 63", f"s_cmp_lt_u32 s{S_T1}, s{S_RDY}", f"s_cbranch_scc1 {ok}")
    I(f"s_mov_b32 s{S_T2}, 0", f"v_lshrrev_b32 v52, 2, v{V_L16}", f"s_mov_b32 s{S_T0}, {KVCNT}")
    p.L(lab)
    I(f"buffer_load_dword v53, v52, s[{S_WS}:{S_WS+3}], s{S_T0} offen sc1", "s_waitcnt vmcnt(0)")
    I("v_cmp_ne_u32 vcc, 32, v53", f"s_ff1_i32_b64 s{S_RDY}, vcc", f"s_cmp_eq_u32 s{S_RDY}, -1", f"s_cselect_b32 s{S_RDY}, 64, s{S_RDY}")
    I(f"s_cmp_lt_u32 s{S_T1}, s{S_RDY}", f"s_cbranch_scc1 {ok}", "s_sleep 8", f"s_add_u32 s{S_T2}, s{S_T2}, 1", f"s_cmp_lt_u32 s{S_T2}, 0x80000", f"s_cbranch_scc1 {lab}")
    I(f"s_mov_b32 s{S_RDY}, 64")
    p.L(ok)

def step(p, local, first=True, last=False):
    I = p.I
    sc_st = "" if local else " sc1"
    WS = f"s[{S_WS}:{S_WS+3}]"
    QA, QB, KA, KB = 32, 36, 40, 44
    A0, A1, A2 = 56, 60, 48
    VA, VB = 48, 52
    W1, W2 = 64, 72
    wv_state = {"b": 0}
    def wread(u, buf):
        out = []
        blk = u // 8
        while wv_state["b"] < blk:
            out.append(f"v_add_u32 v{V_WV}, 0x10000, v{V_WV}"); wv_state["b"] += 1
        off = (u % 8) * 8192
        out.append(f"ds_read_b128 v[{buf}:{buf+3}], v{V_WV} offset:{off}")
        out.append(f"ds_read_b128 v[{buf+4}:{buf+7}], v{V_WV} offset:{off+1024}")
        return out
    aread = lambda kb, a: f"ds_read_b128 v[{a}:{a+3}], v{V_L16} offset:{MEMIMG+kb*1024}"
    ad = lambda d, a_, b_: f"v_add_f32 v{d}, v{a_}, v{b_}"
    cv = lambda d, a_, b_: f"v_cvt_pk_bf16_f32 v{d}, v{a_}, v{b_}"
    p.C("==== step : acquire mem blocks 0..5 (waves 0,1,3)")
    stamp(p, 0, first)
    if STEPTS[0]:
        lab = p.newlabel("sts")
        I(f"s_cmp_lg_u32 s{S_WV}, 3", f"s_cbranch_scc1 {lab}")
        I("s_memrealtime s[2:3]", "s_waitcnt lgkmcnt(0)", f"s_lshl_b32 s3, s{S_H}, 9", f"s_lshl_b32 s{S_T0}, s{S_STEP}, 2", f"s_add_u32 s3, s3, s{S_T0}", f"s_add_u32 s3, s3, {0x9200000}")
        I("s_mov_b64 exec, 1", "v_mov_b32 v52, s2", f"buffer_store_dword v52, v{V_SQA+1}, {WS}, s3 offen", "s_mov_b64 exec, -1")
        p.L(lab)
    if FUSED[0]: need_segment(p, 2 if PREF[0] else 1)
    I(*wread(0, W1)); I(*wread(1, W2))
    for r in range(0, 16, 2): I(f"v_mov_b64 v[{QA+r}:{QA+r+1}], 0")
    skipa = p.newlabel("skip01"); loop = p.newlabel("mem_poll"); done = p.newlabel("mem_done")
    I(f"s_cmp_eq_u32 s{S_WV}, 2", f"s_cbranch_scc1 {skipa}")
    I(f"v_add_u32 v55, s{S_B01}, v{V_L16}")
    if DELAY3[0]:
        nd = p.newlabel("nd3")
        I(f"s_cmp_lg_u32 s{S_WV}, 3", f"s_cbranch_scc1 {nd}")
        delay(p, DELAY3[0])
        p.L(nd)
    delay(p, DELAY2[0])
    p.L(loop)
    a, b = 56, 60
    I(f"buffer_load_dwordx4 v[{a}:{a+3}], v{V_L16}, {WS}, s{S_MEMR} offen sc1")
    I(f"buffer_load_dwordx4 v[{b}:{b+3}], v{V_L16}, {WS}, s{S_MEMR} offen offset:1024 sc1")
    I(f"s_add_u32 s{S_TO}, s{S_TO}, 1")
    I("s_waitcnt vmcnt(1)")
    I(f"ds_write_b128 v55, v[{a}:{a+3}] offset:{MEMIMG}")
    I(f"v_max3_u32 v52, v{a}, v{a+1}, v{a+2}")
    I("s_waitcnt vmcnt(0)")
    I(f"ds_write_b128 v55, v[{b}:{b+3}] offset:{MEMIMG+1024}")
    I(f"v_max3_u32 v52, v52, v{a+3}, v{b}", f"v_max3_u32 v52, v52, v{b+1}, v{b+2}", f"v_max_u32 v52, v52, v{b+3}")
    I("v_cmp_eq_u32 vcc, -1, v52", f"s_cbranch_vccz {done}", f"s_cmp_lt_u32 s{S_TO}, 0x200000", f"s_cbranch_scc1 {loop}")
    p.L(done)
    p.L(skipa)
    stamp(p, 1, first)
    I("s_waitcnt lgkmcnt(0)")
    I("s_barrier")
    p.reset_q()
    stamp(p, 2, first)
    p.C("QK")
    W = Weaver(p)
    Ab = [A0, A1, A2]
    wb = [W1, W2]
    M48 = f"s[{S_M8}:{S_M8+1}]"
    ld2 = f"buffer_load_dwordx4 v[52:55], v{V_L16}, {WS}, s{S_MEMR8} offen sc1"
    W.raw(aread(0, Ab[0])); W.raw(aread(1, Ab[1]))
    W.raw(f"s_mov_b64 exec, {M48}"); W.raw(ld2); W.raw("s_mov_b64 exec, -1")
    W.raw(f"s_add_u32 s{S_TAG}, s{S_STEP}, 1")
    if FUSED[0]: W.raw(f"s_max_u32 s{S_PUBV}, s{S_STEP}, 1"); W.raw(f"s_sub_u32 s{S_PUBV}, s{S_PUBV}, 1")
    def group(kb, extra, areads=True):
        a = Ab[kb % 3]
        kbsrc = frag(F_KB0) if kb == 0 else f"v[{wb[(kb-1)%2]}:{wb[(kb-1)%2]+7}]"
        X = []
        if kb + 2 < 6: X.append([aread(kb + 2, Ab[(kb + 2) % 3])])
        if kb >= 2:
            w = wread(kb, wb[(kb - 2) % 2])
            if len(w) == 3: X.append([w[1], w[0]] if False else [w[0], w[1]]); X.append([w[2]])
            else: X.append([w[0]]); X.append([w[1]])
        ms = [SM(QA, a, frag(F_QA(kb))), SM(QB, a, frag(F_QB(kb))), SM(KA, a, frag(F_KA(kb))), SM(KB, a, kbsrc)]
        for i, m in enumerate(ms):
            W.raw(m)
            if X:
                for y in X.pop(0): W.raw(y)
            for y in extra.get(i, []): W.raw(y)
        assert not X, X
    group(0, {1: [f"v_add_u32 v{V_VX}, s{S_L8}, v{V_L16}"]}); group(1, {}); group(2, {})
    group(3, {3: ["s_waitcnt vmcnt(0)", f"s_mov_b64 exec, {M48}", f"ds_write_b128 v{V_VX}, v[52:55]", "s_mov_b64 exec, -1"]})
    slow = p.newlabel("st2_slow"); back = p.newlabel("st2_back")
    group(4, {2: [f"v_max3_u32 v{V_VX+1}, v52, v53, v54"], 3: [f"v_max_u32 v{V_VX+1}, v{V_VX+1}, v55"]})
    I(f"s_mov_b64 exec, {M48}", f"v_cmp_eq_u32 vcc, -1, v{V_VX+1}", "s_mov_b64 exec, -1", f"s_cbranch_vccnz {slow}")
    p.L(back)
    p.waitw()
    I("s_barrier")
    stamp(p, 13, first)
    W.raw(aread(6, Ab[0])); W.raw(aread(7, Ab[1]))
    vxl = [f"buffer_load_dwordx4 v[{V_VX+4*tb}:{V_VX+4*tb+3}], v{V_L16}, {WS}, s{S_VX} offen offset:{tb*1024} sc1" for tb in range(2)]
    io = []
    io_vm = [f"v_lshrrev_b32 v{V_VX+1}, 1, v{V_L16}", f"buffer_store_dwordx2 v[{V_PY}:{V_PY+1}], v{V_VX+1}, {WS}, s{S_VM} offen sc1"]
    group(5, {2: [f"s_add_u32 s{S_MEMR}, s{S_MEMR}, {MEM_SLOT}", f"s_cmp_ge_u32 s{S_MEMR}, s{S_MEMEND}"], 3: [aread(8, Ab[2])]})
    group(6, {2: [f"s_cselect_b32 s{S_T0}, {4*MEM_SLOT}, 0", f"s_sub_u32 s{S_MEMR}, s{S_MEMR}, s{S_T0}"], 3: [vxl[0]]})
    group(7, {2: [f"s_add_u32 s{S_MEMR8}, s{S_MEMR}, s{S_D8}"], 3: [vxl[1]]})
    pf = []
    if PREF[0]:
        pf = [[f"s_sub_u32 s{S_T0}, s{S_VX}, s{S_W2048}", f"s_add_u32 s{S_T0}, s{S_T0}, {32*8192}", f"v_lshlrev_b32 v{V_MP}, 3, v{V_L16}"],
              [f"s_sub_u32 s{S_T1}, s{S_KX}, s{S_W2048}", f"s_add_u32 s{S_T1}, s{S_T1}, {32*8192}"],
              [f"s_mov_b64 exec, s[{S_PFM}:{S_PFM+1}]", f"buffer_load_dword v{V_DUM}, v{V_MP}, {WS}, s{S_T0} offen ; nodep"],
              [f"buffer_load_dword v{V_DUM}, v{V_MP}, {WS}, s{S_T1} offen ; nodep", "s_mov_b64 exec, -1"]]
        group(8, {0: pf[0], 1: pf[1], 2: pf[2], 3: pf[3]})
    else:
        group(8, {})
    W.raw(f"v_lshrrev_b32 v{V_MP}, 1, v{V_L16}") if False else None
    EXPORT = [f"v_lshrrev_b32 v52, 1, v{V_L16}", f"buffer_store_dwordx2 v[{V_PY}:{V_PY+1}], v52, {WS}, s{S_VM} offen sc1"]
    if FUSED[0]:
        EXPORT += [f"v_mov_b32 v52, s{S_PUBV}", f"s_mov_b64 exec, s[{S_PUB}:{S_PUB+1}]", f"buffer_store_dword v52, v{V_SQA+1}, {WS}, s{S_CHF} offen sc1", "s_mov_b64 exec, -1"]
    for y in EXPORT: W.raw(y)
    SLOW.append((slow, back, ld2, M48, V_VX))
    stamp(p, 3, first)
    p.C("post QK, V phase as filler")
    items = []
    w9 = wread(9, wb[1])
    vorder = VRES + VSTR
    vA = [A0, A1]
    ubuf = {8: wb[0], 9: wb[1]}
    for pos, kb in enumerate(vorder):
        a = vA[pos % 2]
        for tb in range(2):
            it = []
            if pos < 4:
                it.append(SM(VA + 4 * tb, a, frag(F_VS(tb, pos))))
                if pos == 0: it.append(w9[tb])
            else:
                u = 8 + (pos - 4) * 2 + tb
                b = ubuf[u]
                it.append(SM(VA + 4 * tb, a, f"v[{b}:{b+7}]"))
                if u + 2 < 18:
                    it += wread(u + 2, b); ubuf[u + 2] = b
            if tb == 1 and pos + 2 < 9: it.append(aread(vorder[pos + 2], a))
            items.append(it)
    def VI(n):
        return ("call", lambda n=n: [W.raw(y) for _ in range(n) if items for y in items.pop(0)])
    crit = []
    C = crit.append
    zero = [f"v_mov_b64 v[{VA}:{VA+1}], 0", f"v_mov_b64 v[{VA+2}:{VA+3}], 0", f"v_mov_b64 v[{VB}:{VB+1}], 0", f"v_mov_b64 v[{VB+2}:{VB+3}], 0"]
    if not last:
        C(ad(32, 32, 34)); C(ad(33, 33, 35)); C(ad(36, 36, 38)); C(ad(37, 37, 39)); C(cv(34, 32, 33)); C(cv(35, 36, 37))
    C(ad(40, 40, 42)); C(ad(41, 41, 43)); C(zero[2]); C(zero[3]); C(ad(44, 44, 46)); C(ad(45, 45, 47)); C(cv(42, 40, 41)); C(cv(43, 44, 45))
    if not last:
        C(f"v_mfma_f32_16x16x16_bf16 v[36:39], v[34:35], v[{V_SQA}:{V_SQA+1}], 0")
        C(zero[0]); C(zero[1])
        C(f"v_mfma_f32_16x16x16_bf16 v[32:35], v[34:35], v[{V_SQB}:{V_SQB+1}], 0")
    else:
        C(zero[0]); C(zero[1])
    C(f"v_mfma_f32_16x16x16_bf16 v[44:47], v[42:43], v[{V_SKA}:{V_SKA+1}], 0")
    C(f"v_mfma_f32_16x16x16_bf16 v[40:43], v[42:43], v[{V_SKB}:{V_SKB+1}], 0")
    KMST = f"buffer_store_dwordx4 v[44:47], v{V_L16}, {WS}, s{S_KM} offen sc1"
    OA_, OB_, LL = 32, 52, 56
    VMST = [f"v_lshrrev_b32 v60, 1, v{V_L16}", f"buffer_store_dwordx2 v[50:51], v60, {WS}, s{S_VM} offen sc1"]
    if last:
        C(cv(44, 44, 45)); C(cv(45, 46, 47)); C(cv(46, 40, 41)); C(cv(47, 42, 43)); C(KMST)
        W.weave(crit, []); W.drain(items)
        W.raw(f"v_subrev_u32 v{V_WV}, 0x20000, v{V_WV}")
        W.raw(ad(VA, VA, VA + 2)); W.raw(ad(VA + 1, VA + 1, VA + 3)); W.raw(ad(VB, VB, VB + 2)); W.raw(ad(VB + 1, VB + 1, VB + 3))
        W.raw(cv(50, VA, VA + 1)); W.raw(cv(51, VB, VB + 1))
        W.raw(f"s_add_u32 s{S_VM}, s{S_VM}, {32*2048}")
        for y in VMST: W.raw(y)
        p.fence(); p.reset_q()
        return
    V1, V2, V3, V4, V5, V6, V7 = VPLACE
    C(cv(36, 36, 37)); C(cv(37, 38, 39)); C(cv(38, 32, 33)); C(cv(39, 34, 35))
    C(f"v_mfma_f32_16x16x32_bf16 v[32:35], v[{V_KX}:{V_KX+3}], v[36:39], 0")
    C(cv(44, 44, 45)); C(cv(45, 46, 47)); C(cv(46, 40, 41)); C(cv(47, 42, 43))
    C(f"v_mfma_f32_16x16x32_bf16 v[40:43], v[{V_KX+4}:{V_KX+7}], v[36:39], 0")
    C(f"v_mfma_f32_16x16x32_bf16 v[36:39], v[44:47], v[36:39], 0")
    k = V_KX
    C(f"v_and_b32 v{k+6}, 0x70, v{V_L16}"); C(f"v_lshrrev_b32 v{k+7}, 1, v{V_L16}"); C(f"v_and_b32 v{k+7}, 0x180, v{k+7}"); C(f"v_or_b32 v{k+6}, v{k+6}, v{k+7}")
    C(f"v_lshrrev_b32 v{k+7}, 1, v{k+6}"); C(f"v_and_b32 v{k}, 0x80, v{V_L16}"); C(f"v_lshl_add_u32 v{k+6}, v{k}, 2, v{k+6}")
    C(VI(V1))
    C(f"v_add_u32 v{k+6}, {SEXX}, v{k+6}"); C(f"v_add_u32 v{k+7}, {SEXM}, v{k+7}")
    C(f"v_add_u32 v{k}, s{S_W1024}, v{k+6}"); C(f"v_add_u32 v{k+1}, s{S_W256}, v{k+7}")
    for r in range(4): C(f"v_cndmask_b32_e64 v{32+r}, v{40+r}, v{32+r}, s[{S_NLT8}:{S_NLT8+1}]")
    C(f"ds_write_b128 v{k}, v[32:35]"); C(f"ds_write_b64 v{k+1}, v[36:37]")
    C(("call", lambda: stamp(p, 4, first)))
    C(VI(V2))
    C(KMST)
    C(("call", p.waitw)); C("s_barrier")
    C(("call", lambda: stamp(p, 5, first)))
    for w in range(4): C(f"ds_read_b128 v[{32+4*w}:{35+4*w}], v{k+6} offset:{w*1024}")
    C(f"ds_read2_b64 v[{k}:{k+3}], v{k+7} offset0:0 offset1:32"); C(f"ds_read2_b64 v[{k+4}:{k+7}], v{k+7} offset0:64 offset1:96")
    C(VI(V3))
    for r in range(4): C(ad(32 + r, 32 + r, 36 + r))
    for r in range(4): C(ad(40 + r, 40 + r, 44 + r))
    for r in range(4): C(ad(32 + r, 32 + r, 40 + r))
    C("v_max3_f32 v38, v32, v33, v34")
    C(VI(V4))
    C(ad(k, k, k + 2)); C(ad(k + 1, k + 1, k + 3)); C(ad(k + 4, k + 4, k + 6)); C(ad(k + 5, k + 5, k + 7)); C(ad(36, k, k + 4)); C(ad(37, k + 1, k + 5))
    for kt in range(2):
        C(f"buffer_load_dwordx4 v[{V_KX+4*kt}:{V_KX+4*kt+3}], v{V_L16}, {WS}, s{S_KX} offen offset:{kt*1024} sc1")
    C("v_max3_f32 v38, v38, v35, v36"); C("v_max_f32 v38, v38, v37")
    C(VI(V5))
    C("v_max_f32_dpp v38, v38, v38 row_ror:8 row_mask:0xf bank_mask:0xf")
    C("v_mov_b32 v39, v38"); C("v_mov_b32 v45, 0"); C("v_mov_b32 v46, 0"); C("v_permlane16_swap_b32 v38, v39"); C("v_max_f32 v38, v38, v39")
    C("v_mov_b32 v39, v38"); C(VI(V6)); C("v_permlane32_swap_b32 v38, v39"); C("v_max_f32 v38, v38, v39")
    C(f"v_mul_f32 v38, s{S_C}, v38")
    for r in range(6): C(f"v_fma_f32 v{32+r}, v{32+r}, s{S_C}, -v38")
    C(VI(V7))
    for r in range(6): C(f"v_exp_f32 v{32+r}, v{32+r}")
    C(cv(40, 32, 33)); C(cv(41, 34, 35)); C(cv(44, 36, 37))
    for r in range(0, 4, 2): C(f"v_mov_b64 v[{36+r}:{37+r}], s[{S_ONES}:{S_ONES+1}]")
    C("v_mov_b32_dpp v42, v40 row_ror:8 row_mask:0xf bank_mask:0xf"); C("v_mov_b32_dpp v43, v41 row_ror:8 row_mask:0xf bank_mask:0xf")
    C("v_mov_b32 v47, v44")
    C(("call", lambda: stamp(p, 6, first)))
    W.weave(crit, [])
    rest = items
    W.raw(f"v_mfma_f32_16x16x32_bf16 v[{OA_}:{OA_+3}], v[{V_VX}:{V_VX+3}], v[40:43], 0")
    W.drain(rest)
    assert wv_state["b"] == 2
    W.raw(f"v_subrev_u32 v{V_WV}, 0x20000, v{V_WV}")
    W.raw(ad(VA, VA, VA + 2)); W.raw(ad(VA + 1, VA + 1, VA + 3)); W.raw(ad(VB, VB, VB + 2)); W.raw(ad(VB + 1, VB + 1, VB + 3))
    W.raw(cv(50, VA, VA + 1)); W.raw(cv(51, VB, VB + 1))
    stamp(p, 7, first)
    p.C("PV")
    crit = [f"v_mfma_f32_16x16x32_bf16 v[{LL}:{LL+3}], v[36:39], v[40:43], 0",
            f"v_mfma_f32_16x16x32_bf16 v[{OB_}:{OB_+3}], v[{V_VX+4}:{V_VX+7}], v[40:43], 0",
            f"v_mfma_f32_16x16x16_bf16 v[{OA_}:{OA_+3}], v[50:51], v[44:45], v[{OA_}:{OA_+3}]",
            f"v_mfma_f32_16x16x16_bf16 v[{LL}:{LL+3}], v[36:37], v[44:45], v[{LL}:{LL+3}]",
            f"v_mfma_f32_16x16x16_bf16 v[{OB_}:{OB_+3}], v[50:51], v[46:47], v[{OB_}:{OB_+3}]",
            f"v_rcp_f32 v{LL}, v{LL}"]
    for b in (OA_, OB_):
        for r in range(4): crit.append(f"v_mul_f32 v{b+r}, v{b+r}, v{LL}")
    crit += [cv(OA_, OA_, OA_ + 1), cv(OA_ + 1, OA_ + 2, OA_ + 3), cv(OB_, OB_, OB_ + 1), cv(OB_ + 1, OB_ + 2, OB_ + 3)]
    fill = [f"v_mov_b64 v[{V_PY}:{V_PY+1}], v[50:51]", f"v_bfe_u32 v61, v{V_L16}, 4, 3", f"v_bfe_u32 v62, v{V_L16}, 9, 1", f"v_add_u32 v62, s{S_W4}, v62", "v_xor_b32 v62, v62, v61",
            "v_lshlrev_b32 v62, 4, v62", "v_lshl_add_u32 v62, v61, 8, v62", f"v_bfe_u32 v61, v{V_L16}, 8, 1", "v_lshl_add_u32 v62, v61, 3, v62", f"v_add_u32 v62, {OIMG}, v62", "v_xor_b32 v63, 32, v62"]
    rest = W.weave(crit, [[f] for f in fill]); W.drain(rest)
    W.raw(f"s_mov_b64 exec, s[{S_NLT8}:{S_NLT8+1}]"); W.raw(f"ds_write_b64 v62, v[{OA_}:{OA_+1}]"); W.raw(f"ds_write_b64 v63, v[{OB_}:{OB_+1}]"); W.raw("s_mov_b64 exec, -1")
    stamp(p, 8, first)
    OACC = [32 + 4 * j for j in range(9)]
    OAr = 72; G = 68
    I(f"v_mov_b32 v71, s{S_TAG}")
    for b in range(34, 68, 2):
        if b in (52, 62): continue
        I(f"v_mov_b64 v[{b}:{b+1}], 0")
    p.waitw()
    I("s_barrier")
    I(f"ds_read_b128 v[{OAr}:{OAr+3}], v{V_OR}", f"ds_read_b128 v[{OAr+4}:{OAr+7}], v{V_OR} offset:128")
    for b in (32, 52, 62): I(f"v_mov_b64 v[{b}:{b+1}], 0")
    stamp(p, 9, first)
    p.C("O-proj")
    W = Weaver(p)
    osm = lambda j, kb: SM(OACC[j], OAr + 4 * kb, frag(F_WO(j, kb)))
    seq = [(0, 0), (1, 0), (0, 1), (1, 1)] + [(j, kb) for j in range(2, 9) for kb in range(2)]
    def fin(j):
        b = OACC[j]
        ops = [ad(b, b, b + 2), ad(b + 1, b + 1, b + 3), cv(G + j % 3, b, b + 1)]
        if j % 3 == 2: ops.append(f"buffer_store_dwordx4 v[{G}:{G+3}], v{V_PS}, {WS}, s{S_PS + j // 3} offen{sc_st}")
        return ops
    done_at = {}
    pend = []
    for idx, (j, kb) in enumerate(seq):
        W.raw(osm(j, kb))
        if kb == 1: done_at[j] = idx
        for jj in list(done_at):
            if idx >= done_at[jj] + 2:
                pend += fin(jj); del done_at[jj]
        n = 2 if len(pend) > 2 else 1
        for _ in range(n):
            if pend: W.raw(pend.pop(0))
    for jj in sorted(done_at): pend += fin(jj)
    for o in pend: W.raw(o)
    stamp(p, 10, first)
    p.C("reduce")
    skip = p.newlabel("notask")
    I(f"s_cmp_eq_u32 s{S_HASTASK}, 0", f"s_cbranch_scc1 {skip}")
    RS = 64
    if DELAY1[0]:
        nd = p.newlabel("nodelay")
        I(f"s_cmp_eq_u32 s{S_ISW2}, 0", f"s_cbranch_scc1 {nd}")
        delay(p, DELAY1[0])
        p.L(nd)
    if DELAYG1[0]:
        nd = p.newlabel("nodelay1")
        I(f"s_cmp_lg_u32 s{S_WV}, 1", f"s_cbranch_scc1 {nd}")
        delay(p, DELAYG1[0])
        p.L(nd)
    delay(p, DELAY0[0])
    retry = p.newlabel("p_retry"); ok = p.newlabel("p_ok")
    p.L(retry)
    for i in range(4):
        I(f"buffer_load_dwordx4 v[{32+4*i}:{35+4*i}], v{V_L16}, {WS}, s{S_PL} offen offset:{i*1024} sc1")
    I(f"s_add_u32 s{S_TO2}, s{S_TO2}, 1")
    I(f"v_bfe_u32 v69, v{V_L16}, 4, 2", f"v_bfe_u32 v70, v{V_L16}, 6, 2", "v_lshlrev_b32 v71, 4, v69", "v_mov_b32 v68, 0x3f80", "v_lshlrev_b32 v68, v71, v68",
      "v_cmp_gt_u32 vcc, 2, v69", "v_cndmask_b32 v71, 0, v68, vcc")
    for r in range(3): I(f"v_cmp_eq_u32 vcc, {r}, v70", f"v_cndmask_b32 v{RS+r}, 0, v71, vcc")
    I(f"v_mov_b32 v{RS+3}, 0")
    I(f"v_bfe_u32 v68, v{V_L16}, 8, 2", "v_lshlrev_b32 v68, 10, v68", f"v_bfe_u32 v69, v{V_L16}, 4, 3", "v_lshl_add_u32 v68, v69, 1, v68")
    D = 72
    for i in range(4):
        I(f"s_waitcnt vmcnt({3-i})")
        c = "0" if i == 0 else f"v[{D}:{D+3}]"
        I(f"v_mfma_f32_16x16x32_bf16 v[{D}:{D+3}], v[{RS}:{RS+3}], v[{32+4*i}:{35+4*i}], {c}")
        if i == 2: I("v_min3_u32 v76, v35, v39, v43")
        if i == 3: I("v_min_u32 v76, v76, v47")
    I(f"v_cmp_ne_u32 vcc, s{S_TAG}, v76", f"s_cbranch_vccz {ok}", f"s_cmp_lt_u32 s{S_TO2}, 0x200000", f"s_cbranch_scc1 {retry}")
    p.L(ok)
    stamp(p, 11, first)
    p.fence()
    I(f"v_add_f32_dpp v{D}, v{D}, v{D} row_ror:8 row_mask:0xf bank_mask:0xf", f"v_add_f32_dpp v{D+1}, v{D+1}, v{D+1} row_ror:8 row_mask:0xf bank_mask:0xf")
    I(f"v_mov_b32_dpp v76, v{D} quad_perm:[1,0,3,2] row_mask:0xf bank_mask:0xf", f"v_mov_b32_dpp v77, v{D+1} quad_perm:[1,0,3,2] row_mask:0xf bank_mask:0xf")
    I(f"v_cvt_pk_bf16_f32 v76, v{D}, v76", f"v_cvt_pk_bf16_f32 v77, v{D+1}, v77", "v_mov_b32 v78, -1")
    I(f"s_mov_b64 exec, s[{S_EXMS}:{S_EXMS+1}]", f"buffer_store_dword v76, v68, {WS}, s{S_MEMW} offen{sc_st}", f"buffer_store_dword v77, v68, {WS}, s{S_MEMW} offen offset:16{sc_st}")
    I(f"buffer_store_dword v78, v68, {WS}, s{S_MEMZ} offen{sc_st}", f"buffer_store_dword v78, v68, {WS}, s{S_MEMZ} offen offset:16{sc_st}", "s_mov_b64 exec, -1")
    p.L(skip)
    for r_ in (S_MEMW, S_MEMZ):
        I(f"s_add_u32 s{r_}, s{r_}, {MEM_SLOT}", f"s_cmp_ge_u32 s{r_}, s{S_MEMWEND}", f"s_cselect_b32 s{S_T0}, {4*MEM_SLOT}, 0", f"s_sub_u32 s{r_}, s{r_}, s{S_T0}")
    I(f"s_add_u32 s{S_VX}, s{S_VX}, {32*8192}", f"s_add_u32 s{S_KM}, s{S_KM}, {32*4096}", f"s_add_u32 s{S_VM}, s{S_VM}, {32*2048}", f"s_add_u32 s{S_KX}, s{S_KX}, {32*8192}", f"s_add_u32 s{S_STEP}, s{S_STEP}, 1")
    stamp(p, 12, first)
    p.fence()
    p.reset_q()

def emit_slow(p):
    I = p.I
    WS = f"s[{S_WS}:{S_WS+3}]"
    while SLOW:
        slow, back, ld2, M48, areg = SLOW.pop(0)
        p.fence(); p.reset_q()
        p.L(slow)
        lp = p.newlabel("st2_lp")
        I(f"s_mov_b64 exec, {M48}")
        p.L(lp)
        I(ld2, "s_waitcnt vmcnt(0)", f"v_max3_u32 v{V_VX+1}, v52, v53, v54", f"v_max_u32 v{V_VX+1}, v{V_VX+1}, v55", f"v_cmp_eq_u32 vcc, -1, v{V_VX+1}", f"s_add_u32 s{S_TO3}, s{S_TO3}, 1")
        ok = p.newlabel("st2_ok")
        I(f"s_cbranch_vccz {ok}", f"s_cmp_lt_u32 s{S_TO3}, 0x200000", f"s_cbranch_scc1 {lp}")
        p.L(ok)
        I(f"ds_write_b128 v{areg}, v[52:55]", "s_mov_b64 exec, -1", "s_waitcnt lgkmcnt(0)", f"s_branch {back}")
        p.reset_q()

def chain_loop(p, local, nsteps=64):
    I = p.I
    p.reset_q()
    loop = p.newlabel("chain_loop")
    p.fence()
    p.L(loop)
    step(p, local=local)
    I(f"s_cmp_lt_u32 s{S_STEP}, {nsteps-1}", f"s_cbranch_scc1 {loop}")
    step(p, local=local, first=False, last=True)
    I("s_waitcnt vmcnt(0)", "s_barrier")
    if FUSED[0]:
        I("v_mov_b32 v52, 64", "v_mov_b32 v53, 0", f"s_mov_b64 exec, s[{S_PUB}:{S_PUB+1}]", f"buffer_store_dword v52, v53, s[{S_WS}:{S_WS+3}], s{S_CHF} offen sc1", "s_mov_b64 exec, -1")
    over = p.newlabel("over_slow")
    I(f"s_branch {over}")
    emit_slow(p)
    p.L(over)

def gen_chain(p, local=True, nsteps=64, stamps=False):
    I = p.I
    setup_chain(p, local)
    preload(p)
    chain_state(p)
    if stamps: I(f"s_memtime s[{S_TS}:{S_TS+1}]", "s_waitcnt lgkmcnt(0)")
    chain_loop(p, local, nsteps)
    if stamps:
        I("s_waitcnt vmcnt(0) lgkmcnt(0)", f"s_memtime s[{S_TS+2}:{S_TS+3}]", "s_waitcnt lgkmcnt(0)")
        I(f"s_sub_u32 s{S_TS}, s{S_TS+2}, s{S_TS}", f"v_mov_b32 v44, s{S_TS}")
        lab = p.newlabel("st")
        I(f"s_cmp_lg_u32 s{S_WV}, 0", f"s_cbranch_scc1 {lab}")
        I(f"s_lshl_b32 s{S_T0}, s{S_H}, 2", f"s_add_u32 s{S_T0}, s{S_T0}, 128", f"v_mov_b32 v45, s{S_T0}", "s_mov_b64 exec, 1", f"global_store_dword v45, v44, s[{S_DBG}:{S_DBG+1}]", "s_mov_b64 exec, -1")
        p.L(lab)
    prof_dump(p)

def prof_dump(p):
    I = p.I
    if PROF[0]:
        I("s_waitcnt lgkmcnt(0)")
        I(f"s_lshl_b32 s{S_T0}, s{S_H}, 2", f"s_add_u32 s{S_T0}, s{S_T0}, s{S_WV}", f"s_lshl_b32 s{S_T0}, s{S_T0}, 7", f"s_add_u32 s{S_T0}, s{S_T0}, {0x9000000}")
        I("s_mov_b64 exec, 1", "v_mov_b32 v45, 0")
        for k in range(PNST):
            I(f"v_mov_b32 v44, s{S_ST+2*k if k < 13 else 14}", f"buffer_store_dword v44, v45, s[{S_WS}:{S_WS+3}], s{S_T0} offen offset:{4*k}")
        for k, r_ in enumerate((S_TO, S_TO2, S_TO3)):
            I(f"v_mov_b32 v44, s{r_}", f"buffer_store_dword v44, v45, s[{S_WS}:{S_WS+3}], s{S_T0} offen offset:{64+4*k}")
        I("s_mov_b64 exec, -1")

def standalone(local=True, stamps=True, nsteps=64):
    name = "chain_kernel"
    p = AProg()
    p.raw(f"; @launch kernel={name} grid=(256,1,1) block=(256,1,1) lds=163840")
    p.raw('.amdgcn_target "amdgcn-amd-amdhsa--gfx950"\n.text')
    p.raw(f".globl {name}\n.p2align 8\n.type {name},@function\n{name}:")
    I = p.I
    I(f"s_cmp_ge_u32 s2, 256", "s_cbranch_scc1 L_end")
    I(f"s_load_dwordx2 s[{S_PTR}:{S_PTR+1}], s[0:1], {KARG['A_mem0']}")
    I(f"s_load_dwordx4 s[{S_PTR+2}:{S_PTR+5}], s[0:1], {KARG['A_Wq']}")
    I(f"s_load_dwordx2 s[{S_PTR+6}:{S_PTR+7}], s[0:1], {KARG['A_Wv']}")
    I(f"s_load_dwordx2 s[{S_PTR+8}:{S_PTR+9}], s[0:1], {KARG['A_Wo']}")
    I(f"s_load_dwordx2 s[{S_DBG}:{S_DBG+1}], s[0:1], {KARG['dbg']}")
    I(f"s_load_dwordx2 s[{S_PTR+10}:{S_PTR+11}], s[0:1], {KARG['ws']}")
    I("s_waitcnt lgkmcnt(0)")
    I(f"s_mov_b32 s{S_WS}, s{S_PTR+10}", f"s_and_b32 s{S_WS+1}, s{S_PTR+11}, 0xffff", f"s_mov_b32 s{S_WS+2}, {WS_BYTES}", f"s_mov_b32 s{S_WS+3}, 0x20000")
    I(f"s_mov_b32 s{S_MEM}, s{S_PTR}", f"s_and_b32 s{S_MEM+1}, s{S_PTR+1}, 0xffff", f"s_mov_b32 s{S_MEM+2}, 9216", f"s_mov_b32 s{S_MEM+3}, 0x20000")
    lane_consts(p)
    I(f"s_getreg_b32 s{S_T0}, hwreg(HW_REG_XCC_ID, 0, 4)")
    I(f"s_cmp_lg_u32 s{S_T0}, 0", "s_cbranch_scc1 L_end")
    lab = p.newlabel("role")
    I(f"s_cmp_lg_u32 s{S_WV}, 0", f"s_cbranch_scc1 {lab}")
    I("s_mov_b64 exec, 1", "v_mov_b32 v44, 1", "v_mov_b32 v45, 0", f"global_atomic_add v46, v45, v44, s[{S_DBG}:{S_DBG+1}] sc0", "s_waitcnt vmcnt(0)", "v_mov_b32 v45, 0", "ds_write_b32 v45, v46", "s_waitcnt lgkmcnt(0)", "s_mov_b64 exec, -1")
    p.L(lab)
    I("s_barrier", "v_mov_b32 v45, 0", "ds_read_b32 v46, v45", "s_waitcnt lgkmcnt(0)", f"v_readfirstlane_b32 s{S_H}, v46", "s_barrier")
    I(f"s_cmp_ge_u32 s{S_H}, 32", "s_cbranch_scc1 L_end")
    gen_chain(p, local=local, stamps=stamps, nsteps=nsteps)
    p.L("L_end")
    I("s_endpgm")
    p.raw(kd(name))
    return p.render()

if __name__ == "__main__":
    import sys
    for a in sys.argv[2:]:
        if a == "prof": PROF[0] = True
        if a == "rt": RT[0] = True
        if a.startswith("hold="): HOLD[0] = int(a[5:])
        if a.startswith("lead="): LEAD[0] = int(a[5:])
        if a.startswith("lat="): Weaver.LDS_LAT = int(a[4:])
        if a.startswith("vp="): VPERIOD[0] = int(a[3:])
        if a == "nobar4": BAR4[0] = False
        if a.startswith("touch="): TOUCH[0] = int(a[6:])
        if a.startswith("s2i="): ST2_ISSUE[0] = int(a[4:])
        if a.startswith("s2c="): ST2_CHECK[0] = int(a[4:])
        if a.startswith("g1="): DELAYG1[0] = int(a[3:])
        if a == "nopref": PREF[0] = False
        if a.startswith("vpl="): VPLACE[:] = [int(c) for c in a[4:]]
        if a.startswith("d3="): DELAY3[0] = int(a[3:])
        if a.startswith("d0="): DELAY0[0] = int(a[3:])
        if a.startswith("d1="): DELAY1[0] = int(a[3:])
        if a.startswith("d2="): DELAY2[0] = int(a[3:])
    open(sys.argv[1], "w").write(standalone())
```

```python
from asmlib2 import *
from common import *

G_WS   = 4
G_X    = 8
G_W    = 12
G_O    = 40
G_WV   = 19
G_T0, G_T1, G_T2, G_T3 = 28, 29, 30, 31
G_SEG, G_SEGSTEP, G_NSEG, G_IT = 20, 21, 22, 23
G_WCOL = 24
G_WSTR = 25
G_OB   = 26
G_FLG  = 27
G_XB   = 32
G_PREV = 33
G_BUF  = 34
G_DBG  = 16

XB0 = 0; XBUF = 36864

def wfrag(NT, t, ks):
    f = t * 18 + ks
    r = 4 * f
    return ("a", r) if r < 256 else ("v", 256 + 0 + (r - 256) - 256 + 128)

def frag4(idx):
    return f"a[{4*idx}:{4*idx+3}]" if idx < 64 else f"v[{128+4*(idx-64)}:{128+4*(idx-64)+3}]"
def frag4_sub(idx, off, n):
    k, b = ("a", 4*idx) if idx < 64 else ("v", 128 + 4*(idx-64))
    return f"{k}[{b+off}:{b+off+n-1}]"

def lane_common(p):
    I = p.I
    I("v_lshrrev_b32 v32, 6, v0", "v_and_b32 v33, 63, v0", f"v_readfirstlane_b32 s{G_WV}, v32")
    I("v_and_b32 v34, 15, v33", "v_lshrrev_b32 v35, 4, v33", "v_lshlrev_b32 v0, 4, v33")

def hswz(p, dst, src, tmp):
    p.I(f"v_lshrrev_b32 v{tmp}, 1, v{src}", f"v_xor_b32 v{dst}, v{src}, v{tmp}", f"v_and_b32 v{dst}, 1, v{dst}", f"v_lshl_or_b32 v{dst}, v{dst}, 1, v{tmp}")

def preload_w(p, NT):
    I = p.I
    I("v_lshrrev_b32 v40, 5, v33", "v_and_b32 v41, 31, v33")
    I(f"s_and_b32 s{G_T0}, s{G_WV}, 1", f"s_lshl_b32 s{G_T0}, s{G_T0}, 2")
    for jj in range(4):
        I(f"v_add_u32 v42, {2*jj}, v40", "v_and_b32 v43, 3, v42", f"v_or_b32 v43, s{G_T0}, v43", "v_lshlrev_b32 v43, 1, v43", "v_xor_b32 v43, v43, v41",
          "v_lshlrev_b32 v43, 4, v43", f"v_mul_lo_u32 v42, v42, s{G_WSTR}", f"v_add_u32 v{52+jj}, v42, v43")
    I("v_lshrrev_b32 v40, 2, v34", "v_and_b32 v41, 3, v34", "v_and_b32 v42, 1, v35", "v_lshl_or_b32 v42, v42, 2, v40")
    I("v_lshl_add_u32 v43, v35, 3, v40", "v_lshlrev_b32 v43, 9, v43", "v_lshl_add_u32 v43, v41, 3, v43")
    I(f"s_mul_i32 s{G_T0}, s{G_WV}, {NT}")
    for t in range(NT):
        I(f"s_add_u32 s{G_T1}, s{G_T0}, {t}", f"v_xor_b32 v44, s{G_T1}, v42", f"v_lshl_add_u32 v{56+t}, v44, 5, v43")
    NSL = 10
    issued = [0]
    def issue(c):
        I(f"s_lshl_b32 s{G_T0}, s{G_WV}, 3", f"s_add_u32 s{G_T0}, s{G_T0}, {32*c}", f"s_mul_i32 s{G_T0}, s{G_T0}, s{G_WSTR}", f"s_add_u32 s{G_T0}, s{G_T0}, s{G_WCOL}")
        I(f"s_lshl_b32 s{G_T1}, s{G_WV}, 12", f"s_add_u32 s{G_T1}, s{G_T1}, {(c % NSL) * 16384}")
        for jj in range(4):
            I(f"s_add_u32 m0, s{G_T1}, {jj*1024}", f"buffer_load_dwordx4 v{52+jj}, s[{G_W}:{G_W+3}], s{G_T0} offen lds")
        issued[0] = c + 1
    for c in range(NSL): issue(c)
    for c in range(18):
        I(f"s_waitcnt vmcnt({4*(issued[0]-1-c)})", "s_barrier")
        sb = (c % NSL) * 16384
        for t in range(NT):
            I(f"v_add_u32 v44, {sb}, v{56+t}")
            I(f"ds_read_b64_tr_b16 {frag4_sub(t*18+c, 0, 2)}, v44", f"ds_read_b64_tr_b16 {frag4_sub(t*18+c, 2, 2)}, v44 offset:2048")
        I("s_waitcnt lgkmcnt(0)", "s_barrier")
        if c + NSL < 18: issue(c + NSL)

def x_addrs(p):
    I = p.I
    I("v_lshrrev_b32 v40, 2, v33", "v_lshrrev_b32 v41, 4, v33")
    hswz(p, 42, 41, 43)
    I("v_and_b32 v43, 3, v33", "v_xor_b32 v42, v42, v43", "v_mul_u32_u24 v1, 1152, v40", "v_lshl_add_u32 v1, v42, 4, v1")
    I("v_lshrrev_b32 v41, 2, v34")
    hswz(p, 42, 41, 43)
    I("v_xor_b32 v42, v42, v35", "v_lshlrev_b32 v2, 6, v34", "v_lshl_add_u32 v2, v42, 4, v2")

def x_dma(p, segreg, bufbase_sreg, xsc=''):
    I = p.I
    I(f"s_mul_i32 s{G_T0}, s{segreg}, {32*1152}", f"s_lshr_b32 s{G_T1}, s{G_WV}, 1", f"s_mul_i32 s{G_T1}, s{G_T1}, {16*1152}", f"s_add_u32 s{G_T0}, s{G_T0}, s{G_T1}",
      f"s_and_b32 s{G_T1}, s{G_WV}, 1", f"s_mul_i32 s{G_T1}, s{G_T1}, 576", f"s_add_u32 s{G_T0}, s{G_T0}, s{G_T1}")
    I(f"s_mul_i32 s{G_T1}, s{G_WV}, 9216", f"s_add_u32 s{G_T1}, s{G_T1}, s{bufbase_sreg}")
    for j in range(9):
        I(f"s_add_u32 m0, s{G_T1}, {j*1024}")
        I(f"s_add_u32 s{G_T2}, s{G_T0}, {j*64}", f"buffer_load_dwordx4 v1, s[{G_X}:{G_X+3}], s{G_T2} offen{xsc} lds")

def gemm_main(p, NT, epi, sc=" sc1", prewait=None, xsc="", endsig=None):
    I = p.I
    ACC = 64
    NS = {"kq": NT, "v": NT, "row": 2 * NT}[epi]
    I(f"s_mov_b32 s{G_IT}, 0", f"s_mov_b32 s{G_BUF}, {XB0}", f"s_mov_b32 s{G_PREV}, -1")
    if prewait: prewait(p, G_SEG)
    x_dma(p, G_SEG, G_BUF, xsc)
    I("s_waitcnt vmcnt(0)")
    loop = p.newlabel("g_loop");
    p.fence(); p.reset_q()
    p.L(loop)
    I(f"s_waitcnt vmcnt({NS})", "s_barrier")
    if epi != "row":
        nosig = p.newlabel("nosig")
        I(f"s_cmp_lt_u32 s{G_IT}, 5", f"s_cbranch_scc1 {nosig}", f"s_cmp_lg_u32 s{G_WV}, 0", f"s_cbranch_scc1 {nosig}")
        I(f"s_lshl_b32 s{G_T0}, s{G_SEGSTEP}, 1", f"s_sub_u32 s{G_T0}, s{G_SEG}, s{G_T0}", f"s_lshl_b32 s{G_T0}, s{G_T0}, 2", f"s_add_u32 s{G_T0}, s{G_T0}, s{G_FLG}")
        I("s_mov_b64 exec, 1", "v_mov_b32 v48, 1", "v_mov_b32 v49, 0", f"buffer_atomic_add v48, v49, s[{G_WS}:{G_WS+3}], s{G_T0} offen", "s_mov_b64 exec, -1")
        p.L(nosig)
    nopf = p.newlabel("nopf")
    I(f"s_add_u32 s{G_T3}, s{G_IT}, 1", f"s_cmp_ge_u32 s{G_T3}, s{G_NSEG}", f"s_cbranch_scc1 {nopf}")
    I(f"s_add_u32 s{G_XB}, s{G_SEG}, s{G_SEGSTEP}", f"s_sub_u32 s{G_T3}, {XB0 + XBUF}, s{G_BUF}", f"s_add_u32 s{G_T3}, s{G_T3}, {XB0}")
    if prewait:
        I(f"s_mov_b32 s39, s{G_T3}")
        prewait(p, G_XB)
        I(f"s_mov_b32 s{G_T3}, s39")
    x_dma(p, G_XB, G_T3, xsc)
    p.L(nopf)
    p.reset_q()
    I(f"v_add_u32 v3, s{G_BUF}, v2")
    def xr(ks, st):
        return [f"ds_read_b128 v[{32+8*st}:{35+8*st}], v3 offset:{ks*1024}", f"ds_read_b128 v[{36+8*st}:{39+8*st}], v3 offset:{(18+ks)*1024}"]
    for st in range(2):
        for y in xr(st, st): I(y)
    for ks in range(18):
        st = ks % 2
        k = 0
        pend = xr(ks + 2, st) if ks + 2 < 18 else []
        for t in range(NT):
            for tt in range(2):
                d = ACC + 4 * (t * 2 + tt)
                c = "0" if ks == 0 else f"v[{d}:{d+3}]"
                x = f"v[{32+8*st+4*tt}:{35+8*st+4*tt}]"
                w = frag4(t * 18 + ks)
                if epi == "v": I(f"v_mfma_f32_16x16x32_bf16 v[{d}:{d+3}], {x}, {w}, {c}")
                else: I(f"v_mfma_f32_16x16x32_bf16 v[{d}:{d+3}], {w}, {x}, {c}")
        for y in pend: I(y)
    cv = lambda d, a, b: f"v_cvt_pk_bf16_f32 v{d}, v{a}, v{b}"
    if epi == "kq":
        I(f"s_mul_i32 s{G_T0}, s{G_SEG}, {32*8192}", f"s_add_u32 s{G_T0}, s{G_T0}, s{G_OB}")
        for pp in range(NT // 2):
            for tt in range(2):
                a = ACC + 4 * ((2 * pp) * 2 + tt); b = ACC + 4 * ((2 * pp + 1) * 2 + tt); o = 48 + 4 * ((pp * 2 + tt) % 2)
                I(cv(o, a, a + 1), cv(o + 1, a + 2, a + 3), cv(o + 2, b, b + 1), cv(o + 3, b + 2, b + 3))
                I(f"buffer_store_dwordx4 v[{o}:{o+3}], v0, s[{G_WS}:{G_WS+3}], s{G_T0} offen offset:{pp*2048+tt*1024}{sc}")
    elif epi == "v":
        I(f"s_mul_i32 s{G_T0}, s{G_SEG}, {32*8192}", f"s_add_u32 s{G_T0}, s{G_T0}, s{G_OB}")
        for t in range(NT):
            a = ACC + 4 * (t * 2); b = ACC + 4 * (t * 2 + 1); o = 48 + 4 * (t % 2)
            I(cv(o, a, a + 1), cv(o + 1, a + 2, a + 3), cv(o + 2, b, b + 1), cv(o + 3, b + 2, b + 3))
            I(f"buffer_store_dwordx4 v[{o}:{o+3}], v0, s[{G_WS}:{G_WS+3}], s{G_T0} offen offset:{t*1024}{sc}")
    else:
        for tt in range(2):
            I(f"s_lshl_b32 s{G_T0}, s{G_SEG}, 5", f"s_add_u32 s{G_T0}, s{G_T0}, {16*tt}", f"s_mul_i32 s{G_T0}, s{G_T0}, s35", f"s_add_u32 s{G_T0}, s{G_T0}, s{G_OB}")
            for t in range(NT):
                a = ACC + 4 * (t * 2 + tt); o = 48 + 2 * ((tt * NT + t) % 4)
                I(cv(o, a, a + 1), cv(o + 1, a + 2, a + 3))
                I(f"buffer_store_dwordx2 v[{o}:{o+1}], v4, s[{G_O}:{G_O+3}], s{G_T0} offen offset:{t*32}{sc}")
    if epi != "row":
        nf = p.newlabel("nofirst")
        I(f"s_cmp_ge_u32 s{G_IT}, 3", f"s_cbranch_scc1 {nf}")
        I("s_waitcnt vmcnt(0)", "s_barrier")
        I(f"s_cmp_lg_u32 s{G_WV}, 0", f"s_cbranch_scc1 {nf}")
        I(f"s_lshl_b32 s{G_T0}, s{G_SEG}, 2", f"s_add_u32 s{G_T0}, s{G_T0}, s{G_FLG}")
        signal_add(p, G_WS, G_T0, tmpv=(48, 49))
        p.L(nf)
    I(f"s_add_u32 s{G_SEG}, s{G_SEG}, s{G_SEGSTEP}", f"s_sub_u32 s{G_T0}, {XB0 + XBUF}, s{G_BUF}", f"s_add_u32 s{G_BUF}, s{G_T0}, {XB0}", f"s_add_u32 s{G_IT}, s{G_IT}, 1")
    p.fence(); p.reset_q()
    I(f"s_cmp_lt_u32 s{G_IT}, s{G_NSEG}", f"s_cbranch_scc1 {loop}")
    I("s_waitcnt vmcnt(0)", "s_barrier")
    if epi != "row":
        nosig = p.newlabel("nosig")
        I(f"s_cmp_lg_u32 s{G_WV}, 0", f"s_cbranch_scc1 {nosig}")
        I("s_mov_b64 exec, 1", "v_mov_b32 v48, 1", "v_mov_b32 v49, 0")
        for back in (1, 2):
            I(f"s_mul_i32 s{G_T0}, s{G_SEGSTEP}, {back}", f"s_sub_u32 s{G_T0}, s{G_SEG}, s{G_T0}", f"s_lshl_b32 s{G_T0}, s{G_T0}, 2", f"s_add_u32 s{G_T0}, s{G_T0}, s{G_FLG}")
            I(f"buffer_atomic_add v48, v49, s[{G_WS}:{G_WS+3}], s{G_T0} offen")
        I("s_mov_b64 exec, -1")
        p.L(nosig)

    if endsig is not None:
        nosig = p.newlabel("nosig")
        I(f"s_cmp_lg_u32 s{G_WV}, 0", f"s_cbranch_scc1 {nosig}", f"s_mov_b32 s{G_T0}, {endsig}")
        signal_add(p, G_WS, G_T0, tmpv=(48, 49))
        p.L(nosig)
```

```python
import sys
import chain4 as ch
from gemm576 import *
from test_gemm import role_gemm1, role_bq
from test_b import role_bo
from attna import *
from attnb import *
from oproja import *
NAME = "concat_heads__memory_aug_recurrent_mem_tr__grouped_kv_mqa__prompt_kernel"
HEAD = open("concat_heads__memory_aug_recurrent_mem_tr__grouped_kv_mqa__prompt.s.ref").read().split("; Override launch geometry")[0]
PT = 72
PN = ["A_x", "A_mem0", "A_Wq", "A_Wk", "A_Wv", "A_Wo", "B_x", "B_wq", "B_wk", "B_wv", "B_wo", "out"]
def ptr(n): return PT + 2 * PN.index(n)
S_ROLE = 44
N_OPROJ, N_BO0, N_BOUT = 48, 48, 24
ATTNB0 = 96

TL = [False]
def ts(p, k, rolereg, a=30, b=31):
    if not TL[0]: return
    I = p.I
    lab = p.newlabel("ts")
    I(f"s_cmp_lg_u32 s19, 0", f"s_cbranch_scc1 {lab}")
    I("s_memrealtime s[2:3]", "s_waitcnt lgkmcnt(0)", f"s_lshl_b32 s3, s{rolereg}, 6", f"s_add_u32 s3, s3, {0x9100000 + 4*k}")
    I("s_mov_b64 exec, 1", f"v_mov_b32 v{a}, s2", f"v_mov_b32 v{b}, 0", f"buffer_store_dword v{a}, v{b}, s[4:7], s3 offen", "s_mov_b64 exec, -1", "s_nop 1")
    p.L(lab)

def tc(p, k, rolereg, a=30, b=31):
    if not TL[0]: return
    I = p.I
    lab = p.newlabel("tc")
    I(f"s_cmp_lg_u32 s19, 0", f"s_cbranch_scc1 {lab}")
    I("s_memtime s[2:3]", "s_waitcnt lgkmcnt(0)", f"s_lshl_b32 s3, s{rolereg}, 6", f"s_add_u32 s3, s3, {0x9100000 + 4*k}")
    I("s_mov_b64 exec, 1", f"v_mov_b32 v{a}, s2", f"v_mov_b32 v{b}, 0", f"buffer_store_dword v{a}, v{b}, s[4:7], s3 offen", "s_mov_b64 exec, -1", "s_nop 1")
    p.L(lab)

DT = [False]
def dts(p, idx, op="umax", a=52, b=53):
    if not DT[0]: return
    I = p.I
    lab = p.newlabel("dts")
    I("s_cmp_lg_u32 s19, 0", f"s_cbranch_scc1 {lab}")
    I("s_memrealtime s[2:3]", "s_waitcnt lgkmcnt(0)")
    if op == "umin": I("s_not_b32 s2, s2")
    I("s_mov_b64 exec, 1", f"v_mov_b32 v{a}, s2", f"v_mov_b32 v{b}, {4*idx}", f"global_atomic_umax v{b}, v{a}, s[16:17]", "s_mov_b64 exec, -1", "s_nop 1")
    p.L(lab)

def build(opts):
    DT[0] = bool(opts.get("dt"))
    TL[0] = bool(opts.get("tl"))
    ch.PROF[0] = bool(opts.get("prof"))
    ch.PREF[0] = not opts.get("nopref")
    ch.STEPTS[0] = bool(opts.get("sts"))
    ch.FUSED[0] = True
    p = AProg(); I = p.I
    p.raw(HEAD.rstrip("\n"))
    p.raw("; Override launch geometry by editing the next line.")
    p.raw("; @launch grid=(256,1,1) block=(256,1,1) lds=163840")
    p.raw('.amdgcn_target "amdgcn-amd-amdhsa--gfx950"\n.text')
    kernel_head(p, NAME)
    S_DBG, S_WS, S_MEM, S_WV, S_H = ch.S_DBG, ch.S_WS, ch.S_MEM, ch.S_WV, ch.S_H
    I("s_cmp_ge_u32 s2, 256", "s_cbranch_scc1 L_end")
    load_ptrs(p, PN, PT)
    I(f"s_load_dwordx2 s[{S_DBG}:{S_DBG+1}], s[0:1], {KARG['dbg']}", f"s_load_dwordx2 s[46:47], s[0:1], {KARG['ws']}")
    I("s_waitcnt lgkmcnt(0)")
    srd(p, S_WS, 46, WS_BYTES)
    I(f"s_mov_b32 s{S_ABORT}, 0")
    ch.lane_consts(p)
    dts(p, 9, "umin", 60, 61); dts(p, 11, "umax", 60, 61) if opts.get("dt") == 1 else None
    I("s_getreg_b32 s24, hwreg(HW_REG_XCC_ID, 0, 4)", "s_and_b32 s24, s24, 7")
    lab = p.newlabel("role")
    I(f"s_cmp_lg_u32 s{S_WV}, 0", f"s_cbranch_scc1 {lab}")
    I("s_mov_b64 exec, 1", "v_mov_b32 v44, 1", "s_lshl_b32 s25, s24, 2", "v_mov_b32 v45, s25", f"global_atomic_add v46, v45, v44, s[{S_DBG}:{S_DBG+1}] sc0", "s_waitcnt vmcnt(0)")
    I("v_readfirstlane_b32 s26, v46")
    I(f"s_cmp_eq_u32 s24, {opts.get('chx', 0)}", "s_cselect_b32 s27, s26, 1000", "s_cmp_lt_u32 s27, 32", "s_cbranch_scc1 L_isch")
    I(f"v_mov_b32 v45, {DBG_WORK}", f"global_atomic_add v46, v45, v44, s[{S_DBG}:{S_DBG+1}] sc0", "s_waitcnt vmcnt(0)", "v_add_u32 v46, 32, v46")
    p.L("L_isch")
    I("v_mov_b32 v45, 0", "ds_write_b32 v45, v46", "s_waitcnt lgkmcnt(0)", "s_mov_b64 exec, -1")
    p.L(lab)
    I("s_barrier", "v_mov_b32 v45, 0", "ds_read_b32 v46, v45", "s_waitcnt lgkmcnt(0)", f"v_readfirstlane_b32 s{S_H}, v46", "s_barrier")
    I("s_mov_b32 s98, 0")
    I(f"s_cmp_lt_u32 s{S_H}, 256", "s_cbranch_scc1 L_notx", f"s_sub_u32 s{S_H}, 287, s{S_H}", "s_mov_b32 s98, 1")
    p.L("L_notx")
    I(f"s_cmp_ge_u32 s{S_H}, 32", "s_cbranch_scc1 L_worker")
    I("s_mov_b32 s45, s98")
    ts(p, 0, S_H, 52, 53)
    chain_role(p, opts)
    I("s_branch L_end")
    p.L("L_worker")
    I(f"s_sub_u32 s{S_ROLE}, s{S_H}, 32")
    ts(p, 0, S_H)
    worker(p, opts)
    p.L("L_end"); I("s_endpgm")
    p.raw(kd(NAME))
    return p.render()

def chain_role(p, opts):
    I = p.I
    S_PTR = ch.S_PTR
    for i, n in enumerate(["A_mem0", "A_Wq", "A_Wk", "A_Wv", "A_Wo"]):
        I(f"s_mov_b32 s{S_PTR+2*i}, s{ptr(n)}", f"s_mov_b32 s{S_PTR+2*i+1}, s{ptr(n)+1}")
    srd(p, ch.S_MEM, S_PTR, 9216)
    ch.setup_chain(p, local=False, part=1)
    ts(p, 1, ch.S_H, 66, 67); dts(p, 11, "umax", 66, 67) if opts.get("dt") == 2 else None
    def mid(p):
        ch.init_fills(p, " sc1")
        decide_mode(p, opts)
    ch.EARLY[0] = True
    ch.preload(p, mid=mid, late=ch.early_loads)
    ts(p, 2, ch.S_H, 52, 53); dts(p, 15, "umax") if opts.get("dt") == 2 else None
    if opts.get("forceglobal"): I("s_mov_b32 s45, 1")
    I("s_mov_b32 s12, s45")
    ch.chain_state(p)
    ts(p, 3, ch.S_H, 52, 53); tc(p, 8, ch.S_H, 52, 53); dts(p, 8, "umax")
    I("s_cmp_lg_u32 s12, 0", "s_cbranch_scc1 L_chain_global")
    ch.chain_loop(p, local=True)
    ts(p, 4, ch.S_H, 52, 53); tc(p, 9, ch.S_H, 52, 53); dts(p, 14, "umax")
    ch.prof_dump(p)
    I("s_branch L_end")
    p.L("L_chain_global")
    ch.chain_loop(p, local=False)

def decide_mode(p, opts):
    I = p.I
    lab = p.newlabel("mode"); dec = p.newlabel("mode_d")
    I("s_cmp_lg_u32 s45, 0", f"s_cbranch_scc1 {dec}", f"s_mov_b32 s{ch.S_T2}, 0")
    p.L(lab)
    I(f"v_mov_b32 v65, {4*opts.get('chx', 0)}", f"global_load_dword v64, v65, s[{ch.S_DBG}:{ch.S_DBG+1}] sc1", f"v_mov_b32 v65, {DBG_WORK}", f"global_load_dword v66, v65, s[{ch.S_DBG}:{ch.S_DBG+1}] sc1", "s_waitcnt vmcnt(0)")
    I(f"v_readfirstlane_b32 s{ch.S_T0}, v64", f"v_readfirstlane_b32 s{ch.S_T1}, v66")
    I(f"s_cmp_ge_u32 s{ch.S_T0}, 32", f"s_cbranch_scc1 {dec}", f"s_cmp_gt_u32 s{ch.S_T1}, 224", "s_cselect_b32 s45, 1, 0", f"s_cbranch_scc1 {dec}")
    I("s_sleep 4", f"s_add_u32 s{ch.S_T2}, s{ch.S_T2}, 1", f"s_cmp_lt_u32 s{ch.S_T2}, 0x100000", f"s_cbranch_scc1 {lab}")
    p.L(dec)

def worker(p, opts):
    I = p.I
    S_DBG = ch.S_DBG
    lab = p.newlabel("noinit")
    I(f"s_cmp_lg_u32 s{S_ROLE}, 0", f"s_cbranch_scc1 {lab}")
    I("v_mov_b64 v[44:45], 0", "v_mov_b64 v[46:47], 0", f"s_lshl_b32 s{G_T0}, s{G_WV}, 10", f"s_add_u32 s{G_T0}, s{G_T0}, {FLAG_OFF}")
    for rnd in range(4):
        I(f"buffer_store_dwordx4 v[44:47], v0, s[{G_WS}:{G_WS+3}], s{G_T0} offen sc1", f"s_add_u32 s{G_T0}, s{G_T0}, 4096")
    I("s_waitcnt vmcnt(0)", "s_barrier")
    lab2 = p.newlabel("ini2")
    I(f"s_cmp_lg_u32 s{G_WV}, 0", f"s_cbranch_scc1 {lab2}")
    I("s_mov_b64 exec, 1", "v_mov_b32 v44, 1", f"v_mov_b32 v45, {DBG_INIT}", f"global_store_dword v45, v44, s[{S_DBG}:{S_DBG+1}] sc1", "s_mov_b64 exec, -1")
    p.L(lab2); p.L(lab)
    mid = lambda p: wait_init(p, S_DBG, tmpv=(48, 49))
    I(f"s_cmp_ge_u32 s{S_ROLE}, 192", "s_cbranch_scc1 L_p1b")
    if opts.get("qd", 0):
        nq = p.newlabel("noqd")
        I(f"s_mul_hi_u32 s36, s{S_ROLE}, {(1 << 32) // 48 + 1}", "s_mul_i32 s36, s36, 48", f"s_sub_u32 s36, s{S_ROLE}, s36", "s_cmp_lt_u32 s36, 32", f"s_cbranch_scc1 {nq}")
        for _ in range(opts["qd"]): I("s_sleep 127")
        p.L(nq)
    role_gemm1(p, f"s{S_ROLE}", ptr("A_x"), ptr("A_Wq"), ptr("A_Wk"), ptr("A_Wv"), mid=mid)
    I("s_branch L_p2")
    p.L("L_p1b")
    I(f"s_cmp_ge_u32 s{S_ROLE}, 216", "s_cbranch_scc1 L_p1c")
    I(f"s_sub_u32 s36, s{S_ROLE}, 192")
    role_bq(p, 36, ptr("B_x"), ptr("B_wq"), endsig=BQCNT, mid=mid)
    I("s_branch L_p2")
    p.L("L_p1c")
    srd(p, G_X, ptr("B_x"), 2048 * 1152)
    I(f"s_sub_u32 s20, s{S_ROLE}, 216", "s_lshl_b32 s20, s20, 2", f"s_add_u32 s20, s20, s{G_WV}", "s_mov_b32 s21, 32")
    kvproj(p, ptr("B_wk"), ptr("B_wv"), 2, 20)
    I("s_waitcnt vmcnt(0)")
    wait_init(p, S_DBG, tmpv=(30, 31))
    I(f"s_mov_b32 s{G_T0}, {BKVCNT}")
    signal_add(p, G_WS, G_T0)
    p.L("L_p2")
    p.fence(); p.reset_q()
    I("s_barrier")
    ts(p, 1, ch.S_H)
    relane(p)
    I(f"s_cmp_lt_u32 s{S_ROLE}, {N_OPROJ}", "s_cbranch_scc1 L_oproj")
    I(f"s_cmp_lt_u32 s{S_ROLE}, {ATTNB0}", "s_cbranch_scc1 L_attna")
    poll_ge(p, G_WS, BQCNT, 24, imm=True, sleep=32); poll_ge(p, G_WS, BKVCNT, 32, imm=True, sleep=32)
    attnb_setup(p)
    I(f"s_sub_u32 s{B_TASK}, s{S_ROLE}, {ATTNB0}", f"s_lshl_b32 s{B_TASK}, s{B_TASK}, 2", f"s_add_u32 s{B_TASK}, s{B_TASK}, s{G_WV}")
    p.fence(); p.reset_q(); p.L("L_bl")
    attnb_task(p)
    I("s_waitcnt vmcnt(0)", f"s_and_b32 s{G_T0}, s{B_TASK}, 31", f"s_lshl_b32 s{G_T0}, s{G_T0}, 2", f"s_add_u32 s{G_T0}, s{G_T0}, {BACNT}")
    signal_add(p, G_WS, G_T0)
    I(f"s_add_u32 s{B_TASK}, s{B_TASK}, 512")
    p.fence(); p.reset_q()
    I(f"s_cmp_lt_u32 s{B_TASK}, 1024", "s_cbranch_scc1 L_bl")
    I("s_barrier")
    ts(p, 2, ch.S_H)
    I(f"s_cmp_ge_u32 s{S_ROLE}, {ATTNB0 + N_BOUT}", "s_cbranch_scc1 L_attna")
    def bo_wait(p, segreg):
        I(f"s_lshr_b32 s{G_T0}, s{segreg}, 1", f"s_lshl_b32 s{G_T0}, s{G_T0}, 2", f"s_add_u32 s{G_T0}, s{G_T0}, {BACNT}", f"s_mov_b32 s45, s{G_T0}")
        poll_ge(p, G_WS, 45, 32, tmpv=(48, 49), sleep=32)
    I(f"s_sub_u32 s36, s{S_ROLE}, {ATTNB0}")
    relane(p)
    role_bo(p, 36, 46, ptr("B_wo"), ptr("out"), prewait=bo_wait, xsc=" sc1")
    p.fence(); p.reset_q()
    I("s_barrier")
    relane(p)
    p.L("L_attna")
    ts(p, 3, ch.S_H)
    relane(p)
    attna_setup(p)
    p.fence(); p.reset_q(); p.L("L_al")
    I("s_mov_b64 exec, 1", "v_mov_b32 v30, 1", "v_mov_b32 v31, 0", f"s_mov_b32 s{G_T0}, {ATICK}", f"buffer_atomic_add v30, v31, s[{G_WS}:{G_WS+3}], s{G_T0} offen sc0", "s_waitcnt vmcnt(0)", "s_mov_b64 exec, -1")
    I(f"v_readfirstlane_b32 s{A_TASK}, v30")
    I(f"s_cmp_ge_u32 s{A_TASK}, 2048", "s_cbranch_scc1 L_aend")
    I(f"s_lshr_b32 s36, s{A_TASK}, 5", "s_lshl_b32 s37, s36, 2")
    I(f"s_add_u32 s38, s37, {QCNT}"); poll_ge(p, G_WS, 38, 16, sleep=32)
    I(f"s_add_u32 s38, s37, {KVCNT}"); poll_ge(p, G_WS, 38, 32, sleep=32)
    def chwait(p):
        I(f"s_and_b32 s38, s{A_TASK}, 31", "s_lshl_b32 s38, s38, 8", f"s_add_u32 s38, s38, {CHFLG}", "s_add_u32 s39, s36, 1")
        poll_ge_far(p, G_WS, 38, 39, tmpv=(29, 30))
    attna_task(p, midwait=chwait)
    I("s_waitcnt vmcnt(0)", f"s_lshr_b32 s{G_T0}, s{A_TASK}, 5", f"s_lshl_b32 s{G_T0}, s{G_T0}, 2", f"s_add_u32 s{G_T0}, s{G_T0}, {ACNT}")
    signal_add(p, G_WS, G_T0)
    p.fence(); p.reset_q()
    I("s_branch L_al")
    p.L("L_aend")
    ts(p, 4, ch.S_H)
    I("s_branch L_end")
    p.L("L_oproj")
    srd(p, G_W, ptr("A_Wo"), 4096 * 1152); srd(p, G_O, ptr("out"), 2048 * 2304)
    I(f"s_mul_hi_u32 s{G_SEG}, s{S_ROLE}, {(1 << 32) // 12 + 1}", f"s_mul_i32 s{G_T0}, s{G_SEG}, 12", f"s_sub_u32 s{G_T0}, s{S_ROLE}, s{G_T0}", f"s_mul_i32 s{G_WCOL}, s{G_T0}, 96")
    oproj_setup(p); oproj_preload(p)
    ts(p, 2, ch.S_H)
    p.fence(); p.reset_q(); p.L("L_ol")
    I(f"s_lshl_b32 s38, s{G_SEG}, 2", f"s_add_u32 s38, s38, {ACNT}")
    nw = p.newlabel("op_nw")
    I(f"s_cmp_lg_u32 s{G_WV}, 0", f"s_cbranch_scc1 {nw}")
    poll_ge(p, G_WS, 38, 32, tmpv=(30, 31), sleep=12)
    p.L(nw)
    I("s_barrier")
    oproj_seg(p)
    I(f"s_add_u32 s{G_SEG}, s{G_SEG}, {N_OPROJ // 12}")
    p.fence(); p.reset_q()
    I(f"s_cmp_lt_u32 s{G_SEG}, 64", "s_cbranch_scc1 L_ol")
    I("s_waitcnt vmcnt(0)")
    ts(p, 4, ch.S_H); dts(p, 15, "umax", 30, 31) if opts.get("dt") == 1 else None
    I("s_branch L_end")

def relane(p):
    p.I("v_lshrrev_b32 v33, 4, v0", "v_and_b32 v34, 15, v33", "v_lshrrev_b32 v35, 4, v33")

if __name__ == "__main__":
    opts = {}
    for a in sys.argv[2:]:
        if a.startswith("g1="): ch.DELAYG1[0] = int(a[3:])
        elif a.startswith("d3="): ch.DELAY3[0] = int(a[3:])
        elif a.startswith("d0="): ch.DELAY0[0] = int(a[3:])
        elif a.startswith("d1="): ch.DELAY1[0] = int(a[3:])
        elif a.startswith("d2="): ch.DELAY2[0] = int(a[3:])
        elif "=" in a: k, v = a.split("="); opts[k] = int(v)
        else: opts[a] = 1
    open(sys.argv[1], "w").write(build(opts))
```

```python
import struct
from asmlib2 import *
from common import *
import common, sys as _sys
if 'hot' in _sys.argv: MEM_SLOT = 0

MEMIMG, SEXM, SEXX, OIMG, WVL = 0, 9216, 10240, 14336, 16384
PART_BYTES = 48 * 8192
SCALE_LOG2E = 0.08838834764831845 * 1.4426950408889634

S_WS, S_MEM, S_W = 4, 8, 12
S_DBG = 16
S_H, S_WV, S_STEP = 18, 19, 20
S_MEMR, S_MEMW, S_KX, S_VX, S_KM, S_VM = 21, 22, 23, 24, 25, 26
S_TO, S_T0, S_T1, S_T2 = 27, 28, 29, 30
S_C = 31
S_NLT8 = 32
S_M8 = 34
S_PS = 36
S_PL, S_ISW2 = 41, 42
S_W1024, S_W256 = 43, 44
S_HASTASK = 45
S_PTR = 46
S_EXMS = 58
S_D8, S_L8, S_MEMR8, S_TAG = 64, 65, 66, 67
S_ONES, S_W4 = 68, 70
S_MEMR2 = 57
S_B01, S_TO3, S_MEMEND, S_MEMZ, S_MEMWEND = 57, 61, 60, 39, 40
SLOW = []
VPLACE = [2, 4, 3, 2, 2, 2, 3]
V_DUM = 27
ST2_ISSUE = [1]
ST2_CHECK = [4]
S_C2 = 62
S_TCH, S_TMASK = 98, 100
S_RDY, S_CHF = 10, 11
S_PUBV = 13
S_FAST = 14
S_PFM, S_W2048 = 46, 48
PREF = [True]
STEPTS = [False]
S_PUB = 8
FUSED = [False]
TOUCH = [2]
S_TO2 = 71
S_TS = 50
PNST = 14
S_ST = 72

V_L16, V_IDX = 0, 1
V_SQA, V_SQB, V_SKA, V_SKB = 2, 4, 6, 8
V_KX, V_VX = 10, 18
V_WV, V_MP, V_PY, V_PS, V_OR = 26, 27, 28, 30, 31

def frag(f): return ar(8 * f, 8) if f < 32 else vr(80 + 8 * (f - 32), 8)
def fragb(f): return ("a", 8 * f) if f < 32 else ("v", 80 + 8 * (f - 32))
def frag_sub(f, off, n):
    k, b = fragb(f)
    return f"{k}[{b+off}:{b+off+n-1}]" if n > 1 else f"{k}{b+off}"
def F_QA(kb): return kb
def F_QB(kb): return 9 + kb
def F_KA(kb): return 18 + kb
F_KB0 = 27
VRES = [6, 7, 0, 1]
VSTR = [2, 3, 4, 5, 8]
def F_VS(tb, slot): return 28 + slot * 2 + tb
def F_WO(j, kb): return 36 + j * 2 + kb

PROF = [False]
RT = [False]
TAGALL = [False]
def stamp(p, k, on):
    r = S_ST + 2 * k if k < 13 else 14
    if PROF[0] and on: p.I(f"{'s_memrealtime' if RT[0] else 's_memtime'} s[{r}:{r+1}]")

def lane_consts(p):
    I = p.I
    I("v_lshrrev_b32 v32, 6, v0", "v_and_b32 v33, 63, v0", f"v_readfirstlane_b32 s{S_WV}, v32")
    I("v_and_b32 v34, 15, v33", "v_lshrrev_b32 v35, 4, v33")
    I("v_and_b32 v36, 7, v33")
    I("v_bfe_u32 v37, v33, 3, 1")
    I(f"v_lshlrev_b32 v{V_L16}, 4, v33")
    I("v_lshrrev_b32 v38, 2, v34", "v_lshlrev_b32 v38, 1, v38", "v_and_b32 v39, 1, v34", "v_or_b32 v38, v38, v39", "v_bfe_u32 v39, v34, 1, 1")
    I("v_mov_b32 v40, 0x44444444", "v_mov_b32 v41, 0xeeeeeeee", "v_cmp_eq_u32 vcc, 0, v39", f"v_cndmask_b32 v{V_IDX}, v41, v40, vcc")

def setup_chain(p, local, part=3):
    I = p.I
    sc_st = "" if local else " sc1"
    if part & 1: setup_regs(p)
    if part & 2: init_fills(p, sc_st)

def setup_regs(p):
    I = p.I
    I(f"s_lshl_b32 s{S_W1024}, s{S_WV}, 10", f"s_lshl_b32 s{S_W256}, s{S_WV}, 8")
    I(f"s_lshl_b32 s{S_T0}, s{S_WV}, 11", f"s_add_u32 s{S_T0}, s{S_T0}, {WVL}", f"v_add_u32 v{V_WV}, s{S_T0}, v{V_L16}")
    I(f"v_mul_u32_u24 v{V_MP}, 1152, v38", f"v_lshl_add_u32 v{V_MP}, v35, 5, v{V_MP}", f"v_lshl_add_u32 v{V_MP}, v39, 4, v{V_MP}",
      f"s_lshl_b32 s{S_T0}, s{S_WV}, 7", f"v_add_u32 v{V_MP}, s{S_T0}, v{V_MP}")
    I(f"v_lshlrev_b32 v{V_PS}, 13, v35", f"v_lshl_add_u32 v{V_PS}, v37, 12, v{V_PS}", f"v_lshl_add_u32 v{V_PS}, v36, 4, v{V_PS}")
    I("v_lshl_add_u32 v40, v35, 1, v39", "v_xor_b32 v40, v40, v38", "v_lshlrev_b32 v40, 4, v40", "v_lshl_add_u32 v40, v38, 8, v40", f"v_add_u32 v{V_OR}, {OIMG}, v40")
    for src, ra, rb in ((36, V_SQA, V_SQB), (38, V_SKA, V_SKB)):
        I("v_lshlrev_b32 v40, 1, v35", f"v_sub_u32 v40, v{src}, v40", "v_mov_b32 v41, 0", "v_mov_b32 v42, 0x3f80", "v_mov_b32 v43, 0x3f800000")
        I("v_cmp_eq_u32 vcc, 0, v40", "v_cndmask_b32 v41, v41, v42, vcc", "v_cmp_eq_u32 vcc, 1, v40", f"v_cndmask_b32 v{ra}, v41, v43, vcc")
        I(f"v_mov_b32 v{ra+1}, 0", f"v_mov_b32 v{rb}, 0", f"v_mov_b32 v{rb+1}, v{ra}")
    I(f"s_mov_b32 s{S_NLT8}, 0x00ff00ff", f"s_mov_b32 s{S_NLT8+1}, 0x00ff00ff")
    I(f"s_mov_b32 s{S_ONES}, 0x3f803f80", f"s_mov_b32 s{S_ONES+1}, 0x3f803f80", f"s_lshl_b32 s{S_W4}, s{S_WV}, 2")
    cbits = struct.unpack("<I", struct.pack("<f", SCALE_LOG2E))[0]
    I(f"s_mov_b32 s{S_C}, 0x{cbits:08x}", f"s_mov_b32 s{S_C2}, 0x{cbits:08x}", f"s_mov_b32 s{S_C2+1}, 0x{cbits:08x}")
def init_fills(p, sc_st):
    I = p.I
    p.C("init fills: PART zero (12288 B per WG), MEM ring sentinel (slots 1..3), slot 0 = mem0 in fragment order")
    I(f"s_mul_i32 s{S_T0}, s{S_H}, 12288", f"s_add_u32 s{S_T1}, s{S_T0}, s{S_W1024}", f"s_add_u32 s{S_T1}, s{S_T1}, {PART_OFF}")
    I("v_mov_b64 v[64:65], 0", "v_mov_b64 v[66:67], 0", "v_mov_b64 v[68:69], -1", "v_mov_b64 v[70:71], -1")
    for rnd in range(3):
        I(f"buffer_store_dwordx4 v[64:67], v{V_L16}, s[{S_WS}:{S_WS+3}], s{S_T1} offen{sc_st}")
        if rnd < 2: I(f"s_add_u32 s{S_T1}, s{S_T1}, 4096")
    lab = p.newlabel("fill_skip")
    I(f"s_lshl_b32 s{S_T0}, s{S_H}, 2", f"s_add_u32 s{S_T0}, s{S_T0}, s{S_WV}", f"s_sub_u32 s{S_T0}, s{S_T0}, 4", f"s_cmp_ge_u32 s{S_T0}, 27", f"s_cbranch_scc1 {lab}")
    I(f"s_lshl_b32 s{S_T0}, s{S_T0}, 10", f"s_add_u32 s{S_T2}, s{S_T0}, {MEM_OFF + MEM_SLOT}", f"buffer_store_dwordx4 v[68:71], v{V_L16}, s[{S_WS}:{S_WS+3}], s{S_T2} offen{sc_st}")
    p.L(lab)
    lab = p.newlabel("no_m0")
    I(f"s_cmp_lg_u32 s{S_H}, 0", f"s_cbranch_scc1 {lab}")
    I(f"buffer_load_dwordx4 v[64:67], v{V_MP}, s[{S_MEM}:{S_MEM+3}], 0 offen", f"buffer_load_dwordx4 v[68:71], v{V_MP}, s[{S_MEM}:{S_MEM+3}], 0 offen offset:512")
    I(f"s_lshl_b32 s{S_T0}, s{S_WV}, 7", f"v_subrev_u32 v72, s{S_T0}, v{V_MP}", f"buffer_load_dwordx4 v[76:79], v72, s[{S_MEM}:{S_MEM+3}], 0 offen offset:1024")
    I(f"s_add_u32 s{S_T0}, s{S_W1024}, {MEM_OFF}", f"s_mov_b32 s{S_T1}, {MEM_OFF + 8192}", "s_waitcnt vmcnt(0)")
    I(f"buffer_store_dwordx4 v[64:67], v{V_L16}, s[{S_WS}:{S_WS+3}], s{S_T0} offen{sc_st}")
    I(f"s_add_u32 s{S_T0}, s{S_T0}, 4096", f"buffer_store_dwordx4 v[68:71], v{V_L16}, s[{S_WS}:{S_WS+3}], s{S_T0} offen{sc_st}")
    I(f"buffer_store_dwordx4 v[76:79], v{V_L16}, s[{S_WS}:{S_WS+3}], s{S_T1} offen{sc_st}")
    p.L(lab)
    I("s_waitcnt vmcnt(0)", "s_barrier")
    lab = p.newlabel("init_arr")
    I(f"s_cmp_lg_u32 s{S_WV}, 0", f"s_cbranch_scc1 {lab}")
    I("s_mov_b64 exec, 1", "v_mov_b32 v64, 1", "v_mov_b32 v65, 40", f"global_atomic_add v65, v64, s[{S_DBG}:{S_DBG+1}]", "s_mov_b64 exec, -1")
    p.L(lab)

def preload(p, mid=None, late=None):
    I = p.I
    p.C("weight preload")
    I("v_lshrrev_b32 v40, 4, v33", "v_lshlrev_b32 v41, 13, v40")
    I("v_and_b32 v42, 1, v40", "v_lshlrev_b32 v42, 1, v42", "v_xor_b32 v42, v42, v34", "v_lshlrev_b32 v42, 4, v42")
    for jj in range(4):
        I(f"v_xor_b32 v43, {64*jj}, v42", "v_add_u32 v43, v43, v41", f"v_add_u32 v{52+jj}, {jj*32768}, v43")
    I("v_lshrrev_b32 v40, 3, v33", "v_and_b32 v41, 7, v33", "v_lshrrev_b32 v42, 5, v33")
    for jj in range(4):
        I(f"v_add_u32 v43, {8*jj}, v40", "v_mul_u32_u24 v43, 1152, v43")
        I(f"v_add_u32 v44, {2*(jj&1)}, v42", "v_lshlrev_b32 v44, 1, v44", "v_xor_b32 v44, v44, v41", f"v_lshl_add_u32 v{56+jj}, v44, 4, v43")
    I("v_lshrrev_b32 v40, 2, v34", "v_and_b32 v41, 3, v34")
    I("v_lshrrev_b32 v42, 1, v35", "v_lshlrev_b32 v42, 4, v42", "v_and_b32 v43, 1, v35", "v_lshl_add_u32 v42, v43, 2, v42")
    I("v_and_b32 v44, 1, v40", "v_add_u32 v42, v42, v44", "v_lshrrev_b32 v45, 1, v40", "v_lshl_add_u32 v42, v45, 3, v42")
    I("v_lshl_add_u32 v46, v45, 1, v43")
    I("v_lshl_or_b32 v47, v46, 1, v44")
    I(f"s_lshl_b32 s{S_T0}, s{S_WV}, 1", f"v_xor_b32 v47, s{S_T0}, v47", "v_lshlrev_b32 v47, 5, v47", "v_lshl_add_u32 v47, v41, 3, v47", "v_lshl_add_u32 v60, v42, 8, v47", "v_xor_b32 v61, 32, v60")
    I(f"v_xor_b32 v46, s{S_WV}, v46", "v_lshlrev_b32 v46, 5, v46", "v_lshl_add_u32 v46, v41, 3, v46", "v_lshl_add_u32 v62, v42, 7, v46")
    chunks = [("q", kb) for kb in range(9)] + [("o", cc) for cc in range(9)] + [("k", kb) for kb in range(9)] + [("v", kb) for kb in VRES + VSTR]
    slot = lambda c: (c + 4) % 10
    ptr = {"q": S_PTR + 2, "k": S_PTR + 4, "v": S_PTR + 6, "o": S_PTR + 8}
    cur = [None]
    nissued = [0]
    def issue(c):
        kind, x = chunks[c]
        if cur[0] != kind:
            cur[0] = kind
            I(f"s_mov_b32 s{S_W}, s{ptr[kind]}", f"s_and_b32 s{S_W+1}, s{ptr[kind]+1}, 0xffff", f"s_mov_b32 s{S_W+2}, {576*8192 if kind != 'o' else 4096*1152}", f"s_mov_b32 s{S_W+3}, 0x20000")
        if kind != "o":
            I(f"s_lshl_b32 s{S_T0}, s{S_WV}, 17", f"s_lshl_b32 s{S_T1}, s{S_H}, 8", f"s_add_u32 s{S_T0}, s{S_T0}, s{S_T1}", f"s_add_u32 s{S_T0}, s{S_T0}, {x*524288}")
            vb = 52
        else:
            I(f"s_lshl_b32 s{S_T0}, s{S_H}, 7", f"s_lshl_b32 s{S_T1}, s{S_WV}, 5", f"s_add_u32 s{S_T0}, s{S_T0}, s{S_T1}", f"s_mul_i32 s{S_T0}, s{S_T0}, 1152", f"s_add_u32 s{S_T0}, s{S_T0}, {x*128}")
            vb = 56
        I(f"s_lshl_b32 s{S_T1}, s{S_WV}, 12", f"s_add_u32 s{S_T1}, s{S_T1}, {slot(c)*16384}")
        for jj in range(4):
            I(f"s_add_u32 m0, s{S_T1}, {jj*1024}")
            I(f"buffer_load_dwordx4 v{vb+jj}, s[{S_W}:{S_W+3}], s{S_T0} offen lds")
        nissued[0] = c + 1
    def tr(dst_of_t, areg, rowb, row0):
        for t in range(4):
            I(f"ds_read_b64_tr_b16 {dst_of_t(t)}, v{areg} offset:{(row0+32*(t//2)+2*(t%2))*rowb}")
    extra = [0]
    for c in range(10): issue(c)
    if mid: mid(p)
    for c in range(36):
        kind, x = chunks[c]
        if late and c == 27: extra[0] = late(p)
        I(f"s_waitcnt vmcnt({4*(nissued[0]-1-c) + extra[0]})", "s_barrier")
        sb = slot(c) * 16384
        I(f"v_add_u32 v40, {sb}, v60", f"v_add_u32 v41, {sb}, v61", f"v_add_u32 v42, {sb}, v62")
        if kind == "q":
            tr(lambda t: frag_sub(F_QA(x), 2*t, 2), 40, 256, 0); tr(lambda t: frag_sub(F_QB(x), 2*t, 2), 41, 256, 0)
        elif kind == "k":
            fb = F_KB0 if x == 0 else F_VS((x-1) % 2, (x-1) // 2)
            tr(lambda t: frag_sub(F_KA(x), 2*t, 2), 40, 256, 0); tr(lambda t: frag_sub(fb, 2*t, 2), 41, 256, 0)
        elif kind == "o":
            for kb in range(2): tr(lambda t: frag_sub(F_WO(x, kb), 2*t, 2), 42, 128, 64*kb)
        else:
            for tb in range(2): tr(lambda t: f"v[{64+8*tb+2*t}:{65+8*tb+2*t}]", 40 + tb, 256, 0)
        I("s_waitcnt lgkmcnt(0)", "s_barrier")
        if kind == "v":
            pos = c - 27
            I(f"s_lshl_b32 s{S_T0}, s{S_WV}, 11", f"s_add_u32 s{S_T0}, s{S_T0}, {sb}", f"v_add_u32 v40, s{S_T0}, v{V_L16}")
            for sub in range(2):
                for half in range(2):
                    src = frag_sub(F_VS(sub, pos), 4*half, 4) if pos < 4 else f"v[{64+8*sub+4*half}:{67+8*sub+4*half}]"
                    I(f"ds_write_b128 v40, {src} offset:{sub*8192+half*1024}")
            I("s_waitcnt lgkmcnt(0)")
            if pos < 4:
                for tb in range(2):
                    k, b = fragb(F_VS(tb, pos))
                    for r in range(8):
                        I(f"v_accvgpr_write_b32 a{b+r}, v{64+8*tb+r}" if k == "a" else f"v_mov_b32 v{b+r}, v{64+8*tb+r}")
        if c + 10 < 36: issue(c + 10)
    I("s_barrier")

def early_loads(p):
    I = p.I
    WS = f"s[{S_WS}:{S_WS+3}]"
    I(f"v_lshrrev_b32 v45, 4, v{V_L16}", f"v_mul_u32_u24 v46, {DBG_INIT - 40}, v45", "v_add_u32 v46, 40, v46", "s_mov_b64 exec, 3")
    I(f"global_load_dword v44, v46, s[{S_DBG}:{S_DBG+1}] sc1", "s_mov_b64 exec, -1")
    I(f"v_lshlrev_b32 v47, 2, v45", f"s_mov_b32 s{S_T0}, {KVCNT}", f"buffer_load_dword v45, v47, {WS}, s{S_T0} offen sc1")
    return 2

EARLY = [False]
def chain_state(p):
    I = p.I
    lab = p.newlabel("initw"); lab2 = p.newlabel("initd"); fast = p.newlabel("fast_start")
    if EARLY[0]:
        I("s_waitcnt vmcnt(0)", f"v_readlane_b32 s{S_T0}, v44, 0", f"v_readlane_b32 s{S_T1}, v44, 1", "v_cmp_ne_u32 vcc, 32, v45", f"s_ff1_i32_b64 s{S_RDY}, vcc")
        I(f"s_cmp_eq_u32 s{S_RDY}, -1", f"s_cselect_b32 s{S_RDY}, 64, s{S_RDY}", f"s_mov_b32 s{S_FAST}, 1")
        I(f"s_cmp_lt_u32 s{S_T0}, 32", f"s_cselect_b32 s{S_FAST}, 0, s{S_FAST}", f"s_cmp_eq_u32 s{S_T1}, 0", f"s_cselect_b32 s{S_FAST}, 0, s{S_FAST}", f"s_cmp_lt_u32 s{S_RDY}, 3", f"s_cselect_b32 s{S_FAST}, 0, s{S_FAST}")
        I(f"s_cmp_lg_u32 s{S_FAST}, 0", f"s_cbranch_scc1 {lab2}")
    I(f"s_mov_b32 s{S_TO}, 0", f"v_lshrrev_b32 v45, 4, v{V_L16}", f"v_mul_u32_u24 v45, {DBG_INIT - 40}, v45", "v_add_u32 v45, 40, v45", "s_mov_b64 exec, 3")
    p.L(lab)
    I(f"global_load_dword v44, v45, s[{S_DBG}:{S_DBG+1}] sc1", "s_waitcnt vmcnt(0)", f"v_readlane_b32 s{S_T0}, v44, 0", f"v_readlane_b32 s{S_T1}, v44, 1", f"s_add_u32 s{S_TO}, s{S_TO}, 1")
    if FUSED[0]: I(f"s_cmp_eq_u32 s{S_T1}, 0", f"s_cselect_b32 s{S_T0}, 0, s{S_T0}")
    I(f"s_cmp_ge_u32 s{S_T0}, 32", f"s_cbranch_scc1 {lab2}", f"s_cmp_lt_u32 s{S_TO}, 0x40000", f"s_cbranch_scc1 {lab}")
    p.L(lab2)
    I("s_mov_b64 exec, -1")
    I(f"s_mov_b32 s{S_STEP}, 0", f"s_mov_b32 s{S_TO}, 0", f"s_mov_b32 s{S_TO2}, 0", f"s_mov_b32 s{S_TO3}, 0")
    I(f"s_min_u32 s{S_T0}, s{S_WV}, 2", f"s_lshl_b32 s{S_B01}, s{S_T0}, 11", f"s_add_u32 s{S_MEMR}, s{S_B01}, {MEM_OFF}", f"s_add_u32 s{S_MEMEND}, s{S_MEMR}, {4*MEM_SLOT}")
    I(f"s_lshl_b32 s{S_T0}, s{S_WV}, 5", f"s_add_u32 s{S_T0}, s{S_T0}, s{S_H}")
    I(f"s_cmp_lt_u32 s{S_WV}, 3", f"s_cselect_b32 s{S_HASTASK}, 1, 0")
    I(f"s_lshl_b32 s{S_PL}, s{S_T0}, 12", f"s_add_u32 s{S_PL}, s{S_PL}, {PART_OFF}")
    I(f"s_mul_i32 s{S_MEMW}, s{S_WV}, 3072")
    I(f"s_lshr_b32 s{S_T1}, s{S_H}, 3", f"s_lshl_b32 s{S_T1}, s{S_T1}, 8", f"s_add_u32 s{S_MEMW}, s{S_MEMW}, s{S_T1}")
    I(f"s_bfe_u32 s{S_T1}, s{S_H}, 0x20001", f"s_lshl_b32 s{S_T1}, s{S_T1}, 6", f"s_add_u32 s{S_MEMW}, s{S_MEMW}, s{S_T1}")
    I(f"s_and_b32 s{S_T1}, s{S_H}, 1", f"s_lshl_b32 s{S_T1}, s{S_T1}, 5", f"s_add_u32 s{S_MEMW}, s{S_MEMW}, s{S_T1}", f"s_add_u32 s{S_MEMW}, s{S_MEMW}, {MEM_OFF + MEM_SLOT}")
    I(f"s_mov_b32 s{S_EXMS+1}, 0x00000055", f"s_mov_b32 s{S_EXMS}, 0x00550055")
    I(f"s_cmp_eq_u32 s{S_WV}, 2", f"s_cselect_b32 s{S_ISW2}, 1, 0")
    I(f"s_mul_i32 s{S_L8}, s{S_WV}, 768", f"s_add_u32 s{S_L8}, s{S_L8}, {MEMIMG + 6144}", f"s_sub_u32 s{S_D8}, s{S_L8}, s{S_B01}")
    I(f"s_mov_b32 s{S_M8}, -1", f"s_mov_b32 s{S_M8+1}, 0xffff")
    I(f"s_cmp_eq_u32 s{S_WV}, 3", f"s_cselect_b32 s{S_PFM}, -1, 0", f"s_mov_b32 s{S_PFM+1}, s{S_PFM}", f"s_lshl_b32 s{S_W2048}, s{S_WV}, 11")
    I(f"s_add_u32 s{S_MEMZ}, s{S_MEMW}, {2*MEM_SLOT}", f"s_add_u32 s{S_MEMWEND}, s{S_MEMW}, {3*MEM_SLOT}")
    I(f"s_lshl_b32 s{S_T0}, s{S_H}, 13", f"s_lshl_b32 s{S_T1}, s{S_WV}, 11", f"s_add_u32 s{S_T0}, s{S_T0}, s{S_T1}", f"s_add_u32 s{S_KX}, s{S_T0}, {KX_OFF}", f"s_add_u32 s{S_VX}, s{S_T0}, {VX_OFF}")
    I(f"s_lshr_b32 s{S_T1}, s{S_T0}, 1", f"s_add_u32 s{S_KM}, s{S_T1}, {KM_OFF}", f"s_lshr_b32 s{S_T1}, s{S_T0}, 2", f"s_add_u32 s{S_VM}, s{S_T1}, {VM_OFF - 32*2048}")
    I(f"s_lshl_b32 s{S_T0}, s{S_WV}, 15", f"s_lshl_b32 s{S_T1}, s{S_H}, 7", f"s_add_u32 s{S_T0}, s{S_T0}, s{S_T1}", f"s_add_u32 s{S_PS}, s{S_T0}, {PART_OFF}")
    for e in range(1, 3): I(f"s_add_u32 s{S_PS+e}, s{S_PS}, {e*131072}")
    I(f"s_add_u32 s{S_MEMR8}, s{S_MEMR}, s{S_D8}")
    if FUSED[0]:
        I(f"s_lshl_b32 s{S_CHF}, s{S_H}, 8", f"s_add_u32 s{S_CHF}, s{S_CHF}, {CHFLG}")
        I(f"s_cmp_eq_u32 s{S_WV}, 0", f"s_cselect_b32 s{S_PUB}, 1, 0", f"s_mov_b32 s{S_PUB+1}, 0")
    skip = p.newlabel("have_rdy")
    if EARLY[0]: I(f"s_cmp_lg_u32 s{S_FAST}, 0", f"s_cbranch_scc1 {skip}")
    if FUSED[0]:
        I(f"s_mov_b32 s{S_RDY}, 0")
        need_segment(p, 2)
    p.L(skip)
    if FUSED[0]:
        I(f"v_lshlrev_b32 v52, 3, v{V_L16}", f"s_lshl_b32 s{S_T0}, s{S_H}, 13")
        I(f"s_and_b32 s{S_T1}, s{S_WV}, 1", f"s_lshr_b32 s{S_T2}, s{S_WV}, 1", f"s_add_u32 s{S_T1}, s{S_T1}, s{S_T2}", f"s_lshl_b32 s{S_T1}, s{S_T1}, 18", f"s_add_u32 s{S_T0}, s{S_T0}, s{S_T1}")
        I(f"s_cmp_ge_u32 s{S_WV}, 2", f"s_cselect_b32 s{S_T2}, 0, {VX_OFF}", f"s_add_u32 s{S_T0}, s{S_T0}, s{S_T2}")
        I(f"buffer_load_dword v{V_DUM}, v52, s[{S_WS}:{S_WS+3}], s{S_T0} offen ; nodep")
    for kt in range(2):
        I(f"buffer_load_dwordx4 v[{V_KX+4*kt}:{V_KX+4*kt+3}], v{V_L16}, s[{S_WS}:{S_WS+3}], s{S_KX} offen offset:{kt*1024} sc1")
    I(f"s_add_u32 s{S_KX}, s{S_KX}, {32*8192}")

SM = lambda d, a, b: f"v_smfmac_f32_16x16x64_bf16 v[{d}:{d+3}], v[{a}:{a+3}], {b}, v{V_IDX}"

class Stream:
    def __init__(self, p): self.p = p; self.q = []
    def add(self, *instrs): self.q.append(list(instrs))
    def emit(self, n=1):
        for _ in range(n):
            if not self.q: return
            for x in self.q.pop(0): self.p.I(x)
    def drain(self): self.emit(len(self.q))


VPERIOD = [24]
LEAD = [0]
HOLD = [0]
BAR4 = [True]
def delay(p, clks):
    n = clks // 4
    while n > 0:
        k = min(n, 16); p.raw(f"    s_nop {k-1}"); n -= k
DELAYG1 = [0]
DELAY3 = [0]
DELAY0 = [0]
DELAY1 = [0]
DELAY2 = [0]
def need_segment(p, add):
    I = p.I
    lab = p.newlabel("rdy"); ok = p.newlabel("rdy_ok")
    I(f"s_add_u32 s{S_T1}, s{S_STEP}, {add}", f"s_min_u32 s{S_T1}, s{S_T1}, 63", f"s_cmp_lt_u32 s{S_T1}, s{S_RDY}", f"s_cbranch_scc1 {ok}")
    I(f"s_mov_b32 s{S_T2}, 0", f"v_lshrrev_b32 v52, 2, v{V_L16}", f"s_mov_b32 s{S_T0}, {KVCNT}")
    p.L(lab)
    I(f"buffer_load_dword v53, v52, s[{S_WS}:{S_WS+3}], s{S_T0} offen sc1", "s_waitcnt vmcnt(0)")
    I("v_cmp_ne_u32 vcc, 32, v53", f"s_ff1_i32_b64 s{S_RDY}, vcc", f"s_cmp_eq_u32 s{S_RDY}, -1", f"s_cselect_b32 s{S_RDY}, 64, s{S_RDY}")
    I(f"s_cmp_lt_u32 s{S_T1}, s{S_RDY}", f"s_cbranch_scc1 {ok}", "s_sleep 8", f"s_add_u32 s{S_T2}, s{S_T2}, 1", f"s_cmp_lt_u32 s{S_T2}, 0x80000", f"s_cbranch_scc1 {lab}")
    I(f"s_mov_b32 s{S_RDY}, 64")
    p.L(ok)

def step(p, local, first=True, last=False):
    I = p.I
    sc_st = "" if local else " sc1"
    WS = f"s[{S_WS}:{S_WS+3}]"
    QA, QB, KA, KB = 32, 36, 40, 44
    A0, A1, A2 = 56, 60, 48
    VA, VB = 48, 52
    W1, W2 = 64, 72
    wv_state = {"b": 0}
    def wread(u, buf):
        out = []
        blk = u // 8
        while wv_state["b"] < blk:
            out.append(f"v_add_u32 v{V_WV}, 0x10000, v{V_WV}"); wv_state["b"] += 1
        off = (u % 8) * 8192
        out.append(f"ds_read_b128 v[{buf}:{buf+3}], v{V_WV} offset:{off}")
        out.append(f"ds_read_b128 v[{buf+4}:{buf+7}], v{V_WV} offset:{off+1024}")
        return out
    aread = lambda kb, a: f"ds_read_b128 v[{a}:{a+3}], v{V_L16} offset:{MEMIMG+kb*1024}"
    ad = lambda d, a_, b_: f"v_add_f32 v{d}, v{a_}, v{b_}"
    cv = lambda d, a_, b_: f"v_cvt_pk_bf16_f32 v{d}, v{a_}, v{b_}"
    p.C("==== step : acquire mem blocks 0..5 (waves 0,1,3)")
    stamp(p, 0, first)
    if STEPTS[0]:
        lab = p.newlabel("sts")
        I(f"s_cmp_lg_u32 s{S_WV}, 3", f"s_cbranch_scc1 {lab}")
        I("s_memrealtime s[2:3]", "s_waitcnt lgkmcnt(0)", f"s_lshl_b32 s3, s{S_H}, 9", f"s_lshl_b32 s{S_T0}, s{S_STEP}, 2", f"s_add_u32 s3, s3, s{S_T0}", f"s_add_u32 s3, s3, {0x9200000}")
        I("s_mov_b64 exec, 1", "v_mov_b32 v52, s2", f"buffer_store_dword v52, v{V_SQA+1}, {WS}, s3 offen", "s_mov_b64 exec, -1")
        p.L(lab)
    if FUSED[0]: need_segment(p, 2 if PREF[0] else 1)
    I(*wread(0, W1)); I(*wread(1, W2))
    for r in range(0, 16, 2): I(f"v_mov_b64 v[{QA+r}:{QA+r+1}], 0")
    skipa = p.newlabel("skip01"); loop = p.newlabel("mem_poll"); done = p.newlabel("mem_done")
    I(f"s_cmp_eq_u32 s{S_WV}, 2", f"s_cbranch_scc1 {skipa}")
    I(f"v_add_u32 v55, s{S_B01}, v{V_L16}")
    if DELAY3[0]:
        nd = p.newlabel("nd3")
        I(f"s_cmp_lg_u32 s{S_WV}, 3", f"s_cbranch_scc1 {nd}")
        delay(p, DELAY3[0])
        p.L(nd)
    delay(p, DELAY2[0])
    p.L(loop)
    a, b = 56, 60
    I(f"buffer_load_dwordx4 v[{a}:{a+3}], v{V_L16}, {WS}, s{S_MEMR} offen sc1")
    I(f"buffer_load_dwordx4 v[{b}:{b+3}], v{V_L16}, {WS}, s{S_MEMR} offen offset:1024 sc1")
    I(f"s_add_u32 s{S_TO}, s{S_TO}, 1")
    I("s_waitcnt vmcnt(1)")
    I(f"ds_write_b128 v55, v[{a}:{a+3}] offset:{MEMIMG}")
    I(f"v_max3_u32 v52, v{a}, v{a+1}, v{a+2}")
    I("s_waitcnt vmcnt(0)")
    I(f"ds_write_b128 v55, v[{b}:{b+3}] offset:{MEMIMG+1024}")
    I(f"v_max3_u32 v52, v52, v{a+3}, v{b}", f"v_max3_u32 v52, v52, v{b+1}, v{b+2}", f"v_max_u32 v52, v52, v{b+3}")
    I("v_cmp_eq_u32 vcc, -1, v52", f"s_cbranch_vccz {done}", f"s_cmp_lt_u32 s{S_TO}, 0x200000", f"s_cbranch_scc1 {loop}")
    p.L(done)
    p.L(skipa)
    stamp(p, 1, first)
    I("s_waitcnt lgkmcnt(0)")
    I("s_barrier")
    p.reset_q()
    stamp(p, 2, first)
    p.C("QK")
    W = Weaver(p)
    Ab = [A0, A1, A2]
    wb = [W1, W2]
    M48 = f"s[{S_M8}:{S_M8+1}]"
    ld2 = f"buffer_load_dwordx4 v[52:55], v{V_L16}, {WS}, s{S_MEMR8} offen sc1"
    W.raw(aread(0, Ab[0])); W.raw(aread(1, Ab[1]))
    W.raw(f"s_mov_b64 exec, {M48}"); W.raw(ld2); W.raw("s_mov_b64 exec, -1")
    W.raw(f"s_add_u32 s{S_TAG}, s{S_STEP}, 1")
    if FUSED[0]: W.raw(f"s_max_u32 s{S_PUBV}, s{S_STEP}, 1"); W.raw(f"s_sub_u32 s{S_PUBV}, s{S_PUBV}, 1")
    def group(kb, extra, areads=True):
        a = Ab[kb % 3]
        kbsrc = frag(F_KB0) if kb == 0 else f"v[{wb[(kb-1)%2]}:{wb[(kb-1)%2]+7}]"
        X = []
        if kb + 2 < 6: X.append([aread(kb + 2, Ab[(kb + 2) % 3])])
        if kb >= 2:
            w = wread(kb, wb[(kb - 2) % 2])
            if len(w) == 3: X.append([w[1], w[0]] if False else [w[0], w[1]]); X.append([w[2]])
            else: X.append([w[0]]); X.append([w[1]])
        ms = [SM(QA, a, frag(F_QA(kb))), SM(QB, a, frag(F_QB(kb))), SM(KA, a, frag(F_KA(kb))), SM(KB, a, kbsrc)]
        for i, m in enumerate(ms):
            W.raw(m)
            if X:
                for y in X.pop(0): W.raw(y)
            for y in extra.get(i, []): W.raw(y)
        assert not X, X
    group(0, {1: [f"v_add_u32 v{V_VX}, s{S_L8}, v{V_L16}"]}); group(1, {}); group(2, {})
    group(3, {3: ["s_waitcnt vmcnt(0)", f"s_mov_b64 exec, {M48}", f"ds_write_b128 v{V_VX}, v[52:55]", "s_mov_b64 exec, -1"]})
    slow = p.newlabel("st2_slow"); back = p.newlabel("st2_back")
    group(4, {2: [f"v_max3_u32 v{V_VX+1}, v52, v53, v54"], 3: [f"v_max_u32 v{V_VX+1}, v{V_VX+1}, v55"]})
    I(f"s_mov_b64 exec, {M48}", f"v_cmp_eq_u32 vcc, -1, v{V_VX+1}", "s_mov_b64 exec, -1", f"s_cbranch_vccnz {slow}")
    p.L(back)
    p.waitw()
    I("s_barrier")
    stamp(p, 13, first)
    W.raw(aread(6, Ab[0])); W.raw(aread(7, Ab[1]))
    vxl = [f"buffer_load_dwordx4 v[{V_VX+4*tb}:{V_VX+4*tb+3}], v{V_L16}, {WS}, s{S_VX} offen offset:{tb*1024} sc1" for tb in range(2)]
    io = []
    io_vm = [f"v_lshrrev_b32 v{V_VX+1}, 1, v{V_L16}", f"buffer_store_dwordx2 v[{V_PY}:{V_PY+1}], v{V_VX+1}, {WS}, s{S_VM} offen sc1"]
    group(5, {2: [f"s_add_u32 s{S_MEMR}, s{S_MEMR}, {MEM_SLOT}", f"s_cmp_ge_u32 s{S_MEMR}, s{S_MEMEND}"], 3: [aread(8, Ab[2])]})
    group(6, {2: [f"s_cselect_b32 s{S_T0}, {4*MEM_SLOT}, 0", f"s_sub_u32 s{S_MEMR}, s{S_MEMR}, s{S_T0}"], 3: [vxl[0]]})
    group(7, {2: [f"s_add_u32 s{S_MEMR8}, s{S_MEMR}, s{S_D8}"], 3: [vxl[1]]})
    pf = []
    if PREF[0]:
        pf = [[f"s_sub_u32 s{S_T0}, s{S_VX}, s{S_W2048}", f"s_add_u32 s{S_T0}, s{S_T0}, {32*8192}", f"v_lshlrev_b32 v{V_MP}, 3, v{V_L16}"],
              [f"s_sub_u32 s{S_T1}, s{S_KX}, s{S_W2048}", f"s_add_u32 s{S_T1}, s{S_T1}, {32*8192}"],
              [f"s_mov_b64 exec, s[{S_PFM}:{S_PFM+1}]", f"buffer_load_dword v{V_DUM}, v{V_MP}, {WS}, s{S_T0} offen ; nodep"],
              [f"buffer_load_dword v{V_DUM}, v{V_MP}, {WS}, s{S_T1} offen ; nodep", "s_mov_b64 exec, -1"]]
        group(8, {0: pf[0], 1: pf[1], 2: pf[2], 3: pf[3]})
    else:
        group(8, {})
    W.raw(f"v_lshrrev_b32 v{V_MP}, 1, v{V_L16}") if False else None
    EXPORT = [f"v_lshrrev_b32 v52, 1, v{V_L16}", f"buffer_store_dwordx2 v[{V_PY}:{V_PY+1}], v52, {WS}, s{S_VM} offen sc1"]
    if FUSED[0]:
        EXPORT += [f"v_mov_b32 v52, s{S_PUBV}", f"s_mov_b64 exec, s[{S_PUB}:{S_PUB+1}]", f"buffer_store_dword v52, v{V_SQA+1}, {WS}, s{S_CHF} offen sc1", "s_mov_b64 exec, -1"]
    for y in EXPORT: W.raw(y)
    SLOW.append((slow, back, ld2, M48, V_VX))
    stamp(p, 3, first)
    p.C("post QK, V phase as filler")
    items = []
    w9 = wread(9, wb[1])
    vorder = VRES + VSTR
    vA = [A0, A1]
    ubuf = {8: wb[0], 9: wb[1]}
    for pos, kb in enumerate(vorder):
        a = vA[pos % 2]
        for tb in range(2):
            it = []
            if pos < 4:
                it.append(SM(VA + 4 * tb, a, frag(F_VS(tb, pos))))
                if pos == 0: it.append(w9[tb])
            else:
                u = 8 + (pos - 4) * 2 + tb
                b = ubuf[u]
                it.append(SM(VA + 4 * tb, a, f"v[{b}:{b+7}]"))
                if u + 2 < 18:
                    it += wread(u + 2, b); ubuf[u + 2] = b
            if tb == 1 and pos + 2 < 9: it.append(aread(vorder[pos + 2], a))
            items.append(it)
    def VI(n):
        return ("call", lambda n=n: [W.raw(y) for _ in range(n) if items for y in items.pop(0)])
    crit = []
    C = crit.append
    zero = [f"v_mov_b64 v[{VA}:{VA+1}], 0", f"v_mov_b64 v[{VA+2}:{VA+3}], 0", f"v_mov_b64 v[{VB}:{VB+1}], 0", f"v_mov_b64 v[{VB+2}:{VB+3}], 0"]
    if not last:
        C(ad(32, 32, 34)); C(ad(33, 33, 35)); C(ad(36, 36, 38)); C(ad(37, 37, 39)); C(cv(34, 32, 33)); C(cv(35, 36, 37))
    C(ad(40, 40, 42)); C(ad(41, 41, 43)); C(zero[2]); C(zero[3]); C(ad(44, 44, 46)); C(ad(45, 45, 47)); C(cv(42, 40, 41)); C(cv(43, 44, 45))
    if not last:
        C(f"v_mfma_f32_16x16x16_bf16 v[36:39], v[34:35], v[{V_SQA}:{V_SQA+1}], 0")
        C(zero[0]); C(zero[1])
        C(f"v_mfma_f32_16x16x16_bf16 v[32:35], v[34:35], v[{V_SQB}:{V_SQB+1}], 0")
    else:
        C(zero[0]); C(zero[1])
    C(f"v_mfma_f32_16x16x16_bf16 v[44:47], v[42:43], v[{V_SKA}:{V_SKA+1}], 0")
    C(f"v_mfma_f32_16x16x16_bf16 v[40:43], v[42:43], v[{V_SKB}:{V_SKB+1}], 0")
    KMST = f"buffer_store_dwordx4 v[44:47], v{V_L16}, {WS}, s{S_KM} offen sc1"
    OA_, OB_, LL = 32, 52, 56
    VMST = [f"v_lshrrev_b32 v60, 1, v{V_L16}", f"buffer_store_dwordx2 v[50:51], v60, {WS}, s{S_VM} offen sc1"]
    if last:
        C(cv(44, 44, 45)); C(cv(45, 46, 47)); C(cv(46, 40, 41)); C(cv(47, 42, 43)); C(KMST)
        W.weave(crit, []); W.drain(items)
        W.raw(f"v_subrev_u32 v{V_WV}, 0x20000, v{V_WV}")
        W.raw(ad(VA, VA, VA + 2)); W.raw(ad(VA + 1, VA + 1, VA + 3)); W.raw(ad(VB, VB, VB + 2)); W.raw(ad(VB + 1, VB + 1, VB + 3))
        W.raw(cv(50, VA, VA + 1)); W.raw(cv(51, VB, VB + 1))
        W.raw(f"s_add_u32 s{S_VM}, s{S_VM}, {32*2048}")
        for y in VMST: W.raw(y)
        p.fence(); p.reset_q()
        return
    V1, V2, V3, V4, V5, V6, V7 = VPLACE
    C(cv(36, 36, 37)); C(cv(37, 38, 39)); C(cv(38, 32, 33)); C(cv(39, 34, 35))
    C(f"v_mfma_f32_16x16x32_bf16 v[32:35], v[{V_KX}:{V_KX+3}], v[36:39], 0")
    C(cv(44, 44, 45)); C(cv(45, 46, 47)); C(cv(46, 40, 41)); C(cv(47, 42, 43))
    C(f"v_mfma_f32_16x16x32_bf16 v[40:43], v[{V_KX+4}:{V_KX+7}], v[36:39], 0")
    C(f"v_mfma_f32_16x16x32_bf16 v[36:39], v[44:47], v[36:39], 0")
    k = V_KX
    C(f"v_and_b32 v{k+6}, 0x70, v{V_L16}"); C(f"v_lshrrev_b32 v{k+7}, 1, v{V_L16}"); C(f"v_and_b32 v{k+7}, 0x180, v{k+7}"); C(f"v_or_b32 v{k+6}, v{k+6}, v{k+7}")
    C(f"v_lshrrev_b32 v{k+7}, 1, v{k+6}"); C(f"v_and_b32 v{k}, 0x80, v{V_L16}"); C(f"v_lshl_add_u32 v{k+6}, v{k}, 2, v{k+6}")
    C(VI(V1))
    C(f"v_add_u32 v{k+6}, {SEXX}, v{k+6}"); C(f"v_add_u32 v{k+7}, {SEXM}, v{k+7}")
    C(f"v_add_u32 v{k}, s{S_W1024}, v{k+6}"); C(f"v_add_u32 v{k+1}, s{S_W256}, v{k+7}")
    for r in range(4): C(f"v_cndmask_b32_e64 v{32+r}, v{40+r}, v{32+r}, s[{S_NLT8}:{S_NLT8+1}]")
    C(f"ds_write_b128 v{k}, v[32:35]"); C(f"ds_write_b64 v{k+1}, v[36:37]")
    C(("call", lambda: stamp(p, 4, first)))
    C(VI(V2))
    C(KMST)
    C(("call", p.waitw)); C("s_barrier")
    C(("call", lambda: stamp(p, 5, first)))
    for w in range(4): C(f"ds_read_b128 v[{32+4*w}:{35+4*w}], v{k+6} offset:{w*1024}")
    C(f"ds_read2_b64 v[{k}:{k+3}], v{k+7} offset0:0 offset1:32"); C(f"ds_read2_b64 v[{k+4}:{k+7}], v{k+7} offset0:64 offset1:96")
    C(VI(V3))
    for r in range(4): C(ad(32 + r, 32 + r, 36 + r))
    for r in range(4): C(ad(40 + r, 40 + r, 44 + r))
    for r in range(4): C(ad(32 + r, 32 + r, 40 + r))
    C("v_max3_f32 v38, v32, v33, v34")
    C(VI(V4))
    C(ad(k, k, k + 2)); C(ad(k + 1, k + 1, k + 3)); C(ad(k + 4, k + 4, k + 6)); C(ad(k + 5, k + 5, k + 7)); C(ad(36, k, k + 4)); C(ad(37, k + 1, k + 5))
    for kt in range(2):
        C(f"buffer_load_dwordx4 v[{V_KX+4*kt}:{V_KX+4*kt+3}], v{V_L16}, {WS}, s{S_KX} offen offset:{kt*1024} sc1")
    C("v_max3_f32 v38, v38, v35, v36"); C("v_max_f32 v38, v38, v37")
    C(VI(V5))
    C("v_max_f32_dpp v38, v38, v38 row_ror:8 row_mask:0xf bank_mask:0xf")
    C("v_mov_b32 v39, v38"); C("v_mov_b32 v45, 0"); C("v_mov_b32 v46, 0"); C("v_permlane16_swap_b32 v38, v39"); C("v_max_f32 v38, v38, v39")
    C("v_mov_b32 v39, v38"); C(VI(V6)); C("v_permlane32_swap_b32 v38, v39"); C("v_max_f32 v38, v38, v39")
    C(f"v_mul_f32 v38, s{S_C}, v38")
    for r in range(6): C(f"v_fma_f32 v{32+r}, v{32+r}, s{S_C}, -v38")
    C(VI(V7))
    for r in range(6): C(f"v_exp_f32 v{32+r}, v{32+r}")
    C(cv(40, 32, 33)); C(cv(41, 34, 35)); C(cv(44, 36, 37))
    for r in range(0, 4, 2): C(f"v_mov_b64 v[{36+r}:{37+r}], s[{S_ONES}:{S_ONES+1}]")
    C("v_mov_b32_dpp v42, v40 row_ror:8 row_mask:0xf bank_mask:0xf"); C("v_mov_b32_dpp v43, v41 row_ror:8 row_mask:0xf bank_mask:0xf")
    C("v_mov_b32 v47, v44")
    C(("call", lambda: stamp(p, 6, first)))
    W.weave(crit, [])
    rest = items
    W.raw(f"v_mfma_f32_16x16x32_bf16 v[{OA_}:{OA_+3}], v[{V_VX}:{V_VX+3}], v[40:43], 0")
    W.drain(rest)
    assert wv_state["b"] == 2
    W.raw(f"v_subrev_u32 v{V_WV}, 0x20000, v{V_WV}")
    W.raw(ad(VA, VA, VA + 2)); W.raw(ad(VA + 1, VA + 1, VA + 3)); W.raw(ad(VB, VB, VB + 2)); W.raw(ad(VB + 1, VB + 1, VB + 3))
    W.raw(cv(50, VA, VA + 1)); W.raw(cv(51, VB, VB + 1))
    stamp(p, 7, first)
    p.C("PV")
    crit = [f"v_mfma_f32_16x16x32_bf16 v[{LL}:{LL+3}], v[36:39], v[40:43], 0",
            f"v_mfma_f32_16x16x32_bf16 v[{OB_}:{OB_+3}], v[{V_VX+4}:{V_VX+7}], v[40:43], 0",
            f"v_mfma_f32_16x16x16_bf16 v[{OA_}:{OA_+3}], v[50:51], v[44:45], v[{OA_}:{OA_+3}]",
            f"v_mfma_f32_16x16x16_bf16 v[{LL}:{LL+3}], v[36:37], v[44:45], v[{LL}:{LL+3}]",
            f"v_mfma_f32_16x16x16_bf16 v[{OB_}:{OB_+3}], v[50:51], v[46:47], v[{OB_}:{OB_+3}]",
            f"v_rcp_f32 v{LL}, v{LL}"]
    for b in (OA_, OB_):
        for r in range(4): crit.append(f"v_mul_f32 v{b+r}, v{b+r}, v{LL}")
    crit += [cv(OA_, OA_, OA_ + 1), cv(OA_ + 1, OA_ + 2, OA_ + 3), cv(OB_, OB_, OB_ + 1), cv(OB_ + 1, OB_ + 2, OB_ + 3)]
    fill = [f"v_mov_b64 v[{V_PY}:{V_PY+1}], v[50:51]", f"v_bfe_u32 v61, v{V_L16}, 4, 3", f"v_bfe_u32 v62, v{V_L16}, 9, 1", f"v_add_u32 v62, s{S_W4}, v62", "v_xor_b32 v62, v62, v61",
            "v_lshlrev_b32 v62, 4, v62", "v_lshl_add_u32 v62, v61, 8, v62", f"v_bfe_u32 v61, v{V_L16}, 8, 1", "v_lshl_add_u32 v62, v61, 3, v62", f"v_add_u32 v62, {OIMG}, v62", "v_xor_b32 v63, 32, v62"]
    rest = W.weave(crit, [[f] for f in fill]); W.drain(rest)
    W.raw(f"s_mov_b64 exec, s[{S_NLT8}:{S_NLT8+1}]"); W.raw(f"ds_write_b64 v62, v[{OA_}:{OA_+1}]"); W.raw(f"ds_write_b64 v63, v[{OB_}:{OB_+1}]"); W.raw("s_mov_b64 exec, -1")
    stamp(p, 8, first)
    OACC = [32 + 4 * j for j in range(9)]
    OAr = 72; G = 68
    I(f"v_mov_b32 v71, s{S_TAG}")
    for b in range(34, 68, 2):
        if b in (52, 62): continue
        I(f"v_mov_b64 v[{b}:{b+1}], 0")
    p.waitw()
    I("s_barrier")
    I(f"ds_read_b128 v[{OAr}:{OAr+3}], v{V_OR}", f"ds_read_b128 v[{OAr+4}:{OAr+7}], v{V_OR} offset:128")
    for b in (32, 52, 62): I(f"v_mov_b64 v[{b}:{b+1}], 0")
    stamp(p, 9, first)
    p.C("O-proj")
    W = Weaver(p)
    osm = lambda j, kb: SM(OACC[j], OAr + 4 * kb, frag(F_WO(j, kb)))
    seq = [(0, 0), (1, 0), (0, 1), (1, 1)] + [(j, kb) for j in range(2, 9) for kb in range(2)]
    def fin(j):
        b = OACC[j]
        ops = [ad(b, b, b + 2), ad(b + 1, b + 1, b + 3), cv(G + j % 3, b, b + 1)]
        if j % 3 == 2: ops.append(f"buffer_store_dwordx4 v[{G}:{G+3}], v{V_PS}, {WS}, s{S_PS + j // 3} offen{sc_st}")
        return ops
    done_at = {}
    pend = []
    for idx, (j, kb) in enumerate(seq):
        W.raw(osm(j, kb))
        if kb == 1: done_at[j] = idx
        for jj in list(done_at):
            if idx >= done_at[jj] + 2:
                pend += fin(jj); del done_at[jj]
        n = 2 if len(pend) > 2 else 1
        for _ in range(n):
            if pend: W.raw(pend.pop(0))
    for jj in sorted(done_at): pend += fin(jj)
    for o in pend: W.raw(o)
    stamp(p, 10, first)
    p.C("reduce")
    skip = p.newlabel("notask")
    I(f"s_cmp_eq_u32 s{S_HASTASK}, 0", f"s_cbranch_scc1 {skip}")
    RS = 64
    if DELAY1[0]:
        nd = p.newlabel("nodelay")
        I(f"s_cmp_eq_u32 s{S_ISW2}, 0", f"s_cbranch_scc1 {nd}")
        delay(p, DELAY1[0])
        p.L(nd)
    if DELAYG1[0]:
        nd = p.newlabel("nodelay1")
        I(f"s_cmp_lg_u32 s{S_WV}, 1", f"s_cbranch_scc1 {nd}")
        delay(p, DELAYG1[0])
        p.L(nd)
    delay(p, DELAY0[0])
    retry = p.newlabel("p_retry"); ok = p.newlabel("p_ok")
    p.L(retry)
    for i in range(4):
        I(f"buffer_load_dwordx4 v[{32+4*i}:{35+4*i}], v{V_L16}, {WS}, s{S_PL} offen offset:{i*1024} sc1")
    I(f"s_add_u32 s{S_TO2}, s{S_TO2}, 1")
    I(f"v_bfe_u32 v69, v{V_L16}, 4, 2", f"v_bfe_u32 v70, v{V_L16}, 6, 2", "v_lshlrev_b32 v71, 4, v69", "v_mov_b32 v68, 0x3f80", "v_lshlrev_b32 v68, v71, v68",
      "v_cmp_gt_u32 vcc, 2, v69", "v_cndmask_b32 v71, 0, v68, vcc")
    for r in range(3): I(f"v_cmp_eq_u32 vcc, {r}, v70", f"v_cndmask_b32 v{RS+r}, 0, v71, vcc")
    I(f"v_mov_b32 v{RS+3}, 0")
    I(f"v_bfe_u32 v68, v{V_L16}, 8, 2", "v_lshlrev_b32 v68, 10, v68", f"v_bfe_u32 v69, v{V_L16}, 4, 3", "v_lshl_add_u32 v68, v69, 1, v68")
    D = 72
    for i in range(4):
        I(f"s_waitcnt vmcnt({3-i})")
        c = "0" if i == 0 else f"v[{D}:{D+3}]"
        I(f"v_mfma_f32_16x16x32_bf16 v[{D}:{D+3}], v[{RS}:{RS+3}], v[{32+4*i}:{35+4*i}], {c}")
        if i == 2: I("v_min3_u32 v76, v35, v39, v43")
        if i == 3: I("v_min_u32 v76, v76, v47")
    I(f"v_cmp_ne_u32 vcc, s{S_TAG}, v76", f"s_cbranch_vccz {ok}", f"s_cmp_lt_u32 s{S_TO2}, 0x200000", f"s_cbranch_scc1 {retry}")
    p.L(ok)
    stamp(p, 11, first)
    p.fence()
    I(f"v_add_f32_dpp v{D}, v{D}, v{D} row_ror:8 row_mask:0xf bank_mask:0xf", f"v_add_f32_dpp v{D+1}, v{D+1}, v{D+1} row_ror:8 row_mask:0xf bank_mask:0xf")
    I(f"v_mov_b32_dpp v76, v{D} quad_perm:[1,0,3,2] row_mask:0xf bank_mask:0xf", f"v_mov_b32_dpp v77, v{D+1} quad_perm:[1,0,3,2] row_mask:0xf bank_mask:0xf")
    I(f"v_cvt_pk_bf16_f32 v76, v{D}, v76", f"v_cvt_pk_bf16_f32 v77, v{D+1}, v77", "v_mov_b32 v78, -1")
    I(f"s_mov_b64 exec, s[{S_EXMS}:{S_EXMS+1}]", f"buffer_store_dword v76, v68, {WS}, s{S_MEMW} offen{sc_st}", f"buffer_store_dword v77, v68, {WS}, s{S_MEMW} offen offset:16{sc_st}")
    I(f"buffer_store_dword v78, v68, {WS}, s{S_MEMZ} offen{sc_st}", f"buffer_store_dword v78, v68, {WS}, s{S_MEMZ} offen offset:16{sc_st}", "s_mov_b64 exec, -1")
    p.L(skip)
    for r_ in (S_MEMW, S_MEMZ):
        I(f"s_add_u32 s{r_}, s{r_}, {MEM_SLOT}", f"s_cmp_ge_u32 s{r_}, s{S_MEMWEND}", f"s_cselect_b32 s{S_T0}, {4*MEM_SLOT}, 0", f"s_sub_u32 s{r_}, s{r_}, s{S_T0}")
    I(f"s_add_u32 s{S_VX}, s{S_VX}, {32*8192}", f"s_add_u32 s{S_KM}, s{S_KM}, {32*4096}", f"s_add_u32 s{S_VM}, s{S_VM}, {32*2048}", f"s_add_u32 s{S_KX}, s{S_KX}, {32*8192}", f"s_add_u32 s{S_STEP}, s{S_STEP}, 1")
    stamp(p, 12, first)
    p.fence()
    p.reset_q()

def emit_slow(p):
    I = p.I
    WS = f"s[{S_WS}:{S_WS+3}]"
    while SLOW:
        slow, back, ld2, M48, areg = SLOW.pop(0)
        p.fence(); p.reset_q()
        p.L(slow)
        lp = p.newlabel("st2_lp")
        I(f"s_mov_b64 exec, {M48}")
        p.L(lp)
        I(ld2, "s_waitcnt vmcnt(0)", f"v_max3_u32 v{V_VX+1}, v52, v53, v54", f"v_max_u32 v{V_VX+1}, v{V_VX+1}, v55", f"v_cmp_eq_u32 vcc, -1, v{V_VX+1}", f"s_add_u32 s{S_TO3}, s{S_TO3}, 1")
        ok = p.newlabel("st2_ok")
        I(f"s_cbranch_vccz {ok}", f"s_cmp_lt_u32 s{S_TO3}, 0x200000", f"s_cbranch_scc1 {lp}")
        p.L(ok)
        I(f"ds_write_b128 v{areg}, v[52:55]", "s_mov_b64 exec, -1", "s_waitcnt lgkmcnt(0)", f"s_branch {back}")
        p.reset_q()

def chain_loop(p, local, nsteps=64):
    I = p.I
    p.reset_q()
    loop = p.newlabel("chain_loop")
    p.fence()
    p.L(loop)
    step(p, local=local)
    I(f"s_cmp_lt_u32 s{S_STEP}, {nsteps-1}", f"s_cbranch_scc1 {loop}")
    step(p, local=local, first=False, last=True)
    I("s_waitcnt vmcnt(0)", "s_barrier")
    if FUSED[0]:
        I("v_mov_b32 v52, 64", "v_mov_b32 v53, 0", f"s_mov_b64 exec, s[{S_PUB}:{S_PUB+1}]", f"buffer_store_dword v52, v53, s[{S_WS}:{S_WS+3}], s{S_CHF} offen sc1", "s_mov_b64 exec, -1")
    over = p.newlabel("over_slow")
    I(f"s_branch {over}")
    emit_slow(p)
    p.L(over)

def gen_chain(p, local=True, nsteps=64, stamps=False):
    I = p.I
    setup_chain(p, local)
    preload(p)
    chain_state(p)
    if stamps: I(f"s_memtime s[{S_TS}:{S_TS+1}]", "s_waitcnt lgkmcnt(0)")
    chain_loop(p, local, nsteps)
    if stamps:
        I("s_waitcnt vmcnt(0) lgkmcnt(0)", f"s_memtime s[{S_TS+2}:{S_TS+3}]", "s_waitcnt lgkmcnt(0)")
        I(f"s_sub_u32 s{S_TS}, s{S_TS+2}, s{S_TS}", f"v_mov_b32 v44, s{S_TS}")
        lab = p.newlabel("st")
        I(f"s_cmp_lg_u32 s{S_WV}, 0", f"s_cbranch_scc1 {lab}")
        I(f"s_lshl_b32 s{S_T0}, s{S_H}, 2", f"s_add_u32 s{S_T0}, s{S_T0}, 128", f"v_mov_b32 v45, s{S_T0}", "s_mov_b64 exec, 1", f"global_store_dword v45, v44, s[{S_DBG}:{S_DBG+1}]", "s_mov_b64 exec, -1")
        p.L(lab)
    prof_dump(p)

def prof_dump(p):
    I = p.I
    if PROF[0]:
        I("s_waitcnt lgkmcnt(0)")
        I(f"s_lshl_b32 s{S_T0}, s{S_H}, 2", f"s_add_u32 s{S_T0}, s{S_T0}, s{S_WV}", f"s_lshl_b32 s{S_T0}, s{S_T0}, 7", f"s_add_u32 s{S_T0}, s{S_T0}, {0x9000000}")
        I("s_mov_b64 exec, 1", "v_mov_b32 v45, 0")
        for k in range(PNST):
            I(f"v_mov_b32 v44, s{S_ST+2*k if k < 13 else 14}", f"buffer_store_dword v44, v45, s[{S_WS}:{S_WS+3}], s{S_T0} offen offset:{4*k}")
        for k, r_ in enumerate((S_TO, S_TO2, S_TO3)):
            I(f"v_mov_b32 v44, s{r_}", f"buffer_store_dword v44, v45, s[{S_WS}:{S_WS+3}], s{S_T0} offen offset:{64+4*k}")
        I("s_mov_b64 exec, -1")

def standalone(local=True, stamps=True, nsteps=64):
    name = "chain_kernel"
    p = AProg()
    p.raw(f"; @launch kernel={name} grid=(256,1,1) block=(256,1,1) lds=163840")
    p.raw('.amdgcn_target "amdgcn-amd-amdhsa--gfx950"\n.text')
    p.raw(f".globl {name}\n.p2align 8\n.type {name},@function\n{name}:")
    I = p.I
    I(f"s_cmp_ge_u32 s2, 256", "s_cbranch_scc1 L_end")
    I(f"s_load_dwordx2 s[{S_PTR}:{S_PTR+1}], s[0:1], {KARG['A_mem0']}")
    I(f"s_load_dwordx4 s[{S_PTR+2}:{S_PTR+5}], s[0:1], {KARG['A_Wq']}")
    I(f"s_load_dwordx2 s[{S_PTR+6}:{S_PTR+7}], s[0:1], {KARG['A_Wv']}")
    I(f"s_load_dwordx2 s[{S_PTR+8}:{S_PTR+9}], s[0:1], {KARG['A_Wo']}")
    I(f"s_load_dwordx2 s[{S_DBG}:{S_DBG+1}], s[0:1], {KARG['dbg']}")
    I(f"s_load_dwordx2 s[{S_PTR+10}:{S_PTR+11}], s[0:1], {KARG['ws']}")
    I("s_waitcnt lgkmcnt(0)")
    I(f"s_mov_b32 s{S_WS}, s{S_PTR+10}", f"s_and_b32 s{S_WS+1}, s{S_PTR+11}, 0xffff", f"s_mov_b32 s{S_WS+2}, {WS_BYTES}", f"s_mov_b32 s{S_WS+3}, 0x20000")
    I(f"s_mov_b32 s{S_MEM}, s{S_PTR}", f"s_and_b32 s{S_MEM+1}, s{S_PTR+1}, 0xffff", f"s_mov_b32 s{S_MEM+2}, 9216", f"s_mov_b32 s{S_MEM+3}, 0x20000")
    lane_consts(p)
    I(f"s_getreg_b32 s{S_T0}, hwreg(HW_REG_XCC_ID, 0, 4)")
    I(f"s_cmp_lg_u32 s{S_T0}, 0", "s_cbranch_scc1 L_end")
    lab = p.newlabel("role")
    I(f"s_cmp_lg_u32 s{S_WV}, 0", f"s_cbranch_scc1 {lab}")
    I("s_mov_b64 exec, 1", "v_mov_b32 v44, 1", "v_mov_b32 v45, 0", f"global_atomic_add v46, v45, v44, s[{S_DBG}:{S_DBG+1}] sc0", "s_waitcnt vmcnt(0)", "v_mov_b32 v45, 0", "ds_write_b32 v45, v46", "s_waitcnt lgkmcnt(0)", "s_mov_b64 exec, -1")
    p.L(lab)
    I("s_barrier", "v_mov_b32 v45, 0", "ds_read_b32 v46, v45", "s_waitcnt lgkmcnt(0)", f"v_readfirstlane_b32 s{S_H}, v46", "s_barrier")
    I(f"s_cmp_ge_u32 s{S_H}, 32", "s_cbranch_scc1 L_end")
    gen_chain(p, local=local, stamps=stamps, nsteps=nsteps)
    p.L("L_end")
    I("s_endpgm")
    p.raw(kd(name))
    return p.render()

if __name__ == "__main__":
    import sys
    for a in sys.argv[2:]:
        if a == "prof": PROF[0] = True
        if a == "rt": RT[0] = True
        if a.startswith("hold="): HOLD[0] = int(a[5:])
        if a.startswith("lead="): LEAD[0] = int(a[5:])
        if a.startswith("lat="): Weaver.LDS_LAT = int(a[4:])
        if a.startswith("vp="): VPERIOD[0] = int(a[3:])
        if a == "nobar4": BAR4[0] = False
        if a.startswith("touch="): TOUCH[0] = int(a[6:])
        if a.startswith("s2i="): ST2_ISSUE[0] = int(a[4:])
        if a.startswith("s2c="): ST2_CHECK[0] = int(a[4:])
        if a.startswith("g1="): DELAYG1[0] = int(a[3:])
        if a == "nopref": PREF[0] = False
        if a.startswith("vpl="): VPLACE[:] = [int(c) for c in a[4:]]
        if a.startswith("d3="): DELAY3[0] = int(a[3:])
        if a.startswith("d0="): DELAY0[0] = int(a[3:])
        if a.startswith("d1="): DELAY1[0] = int(a[3:])
        if a.startswith("d2="): DELAY2[0] = int(a[3:])
    open(sys.argv[1], "w").write(standalone())
```

```python
import sys
import chain4 as ch
from gemm576 import *
from test_gemm import role_gemm1, role_bq
from test_b import role_bo
from attna import *
from attnb import *
from oproja import *
NAME = "concat_heads__memory_aug_recurrent_mem_tr__grouped_kv_mqa__prompt_kernel"
HEAD = open("concat_heads__memory_aug_recurrent_mem_tr__grouped_kv_mqa__prompt.s.ref").read().split("; Override launch geometry")[0]
PT = 72
PN = ["A_x", "A_mem0", "A_Wq", "A_Wk", "A_Wv", "A_Wo", "B_x", "B_wq", "B_wk", "B_wv", "B_wo", "out"]
def ptr(n): return PT + 2 * PN.index(n)
S_ROLE = 44
N_OPROJ, N_BO0, N_BOUT = 48, 48, 24
ATTNB0 = 96

TL = [False]
def ts(p, k, rolereg, a=30, b=31):
    if not TL[0]: return
    I = p.I
    lab = p.newlabel("ts")
    I(f"s_cmp_lg_u32 s19, 0", f"s_cbranch_scc1 {lab}")
    I("s_memrealtime s[2:3]", "s_waitcnt lgkmcnt(0)", f"s_lshl_b32 s3, s{rolereg}, 6", f"s_add_u32 s3, s3, {0x9100000 + 4*k}")
    I("s_mov_b64 exec, 1", f"v_mov_b32 v{a}, s2", f"v_mov_b32 v{b}, 0", f"buffer_store_dword v{a}, v{b}, s[4:7], s3 offen", "s_mov_b64 exec, -1", "s_nop 1")
    p.L(lab)

def tc(p, k, rolereg, a=30, b=31):
    if not TL[0]: return
    I = p.I
    lab = p.newlabel("tc")
    I(f"s_cmp_lg_u32 s19, 0", f"s_cbranch_scc1 {lab}")
    I("s_memtime s[2:3]", "s_waitcnt lgkmcnt(0)", f"s_lshl_b32 s3, s{rolereg}, 6", f"s_add_u32 s3, s3, {0x9100000 + 4*k}")
    I("s_mov_b64 exec, 1", f"v_mov_b32 v{a}, s2", f"v_mov_b32 v{b}, 0", f"buffer_store_dword v{a}, v{b}, s[4:7], s3 offen", "s_mov_b64 exec, -1", "s_nop 1")
    p.L(lab)

DT = [False]
def dts(p, idx, op="umax", a=52, b=53):
    if not DT[0]: return
    I = p.I
    lab = p.newlabel("dts")
    I("s_cmp_lg_u32 s19, 0", f"s_cbranch_scc1 {lab}")
    I("s_memrealtime s[2:3]", "s_waitcnt lgkmcnt(0)")
    if op == "umin": I("s_not_b32 s2, s2")
    I("s_mov_b64 exec, 1", f"v_mov_b32 v{a}, s2", f"v_mov_b32 v{b}, {4*idx}", f"global_atomic_umax v{b}, v{a}, s[16:17]", "s_mov_b64 exec, -1", "s_nop 1")
    p.L(lab)

def build(opts):
    DT[0] = bool(opts.get("dt"))
    TL[0] = bool(opts.get("tl"))
    ch.PROF[0] = bool(opts.get("prof"))
    ch.PREF[0] = not opts.get("nopref")
    ch.ROT[0] = not opts.get("norot")
    ch.EXPL[0] = opts.get("expl", 0)
    ch.PFBR[0] = bool(opts.get("pfbr"))
    ch.STEPTS[0] = bool(opts.get("sts"))
    ch.FUSED[0] = True
    p = AProg(); I = p.I
    p.raw(HEAD.rstrip("\n"))
    p.raw("; Override launch geometry by editing the next line.")
    p.raw("; @launch grid=(256,1,1) block=(256,1,1) lds=163840")
    p.raw('.amdgcn_target "amdgcn-amd-amdhsa--gfx950"\n.text')
    kernel_head(p, NAME)
    S_DBG, S_WS, S_MEM, S_WV, S_H = ch.S_DBG, ch.S_WS, ch.S_MEM, ch.S_WV, ch.S_H
    I("s_cmp_ge_u32 s2, 256", "s_cbranch_scc1 L_end")
    load_ptrs(p, PN, PT)
    I(f"s_load_dwordx2 s[{S_DBG}:{S_DBG+1}], s[0:1], {KARG['dbg']}", f"s_load_dwordx2 s[46:47], s[0:1], {KARG['ws']}")
    I("s_waitcnt lgkmcnt(0)")
    srd(p, S_WS, 46, WS_BYTES)
    I(f"s_mov_b32 s{S_ABORT}, 0")
    if opts.get("cpf"):
        p.L("L_pc_here") if False else None
        I("s_getpc_b64 s[60:61]")
        p.L("L_pc0")
        I("v_lshrrev_b32 v60, 6, v0", "v_and_b32 v61, 63, v0", "v_lshlrev_b32 v61, 7, v61", "v_lshl_add_u32 v61, v60, 13, v61")
        n = opts["cpf"]
        for i in range(n):
            I(f"v_cmp_gt_u32 vcc, L_end - L_pc0, v61" if False else f"v_min_u32 v62, L_end - L_pc0, v61", f"global_load_dword v63, v62, s[60:61] ; nodep", "v_add_u32 v61, 0x8000, v61")
    ch.lane_consts(p)
    dts(p, 9, "umin", 60, 61); dts(p, 11, "umax", 60, 61) if opts.get("dt") == 1 else None
    I("s_getreg_b32 s24, hwreg(HW_REG_XCC_ID, 0, 4)", "s_and_b32 s24, s24, 7")
    lab = p.newlabel("role")
    I(f"s_cmp_lg_u32 s{S_WV}, 0", f"s_cbranch_scc1 {lab}")
    I("s_mov_b64 exec, 1", "v_mov_b32 v44, 1", "s_lshl_b32 s25, s24, 2", "v_mov_b32 v45, s25", f"global_atomic_add v46, v45, v44, s[{S_DBG}:{S_DBG+1}] sc0", "s_waitcnt vmcnt(0)")
    I("v_readfirstlane_b32 s26, v46")
    I(f"s_cmp_eq_u32 s24, {opts.get('chx', 0)}", "s_cselect_b32 s27, s26, 1000", "s_cmp_lt_u32 s27, 32", "s_cbranch_scc1 L_isch")
    I(f"v_mov_b32 v45, {DBG_WORK}", f"global_atomic_add v46, v45, v44, s[{S_DBG}:{S_DBG+1}] sc0", "s_waitcnt vmcnt(0)", "v_add_u32 v46, 32, v46")
    p.L("L_isch")
    I("v_mov_b32 v45, 0", "ds_write_b32 v45, v46", "s_waitcnt lgkmcnt(0)", "s_mov_b64 exec, -1")
    p.L(lab)
    I("s_waitcnt vmcnt(0)", "s_barrier", "v_mov_b32 v45, 0", "ds_read_b32 v46, v45", "s_waitcnt lgkmcnt(0)", f"v_readfirstlane_b32 s{S_H}, v46", "s_barrier")
    I("s_mov_b32 s98, 0")
    I(f"s_cmp_lt_u32 s{S_H}, 256", "s_cbranch_scc1 L_notx", f"s_sub_u32 s{S_H}, 287, s{S_H}", "s_mov_b32 s98, 1")
    p.L("L_notx")
    I(f"s_cmp_ge_u32 s{S_H}, 32", "s_cbranch_scc1 L_worker")
    I("s_mov_b32 s45, s98")
    ts(p, 0, S_H, 52, 53)
    chain_role(p, opts)
    I("s_branch L_end")
    p.L("L_worker")
    I(f"s_sub_u32 s{S_ROLE}, s{S_H}, 32")
    ts(p, 0, S_H)
    worker(p, opts)
    p.L("L_end"); I("s_endpgm")
    p.raw(kd(NAME))
    return p.render()

def chain_role(p, opts):
    I = p.I
    S_PTR = ch.S_PTR
    for i, n in enumerate(["A_mem0", "A_Wq", "A_Wk", "A_Wv", "A_Wo"]):
        I(f"s_mov_b32 s{S_PTR+2*i}, s{ptr(n)}", f"s_mov_b32 s{S_PTR+2*i+1}, s{ptr(n)+1}")
    srd(p, ch.S_MEM, S_PTR, 9216)
    ch.setup_chain(p, local=False, part=1)
    ts(p, 1, ch.S_H, 66, 67); dts(p, 11, "umax", 66, 67) if opts.get("dt") == 2 else None
    def mid(p):
        ch.init_fills(p, " sc1")
        decide_mode(p, opts)
    ch.EARLY[0] = True
    ch.preload(p, mid=mid, late=ch.early_loads)
    ts(p, 2, ch.S_H, 52, 53); dts(p, 15, "umax") if opts.get("dt") == 2 else None
    if opts.get("forceglobal"): I("s_mov_b32 s45, 1")
    I("s_mov_b32 s12, s45")
    ch.chain_state(p)
    ts(p, 3, ch.S_H, 52, 53); tc(p, 8, ch.S_H, 52, 53); dts(p, 8, "umax")
    I("s_cmp_lg_u32 s12, 0", "s_cbranch_scc1 L_chain_global")
    ch.chain_loop(p, local=True)
    ts(p, 4, ch.S_H, 52, 53); tc(p, 9, ch.S_H, 52, 53); dts(p, 14, "umax")
    ch.prof_dump(p)
    I("s_branch L_end")
    p.L("L_chain_global")
    ch.chain_loop(p, local=False)

def decide_mode(p, opts):
    I = p.I
    lab = p.newlabel("mode"); dec = p.newlabel("mode_d")
    I("s_cmp_lg_u32 s45, 0", f"s_cbranch_scc1 {dec}", f"s_mov_b32 s{ch.S_T2}, 0")
    p.L(lab)
    I(f"v_mov_b32 v65, {4*opts.get('chx', 0)}", f"global_load_dword v64, v65, s[{ch.S_DBG}:{ch.S_DBG+1}] sc1", f"v_mov_b32 v65, {DBG_WORK}", f"global_load_dword v66, v65, s[{ch.S_DBG}:{ch.S_DBG+1}] sc1", "s_waitcnt vmcnt(0)")
    I(f"v_readfirstlane_b32 s{ch.S_T0}, v64", f"v_readfirstlane_b32 s{ch.S_T1}, v66")
    I(f"s_cmp_ge_u32 s{ch.S_T0}, 32", f"s_cbranch_scc1 {dec}", f"s_cmp_gt_u32 s{ch.S_T1}, 224", "s_cselect_b32 s45, 1, 0", f"s_cbranch_scc1 {dec}")
    I("s_sleep 4", f"s_add_u32 s{ch.S_T2}, s{ch.S_T2}, 1", f"s_cmp_lt_u32 s{ch.S_T2}, 0x100000", f"s_cbranch_scc1 {lab}")
    p.L(dec)

def worker(p, opts):
    I = p.I
    S_DBG = ch.S_DBG
    lab = p.newlabel("noinit")
    I(f"s_cmp_lg_u32 s{S_ROLE}, 0", f"s_cbranch_scc1 {lab}")
    I("v_mov_b64 v[44:45], 0", "v_mov_b64 v[46:47], 0", f"s_lshl_b32 s{G_T0}, s{G_WV}, 10", f"s_add_u32 s{G_T0}, s{G_T0}, {FLAG_OFF}")
    for rnd in range(4):
        I(f"buffer_store_dwordx4 v[44:47], v0, s[{G_WS}:{G_WS+3}], s{G_T0} offen sc1", f"s_add_u32 s{G_T0}, s{G_T0}, 4096")
    I("s_waitcnt vmcnt(0)", "s_barrier")
    lab2 = p.newlabel("ini2")
    I(f"s_cmp_lg_u32 s{G_WV}, 0", f"s_cbranch_scc1 {lab2}")
    I("s_mov_b64 exec, 1", "v_mov_b32 v44, 1", f"v_mov_b32 v45, {DBG_INIT}", f"global_store_dword v45, v44, s[{S_DBG}:{S_DBG+1}] sc1", "s_mov_b64 exec, -1")
    p.L(lab2); p.L(lab)
    mid = lambda p: wait_init(p, S_DBG, tmpv=(48, 49))
    I(f"s_cmp_ge_u32 s{S_ROLE}, 192", "s_cbranch_scc1 L_p1b")
    if opts.get("qd", 0):
        nq = p.newlabel("noqd")
        I(f"s_mul_hi_u32 s36, s{S_ROLE}, {(1 << 32) // 48 + 1}", "s_mul_i32 s36, s36, 48", f"s_sub_u32 s36, s{S_ROLE}, s36", "s_cmp_lt_u32 s36, 32", f"s_cbranch_scc1 {nq}")
        for _ in range(opts["qd"]): I("s_sleep 127")
        p.L(nq)
    role_gemm1(p, f"s{S_ROLE}", ptr("A_x"), ptr("A_Wq"), ptr("A_Wk"), ptr("A_Wv"), mid=mid)
    I("s_branch L_p2")
    p.L("L_p1b")
    I(f"s_cmp_ge_u32 s{S_ROLE}, 216", "s_cbranch_scc1 L_p1c")
    I(f"s_sub_u32 s36, s{S_ROLE}, 192")
    role_bq(p, 36, ptr("B_x"), ptr("B_wq"), endsig=BQCNT, mid=mid)
    I("s_branch L_p2")
    p.L("L_p1c")
    srd(p, G_X, ptr("B_x"), 2048 * 1152)
    I(f"s_sub_u32 s20, s{S_ROLE}, 216", "s_lshl_b32 s20, s20, 2", f"s_add_u32 s20, s20, s{G_WV}", "s_mov_b32 s21, 32")
    kvproj(p, ptr("B_wk"), ptr("B_wv"), 2, 20)
    I("s_waitcnt vmcnt(0)")
    wait_init(p, S_DBG, tmpv=(30, 31))
    I(f"s_mov_b32 s{G_T0}, {BKVCNT}")
    signal_add(p, G_WS, G_T0)
    p.L("L_p2")
    p.fence(); p.reset_q()
    I("s_barrier")
    ts(p, 1, ch.S_H)
    relane(p)
    I(f"s_cmp_lt_u32 s{S_ROLE}, {N_OPROJ}", "s_cbranch_scc1 L_oproj")
    I(f"s_cmp_lt_u32 s{S_ROLE}, {ATTNB0}", "s_cbranch_scc1 L_attna")
    poll_ge(p, G_WS, BQCNT, 24, imm=True, sleep=32); poll_ge(p, G_WS, BKVCNT, 32, imm=True, sleep=32)
    attnb_setup(p)
    I(f"s_sub_u32 s{B_TASK}, s{S_ROLE}, {ATTNB0}", f"s_lshl_b32 s{B_TASK}, s{B_TASK}, 2", f"s_add_u32 s{B_TASK}, s{B_TASK}, s{G_WV}")
    p.fence(); p.reset_q(); p.L("L_bl")
    attnb_task(p)
    I("s_waitcnt vmcnt(0)", f"s_and_b32 s{G_T0}, s{B_TASK}, 31", f"s_lshl_b32 s{G_T0}, s{G_T0}, 2", f"s_add_u32 s{G_T0}, s{G_T0}, {BACNT}")
    signal_add(p, G_WS, G_T0)
    I(f"s_add_u32 s{B_TASK}, s{B_TASK}, 512")
    p.fence(); p.reset_q()
    I(f"s_cmp_lt_u32 s{B_TASK}, 1024", "s_cbranch_scc1 L_bl")
    I("s_barrier")
    ts(p, 2, ch.S_H)
    I(f"s_cmp_ge_u32 s{S_ROLE}, {ATTNB0 + N_BOUT}", "s_cbranch_scc1 L_attna")
    def bo_wait(p, segreg):
        I(f"s_lshr_b32 s{G_T0}, s{segreg}, 1", f"s_lshl_b32 s{G_T0}, s{G_T0}, 2", f"s_add_u32 s{G_T0}, s{G_T0}, {BACNT}", f"s_mov_b32 s45, s{G_T0}")
        poll_ge(p, G_WS, 45, 32, tmpv=(48, 49), sleep=32)
    I(f"s_sub_u32 s36, s{S_ROLE}, {ATTNB0}")
    relane(p)
    role_bo(p, 36, 46, ptr("B_wo"), ptr("out"), prewait=bo_wait, xsc=" sc1")
    p.fence(); p.reset_q()
    I("s_barrier")
    relane(p)
    p.L("L_attna")
    ts(p, 3, ch.S_H)
    relane(p)
    attna_setup(p)
    p.fence(); p.reset_q(); p.L("L_al")
    I("s_mov_b64 exec, 1", "v_mov_b32 v30, 1", "v_mov_b32 v31, 0", f"s_mov_b32 s{G_T0}, {ATICK}", f"buffer_atomic_add v30, v31, s[{G_WS}:{G_WS+3}], s{G_T0} offen sc0", "s_waitcnt vmcnt(0)", "s_mov_b64 exec, -1")
    I(f"v_readfirstlane_b32 s{A_TASK}, v30")
    I(f"s_cmp_ge_u32 s{A_TASK}, 2048", "s_cbranch_scc1 L_aend")
    I(f"s_lshr_b32 s36, s{A_TASK}, 5", "s_lshl_b32 s37, s36, 2")
    I(f"s_add_u32 s38, s37, {QCNT}"); poll_ge(p, G_WS, 38, 16, sleep=32)
    I(f"s_add_u32 s38, s37, {KVCNT}"); poll_ge(p, G_WS, 38, 32, sleep=32)
    def chwait(p):
        I(f"s_and_b32 s38, s{A_TASK}, 31", "s_lshl_b32 s38, s38, 8", f"s_add_u32 s38, s38, {CHFLG}", "s_add_u32 s39, s36, 1")
        poll_ge_far(p, G_WS, 38, 39, tmpv=(29, 30), near_sleep=opts.get("nsl", 6), far_sleep=opts.get("fsl", 60))
    attna_task(p, midwait=chwait)
    I("s_waitcnt vmcnt(0)", f"s_lshr_b32 s{G_T0}, s{A_TASK}, 5", f"s_lshl_b32 s{G_T0}, s{G_T0}, 2", f"s_add_u32 s{G_T0}, s{G_T0}, {ACNT}")
    signal_add(p, G_WS, G_T0)
    p.fence(); p.reset_q()
    I("s_branch L_al")
    p.L("L_aend")
    ts(p, 4, ch.S_H)
    I("s_branch L_end")
    p.L("L_oproj")
    srd(p, G_W, ptr("A_Wo"), 4096 * 1152); srd(p, G_O, ptr("out"), 2048 * 2304)
    I(f"s_mul_hi_u32 s{G_SEG}, s{S_ROLE}, {(1 << 32) // 12 + 1}", f"s_mul_i32 s{G_T0}, s{G_SEG}, 12", f"s_sub_u32 s{G_T0}, s{S_ROLE}, s{G_T0}", f"s_mul_i32 s{G_WCOL}, s{G_T0}, 96")
    oproj_setup(p); oproj_preload(p)
    ts(p, 2, ch.S_H)
    p.fence(); p.reset_q(); p.L("L_ol")
    I(f"s_lshr_b32 s38, s{G_SEG}, 1", "s_lshl_b32 s38, s38, 2", f"s_add_u32 s38, s38, {ACNT}")
    nw = p.newlabel("op_nw")
    I(f"s_cmp_lg_u32 s{G_WV}, 0", f"s_cbranch_scc1 {nw}")
    poll_ge(p, G_WS, 38, 32, tmpv=(30, 31), sleep=opts.get("osl", 8))
    p.L(nw)
    I("s_barrier")
    oproj_seg(p)
    I(f"s_add_u32 s{G_SEG}, s{G_SEG}, {N_OPROJ // 12}")
    p.fence(); p.reset_q()
    I(f"s_cmp_lt_u32 s{G_SEG}, 128", "s_cbranch_scc1 L_ol")
    I("s_waitcnt vmcnt(0)")
    ts(p, 4, ch.S_H); dts(p, 15, "umax", 30, 31) if opts.get("dt") == 1 else None
    I("s_branch L_end")

def relane(p):
    p.I("v_lshrrev_b32 v33, 4, v0", "v_and_b32 v34, 15, v33", "v_lshrrev_b32 v35, 4, v33")

if __name__ == "__main__":
    opts = {}
    for a in sys.argv[2:]:
        if a.startswith("g1="): ch.DELAYG1[0] = int(a[3:])
        elif a.startswith("d3="): ch.DELAY3[0] = int(a[3:])
        elif a.startswith("d0="): ch.DELAY0[0] = int(a[3:])
        elif a.startswith("d1="): ch.DELAY1[0] = int(a[3:])
        elif a.startswith("d2="): ch.DELAY2[0] = int(a[3:])
        elif "=" in a: k, v = a.split("="); opts[k] = int(v)
        else: opts[a] = 1
    open(sys.argv[1], "w").write(build(opts))
```

```python
import struct
from asmlib2 import *
from common import *
import common, sys as _sys
if 'hot' in _sys.argv: MEM_SLOT = 0

MEMIMG, SEXM, SEXX, OIMG, WVL = 0, 9216, 10240, 14336, 16384
PART_BYTES = 48 * 8192
SCALE_LOG2E = 0.08838834764831845 * 1.4426950408889634

S_WS, S_MEM, S_W = 4, 8, 12
S_DBG = 16
S_H, S_WV, S_STEP = 18, 19, 20
S_MEMR, S_MEMW, S_KX, S_VX, S_KM, S_VM = 21, 22, 23, 24, 25, 26
S_TO, S_T0, S_T1, S_T2 = 27, 28, 29, 30
S_C = 31
S_NLT8 = 32
S_M8 = 34
S_PS = 36
S_PL, S_ISW2 = 41, 42
S_W1024, S_W256 = 43, 44
S_HASTASK = 45
S_PTR = 46
S_EXMS = 58
S_D8, S_L8, S_MEMR8, S_TAG = 64, 65, 66, 67
S_ONES, S_W4 = 68, 70
S_MEMR2 = 57
S_B01, S_TO3, S_MEMEND, S_MEMZ, S_MEMWEND = 57, 61, 60, 39, 40
SLOW = []
VPLACE = [2, 4, 3, 2, 2, 2, 3]
V_DUM = 27
ST2_ISSUE = [1]
ST2_CHECK = [4]
S_C2 = 62
S_TCH, S_TMASK = 98, 100
S_RDY, S_CHF = 10, 11
S_PUBV = 13
S_FAST = 14
S_PFM, S_W2048 = 46, 48
PREF = [True]
EXPL = [0]
PFBR = [False]
ROT = [True]
STEPTS = [False]
S_PUB = 8
FUSED = [False]
TOUCH = [2]
S_TO2 = 71
S_TS = 50
PNST = 14
S_ST = 72

V_L16, V_IDX = 0, 1
V_SQA, V_SQB, V_SKA, V_SKB = 2, 4, 6, 8
V_KX, V_VX = 10, 18
V_WV, V_MP, V_PY, V_PS, V_OR = 26, 27, 28, 30, 31

def frag(f): return ar(8 * f, 8) if f < 32 else vr(80 + 8 * (f - 32), 8)
def fragb(f): return ("a", 8 * f) if f < 32 else ("v", 80 + 8 * (f - 32))
def frag_sub(f, off, n):
    k, b = fragb(f)
    return f"{k}[{b+off}:{b+off+n-1}]" if n > 1 else f"{k}{b+off}"
def F_QA(kb): return kb
def F_QB(kb): return 9 + kb
def F_KA(kb): return 18 + kb
F_KB0 = 27
VRES = [6, 7, 0, 1]
VSTR = [2, 3, 4, 5, 8]
def F_VS(tb, slot): return 28 + slot * 2 + tb
def F_WO(j, kb): return 36 + j * 2 + kb

PROF = [False]
RT = [False]
TAGALL = [False]
def stamp(p, k, on):
    r = S_ST + 2 * k if k < 13 else 14
    if PROF[0] and on: p.I(f"{'s_memrealtime' if RT[0] else 's_memtime'} s[{r}:{r+1}]")

def lane_consts(p):
    I = p.I
    I("v_lshrrev_b32 v32, 6, v0", "v_and_b32 v33, 63, v0", f"v_readfirstlane_b32 s{S_WV}, v32")
    I("v_and_b32 v34, 15, v33", "v_lshrrev_b32 v35, 4, v33")
    I("v_and_b32 v36, 7, v33")
    I("v_bfe_u32 v37, v33, 3, 1")
    I(f"v_lshlrev_b32 v{V_L16}, 4, v33")
    I("v_lshrrev_b32 v38, 2, v34", "v_lshlrev_b32 v38, 1, v38", "v_and_b32 v39, 1, v34", "v_or_b32 v38, v38, v39", "v_bfe_u32 v39, v34, 1, 1")
    I("v_mov_b32 v40, 0x44444444", "v_mov_b32 v41, 0xeeeeeeee", "v_cmp_eq_u32 vcc, 0, v39", f"v_cndmask_b32 v{V_IDX}, v41, v40, vcc")

def setup_chain(p, local, part=3):
    I = p.I
    sc_st = "" if local else " sc1"
    if part & 1: setup_regs(p)
    if part & 2: init_fills(p, sc_st)

def setup_regs(p):
    I = p.I
    I(f"s_lshl_b32 s{S_W1024}, s{S_WV}, 10", f"s_lshl_b32 s{S_W256}, s{S_WV}, 8")
    I(f"s_lshl_b32 s{S_T0}, s{S_WV}, 11", f"s_add_u32 s{S_T0}, s{S_T0}, {WVL}", f"v_add_u32 v{V_WV}, s{S_T0}, v{V_L16}")
    I(f"v_mul_u32_u24 v{V_MP}, 1152, v38", f"v_lshl_add_u32 v{V_MP}, v35, 5, v{V_MP}", f"v_lshl_add_u32 v{V_MP}, v39, 4, v{V_MP}",
      f"s_lshl_b32 s{S_T0}, s{S_WV}, 7", f"v_add_u32 v{V_MP}, s{S_T0}, v{V_MP}")
    I(f"v_lshlrev_b32 v{V_PS}, 13, v35", f"v_lshl_add_u32 v{V_PS}, v37, 12, v{V_PS}", f"v_lshl_add_u32 v{V_PS}, v36, 4, v{V_PS}")
    if ROT[0]:
        I(f"s_lshl_b32 s{S_T0}, s{S_WV}, 3", f"s_add_u32 s{S_T0}, s{S_T0}, s{S_H}", "v_lshl_add_u32 v40, v35, 1, v37", f"v_add_u32 v40, s{S_T0}, v40", "v_and_b32 v40, 31, v40", f"v_lshl_add_u32 v{V_PS}, v40, 7, v{V_PS}")
    I("v_lshl_add_u32 v40, v35, 1, v39", "v_xor_b32 v40, v40, v38", "v_lshlrev_b32 v40, 4, v40", "v_lshl_add_u32 v40, v38, 8, v40", f"v_add_u32 v{V_OR}, {OIMG}, v40")
    for src, ra, rb in ((36, V_SQA, V_SQB), (38, V_SKA, V_SKB)):
        I("v_lshlrev_b32 v40, 1, v35", f"v_sub_u32 v40, v{src}, v40", "v_mov_b32 v41, 0", "v_mov_b32 v42, 0x3f80", "v_mov_b32 v43, 0x3f800000")
        I("v_cmp_eq_u32 vcc, 0, v40", "v_cndmask_b32 v41, v41, v42, vcc", "v_cmp_eq_u32 vcc, 1, v40", f"v_cndmask_b32 v{ra}, v41, v43, vcc")
        I(f"v_mov_b32 v{ra+1}, 0", f"v_mov_b32 v{rb}, 0", f"v_mov_b32 v{rb+1}, v{ra}")
    I(f"s_mov_b32 s{S_NLT8}, 0x00ff00ff", f"s_mov_b32 s{S_NLT8+1}, 0x00ff00ff")
    I(f"s_mov_b32 s{S_ONES}, 0x3f803f80", f"s_mov_b32 s{S_ONES+1}, 0x3f803f80", f"s_lshl_b32 s{S_W4}, s{S_WV}, 2")
    cbits = struct.unpack("<I", struct.pack("<f", SCALE_LOG2E))[0]
    I(f"s_mov_b32 s{S_C}, 0x{cbits:08x}", f"s_mov_b32 s{S_C2}, 0x{cbits:08x}", f"s_mov_b32 s{S_C2+1}, 0x{cbits:08x}")
def init_fills(p, sc_st):
    I = p.I
    p.C("init fills: PART zero (12288 B per WG), MEM ring sentinel (slots 1..3), slot 0 = mem0 in fragment order")
    I(f"s_mul_i32 s{S_T0}, s{S_H}, 12288", f"s_add_u32 s{S_T1}, s{S_T0}, s{S_W1024}", f"s_add_u32 s{S_T1}, s{S_T1}, {PART_OFF}")
    I("v_mov_b64 v[64:65], 0", "v_mov_b64 v[66:67], 0", "v_mov_b64 v[68:69], -1", "v_mov_b64 v[70:71], -1")
    for rnd in range(3):
        I(f"buffer_store_dwordx4 v[64:67], v{V_L16}, s[{S_WS}:{S_WS+3}], s{S_T1} offen{sc_st}")
        if rnd < 2: I(f"s_add_u32 s{S_T1}, s{S_T1}, 4096")
    lab = p.newlabel("fill_skip")
    I(f"s_lshl_b32 s{S_T0}, s{S_H}, 2", f"s_add_u32 s{S_T0}, s{S_T0}, s{S_WV}", f"s_sub_u32 s{S_T0}, s{S_T0}, 4", f"s_cmp_ge_u32 s{S_T0}, 27", f"s_cbranch_scc1 {lab}")
    I(f"s_lshl_b32 s{S_T0}, s{S_T0}, 10", f"s_add_u32 s{S_T2}, s{S_T0}, {MEM_OFF + MEM_SLOT}", f"buffer_store_dwordx4 v[68:71], v{V_L16}, s[{S_WS}:{S_WS+3}], s{S_T2} offen{sc_st}")
    p.L(lab)
    lab = p.newlabel("no_m0")
    I(f"s_cmp_lg_u32 s{S_H}, 0", f"s_cbranch_scc1 {lab}")
    I(f"buffer_load_dwordx4 v[64:67], v{V_MP}, s[{S_MEM}:{S_MEM+3}], 0 offen", f"buffer_load_dwordx4 v[68:71], v{V_MP}, s[{S_MEM}:{S_MEM+3}], 0 offen offset:512")
    I(f"s_lshl_b32 s{S_T0}, s{S_WV}, 7", f"v_subrev_u32 v72, s{S_T0}, v{V_MP}", f"buffer_load_dwordx4 v[76:79], v72, s[{S_MEM}:{S_MEM+3}], 0 offen offset:1024")
    I(f"s_add_u32 s{S_T0}, s{S_W1024}, {MEM_OFF}", f"s_mov_b32 s{S_T1}, {MEM_OFF + 8192}", "s_waitcnt vmcnt(0)")
    I(f"buffer_store_dwordx4 v[64:67], v{V_L16}, s[{S_WS}:{S_WS+3}], s{S_T0} offen{sc_st}")
    I(f"s_add_u32 s{S_T0}, s{S_T0}, 4096", f"buffer_store_dwordx4 v[68:71], v{V_L16}, s[{S_WS}:{S_WS+3}], s{S_T0} offen{sc_st}")
    I(f"buffer_store_dwordx4 v[76:79], v{V_L16}, s[{S_WS}:{S_WS+3}], s{S_T1} offen{sc_st}")
    p.L(lab)
    I("s_waitcnt vmcnt(0)", "s_barrier")
    lab = p.newlabel("init_arr")
    I(f"s_cmp_lg_u32 s{S_WV}, 0", f"s_cbranch_scc1 {lab}")
    I("s_mov_b64 exec, 1", "v_mov_b32 v64, 1", "v_mov_b32 v65, 40", f"global_atomic_add v65, v64, s[{S_DBG}:{S_DBG+1}]", "s_mov_b64 exec, -1")
    p.L(lab)

def preload(p, mid=None, late=None):
    I = p.I
    p.C("weight preload")
    I("v_lshrrev_b32 v40, 4, v33", "v_lshlrev_b32 v41, 13, v40")
    I("v_and_b32 v42, 1, v40", "v_lshlrev_b32 v42, 1, v42", "v_xor_b32 v42, v42, v34", "v_lshlrev_b32 v42, 4, v42")
    for jj in range(4):
        I(f"v_xor_b32 v43, {64*jj}, v42", "v_add_u32 v43, v43, v41", f"v_add_u32 v{52+jj}, {jj*32768}, v43")
    I("v_lshrrev_b32 v40, 3, v33", "v_and_b32 v41, 7, v33", "v_lshrrev_b32 v42, 5, v33")
    for jj in range(4):
        I(f"v_add_u32 v43, {8*jj}, v40", "v_mul_u32_u24 v43, 1152, v43")
        I(f"v_add_u32 v44, {2*(jj&1)}, v42", "v_lshlrev_b32 v44, 1, v44", "v_xor_b32 v44, v44, v41", f"v_lshl_add_u32 v{56+jj}, v44, 4, v43")
    I("v_lshrrev_b32 v40, 2, v34", "v_and_b32 v41, 3, v34")
    I("v_lshrrev_b32 v42, 1, v35", "v_lshlrev_b32 v42, 4, v42", "v_and_b32 v43, 1, v35", "v_lshl_add_u32 v42, v43, 2, v42")
    I("v_and_b32 v44, 1, v40", "v_add_u32 v42, v42, v44", "v_lshrrev_b32 v45, 1, v40", "v_lshl_add_u32 v42, v45, 3, v42")
    I("v_lshl_add_u32 v46, v45, 1, v43")
    I("v_lshl_or_b32 v47, v46, 1, v44")
    I(f"s_lshl_b32 s{S_T0}, s{S_WV}, 1", f"v_xor_b32 v47, s{S_T0}, v47", "v_lshlrev_b32 v47, 5, v47", "v_lshl_add_u32 v47, v41, 3, v47", "v_lshl_add_u32 v60, v42, 8, v47", "v_xor_b32 v61, 32, v60")
    I(f"v_xor_b32 v46, s{S_WV}, v46", "v_lshlrev_b32 v46, 5, v46", "v_lshl_add_u32 v46, v41, 3, v46", "v_lshl_add_u32 v62, v42, 7, v46")
    chunks = [("q", kb) for kb in range(9)] + [("o", cc) for cc in range(9)] + [("k", kb) for kb in range(9)] + [("v", kb) for kb in VRES + VSTR]
    slot = lambda c: (c + 4) % 10
    ptr = {"q": S_PTR + 2, "k": S_PTR + 4, "v": S_PTR + 6, "o": S_PTR + 8}
    cur = [None]
    nissued = [0]
    def issue(c):
        kind, x = chunks[c]
        if cur[0] != kind:
            cur[0] = kind
            I(f"s_mov_b32 s{S_W}, s{ptr[kind]}", f"s_and_b32 s{S_W+1}, s{ptr[kind]+1}, 0xffff", f"s_mov_b32 s{S_W+2}, {576*8192 if kind != 'o' else 4096*1152}", f"s_mov_b32 s{S_W+3}, 0x20000")
        if kind != "o":
            I(f"s_lshl_b32 s{S_T0}, s{S_WV}, 17", f"s_lshl_b32 s{S_T1}, s{S_H}, 8", f"s_add_u32 s{S_T0}, s{S_T0}, s{S_T1}", f"s_add_u32 s{S_T0}, s{S_T0}, {x*524288}")
            vb = 52
        else:
            I(f"s_lshl_b32 s{S_T0}, s{S_H}, 7", f"s_lshl_b32 s{S_T1}, s{S_WV}, 5", f"s_add_u32 s{S_T0}, s{S_T0}, s{S_T1}", f"s_mul_i32 s{S_T0}, s{S_T0}, 1152", f"s_add_u32 s{S_T0}, s{S_T0}, {x*128}")
            vb = 56
        I(f"s_lshl_b32 s{S_T1}, s{S_WV}, 12", f"s_add_u32 s{S_T1}, s{S_T1}, {slot(c)*16384}")
        for jj in range(4):
            I(f"s_add_u32 m0, s{S_T1}, {jj*1024}")
            I(f"buffer_load_dwordx4 v{vb+jj}, s[{S_W}:{S_W+3}], s{S_T0} offen lds")
        nissued[0] = c + 1
    def tr(dst_of_t, areg, rowb, row0):
        for t in range(4):
            I(f"ds_read_b64_tr_b16 {dst_of_t(t)}, v{areg} offset:{(row0+32*(t//2)+2*(t%2))*rowb}")
    extra = [0]
    for c in range(10): issue(c)
    if mid: mid(p)
    for c in range(36):
        kind, x = chunks[c]
        if late and c == 27: extra[0] = late(p)
        I(f"s_waitcnt vmcnt({4*(nissued[0]-1-c) + extra[0]})", "s_barrier")
        sb = slot(c) * 16384
        I(f"v_add_u32 v40, {sb}, v60", f"v_add_u32 v41, {sb}, v61", f"v_add_u32 v42, {sb}, v62")
        if kind == "q":
            tr(lambda t: frag_sub(F_QA(x), 2*t, 2), 40, 256, 0); tr(lambda t: frag_sub(F_QB(x), 2*t, 2), 41, 256, 0)
        elif kind == "k":
            fb = F_KB0 if x == 0 else F_VS((x-1) % 2, (x-1) // 2)
            tr(lambda t: frag_sub(F_KA(x), 2*t, 2), 40, 256, 0); tr(lambda t: frag_sub(fb, 2*t, 2), 41, 256, 0)
        elif kind == "o":
            for kb in range(2): tr(lambda t: frag_sub(F_WO(x, kb), 2*t, 2), 42, 128, 64*kb)
        else:
            for tb in range(2): tr(lambda t: f"v[{64+8*tb+2*t}:{65+8*tb+2*t}]", 40 + tb, 256, 0)
        I("s_waitcnt lgkmcnt(0)", "s_barrier")
        if kind == "v":
            pos = c - 27
            I(f"s_lshl_b32 s{S_T0}, s{S_WV}, 11", f"s_add_u32 s{S_T0}, s{S_T0}, {sb}", f"v_add_u32 v40, s{S_T0}, v{V_L16}")
            for sub in range(2):
                for half in range(2):
                    src = frag_sub(F_VS(sub, pos), 4*half, 4) if pos < 4 else f"v[{64+8*sub+4*half}:{67+8*sub+4*half}]"
                    I(f"ds_write_b128 v40, {src} offset:{sub*8192+half*1024}")
            I("s_waitcnt lgkmcnt(0)")
            if pos < 4:
                for tb in range(2):
                    k, b = fragb(F_VS(tb, pos))
                    for r in range(8):
                        I(f"v_accvgpr_write_b32 a{b+r}, v{64+8*tb+r}" if k == "a" else f"v_mov_b32 v{b+r}, v{64+8*tb+r}")
        if c + 10 < 36: issue(c + 10)
    I("s_barrier")

def early_loads(p):
    I = p.I
    WS = f"s[{S_WS}:{S_WS+3}]"
    I(f"v_lshrrev_b32 v45, 4, v{V_L16}", f"v_mul_u32_u24 v46, {DBG_INIT - 40}, v45", "v_add_u32 v46, 40, v46", "s_mov_b64 exec, 3")
    I(f"global_load_dword v44, v46, s[{S_DBG}:{S_DBG+1}] sc1", "s_mov_b64 exec, -1")
    I(f"v_lshlrev_b32 v47, 2, v45", f"s_mov_b32 s{S_T0}, {KVCNT}", f"buffer_load_dword v45, v47, {WS}, s{S_T0} offen sc1")
    return 2

EARLY = [False]
def chain_state(p):
    I = p.I
    lab = p.newlabel("initw"); lab2 = p.newlabel("initd"); fast = p.newlabel("fast_start")
    if EARLY[0]:
        I("s_waitcnt vmcnt(0)", f"v_readlane_b32 s{S_T0}, v44, 0", f"v_readlane_b32 s{S_T1}, v44, 1", "v_cmp_ne_u32 vcc, 32, v45", f"s_ff1_i32_b64 s{S_RDY}, vcc")
        I(f"s_cmp_eq_u32 s{S_RDY}, -1", f"s_cselect_b32 s{S_RDY}, 64, s{S_RDY}", f"s_mov_b32 s{S_FAST}, 1")
        I(f"s_cmp_lt_u32 s{S_T0}, 32", f"s_cselect_b32 s{S_FAST}, 0, s{S_FAST}", f"s_cmp_eq_u32 s{S_T1}, 0", f"s_cselect_b32 s{S_FAST}, 0, s{S_FAST}", f"s_cmp_lt_u32 s{S_RDY}, 3", f"s_cselect_b32 s{S_FAST}, 0, s{S_FAST}")
        I(f"s_cmp_lg_u32 s{S_FAST}, 0", f"s_cbranch_scc1 {lab2}")
    I(f"s_mov_b32 s{S_TO}, 0", f"v_lshrrev_b32 v45, 4, v{V_L16}", f"v_mul_u32_u24 v45, {DBG_INIT - 40}, v45", "v_add_u32 v45, 40, v45", "s_mov_b64 exec, 3")
    p.L(lab)
    I(f"global_load_dword v44, v45, s[{S_DBG}:{S_DBG+1}] sc1", "s_waitcnt vmcnt(0)", f"v_readlane_b32 s{S_T0}, v44, 0", f"v_readlane_b32 s{S_T1}, v44, 1", f"s_add_u32 s{S_TO}, s{S_TO}, 1")
    if FUSED[0]: I(f"s_cmp_eq_u32 s{S_T1}, 0", f"s_cselect_b32 s{S_T0}, 0, s{S_T0}")
    I(f"s_cmp_ge_u32 s{S_T0}, 32", f"s_cbranch_scc1 {lab2}", f"s_cmp_lt_u32 s{S_TO}, 0x40000", f"s_cbranch_scc1 {lab}")
    p.L(lab2)
    I("s_mov_b64 exec, -1")
    I(f"s_mov_b32 s{S_STEP}, 0", f"s_mov_b32 s{S_TO}, 0", f"s_mov_b32 s{S_TO2}, 0", f"s_mov_b32 s{S_TO3}, 0")
    I(f"s_min_u32 s{S_T0}, s{S_WV}, 2", f"s_lshl_b32 s{S_B01}, s{S_T0}, 11", f"s_add_u32 s{S_MEMR}, s{S_B01}, {MEM_OFF}", f"s_add_u32 s{S_MEMEND}, s{S_MEMR}, {4*MEM_SLOT}")
    I(f"s_lshl_b32 s{S_T0}, s{S_WV}, 5", f"s_add_u32 s{S_T0}, s{S_T0}, s{S_H}")
    I(f"s_cmp_lt_u32 s{S_WV}, 3", f"s_cselect_b32 s{S_HASTASK}, 1, 0")
    I(f"s_lshl_b32 s{S_PL}, s{S_T0}, 12", f"s_add_u32 s{S_PL}, s{S_PL}, {PART_OFF}")
    I(f"s_mul_i32 s{S_MEMW}, s{S_WV}, 3072")
    I(f"s_lshr_b32 s{S_T1}, s{S_H}, 3", f"s_lshl_b32 s{S_T1}, s{S_T1}, 8", f"s_add_u32 s{S_MEMW}, s{S_MEMW}, s{S_T1}")
    I(f"s_bfe_u32 s{S_T1}, s{S_H}, 0x20001", f"s_lshl_b32 s{S_T1}, s{S_T1}, 6", f"s_add_u32 s{S_MEMW}, s{S_MEMW}, s{S_T1}")
    I(f"s_and_b32 s{S_T1}, s{S_H}, 1", f"s_lshl_b32 s{S_T1}, s{S_T1}, 5", f"s_add_u32 s{S_MEMW}, s{S_MEMW}, s{S_T1}", f"s_add_u32 s{S_MEMW}, s{S_MEMW}, {MEM_OFF + MEM_SLOT}")
    I(f"s_mov_b32 s{S_EXMS+1}, 0x00000055", f"s_mov_b32 s{S_EXMS}, 0x00550055")
    I(f"s_cmp_eq_u32 s{S_WV}, 2", f"s_cselect_b32 s{S_ISW2}, 1, 0")
    I(f"s_mul_i32 s{S_L8}, s{S_WV}, 768", f"s_add_u32 s{S_L8}, s{S_L8}, {MEMIMG + 6144}", f"s_sub_u32 s{S_D8}, s{S_L8}, s{S_B01}")
    I(f"s_mov_b32 s{S_M8}, -1", f"s_mov_b32 s{S_M8+1}, 0xffff")
    I(f"s_cmp_eq_u32 s{S_WV}, 3", f"s_cselect_b32 s{S_PFM}, -1, 0", f"s_mov_b32 s{S_PFM+1}, s{S_PFM}", f"s_lshl_b32 s{S_W2048}, s{S_WV}, 11")
    I(f"s_add_u32 s{S_MEMZ}, s{S_MEMW}, {2*MEM_SLOT}", f"s_add_u32 s{S_MEMWEND}, s{S_MEMW}, {3*MEM_SLOT}")
    I(f"s_lshl_b32 s{S_T0}, s{S_H}, 13", f"s_lshl_b32 s{S_T1}, s{S_WV}, 11", f"s_add_u32 s{S_T0}, s{S_T0}, s{S_T1}", f"s_add_u32 s{S_KX}, s{S_T0}, {KX_OFF}", f"s_add_u32 s{S_VX}, s{S_T0}, {VX_OFF}")
    I(f"s_lshr_b32 s{S_T1}, s{S_T0}, 1", f"s_add_u32 s{S_KM}, s{S_T1}, {KM_OFF}", f"s_lshr_b32 s{S_T1}, s{S_T0}, 2", f"s_add_u32 s{S_VM}, s{S_T1}, {VM_OFF - 32*2048}")
    I(f"s_lshl_b32 s{S_T0}, s{S_WV}, 15", f"s_lshl_b32 s{S_T1}, s{S_H}, 7" if not ROT[0] else f"s_mov_b32 s{S_T1}, 0", f"s_add_u32 s{S_T0}, s{S_T0}, s{S_T1}", f"s_add_u32 s{S_PS}, s{S_T0}, {PART_OFF}")
    for e in range(1, 3): I(f"s_add_u32 s{S_PS+e}, s{S_PS}, {e*131072}")
    I(f"s_add_u32 s{S_MEMR8}, s{S_MEMR}, s{S_D8}")
    if FUSED[0]:
        I(f"s_lshl_b32 s{S_CHF}, s{S_H}, 8", f"s_add_u32 s{S_CHF}, s{S_CHF}, {CHFLG}")
        I(f"s_cmp_eq_u32 s{S_WV}, 0", f"s_cselect_b32 s{S_PUB}, 1, 0", f"s_mov_b32 s{S_PUB+1}, 0")
    skip = p.newlabel("have_rdy")
    if EARLY[0]: I(f"s_cmp_lg_u32 s{S_FAST}, 0", f"s_cbranch_scc1 {skip}")
    if FUSED[0]:
        I(f"s_mov_b32 s{S_RDY}, 0")
        need_segment(p, 2)
    p.L(skip)
    if FUSED[0]:
        I(f"v_lshlrev_b32 v52, 3, v{V_L16}", f"s_lshl_b32 s{S_T0}, s{S_H}, 13")
        I(f"s_and_b32 s{S_T1}, s{S_WV}, 1", f"s_lshr_b32 s{S_T2}, s{S_WV}, 1", f"s_add_u32 s{S_T1}, s{S_T1}, s{S_T2}", f"s_lshl_b32 s{S_T1}, s{S_T1}, 18", f"s_add_u32 s{S_T0}, s{S_T0}, s{S_T1}")
        I(f"s_cmp_ge_u32 s{S_WV}, 2", f"s_cselect_b32 s{S_T2}, 0, {VX_OFF}", f"s_add_u32 s{S_T0}, s{S_T0}, s{S_T2}")
        I(f"buffer_load_dword v{V_DUM}, v52, s[{S_WS}:{S_WS+3}], s{S_T0} offen ; nodep")
    for kt in range(2):
        I(f"buffer_load_dwordx4 v[{V_KX+4*kt}:{V_KX+4*kt+3}], v{V_L16}, s[{S_WS}:{S_WS+3}], s{S_KX} offen offset:{kt*1024} sc1")
    I(f"s_add_u32 s{S_KX}, s{S_KX}, {32*8192}")

SM = lambda d, a, b: f"v_smfmac_f32_16x16x64_bf16 v[{d}:{d+3}], v[{a}:{a+3}], {b}, v{V_IDX}"

class Stream:
    def __init__(self, p): self.p = p; self.q = []
    def add(self, *instrs): self.q.append(list(instrs))
    def emit(self, n=1):
        for _ in range(n):
            if not self.q: return
            for x in self.q.pop(0): self.p.I(x)
    def drain(self): self.emit(len(self.q))


VPERIOD = [24]
LEAD = [0]
HOLD = [0]
BAR4 = [True]
def delay(p, clks):
    n = clks // 4
    while n > 0:
        k = min(n, 16); p.raw(f"    s_nop {k-1}"); n -= k
DELAYG1 = [0]
DELAY3 = [0]
DELAY0 = [0]
DELAY1 = [0]
DELAY2 = [0]
def need_segment(p, add):
    I = p.I
    lab = p.newlabel("rdy"); ok = p.newlabel("rdy_ok")
    I(f"s_add_u32 s{S_T1}, s{S_STEP}, {add}", f"s_min_u32 s{S_T1}, s{S_T1}, 63", f"s_cmp_lt_u32 s{S_T1}, s{S_RDY}", f"s_cbranch_scc1 {ok}")
    I(f"s_mov_b32 s{S_T2}, 0", f"v_lshrrev_b32 v52, 2, v{V_L16}", f"s_mov_b32 s{S_T0}, {KVCNT}")
    p.L(lab)
    I(f"buffer_load_dword v53, v52, s[{S_WS}:{S_WS+3}], s{S_T0} offen sc1", "s_waitcnt vmcnt(0)")
    I("v_cmp_ne_u32 vcc, 32, v53", f"s_ff1_i32_b64 s{S_RDY}, vcc", f"s_cmp_eq_u32 s{S_RDY}, -1", f"s_cselect_b32 s{S_RDY}, 64, s{S_RDY}")
    I(f"s_cmp_lt_u32 s{S_T1}, s{S_RDY}", f"s_cbranch_scc1 {ok}", "s_sleep 8", f"s_add_u32 s{S_T2}, s{S_T2}, 1", f"s_cmp_lt_u32 s{S_T2}, 0x80000", f"s_cbranch_scc1 {lab}")
    I(f"s_mov_b32 s{S_RDY}, 64")
    p.L(ok)

def step(p, local, first=True, last=False):
    I = p.I
    sc_st = "" if local else " sc1"
    WS = f"s[{S_WS}:{S_WS+3}]"
    QA, QB, KA, KB = 32, 36, 40, 44
    A0, A1, A2 = 56, 60, 48
    VA, VB = 48, 52
    W1, W2 = 64, 72
    wv_state = {"b": 0}
    def wread(u, buf):
        out = []
        blk = u // 8
        while wv_state["b"] < blk:
            out.append(f"v_add_u32 v{V_WV}, 0x10000, v{V_WV}"); wv_state["b"] += 1
        off = (u % 8) * 8192
        out.append(f"ds_read_b128 v[{buf}:{buf+3}], v{V_WV} offset:{off}")
        out.append(f"ds_read_b128 v[{buf+4}:{buf+7}], v{V_WV} offset:{off+1024}")
        return out
    aread = lambda kb, a: f"ds_read_b128 v[{a}:{a+3}], v{V_L16} offset:{MEMIMG+kb*1024}"
    ad = lambda d, a_, b_: f"v_add_f32 v{d}, v{a_}, v{b_}"
    cv = lambda d, a_, b_: f"v_cvt_pk_bf16_f32 v{d}, v{a_}, v{b_}"
    p.C("==== step : acquire mem blocks 0..5 (waves 0,1,3)")
    stamp(p, 0, first)
    if STEPTS[0]:
        lab = p.newlabel("sts")
        I(f"s_cmp_lg_u32 s{S_WV}, 3", f"s_cbranch_scc1 {lab}")
        I("s_memrealtime s[2:3]", "s_waitcnt lgkmcnt(0)", f"s_lshl_b32 s3, s{S_H}, 9", f"s_lshl_b32 s{S_T0}, s{S_STEP}, 2", f"s_add_u32 s3, s3, s{S_T0}", f"s_add_u32 s3, s3, {0x9200000}")
        I("s_mov_b64 exec, 1", "v_mov_b32 v52, s2", f"buffer_store_dword v52, v{V_SQA+1}, {WS}, s3 offen", "s_mov_b64 exec, -1")
        p.L(lab)
    if FUSED[0]: need_segment(p, 2 if PREF[0] else 1)
    I(*wread(0, W1)); I(*wread(1, W2))
    for r in range(0, 16, 2): I(f"v_mov_b64 v[{QA+r}:{QA+r+1}], 0")
    skipa = p.newlabel("skip01"); loop = p.newlabel("mem_poll"); done = p.newlabel("mem_done")
    I(f"s_cmp_eq_u32 s{S_WV}, 2", f"s_cbranch_scc1 {skipa}")
    I(f"v_add_u32 v55, s{S_B01}, v{V_L16}")
    if DELAY3[0]:
        nd = p.newlabel("nd3")
        I(f"s_cmp_lg_u32 s{S_WV}, 3", f"s_cbranch_scc1 {nd}")
        delay(p, DELAY3[0])
        p.L(nd)
    delay(p, DELAY2[0])
    p.L(loop)
    a, b = 56, 60
    I(f"buffer_load_dwordx4 v[{a}:{a+3}], v{V_L16}, {WS}, s{S_MEMR} offen sc1")
    I(f"buffer_load_dwordx4 v[{b}:{b+3}], v{V_L16}, {WS}, s{S_MEMR} offen offset:1024 sc1")
    I(f"s_add_u32 s{S_TO}, s{S_TO}, 1")
    I("s_waitcnt vmcnt(1)")
    I(f"ds_write_b128 v55, v[{a}:{a+3}] offset:{MEMIMG}")
    I(f"v_max3_u32 v52, v{a}, v{a+1}, v{a+2}")
    I("s_waitcnt vmcnt(0)")
    I(f"ds_write_b128 v55, v[{b}:{b+3}] offset:{MEMIMG+1024}")
    I(f"v_max3_u32 v52, v52, v{a+3}, v{b}", f"v_max3_u32 v52, v52, v{b+1}, v{b+2}", f"v_max_u32 v52, v52, v{b+3}")
    I("v_cmp_eq_u32 vcc, -1, v52", f"s_cbranch_vccz {done}", f"s_cmp_lt_u32 s{S_TO}, 0x200000", f"s_cbranch_scc1 {loop}")
    p.L(done)
    p.L(skipa)
    stamp(p, 1, first)
    I("s_waitcnt lgkmcnt(0)")
    I("s_barrier")
    p.reset_q()
    stamp(p, 2, first)
    p.C("QK")
    W = Weaver(p)
    Ab = [A0, A1, A2]
    wb = [W1, W2]
    M48 = f"s[{S_M8}:{S_M8+1}]"
    ld2 = f"buffer_load_dwordx4 v[52:55], v{V_L16}, {WS}, s{S_MEMR8} offen sc1"
    W.raw(aread(0, Ab[0])); W.raw(aread(1, Ab[1]))
    W.raw(f"s_mov_b64 exec, {M48}"); W.raw(ld2); W.raw("s_mov_b64 exec, -1")
    W.raw(f"s_add_u32 s{S_TAG}, s{S_STEP}, 1")
    if FUSED[0]: W.raw(f"s_max_u32 s{S_PUBV}, s{S_STEP}, 1"); W.raw(f"s_sub_u32 s{S_PUBV}, s{S_PUBV}, 1")
    def group(kb, extra, areads=True):
        a = Ab[kb % 3]
        kbsrc = frag(F_KB0) if kb == 0 else f"v[{wb[(kb-1)%2]}:{wb[(kb-1)%2]+7}]"
        X = []
        if kb + 2 < 6: X.append([aread(kb + 2, Ab[(kb + 2) % 3])])
        if kb >= 2:
            w = wread(kb, wb[(kb - 2) % 2])
            if len(w) == 3: X.append([w[1], w[0]] if False else [w[0], w[1]]); X.append([w[2]])
            else: X.append([w[0]]); X.append([w[1]])
        ms = [SM(QA, a, frag(F_QA(kb))), SM(QB, a, frag(F_QB(kb))), SM(KA, a, frag(F_KA(kb))), SM(KB, a, kbsrc)]
        for i, m in enumerate(ms):
            if not (last and i < 2): W.raw(m)
            if X:
                for y in X.pop(0): W.raw(y)
            for y in extra.get(i, []): W.raw(y)
        assert not X, X
    group(0, {1: [f"v_add_u32 v{V_VX}, s{S_L8}, v{V_L16}"]}); group(1, {}); group(2, {})
    group(3, {3: ["s_waitcnt vmcnt(0)", f"s_mov_b64 exec, {M48}", f"ds_write_b128 v{V_VX}, v[52:55]", "s_mov_b64 exec, -1"]})
    slow = p.newlabel("st2_slow"); back = p.newlabel("st2_back")
    group(4, {2: [f"v_max3_u32 v{V_VX+1}, v52, v53, v54"], 3: [f"v_max_u32 v{V_VX+1}, v{V_VX+1}, v55"]})
    I(f"s_mov_b64 exec, {M48}", f"v_cmp_eq_u32 vcc, -1, v{V_VX+1}", "s_mov_b64 exec, -1", f"s_cbranch_vccnz {slow}")
    p.L(back)
    p.waitw()
    I("s_barrier")
    stamp(p, 13, first)
    W.raw(aread(6, Ab[0])); W.raw(aread(7, Ab[1]))
    vxl = [f"buffer_load_dwordx4 v[{V_VX+4*tb}:{V_VX+4*tb+3}], v{V_L16}, {WS}, s{S_VX} offen offset:{tb*1024} sc1" for tb in range(2)]
    io = []
    io_vm = [f"v_lshrrev_b32 v{V_VX+1}, 1, v{V_L16}", f"buffer_store_dwordx2 v[{V_PY}:{V_PY+1}], v{V_VX+1}, {WS}, s{S_VM} offen sc1"]
    group(5, {2: [f"s_add_u32 s{S_MEMR}, s{S_MEMR}, {MEM_SLOT}", f"s_cmp_ge_u32 s{S_MEMR}, s{S_MEMEND}"], 3: [aread(8, Ab[2])]})
    group(6, {2: [f"s_cselect_b32 s{S_T0}, {4*MEM_SLOT}, 0", f"s_sub_u32 s{S_MEMR}, s{S_MEMR}, s{S_T0}"], 3: [vxl[0]]})
    group(7, {2: [f"s_add_u32 s{S_MEMR8}, s{S_MEMR}, s{S_D8}"], 3: [vxl[1]]})
    pf = []
    if PREF[0]:
        pf = [[f"s_sub_u32 s{S_T0}, s{S_VX}, s{S_W2048}", f"s_add_u32 s{S_T0}, s{S_T0}, {32*8192}", f"v_lshlrev_b32 v{V_MP}, 3, v{V_L16}"],
              [f"s_sub_u32 s{S_T1}, s{S_KX}, s{S_W2048}", f"s_add_u32 s{S_T1}, s{S_T1}, {32*8192}"],
              [f"s_mov_b64 exec, s[{S_PFM}:{S_PFM+1}]", f"buffer_load_dword v{V_DUM}, v{V_MP}, {WS}, s{S_T0} offen ; nodep"],
              [f"buffer_load_dword v{V_DUM}, v{V_MP}, {WS}, s{S_T1} offen ; nodep", "s_mov_b64 exec, -1"]]
        if PFBR[0]:
            group(8, {})
        else:
            group(8, {0: pf[0], 1: pf[1], 2: pf[2], 3: pf[3]})
    else:
        group(8, {})
    W.raw(f"v_lshrrev_b32 v{V_MP}, 1, v{V_L16}") if False else None
    EXPORT = [f"v_lshrrev_b32 v52, 1, v{V_L16}", f"buffer_store_dwordx2 v[{V_PY}:{V_PY+1}], v52, {WS}, s{S_VM} offen sc1"]
    if FUSED[0]:
        EXPORT += [f"v_mov_b32 v52, s{S_PUBV}", f"s_mov_b64 exec, s[{S_PUB}:{S_PUB+1}]", f"buffer_store_dword v52, v{V_SQA+1}, {WS}, s{S_CHF} offen sc1", "s_mov_b64 exec, -1"]
    if EXPL[0] == 0 or last:
        for y in EXPORT: W.raw(y)
    SLOW.append((slow, back, ld2, M48, V_VX))
    stamp(p, 3, first)
    p.C("post QK, V phase as filler")
    items = []
    w9 = wread(9, wb[1])
    vorder = VRES + VSTR
    vA = [A0, A1]
    ubuf = {8: wb[0], 9: wb[1]}
    for pos, kb in enumerate(vorder):
        a = vA[pos % 2]
        for tb in range(2):
            it = []
            if pos < 4:
                it.append(SM(VA + 4 * tb, a, frag(F_VS(tb, pos))))
                if pos == 0: it.append(w9[tb])
            else:
                u = 8 + (pos - 4) * 2 + tb
                b = ubuf[u]
                it.append(SM(VA + 4 * tb, a, f"v[{b}:{b+7}]"))
                if u + 2 < 18:
                    it += wread(u + 2, b); ubuf[u + 2] = b
            if tb == 1 and pos + 2 < 9: it.append(aread(vorder[pos + 2], a))
            items.append(it)
    def VI(n):
        return ("call", lambda n=n: [W.raw(y) for _ in range(n) if items for y in items.pop(0)])
    crit = []
    C = crit.append
    zero = [f"v_mov_b64 v[{VA}:{VA+1}], 0", f"v_mov_b64 v[{VA+2}:{VA+3}], 0", f"v_mov_b64 v[{VB}:{VB+1}], 0", f"v_mov_b64 v[{VB+2}:{VB+3}], 0"]
    if not last:
        C(ad(32, 32, 34)); C(ad(33, 33, 35)); C(ad(36, 36, 38)); C(ad(37, 37, 39)); C(cv(34, 32, 33)); C(cv(35, 36, 37))
    C(ad(40, 40, 42)); C(ad(41, 41, 43)); C(zero[2]); C(zero[3]); C(ad(44, 44, 46)); C(ad(45, 45, 47)); C(cv(42, 40, 41)); C(cv(43, 44, 45))
    if not last:
        C(f"v_mfma_f32_16x16x16_bf16 v[36:39], v[34:35], v[{V_SQA}:{V_SQA+1}], 0")
        C(zero[0]); C(zero[1])
        C(f"v_mfma_f32_16x16x16_bf16 v[32:35], v[34:35], v[{V_SQB}:{V_SQB+1}], 0")
    else:
        C(zero[0]); C(zero[1])
    C(f"v_mfma_f32_16x16x16_bf16 v[44:47], v[42:43], v[{V_SKA}:{V_SKA+1}], 0")
    C(f"v_mfma_f32_16x16x16_bf16 v[40:43], v[42:43], v[{V_SKB}:{V_SKB+1}], 0")
    KMST = f"buffer_store_dwordx4 v[44:47], v{V_L16}, {WS}, s{S_KM} offen sc1"
    OA_, OB_, LL = 32, 52, 56
    VMST = [f"v_lshrrev_b32 v60, 1, v{V_L16}", f"buffer_store_dwordx2 v[50:51], v60, {WS}, s{S_VM} offen sc1"]
    if last:
        C(cv(44, 44, 45)); C(cv(45, 46, 47)); C(cv(46, 40, 41)); C(cv(47, 42, 43)); C(KMST)
        W.weave(crit, []); W.drain(items)
        W.raw(f"v_subrev_u32 v{V_WV}, 0x20000, v{V_WV}")
        W.raw(ad(VA, VA, VA + 2)); W.raw(ad(VA + 1, VA + 1, VA + 3)); W.raw(ad(VB, VB, VB + 2)); W.raw(ad(VB + 1, VB + 1, VB + 3))
        W.raw(cv(50, VA, VA + 1)); W.raw(cv(51, VB, VB + 1))
        W.raw(f"s_add_u32 s{S_VM}, s{S_VM}, {32*2048}")
        for y in VMST: W.raw(y)
        p.fence(); p.reset_q()
        return
    V1, V2, V3, V4, V5, V6, V7 = VPLACE
    C(cv(36, 36, 37)); C(cv(37, 38, 39)); C(cv(38, 32, 33)); C(cv(39, 34, 35))
    C(f"v_mfma_f32_16x16x32_bf16 v[32:35], v[{V_KX}:{V_KX+3}], v[36:39], 0")
    C(cv(44, 44, 45)); C(cv(45, 46, 47)); C(cv(46, 40, 41)); C(cv(47, 42, 43))
    C(f"v_mfma_f32_16x16x32_bf16 v[40:43], v[{V_KX+4}:{V_KX+7}], v[36:39], 0")
    C(f"v_mfma_f32_16x16x32_bf16 v[36:39], v[44:47], v[36:39], 0")
    k = V_KX
    C(f"v_and_b32 v{k+6}, 0x70, v{V_L16}"); C(f"v_lshrrev_b32 v{k+7}, 1, v{V_L16}"); C(f"v_and_b32 v{k+7}, 0x180, v{k+7}"); C(f"v_or_b32 v{k+6}, v{k+6}, v{k+7}")
    C(f"v_lshrrev_b32 v{k+7}, 1, v{k+6}"); C(f"v_and_b32 v{k}, 0x80, v{V_L16}"); C(f"v_lshl_add_u32 v{k+6}, v{k}, 2, v{k+6}")
    C(VI(V1))
    C(f"v_add_u32 v{k+6}, {SEXX}, v{k+6}"); C(f"v_add_u32 v{k+7}, {SEXM}, v{k+7}")
    C(f"v_add_u32 v{k}, s{S_W1024}, v{k+6}"); C(f"v_add_u32 v{k+1}, s{S_W256}, v{k+7}")
    for r in range(4): C(f"v_cndmask_b32_e64 v{32+r}, v{40+r}, v{32+r}, s[{S_NLT8}:{S_NLT8+1}]")
    C(f"ds_write_b128 v{k}, v[32:35]"); C(f"ds_write_b64 v{k+1}, v[36:37]")
    C(("call", lambda: stamp(p, 4, first)))
    C(VI(V2))
    C(KMST)
    if EXPL[0] == 1:
        for y in EXPORT: C(y.replace("v52", f"v{k+2}"))
    C(("call", p.waitw)); C("s_barrier")
    C(("call", lambda: stamp(p, 5, first)))
    for w in range(4): C(f"ds_read_b128 v[{32+4*w}:{35+4*w}], v{k+6} offset:{w*1024}")
    C(f"ds_read2_b64 v[{k}:{k+3}], v{k+7} offset0:0 offset1:32"); C(f"ds_read2_b64 v[{k+4}:{k+7}], v{k+7} offset0:64 offset1:96")
    C(VI(V3))
    for r in range(4): C(ad(32 + r, 32 + r, 36 + r))
    for r in range(4): C(ad(40 + r, 40 + r, 44 + r))
    for r in range(4): C(ad(32 + r, 32 + r, 40 + r))
    C("v_max3_f32 v38, v32, v33, v34")
    C(VI(V4))
    C(ad(k, k, k + 2)); C(ad(k + 1, k + 1, k + 3)); C(ad(k + 4, k + 4, k + 6)); C(ad(k + 5, k + 5, k + 7)); C(ad(36, k, k + 4)); C(ad(37, k + 1, k + 5))
    for kt in range(2):
        C(f"buffer_load_dwordx4 v[{V_KX+4*kt}:{V_KX+4*kt+3}], v{V_L16}, {WS}, s{S_KX} offen offset:{kt*1024} sc1")
    C("v_max3_f32 v38, v38, v35, v36"); C("v_max_f32 v38, v38, v37")
    C(VI(V5))
    C("v_max_f32_dpp v38, v38, v38 row_ror:8 row_mask:0xf bank_mask:0xf")
    C("v_mov_b32 v39, v38"); C("v_mov_b32 v45, 0"); C("v_mov_b32 v46, 0"); C("v_permlane16_swap_b32 v38, v39"); C("v_max_f32 v38, v38, v39")
    C("v_mov_b32 v39, v38"); C(VI(V6)); C("v_permlane32_swap_b32 v38, v39"); C("v_max_f32 v38, v38, v39")
    C(f"v_mul_f32 v38, s{S_C}, v38")
    for r in range(6): C(f"v_fma_f32 v{32+r}, v{32+r}, s{S_C}, -v38")
    C(VI(V7))
    for r in range(6): C(f"v_exp_f32 v{32+r}, v{32+r}")
    C(cv(40, 32, 33)); C(cv(41, 34, 35)); C(cv(44, 36, 37))
    for r in range(0, 4, 2): C(f"v_mov_b64 v[{36+r}:{37+r}], s[{S_ONES}:{S_ONES+1}]")
    C("v_mov_b32_dpp v42, v40 row_ror:8 row_mask:0xf bank_mask:0xf"); C("v_mov_b32_dpp v43, v41 row_ror:8 row_mask:0xf bank_mask:0xf")
    C("v_mov_b32 v47, v44")
    C(("call", lambda: stamp(p, 6, first)))
    W.weave(crit, [])
    rest = items
    W.raw(f"v_mfma_f32_16x16x32_bf16 v[{OA_}:{OA_+3}], v[{V_VX}:{V_VX+3}], v[40:43], 0")
    W.drain(rest)
    assert wv_state["b"] == 2
    W.raw(f"v_subrev_u32 v{V_WV}, 0x20000, v{V_WV}")
    W.raw(ad(VA, VA, VA + 2)); W.raw(ad(VA + 1, VA + 1, VA + 3)); W.raw(ad(VB, VB, VB + 2)); W.raw(ad(VB + 1, VB + 1, VB + 3))
    W.raw(cv(50, VA, VA + 1)); W.raw(cv(51, VB, VB + 1))
    stamp(p, 7, first)
    p.C("PV")
    crit = [f"v_mfma_f32_16x16x32_bf16 v[{LL}:{LL+3}], v[36:39], v[40:43], 0",
            f"v_mfma_f32_16x16x32_bf16 v[{OB_}:{OB_+3}], v[{V_VX+4}:{V_VX+7}], v[40:43], 0",
            f"v_mfma_f32_16x16x16_bf16 v[{OA_}:{OA_+3}], v[50:51], v[44:45], v[{OA_}:{OA_+3}]",
            f"v_mfma_f32_16x16x16_bf16 v[{LL}:{LL+3}], v[36:37], v[44:45], v[{LL}:{LL+3}]",
            f"v_mfma_f32_16x16x16_bf16 v[{OB_}:{OB_+3}], v[50:51], v[46:47], v[{OB_}:{OB_+3}]",
            f"v_rcp_f32 v{LL}, v{LL}"]
    for b in (OA_, OB_):
        for r in range(4): crit.append(f"v_mul_f32 v{b+r}, v{b+r}, v{LL}")
    crit += [cv(OA_, OA_, OA_ + 1), cv(OA_ + 1, OA_ + 2, OA_ + 3), cv(OB_, OB_, OB_ + 1), cv(OB_ + 1, OB_ + 2, OB_ + 3)]
    fill = [f"v_mov_b64 v[{V_PY}:{V_PY+1}], v[50:51]", f"v_bfe_u32 v61, v{V_L16}, 4, 3", f"v_bfe_u32 v62, v{V_L16}, 9, 1", f"v_add_u32 v62, s{S_W4}, v62", "v_xor_b32 v62, v62, v61",
            "v_lshlrev_b32 v62, 4, v62", "v_lshl_add_u32 v62, v61, 8, v62", f"v_bfe_u32 v61, v{V_L16}, 8, 1", "v_lshl_add_u32 v62, v61, 3, v62", f"v_add_u32 v62, {OIMG}, v62", "v_xor_b32 v63, 32, v62"]
    rest = W.weave(crit, [[f] for f in fill]); W.drain(rest)
    W.raw(f"s_mov_b64 exec, s[{S_NLT8}:{S_NLT8+1}]"); W.raw(f"ds_write_b64 v62, v[{OA_}:{OA_+1}]"); W.raw(f"ds_write_b64 v63, v[{OB_}:{OB_+1}]"); W.raw("s_mov_b64 exec, -1")
    stamp(p, 8, first)
    OACC = [32 + 4 * j for j in range(9)]
    OAr = 72; G = 68
    I(f"v_mov_b32 v71, s{S_TAG}")
    for b in range(34, 68, 2):
        if b in (52, 62): continue
        I(f"v_mov_b64 v[{b}:{b+1}], 0")
    p.waitw()
    I("s_barrier")
    I(f"ds_read_b128 v[{OAr}:{OAr+3}], v{V_OR}", f"ds_read_b128 v[{OAr+4}:{OAr+7}], v{V_OR} offset:128")
    for b in (32, 52, 62): I(f"v_mov_b64 v[{b}:{b+1}], 0")
    stamp(p, 9, first)
    p.C("O-proj")
    W = Weaver(p)
    osm = lambda j, kb: SM(OACC[j], OAr + 4 * kb, frag(F_WO(j, kb)))
    seq = [(0, 0), (1, 0), (0, 1), (1, 1)] + [(j, kb) for j in range(2, 9) for kb in range(2)]
    def fin(j):
        b = OACC[j]
        ops = [ad(b, b, b + 2), ad(b + 1, b + 1, b + 3), cv(G + j % 3, b, b + 1)]
        if j % 3 == 2: ops.append(f"buffer_store_dwordx4 v[{G}:{G+3}], v{V_PS}, {WS}, s{S_PS + j // 3} offen{sc_st}")
        return ops
    done_at = {}
    pend = []
    for idx, (j, kb) in enumerate(seq):
        W.raw(osm(j, kb))
        if kb == 1: done_at[j] = idx
        for jj in list(done_at):
            if idx >= done_at[jj] + 2:
                pend += fin(jj); del done_at[jj]
        n = 2 if len(pend) > 2 else 1
        for _ in range(n):
            if pend: W.raw(pend.pop(0))
    for jj in sorted(done_at): pend += fin(jj)
    for o in pend: W.raw(o)
    stamp(p, 10, first)
    p.C("reduce")
    skip = p.newlabel("notask")
    if PFBR[0] and PREF[0]:
        nt = p.newlabel("hastask")
        I(f"s_cmp_lg_u32 s{S_HASTASK}, 0", f"s_cbranch_scc1 {nt}")
        I(f"s_sub_u32 s{S_T0}, s{S_VX}, s{S_W2048}", f"s_add_u32 s{S_T0}, s{S_T0}, {32*8192}", f"v_lshlrev_b32 v{V_MP}, 3, v{V_L16}",
          f"s_sub_u32 s{S_T1}, s{S_KX}, s{S_W2048}", f"s_add_u32 s{S_T1}, s{S_T1}, {32*8192}")
        I(f"buffer_load_dword v{V_DUM}, v{V_MP}, {WS}, s{S_T0} offen ; nodep", f"buffer_load_dword v{V_DUM}, v{V_MP}, {WS}, s{S_T1} offen ; nodep")
        I(f"s_branch {skip}")
        p.L(nt)
    else:
        I(f"s_cmp_eq_u32 s{S_HASTASK}, 0", f"s_cbranch_scc1 {skip}")
    RS = 64
    if DELAY1[0]:
        nd = p.newlabel("nodelay")
        I(f"s_cmp_eq_u32 s{S_ISW2}, 0", f"s_cbranch_scc1 {nd}")
        delay(p, DELAY1[0])
        p.L(nd)
    if DELAYG1[0]:
        nd = p.newlabel("nodelay1")
        I(f"s_cmp_lg_u32 s{S_WV}, 1", f"s_cbranch_scc1 {nd}")
        delay(p, DELAYG1[0])
        p.L(nd)
    delay(p, DELAY0[0])
    retry = p.newlabel("p_retry"); ok = p.newlabel("p_ok")
    p.L(retry)
    for i in range(4):
        I(f"buffer_load_dwordx4 v[{32+4*i}:{35+4*i}], v{V_L16}, {WS}, s{S_PL} offen offset:{i*1024} sc1")
    I(f"s_add_u32 s{S_TO2}, s{S_TO2}, 1")
    I(f"v_bfe_u32 v69, v{V_L16}, 4, 2", f"v_bfe_u32 v70, v{V_L16}, 6, 2", "v_lshlrev_b32 v71, 4, v69", "v_mov_b32 v68, 0x3f80", "v_lshlrev_b32 v68, v71, v68",
      "v_cmp_gt_u32 vcc, 2, v69", "v_cndmask_b32 v71, 0, v68, vcc")
    for r in range(3): I(f"v_cmp_eq_u32 vcc, {r}, v70", f"v_cndmask_b32 v{RS+r}, 0, v71, vcc")
    I(f"v_mov_b32 v{RS+3}, 0")
    I(f"v_bfe_u32 v68, v{V_L16}, 8, 2", "v_lshlrev_b32 v68, 10, v68", f"v_bfe_u32 v69, v{V_L16}, 4, 3", "v_lshl_add_u32 v68, v69, 1, v68")
    D = 72
    for i in range(4):
        I(f"s_waitcnt vmcnt({3-i})")
        c = "0" if i == 0 else f"v[{D}:{D+3}]"
        I(f"v_mfma_f32_16x16x32_bf16 v[{D}:{D+3}], v[{RS}:{RS+3}], v[{32+4*i}:{35+4*i}], {c}")
        if i == 2: I("v_min3_u32 v76, v35, v39, v43")
        if i == 3: I("v_min_u32 v76, v76, v47")
    I(f"v_cmp_ne_u32 vcc, s{S_TAG}, v76", f"s_cbranch_vccz {ok}", f"s_cmp_lt_u32 s{S_TO2}, 0x200000", f"s_cbranch_scc1 {retry}")
    p.L(ok)
    stamp(p, 11, first)
    p.fence()
    I(f"v_add_f32_dpp v{D}, v{D}, v{D} row_ror:8 row_mask:0xf bank_mask:0xf", f"v_add_f32_dpp v{D+1}, v{D+1}, v{D+1} row_ror:8 row_mask:0xf bank_mask:0xf")
    I(f"v_mov_b32_dpp v76, v{D} quad_perm:[1,0,3,2] row_mask:0xf bank_mask:0xf", f"v_mov_b32_dpp v77, v{D+1} quad_perm:[1,0,3,2] row_mask:0xf bank_mask:0xf")
    I(f"v_cvt_pk_bf16_f32 v76, v{D}, v76", f"v_cvt_pk_bf16_f32 v77, v{D+1}, v77", "v_mov_b32 v78, -1")
    I(f"s_mov_b64 exec, s[{S_EXMS}:{S_EXMS+1}]", f"buffer_store_dword v76, v68, {WS}, s{S_MEMW} offen{sc_st}", f"buffer_store_dword v77, v68, {WS}, s{S_MEMW} offen offset:16{sc_st}")
    I(f"buffer_store_dword v78, v68, {WS}, s{S_MEMZ} offen{sc_st}", f"buffer_store_dword v78, v68, {WS}, s{S_MEMZ} offen offset:16{sc_st}", "s_mov_b64 exec, -1")
    p.L(skip)
    for r_ in (S_MEMW, S_MEMZ):
        I(f"s_add_u32 s{r_}, s{r_}, {MEM_SLOT}", f"s_cmp_ge_u32 s{r_}, s{S_MEMWEND}", f"s_cselect_b32 s{S_T0}, {4*MEM_SLOT}, 0", f"s_sub_u32 s{r_}, s{r_}, s{S_T0}")
    I(f"s_add_u32 s{S_VX}, s{S_VX}, {32*8192}", f"s_add_u32 s{S_KM}, s{S_KM}, {32*4096}", f"s_add_u32 s{S_VM}, s{S_VM}, {32*2048}", f"s_add_u32 s{S_KX}, s{S_KX}, {32*8192}", f"s_add_u32 s{S_STEP}, s{S_STEP}, 1")
    stamp(p, 12, first)
    p.fence()
    p.reset_q()

def emit_slow(p):
    I = p.I
    WS = f"s[{S_WS}:{S_WS+3}]"
    while SLOW:
        slow, back, ld2, M48, areg = SLOW.pop(0)
        p.fence(); p.reset_q()
        p.L(slow)
        lp = p.newlabel("st2_lp")
        I(f"s_mov_b64 exec, {M48}")
        p.L(lp)
        I(ld2, "s_waitcnt vmcnt(0)", f"v_max3_u32 v{V_VX+1}, v52, v53, v54", f"v_max_u32 v{V_VX+1}, v{V_VX+1}, v55", f"v_cmp_eq_u32 vcc, -1, v{V_VX+1}", f"s_add_u32 s{S_TO3}, s{S_TO3}, 1")
        ok = p.newlabel("st2_ok")
        I(f"s_cbranch_vccz {ok}", f"s_cmp_lt_u32 s{S_TO3}, 0x200000", f"s_cbranch_scc1 {lp}")
        p.L(ok)
        I(f"ds_write_b128 v{areg}, v[52:55]", "s_mov_b64 exec, -1", "s_waitcnt lgkmcnt(0)", f"s_branch {back}")
        p.reset_q()

def chain_loop(p, local, nsteps=64):
    I = p.I
    p.reset_q()
    loop = p.newlabel("chain_loop")
    p.fence()
    p.L(loop)
    step(p, local=local)
    I(f"s_cmp_lt_u32 s{S_STEP}, {nsteps-1}", f"s_cbranch_scc1 {loop}")
    step(p, local=local, first=False, last=True)
    I("s_waitcnt vmcnt(0)", "s_barrier")
    if FUSED[0]:
        I("v_mov_b32 v52, 64", "v_mov_b32 v53, 0", f"s_mov_b64 exec, s[{S_PUB}:{S_PUB+1}]", f"buffer_store_dword v52, v53, s[{S_WS}:{S_WS+3}], s{S_CHF} offen sc1", "s_mov_b64 exec, -1")
    over = p.newlabel("over_slow")
    I(f"s_branch {over}")
    emit_slow(p)
    p.L(over)

def gen_chain(p, local=True, nsteps=64, stamps=False):
    I = p.I
    setup_chain(p, local)
    preload(p)
    chain_state(p)
    if stamps: I(f"s_memtime s[{S_TS}:{S_TS+1}]", "s_waitcnt lgkmcnt(0)")
    chain_loop(p, local, nsteps)
    if stamps:
        I("s_waitcnt vmcnt(0) lgkmcnt(0)", f"s_memtime s[{S_TS+2}:{S_TS+3}]", "s_waitcnt lgkmcnt(0)")
        I(f"s_sub_u32 s{S_TS}, s{S_TS+2}, s{S_TS}", f"v_mov_b32 v44, s{S_TS}")
        lab = p.newlabel("st")
        I(f"s_cmp_lg_u32 s{S_WV}, 0", f"s_cbranch_scc1 {lab}")
        I(f"s_lshl_b32 s{S_T0}, s{S_H}, 2", f"s_add_u32 s{S_T0}, s{S_T0}, 128", f"v_mov_b32 v45, s{S_T0}", "s_mov_b64 exec, 1", f"global_store_dword v45, v44, s[{S_DBG}:{S_DBG+1}]", "s_mov_b64 exec, -1")
        p.L(lab)
    prof_dump(p)

def prof_dump(p):
    I = p.I
    if PROF[0]:
        I("s_waitcnt lgkmcnt(0)")
        I(f"s_lshl_b32 s{S_T0}, s{S_H}, 2", f"s_add_u32 s{S_T0}, s{S_T0}, s{S_WV}", f"s_lshl_b32 s{S_T0}, s{S_T0}, 7", f"s_add_u32 s{S_T0}, s{S_T0}, {0x9000000}")
        I("s_mov_b64 exec, 1", "v_mov_b32 v45, 0")
        for k in range(PNST):
            I(f"v_mov_b32 v44, s{S_ST+2*k if k < 13 else 14}", f"buffer_store_dword v44, v45, s[{S_WS}:{S_WS+3}], s{S_T0} offen offset:{4*k}")
        for k, r_ in enumerate((S_TO, S_TO2, S_TO3)):
            I(f"v_mov_b32 v44, s{r_}", f"buffer_store_dword v44, v45, s[{S_WS}:{S_WS+3}], s{S_T0} offen offset:{64+4*k}")
        I("s_mov_b64 exec, -1")

def standalone(local=True, stamps=True, nsteps=64):
    name = "chain_kernel"
    p = AProg()
    p.raw(f"; @launch kernel={name} grid=(256,1,1) block=(256,1,1) lds=163840")
    p.raw('.amdgcn_target "amdgcn-amd-amdhsa--gfx950"\n.text')
    p.raw(f".globl {name}\n.p2align 8\n.type {name},@function\n{name}:")
    I = p.I
    I(f"s_cmp_ge_u32 s2, 256", "s_cbranch_scc1 L_end")
    I(f"s_load_dwordx2 s[{S_PTR}:{S_PTR+1}], s[0:1], {KARG['A_mem0']}")
    I(f"s_load_dwordx4 s[{S_PTR+2}:{S_PTR+5}], s[0:1], {KARG['A_Wq']}")
    I(f"s_load_dwordx2 s[{S_PTR+6}:{S_PTR+7}], s[0:1], {KARG['A_Wv']}")
    I(f"s_load_dwordx2 s[{S_PTR+8}:{S_PTR+9}], s[0:1], {KARG['A_Wo']}")
    I(f"s_load_dwordx2 s[{S_DBG}:{S_DBG+1}], s[0:1], {KARG['dbg']}")
    I(f"s_load_dwordx2 s[{S_PTR+10}:{S_PTR+11}], s[0:1], {KARG['ws']}")
    I("s_waitcnt lgkmcnt(0)")
    I(f"s_mov_b32 s{S_WS}, s{S_PTR+10}", f"s_and_b32 s{S_WS+1}, s{S_PTR+11}, 0xffff", f"s_mov_b32 s{S_WS+2}, {WS_BYTES}", f"s_mov_b32 s{S_WS+3}, 0x20000")
    I(f"s_mov_b32 s{S_MEM}, s{S_PTR}", f"s_and_b32 s{S_MEM+1}, s{S_PTR+1}, 0xffff", f"s_mov_b32 s{S_MEM+2}, 9216", f"s_mov_b32 s{S_MEM+3}, 0x20000")
    lane_consts(p)
    I(f"s_getreg_b32 s{S_T0}, hwreg(HW_REG_XCC_ID, 0, 4)")
    I(f"s_cmp_lg_u32 s{S_T0}, 0", "s_cbranch_scc1 L_end")
    lab = p.newlabel("role")
    I(f"s_cmp_lg_u32 s{S_WV}, 0", f"s_cbranch_scc1 {lab}")
    I("s_mov_b64 exec, 1", "v_mov_b32 v44, 1", "v_mov_b32 v45, 0", f"global_atomic_add v46, v45, v44, s[{S_DBG}:{S_DBG+1}] sc0", "s_waitcnt vmcnt(0)", "v_mov_b32 v45, 0", "ds_write_b32 v45, v46", "s_waitcnt lgkmcnt(0)", "s_mov_b64 exec, -1")
    p.L(lab)
    I("s_barrier", "v_mov_b32 v45, 0", "ds_read_b32 v46, v45", "s_waitcnt lgkmcnt(0)", f"v_readfirstlane_b32 s{S_H}, v46", "s_barrier")
    I(f"s_cmp_ge_u32 s{S_H}, 32", "s_cbranch_scc1 L_end")
    gen_chain(p, local=local, stamps=stamps, nsteps=nsteps)
    p.L("L_end")
    I("s_endpgm")
    p.raw(kd(name))
    return p.render()

if __name__ == "__main__":
    import sys
    for a in sys.argv[2:]:
        if a == "prof": PROF[0] = True
        if a == "rt": RT[0] = True
        if a.startswith("hold="): HOLD[0] = int(a[5:])
        if a.startswith("lead="): LEAD[0] = int(a[5:])
        if a.startswith("lat="): Weaver.LDS_LAT = int(a[4:])
        if a.startswith("vp="): VPERIOD[0] = int(a[3:])
        if a == "nobar4": BAR4[0] = False
        if a.startswith("touch="): TOUCH[0] = int(a[6:])
        if a.startswith("s2i="): ST2_ISSUE[0] = int(a[4:])
        if a.startswith("s2c="): ST2_CHECK[0] = int(a[4:])
        if a.startswith("g1="): DELAYG1[0] = int(a[3:])
        if a == "nopref": PREF[0] = False
        if a.startswith("expl="): EXPL[0] = int(a[5:])
        if a == "pfbr": PFBR[0] = True
        if a == "norot": ROT[0] = False
        if a.startswith("vpl="): VPLACE[:] = [int(c) for c in a[4:]]
        if a.startswith("d3="): DELAY3[0] = int(a[3:])
        if a.startswith("d0="): DELAY0[0] = int(a[3:])
        if a.startswith("d1="): DELAY1[0] = int(a[3:])
        if a.startswith("d2="): DELAY2[0] = int(a[3:])
    open(sys.argv[1], "w").write(standalone())
```

```python
from asmlib2 import *
from common import *
from gemm576 import G_WS, G_W, G_O, G_WV, G_T0, G_T1, G_T2, G_T3, G_SEG, G_SEGSTEP, G_NSEG, G_IT, G_WCOL
def bfrag(i):
    return f"a[{4*i}:{4*i+3}]" if i < 64 else f"v[{128+4*(i-64)}:{128+4*(i-64)+3}]"
def bfrag_sub(i, off, n):
    k, b = ("a", 4*i) if i < 64 else ("v", 128 + 4*(i-64))
    return f"{k}[{b+off}:{b+off+n-1}]"
def oproj_preload(p):
    I = p.I
    I("v_lshrrev_b32 v40, 3, v33", "v_and_b32 v41, 7, v33")
    for jj in range(4):
        I(f"s_lshl_b32 s{G_T0}, s{G_WV}, 5", f"s_add_u32 s{G_T0}, s{G_T0}, {8*jj}", f"v_add_u32 v42, s{G_T0}, v40",
          "v_bfe_u32 v43, v42, 1, 2", "v_lshlrev_b32 v43, 1, v43", "v_xor_b32 v43, v43, v41", "v_mul_u32_u24 v42, 1152, v42", f"v_lshl_add_u32 v{52+jj}, v43, 4, v42")
    I("v_lshrrev_b32 v40, 2, v34", "v_and_b32 v41, 3, v34", "v_lshl_add_u32 v42, v35, 2, v40", "v_bfe_u32 v43, v42, 1, 2", "v_lshlrev_b32 v44, 7, v42", "v_lshl_add_u32 v44, v41, 3, v44")
    for t in range(3): I(f"v_xor_b32 v45, {t}, v43", f"v_lshl_add_u32 v{56+t}, v45, 5, v44")
    NSL = 10
    issued = [0]
    def issue(c):
        I(f"s_mov_b32 s{G_T0}, {c*128*1152}", f"s_add_u32 s{G_T0}, s{G_T0}, s{G_WCOL}")
        I(f"s_lshl_b32 s{G_T1}, s{G_WV}, 12", f"s_add_u32 s{G_T1}, s{G_T1}, {(c % NSL) * 16384}")
        for jj in range(4):
            I(f"s_add_u32 m0, s{G_T1}, {jj*1024}", f"buffer_load_dwordx4 v{52+jj}, s[{G_W}:{G_W+3}], s{G_T0} offen lds")
        issued[0] = c + 1
    for c in range(NSL): issue(c)
    for c in range(32):
        I(f"s_waitcnt vmcnt({4*(issued[0]-1-c)})", "s_barrier")
        sk = p.newlabel("op_sk")
        I(f"s_cmp_lg_u32 s{G_WV}, {c // 8}", f"s_cbranch_scc1 {sk}")
        sb = (c % NSL) * 16384
        j = c % 8
        for t in range(3):
            I(f"v_add_u32 v44, {sb}, v{56+t}")
            for pp in range(4):
                i = t * 32 + j * 4 + pp
                I(f"ds_read_b64_tr_b16 {bfrag_sub(i, 0, 2)}, v44 offset:{pp*32*128}", f"ds_read_b64_tr_b16 {bfrag_sub(i, 2, 2)}, v44 offset:{(pp*32+16)*128}")
        I("s_waitcnt lgkmcnt(0)")
        p.L(sk)
        I("s_barrier")
        if c + NSL < 32: issue(c + NSL)
OSC = ['']
def oproj_seg(p):
    I = p.I
    WS = f"s[{G_WS}:{G_WS+3}]"
    ACC = 112
    NB = 20
    I(f"s_lshl_b32 s{G_T0}, s{G_SEG}, 5", f"s_lshl_b32 s{G_T1}, s{G_WV}, 3", f"s_add_u32 s{G_T0}, s{G_T0}, s{G_T1}", f"s_lshl_b32 s{G_T0}, s{G_T0}, 12", f"s_add_u32 s{G_T0}, s{G_T0}, {OX_OFF}")
    order = [(j, pp) for j in range(8) for pp in range(4)]
    def ld(idx):
        j, pp = order[idx]; b = 32 + 4 * (idx % NB)
        if pp == 0: I(f"s_add_u32 s{G_T1}, s{G_T0}, {j*4096}")
        I(f"buffer_load_dwordx4 v[{b}:{b+3}], v0, {WS}, s{G_T1} offen offset:{pp*1024} sc1")
    for idx in range(NB): ld(idx)
    for idx, (j, pp) in enumerate(order):
        b = 32 + 4 * (idx % NB)
        for t in range(3):
            d = ACC + 4 * t
            c = "0" if idx == 0 else f"v[{d}:{d+3}]"
            I(f"v_mfma_f32_16x16x32_bf16 v[{d}:{d+3}], v[{b}:{b+3}], {bfrag(t*32 + j*4 + pp)}, {c}")
        if idx + NB < len(order): ld(idx + NB)
    I(f"s_mul_i32 s{G_T1}, s{G_WV}, 3072", f"v_add_u32 v1, s{G_T1}, v0")
    I("s_barrier")
    for i in range(3): I(f"ds_write_b128 v1, v[{ACC+4*i}:{ACC+4*i+3}] offset:{i*1024}")
    I("s_waitcnt lgkmcnt(0)", "s_barrier")
    sk = p.newlabel("op_r")
    I(f"s_cmp_ge_u32 s{G_WV}, 3", f"s_cbranch_scc1 {sk}")
    I(f"s_lshl_b32 s{G_T2}, s{G_WV}, 10", f"v_add_u32 v1, s{G_T2}, v0")
    for w in range(4): I(f"ds_read_b128 v[{32+4*w}:{35+4*w}], v1 offset:{w*3072}")
    for r in range(4): I(f"v_add_f32 v{32+r}, v{32+r}, v{36+r}", f"v_add_f32 v{40+r}, v{40+r}, v{44+r}", f"v_add_f32 v{32+r}, v{32+r}, v{40+r}")
    for r in range(4):
        I(f"v_mov_b32_dpp v{36+r}, v{32+r} quad_perm:[1,0,3,2] row_mask:0xf bank_mask:0xf", f"v_cvt_pk_bf16_f32 v{40+r}, v{32+r}, v{36+r}")
    I(f"s_lshl_b32 s{G_T1}, s{G_SEG}, 4", f"s_mul_i32 s{G_T1}, s{G_T1}, 2304", f"s_lshl_b32 s{G_T3}, s{G_WV}, 5", f"s_add_u32 s{G_T1}, s{G_T1}, s{G_T3}", f"s_add_u32 s{G_T1}, s{G_T1}, s{G_WCOL}")
    I("s_mov_b64 exec, s[70:71]")
    for r in range(4): I(f"buffer_store_dword v{40+r}, v{4+r}, s[{G_O}:{G_O+3}], s{G_T1} offen{OSC[0]}")
    I("s_mov_b64 exec, -1")
    p.L(sk)
def oproj_setup(p):
    I = p.I
    for r in range(4): I(f"v_lshl_add_u32 v40, v35, 2, {r}", "v_mul_u32_u24 v40, 2304, v40", f"v_lshl_add_u32 v{4+r}, v34, 1, v40")
    I("s_mov_b32 s70, 0x55555555", "s_mov_b32 s71, 0x55555555")
```

```python
KX_OFF   = 0x0000000
VX_OFF   = 0x1000000
QX_OFF   = 0x2000000
KM_OFF   = 0x3000000
VM_OFF   = 0x3810000
MEM_OFF  = 0x3C80000
PART_OFF = 0x3D00000
OX_OFF   = 0x4000000
WS_BYTES = 0x10000000
MEM_SLOT = 9216
KARG = dict(A_x=0, A_mem0=8, A_Wq=16, A_Wk=24, A_Wv=32, A_Wo=40, A_seg=48, B_x=56, B_wq=64, B_wk=72, B_wv=80, B_wo=88, out=96, dbg=104, ws=112)
HEADER = """; Kernarg layout: 15 pointers (see the starter file)
"""
def kd(name, vgpr=512, accum=256, sgpr=102):
    return f""".section .rodata,"a"
.p2align 6
.amdhsa_kernel {name}
  .amdhsa_next_free_vgpr {vgpr}
  .amdhsa_next_free_sgpr {sgpr}
  .amdhsa_accum_offset {accum}
  .amdhsa_group_segment_fixed_size 0
  .amdhsa_kernarg_size 120
  .amdhsa_user_sgpr_count 2
  .amdhsa_user_sgpr_kernarg_segment_ptr 1
  .amdhsa_system_sgpr_workgroup_id_x 1
.end_amdhsa_kernel
"""
FLAG_OFF = 0x3E00000
KVCNT, QCNT, ACNT, OCNT = FLAG_OFF, FLAG_OFF + 256, FLAG_OFF + 512, FLAG_OFF + 768
QB_OFF  = 0x5000000
OB_OFF  = 0x5300000
KB_OFF  = 0x5600000
VB_OFF  = 0x5640000
def load_ptrs(p, names, base):
    for i, n in enumerate(names): p.I(f"s_load_dwordx2 s[{base+2*i}:{base+2*i+1}], s[0:1], {KARG[n]}")
def srd(p, dst, ptr, nbytes):
    p.I(f"s_mov_b32 s{dst}, s{ptr}", f"s_and_b32 s{dst+1}, s{ptr+1}, 0xffff", f"s_mov_b32 s{dst+2}, {nbytes}", f"s_mov_b32 s{dst+3}, 0x20000")
def kernel_head(p, name):
    p.raw(f".globl {name}\n.p2align 8\n.type {name},@function\n{name}:")

CHFLG  = FLAG_OFF + 4096
BQCNT  = FLAG_OFF + 1152
BKVCNT = FLAG_OFF + 1156
ATICK  = FLAG_OFF + 1280
BACNT  = FLAG_OFF + 1536
DBG_INIT = 52
DBG_WORK = 48
S_ABORT = 99
def poll_ge(p, srd_ws, off_sreg_or_imm, target, tmpv=(30, 31), tmps=28, imm=False, sleep=4):
    I = p.I
    lab = p.newlabel("pw"); done = p.newlabel("pd")
    a, b = tmpv
    I(f"s_cmp_lg_u32 s{S_ABORT}, 0", f"s_cbranch_scc1 {done}")
    if imm: I(f"s_mov_b32 s{tmps+1}, {off_sreg_or_imm}")
    else: I(f"s_mov_b32 s{tmps+1}, s{off_sreg_or_imm}")
    I(f"s_mov_b32 s{tmps+2}, 0", f"v_mov_b32 v{a}, 0")
    p.L(lab)
    I(f"buffer_load_dword v{b}, v{a}, s[{srd_ws}:{srd_ws+3}], s{tmps+1} offen sc1", "s_waitcnt vmcnt(0)", f"v_readfirstlane_b32 s{tmps}, v{b}")
    I(f"s_cmp_ge_u32 s{tmps}, {target}", f"s_cbranch_scc1 {done}", f"s_sleep {sleep}", f"s_add_u32 s{tmps+2}, s{tmps+2}, 1", f"s_cmp_lt_u32 s{tmps+2}, 0x100000", f"s_cbranch_scc1 {lab}", f"s_mov_b32 s{S_ABORT}, 1")
    p.L(done)
def wait_init(p, dbgpair, tmpv=(30, 31), tmps=28):
    I = p.I
    lab = p.newlabel("iw"); done = p.newlabel("id")
    a, b = tmpv
    I(f"s_mov_b32 s{tmps+2}, 0", f"v_mov_b32 v{a}, {DBG_INIT}")
    p.L(lab)
    I(f"global_load_dword v{b}, v{a}, s[{dbgpair}:{dbgpair+1}] sc1", "s_waitcnt vmcnt(0)", f"v_readfirstlane_b32 s{tmps}, v{b}")
    I(f"s_cmp_lg_u32 s{tmps}, 0", f"s_cbranch_scc1 {done}", "s_sleep 2", f"s_add_u32 s{tmps+2}, s{tmps+2}, 1", f"s_cmp_lt_u32 s{tmps+2}, 0x100000", f"s_cbranch_scc1 {lab}", f"s_mov_b32 s{S_ABORT}, 1")
    p.L(done)
def signal_add(p, srd_ws, off_sreg, tmpv=(30, 31)):
    a, b = tmpv
    p.I("s_mov_b64 exec, 1", f"v_mov_b32 v{a}, 1", f"v_mov_b32 v{b}, 0", f"buffer_atomic_add v{a}, v{b}, s[{srd_ws}:{srd_ws+3}], s{off_sreg} offen", "s_mov_b64 exec, -1")

def poll_ge_far(p, srd_ws, off_sreg, target_sreg, tmpv=(30, 31), tmps=28, near_sleep=6, far_sleep=60):
    I = p.I
    lab = p.newlabel("pw"); done = p.newlabel("pd"); near = p.newlabel("pn"); slp = p.newlabel("ps")
    a, b = tmpv
    I(f"s_cmp_lg_u32 s{S_ABORT}, 0", f"s_cbranch_scc1 {done}")
    I(f"s_mov_b32 s{tmps+1}, s{off_sreg}", f"s_mov_b32 s{tmps+2}, 0", f"v_mov_b32 v{a}, 0")
    p.L(lab)
    I(f"buffer_load_dword v{b}, v{a}, s[{srd_ws}:{srd_ws+3}], s{tmps+1} offen sc1", "s_waitcnt vmcnt(0)", f"v_readfirstlane_b32 s{tmps}, v{b}")
    I(f"s_cmp_ge_u32 s{tmps}, s{target_sreg}", f"s_cbranch_scc1 {done}")
    I(f"s_sub_u32 s{tmps}, s{target_sreg}, s{tmps}", f"s_cmp_le_u32 s{tmps}, 1", f"s_cbranch_scc1 {near}", f"s_min_u32 s{tmps}, s{tmps}, 9", f"s_sub_u32 s{tmps}, s{tmps}, 1")
    p.L(slp)
    I(f"s_sleep {far_sleep}", f"s_sub_u32 s{tmps}, s{tmps}, 1", f"s_cmp_gt_u32 s{tmps}, 0", f"s_cbranch_scc1 {slp}")
    p.L(near)
    I(f"s_sleep {near_sleep}", f"s_add_u32 s{tmps+2}, s{tmps+2}, 1", f"s_cmp_lt_u32 s{tmps+2}, 0x40000", f"s_cbranch_scc1 {lab}", f"s_mov_b32 s{S_ABORT}, 1")
    p.L(done)
```

```python
import struct
from asmlib2 import *
from common import *
import common, sys as _sys
if 'hot' in _sys.argv: MEM_SLOT = 0

MEMIMG, SEXM, SEXX, OIMG, WVL = 0, 9216, 10240, 14336, 16384
PART_BYTES = 48 * 8192
SCALE_LOG2E = 0.08838834764831845 * 1.4426950408889634

S_WS, S_MEM, S_W = 4, 8, 12
S_DBG = 16
S_H, S_WV, S_STEP = 18, 19, 20
S_MEMR, S_MEMW, S_KX, S_VX, S_KM, S_VM = 21, 22, 23, 24, 25, 26
S_TO, S_T0, S_T1, S_T2 = 27, 28, 29, 30
S_C = 31
S_NLT8 = 32
S_M8 = 34
S_PS = 36
S_PL, S_ISW2 = 41, 42
S_W1024, S_W256 = 43, 44
S_HASTASK = 45
S_PTR = 46
S_EXMS = 58
S_D8, S_L8, S_MEMR8, S_TAG = 64, 65, 66, 67
S_ONES, S_W4 = 68, 70
S_MEMR2 = 57
S_B01, S_TO3, S_MEMEND, S_MEMZ, S_MEMWEND = 57, 61, 60, 39, 40
SLOW = []
VPLACE = [2, 4, 3, 2, 2, 2, 3]
V_DUM = 27
ST2_ISSUE = [1]
ST2_CHECK = [4]
S_C2 = 62
S_TCH, S_TMASK = 98, 100
S_RDY, S_CHF = 10, 11
S_PUBV = 13
S_FAST = 14
S_PFM, S_W2048 = 46, 48
PREF = [True]
EXPL = [0]
PFBR = [False]
ROT = [True]
STEPTS = [False]
S_PUB = 8
FUSED = [False]
TOUCH = [2]
S_TO2 = 71
S_TS = 50
PNST = 14
S_ST = 72

V_L16, V_IDX = 0, 1
V_SQA, V_SQB, V_SKA, V_SKB = 2, 4, 6, 8
V_KX, V_VX = 10, 18
V_WV, V_MP, V_PY, V_PS, V_OR = 26, 27, 28, 30, 31

def frag(f): return ar(8 * f, 8) if f < 32 else vr(80 + 8 * (f - 32), 8)
def fragb(f): return ("a", 8 * f) if f < 32 else ("v", 80 + 8 * (f - 32))
def frag_sub(f, off, n):
    k, b = fragb(f)
    return f"{k}[{b+off}:{b+off+n-1}]" if n > 1 else f"{k}{b+off}"
def F_QA(kb): return kb
def F_QB(kb): return 9 + kb
def F_KA(kb): return 18 + kb
F_KB0 = 27
VRES = [6, 7, 0, 1]
VSTR = [2, 3, 4, 5, 8]
def F_VS(tb, slot): return 28 + slot * 2 + tb
def F_WO(j, kb): return 36 + j * 2 + kb

PROF = [False]
RT = [False]
TAGALL = [False]
def stamp(p, k, on):
    r = S_ST + 2 * k if k < 13 else 14
    if PROF[0] and on: p.I(f"{'s_memrealtime' if RT[0] else 's_memtime'} s[{r}:{r+1}]")

def lane_consts(p):
    I = p.I
    I("v_lshrrev_b32 v32, 6, v0", "v_and_b32 v33, 63, v0", f"v_readfirstlane_b32 s{S_WV}, v32")
    I("v_and_b32 v34, 15, v33", "v_lshrrev_b32 v35, 4, v33")
    I("v_and_b32 v36, 7, v33")
    I("v_bfe_u32 v37, v33, 3, 1")
    I(f"v_lshlrev_b32 v{V_L16}, 4, v33")
    I("v_lshrrev_b32 v38, 2, v34", "v_lshlrev_b32 v38, 1, v38", "v_and_b32 v39, 1, v34", "v_or_b32 v38, v38, v39", "v_bfe_u32 v39, v34, 1, 1")
    I("v_mov_b32 v40, 0x44444444", "v_mov_b32 v41, 0xeeeeeeee", "v_cmp_eq_u32 vcc, 0, v39", f"v_cndmask_b32 v{V_IDX}, v41, v40, vcc")

def setup_chain(p, local, part=3):
    I = p.I
    sc_st = "" if local else " sc1"
    if part & 1: setup_regs(p)
    if part & 2: init_fills(p, sc_st)

def setup_regs(p):
    I = p.I
    I(f"s_lshl_b32 s{S_W1024}, s{S_WV}, 10", f"s_lshl_b32 s{S_W256}, s{S_WV}, 8")
    I(f"s_lshl_b32 s{S_T0}, s{S_WV}, 11", f"s_add_u32 s{S_T0}, s{S_T0}, {WVL}", f"v_add_u32 v{V_WV}, s{S_T0}, v{V_L16}")
    I(f"v_mul_u32_u24 v{V_MP}, 1152, v38", f"v_lshl_add_u32 v{V_MP}, v35, 5, v{V_MP}", f"v_lshl_add_u32 v{V_MP}, v39, 4, v{V_MP}",
      f"s_lshl_b32 s{S_T0}, s{S_WV}, 7", f"v_add_u32 v{V_MP}, s{S_T0}, v{V_MP}")
    I(f"v_lshlrev_b32 v{V_PS}, 13, v35", f"v_lshl_add_u32 v{V_PS}, v37, 12, v{V_PS}", f"v_lshl_add_u32 v{V_PS}, v36, 4, v{V_PS}")
    if ROT[0]:
        I(f"s_lshl_b32 s{S_T0}, s{S_WV}, 3", f"s_add_u32 s{S_T0}, s{S_T0}, s{S_H}", "v_lshl_add_u32 v40, v35, 1, v37", f"v_add_u32 v40, s{S_T0}, v40", "v_and_b32 v40, 31, v40", f"v_lshl_add_u32 v{V_PS}, v40, 7, v{V_PS}")
    I("v_lshl_add_u32 v40, v35, 1, v39", "v_xor_b32 v40, v40, v38", "v_lshlrev_b32 v40, 4, v40", "v_lshl_add_u32 v40, v38, 8, v40", f"v_add_u32 v{V_OR}, {OIMG}, v40")
    for src, ra, rb in ((36, V_SQA, V_SQB), (38, V_SKA, V_SKB)):
        I("v_lshlrev_b32 v40, 1, v35", f"v_sub_u32 v40, v{src}, v40", "v_mov_b32 v41, 0", "v_mov_b32 v42, 0x3f80", "v_mov_b32 v43, 0x3f800000")
        I("v_cmp_eq_u32 vcc, 0, v40", "v_cndmask_b32 v41, v41, v42, vcc", "v_cmp_eq_u32 vcc, 1, v40", f"v_cndmask_b32 v{ra}, v41, v43, vcc")
        I(f"v_mov_b32 v{ra+1}, 0", f"v_mov_b32 v{rb}, 0", f"v_mov_b32 v{rb+1}, v{ra}")
    I(f"s_mov_b32 s{S_NLT8}, 0x00ff00ff", f"s_mov_b32 s{S_NLT8+1}, 0x00ff00ff")
    I(f"s_mov_b32 s{S_ONES}, 0x3f803f80", f"s_mov_b32 s{S_ONES+1}, 0x3f803f80", f"s_lshl_b32 s{S_W4}, s{S_WV}, 2")
    cbits = struct.unpack("<I", struct.pack("<f", SCALE_LOG2E))[0]
    I(f"s_mov_b32 s{S_C}, 0x{cbits:08x}", f"s_mov_b32 s{S_C2}, 0x{cbits:08x}", f"s_mov_b32 s{S_C2+1}, 0x{cbits:08x}")
def init_fills(p, sc_st):
    I = p.I
    p.C("init fills: PART zero (12288 B per WG), MEM ring sentinel (slots 1..3), slot 0 = mem0 in fragment order")
    I(f"s_mul_i32 s{S_T0}, s{S_H}, 12288", f"s_add_u32 s{S_T1}, s{S_T0}, s{S_W1024}", f"s_add_u32 s{S_T1}, s{S_T1}, {PART_OFF}")
    I("v_mov_b64 v[64:65], 0", "v_mov_b64 v[66:67], 0", "v_mov_b64 v[68:69], -1", "v_mov_b64 v[70:71], -1")
    for rnd in range(3):
        I(f"buffer_store_dwordx4 v[64:67], v{V_L16}, s[{S_WS}:{S_WS+3}], s{S_T1} offen{sc_st}")
        if rnd < 2: I(f"s_add_u32 s{S_T1}, s{S_T1}, 4096")
    lab = p.newlabel("fill_skip")
    I(f"s_lshl_b32 s{S_T0}, s{S_H}, 2", f"s_add_u32 s{S_T0}, s{S_T0}, s{S_WV}", f"s_sub_u32 s{S_T0}, s{S_T0}, 4", f"s_cmp_ge_u32 s{S_T0}, 27", f"s_cbranch_scc1 {lab}")
    I(f"s_lshl_b32 s{S_T0}, s{S_T0}, 10", f"s_add_u32 s{S_T2}, s{S_T0}, {MEM_OFF + MEM_SLOT}", f"buffer_store_dwordx4 v[68:71], v{V_L16}, s[{S_WS}:{S_WS+3}], s{S_T2} offen{sc_st}")
    p.L(lab)
    lab = p.newlabel("no_m0")
    I(f"s_cmp_lg_u32 s{S_H}, 0", f"s_cbranch_scc1 {lab}")
    I(f"buffer_load_dwordx4 v[64:67], v{V_MP}, s[{S_MEM}:{S_MEM+3}], 0 offen", f"buffer_load_dwordx4 v[68:71], v{V_MP}, s[{S_MEM}:{S_MEM+3}], 0 offen offset:512")
    I(f"s_lshl_b32 s{S_T0}, s{S_WV}, 7", f"v_subrev_u32 v72, s{S_T0}, v{V_MP}", f"buffer_load_dwordx4 v[76:79], v72, s[{S_MEM}:{S_MEM+3}], 0 offen offset:1024")
    I(f"s_add_u32 s{S_T0}, s{S_W1024}, {MEM_OFF}", f"s_mov_b32 s{S_T1}, {MEM_OFF + 8192}", "s_waitcnt vmcnt(0)")
    I(f"buffer_store_dwordx4 v[64:67], v{V_L16}, s[{S_WS}:{S_WS+3}], s{S_T0} offen{sc_st}")
    I(f"s_add_u32 s{S_T0}, s{S_T0}, 4096", f"buffer_store_dwordx4 v[68:71], v{V_L16}, s[{S_WS}:{S_WS+3}], s{S_T0} offen{sc_st}")
    I(f"buffer_store_dwordx4 v[76:79], v{V_L16}, s[{S_WS}:{S_WS+3}], s{S_T1} offen{sc_st}")
    p.L(lab)
    I("s_waitcnt vmcnt(0)", "s_barrier")
    lab = p.newlabel("init_arr")
    I(f"s_cmp_lg_u32 s{S_WV}, 0", f"s_cbranch_scc1 {lab}")
    I("s_mov_b64 exec, 1", "v_mov_b32 v64, 1", "v_mov_b32 v65, 40", f"global_atomic_add v65, v64, s[{S_DBG}:{S_DBG+1}]", "s_mov_b64 exec, -1")
    p.L(lab)

def preload(p, mid=None, late=None):
    I = p.I
    p.C("weight preload")
    I("v_lshrrev_b32 v40, 4, v33", "v_lshlrev_b32 v41, 13, v40")
    I("v_and_b32 v42, 1, v40", "v_lshlrev_b32 v42, 1, v42", "v_xor_b32 v42, v42, v34", "v_lshlrev_b32 v42, 4, v42")
    for jj in range(4):
        I(f"v_xor_b32 v43, {64*jj}, v42", "v_add_u32 v43, v43, v41", f"v_add_u32 v{52+jj}, {jj*32768}, v43")
    I("v_lshrrev_b32 v40, 3, v33", "v_and_b32 v41, 7, v33", "v_lshrrev_b32 v42, 5, v33")
    for jj in range(4):
        I(f"v_add_u32 v43, {8*jj}, v40", "v_mul_u32_u24 v43, 1152, v43")
        I(f"v_add_u32 v44, {2*(jj&1)}, v42", "v_lshlrev_b32 v44, 1, v44", "v_xor_b32 v44, v44, v41", f"v_lshl_add_u32 v{56+jj}, v44, 4, v43")
    I("v_lshrrev_b32 v40, 2, v34", "v_and_b32 v41, 3, v34")
    I("v_lshrrev_b32 v42, 1, v35", "v_lshlrev_b32 v42, 4, v42", "v_and_b32 v43, 1, v35", "v_lshl_add_u32 v42, v43, 2, v42")
    I("v_and_b32 v44, 1, v40", "v_add_u32 v42, v42, v44", "v_lshrrev_b32 v45, 1, v40", "v_lshl_add_u32 v42, v45, 3, v42")
    I("v_lshl_add_u32 v46, v45, 1, v43")
    I("v_lshl_or_b32 v47, v46, 1, v44")
    I(f"s_lshl_b32 s{S_T0}, s{S_WV}, 1", f"v_xor_b32 v47, s{S_T0}, v47", "v_lshlrev_b32 v47, 5, v47", "v_lshl_add_u32 v47, v41, 3, v47", "v_lshl_add_u32 v60, v42, 8, v47", "v_xor_b32 v61, 32, v60")
    I(f"v_xor_b32 v46, s{S_WV}, v46", "v_lshlrev_b32 v46, 5, v46", "v_lshl_add_u32 v46, v41, 3, v46", "v_lshl_add_u32 v62, v42, 7, v46")
    chunks = [("q", kb) for kb in range(9)] + [("o", cc) for cc in range(9)] + [("k", kb) for kb in range(9)] + [("v", kb) for kb in VRES + VSTR]
    slot = lambda c: (c + 4) % 10
    ptr = {"q": S_PTR + 2, "k": S_PTR + 4, "v": S_PTR + 6, "o": S_PTR + 8}
    cur = [None]
    nissued = [0]
    def issue(c):
        kind, x = chunks[c]
        if cur[0] != kind:
            cur[0] = kind
            I(f"s_mov_b32 s{S_W}, s{ptr[kind]}", f"s_and_b32 s{S_W+1}, s{ptr[kind]+1}, 0xffff", f"s_mov_b32 s{S_W+2}, {576*8192 if kind != 'o' else 4096*1152}", f"s_mov_b32 s{S_W+3}, 0x20000")
        if kind != "o":
            I(f"s_lshl_b32 s{S_T0}, s{S_WV}, 17", f"s_lshl_b32 s{S_T1}, s{S_H}, 8", f"s_add_u32 s{S_T0}, s{S_T0}, s{S_T1}", f"s_add_u32 s{S_T0}, s{S_T0}, {x*524288}")
            vb = 52
        else:
            I(f"s_lshl_b32 s{S_T0}, s{S_H}, 7", f"s_lshl_b32 s{S_T1}, s{S_WV}, 5", f"s_add_u32 s{S_T0}, s{S_T0}, s{S_T1}", f"s_mul_i32 s{S_T0}, s{S_T0}, 1152", f"s_add_u32 s{S_T0}, s{S_T0}, {x*128}")
            vb = 56
        I(f"s_lshl_b32 s{S_T1}, s{S_WV}, 12", f"s_add_u32 s{S_T1}, s{S_T1}, {slot(c)*16384}")
        for jj in range(4):
            I(f"s_add_u32 m0, s{S_T1}, {jj*1024}")
            I(f"buffer_load_dwordx4 v{vb+jj}, s[{S_W}:{S_W+3}], s{S_T0} offen lds")
        nissued[0] = c + 1
    def tr(dst_of_t, areg, rowb, row0):
        for t in range(4):
            I(f"ds_read_b64_tr_b16 {dst_of_t(t)}, v{areg} offset:{(row0+32*(t//2)+2*(t%2))*rowb}")
    extra = [0]
    for c in range(10): issue(c)
    if mid: mid(p)
    for c in range(36):
        kind, x = chunks[c]
        if late and c == 27: extra[0] = late(p)
        I(f"s_waitcnt vmcnt({4*(nissued[0]-1-c) + extra[0]})", "s_barrier")
        sb = slot(c) * 16384
        I(f"v_add_u32 v40, {sb}, v60", f"v_add_u32 v41, {sb}, v61", f"v_add_u32 v42, {sb}, v62")
        if kind == "q":
            tr(lambda t: frag_sub(F_QA(x), 2*t, 2), 40, 256, 0); tr(lambda t: frag_sub(F_QB(x), 2*t, 2), 41, 256, 0)
        elif kind == "k":
            fb = F_KB0 if x == 0 else F_VS((x-1) % 2, (x-1) // 2)
            tr(lambda t: frag_sub(F_KA(x), 2*t, 2), 40, 256, 0); tr(lambda t: frag_sub(fb, 2*t, 2), 41, 256, 0)
        elif kind == "o":
            for kb in range(2): tr(lambda t: frag_sub(F_WO(x, kb), 2*t, 2), 42, 128, 64*kb)
        else:
            for tb in range(2): tr(lambda t: f"v[{64+8*tb+2*t}:{65+8*tb+2*t}]", 40 + tb, 256, 0)
        I("s_waitcnt lgkmcnt(0)", "s_barrier")
        if kind == "v":
            pos = c - 27
            I(f"s_lshl_b32 s{S_T0}, s{S_WV}, 11", f"s_add_u32 s{S_T0}, s{S_T0}, {sb}", f"v_add_u32 v40, s{S_T0}, v{V_L16}")
            for sub in range(2):
                for half in range(2):
                    src = frag_sub(F_VS(sub, pos), 4*half, 4) if pos < 4 else f"v[{64+8*sub+4*half}:{67+8*sub+4*half}]"
                    I(f"ds_write_b128 v40, {src} offset:{sub*8192+half*1024}")
            I("s_waitcnt lgkmcnt(0)")
            if pos < 4:
                for tb in range(2):
                    k, b = fragb(F_VS(tb, pos))
                    for r in range(8):
                        I(f"v_accvgpr_write_b32 a{b+r}, v{64+8*tb+r}" if k == "a" else f"v_mov_b32 v{b+r}, v{64+8*tb+r}")
        if c + 10 < 36: issue(c + 10)
    I("s_barrier")

def early_loads(p):
    I = p.I
    WS = f"s[{S_WS}:{S_WS+3}]"
    I(f"v_lshrrev_b32 v45, 4, v{V_L16}", f"v_mul_u32_u24 v46, {DBG_INIT - 40}, v45", "v_add_u32 v46, 40, v46", "s_mov_b64 exec, 3")
    I(f"global_load_dword v44, v46, s[{S_DBG}:{S_DBG+1}] sc1", "s_mov_b64 exec, -1")
    I(f"v_lshlrev_b32 v47, 2, v45", f"s_mov_b32 s{S_T0}, {KVCNT}", f"buffer_load_dword v45, v47, {WS}, s{S_T0} offen sc1")
    return 2

EARLY = [False]
def chain_state(p):
    I = p.I
    lab = p.newlabel("initw"); lab2 = p.newlabel("initd"); fast = p.newlabel("fast_start")
    if EARLY[0]:
        I("s_waitcnt vmcnt(0)", f"v_readlane_b32 s{S_T0}, v44, 0", f"v_readlane_b32 s{S_T1}, v44, 1", "v_cmp_ne_u32 vcc, 32, v45", f"s_ff1_i32_b64 s{S_RDY}, vcc")
        I(f"s_cmp_eq_u32 s{S_RDY}, -1", f"s_cselect_b32 s{S_RDY}, 64, s{S_RDY}", f"s_mov_b32 s{S_FAST}, 1")
        I(f"s_cmp_lt_u32 s{S_T0}, 32", f"s_cselect_b32 s{S_FAST}, 0, s{S_FAST}", f"s_cmp_eq_u32 s{S_T1}, 0", f"s_cselect_b32 s{S_FAST}, 0, s{S_FAST}", f"s_cmp_lt_u32 s{S_RDY}, 3", f"s_cselect_b32 s{S_FAST}, 0, s{S_FAST}")
        I(f"s_cmp_lg_u32 s{S_FAST}, 0", f"s_cbranch_scc1 {lab2}")
    I(f"s_mov_b32 s{S_TO}, 0", f"v_lshrrev_b32 v45, 4, v{V_L16}", f"v_mul_u32_u24 v45, {DBG_INIT - 40}, v45", "v_add_u32 v45, 40, v45", "s_mov_b64 exec, 3")
    p.L(lab)
    I(f"global_load_dword v44, v45, s[{S_DBG}:{S_DBG+1}] sc1", "s_waitcnt vmcnt(0)", f"v_readlane_b32 s{S_T0}, v44, 0", f"v_readlane_b32 s{S_T1}, v44, 1", f"s_add_u32 s{S_TO}, s{S_TO}, 1")
    if FUSED[0]: I(f"s_cmp_eq_u32 s{S_T1}, 0", f"s_cselect_b32 s{S_T0}, 0, s{S_T0}")
    I(f"s_cmp_ge_u32 s{S_T0}, 32", f"s_cbranch_scc1 {lab2}", f"s_cmp_lt_u32 s{S_TO}, 0x40000", f"s_cbranch_scc1 {lab}")
    p.L(lab2)
    I("s_mov_b64 exec, -1")
    I(f"s_mov_b32 s{S_STEP}, 0", f"s_mov_b32 s{S_TO}, 0", f"s_mov_b32 s{S_TO2}, 0", f"s_mov_b32 s{S_TO3}, 0")
    I(f"s_min_u32 s{S_T0}, s{S_WV}, 2", f"s_lshl_b32 s{S_B01}, s{S_T0}, 11", f"s_add_u32 s{S_MEMR}, s{S_B01}, {MEM_OFF}", f"s_add_u32 s{S_MEMEND}, s{S_MEMR}, {4*MEM_SLOT}")
    I(f"s_lshl_b32 s{S_T0}, s{S_WV}, 5", f"s_add_u32 s{S_T0}, s{S_T0}, s{S_H}")
    I(f"s_cmp_lt_u32 s{S_WV}, 3", f"s_cselect_b32 s{S_HASTASK}, 1, 0")
    I(f"s_lshl_b32 s{S_PL}, s{S_T0}, 12", f"s_add_u32 s{S_PL}, s{S_PL}, {PART_OFF}")
    I(f"s_mul_i32 s{S_MEMW}, s{S_WV}, 3072")
    I(f"s_lshr_b32 s{S_T1}, s{S_H}, 3", f"s_lshl_b32 s{S_T1}, s{S_T1}, 8", f"s_add_u32 s{S_MEMW}, s{S_MEMW}, s{S_T1}")
    I(f"s_bfe_u32 s{S_T1}, s{S_H}, 0x20001", f"s_lshl_b32 s{S_T1}, s{S_T1}, 6", f"s_add_u32 s{S_MEMW}, s{S_MEMW}, s{S_T1}")
    I(f"s_and_b32 s{S_T1}, s{S_H}, 1", f"s_lshl_b32 s{S_T1}, s{S_T1}, 5", f"s_add_u32 s{S_MEMW}, s{S_MEMW}, s{S_T1}", f"s_add_u32 s{S_MEMW}, s{S_MEMW}, {MEM_OFF + MEM_SLOT}")
    I(f"s_mov_b32 s{S_EXMS+1}, 0x00000055", f"s_mov_b32 s{S_EXMS}, 0x00550055")
    I(f"s_cmp_eq_u32 s{S_WV}, 2", f"s_cselect_b32 s{S_ISW2}, 1, 0")
    I(f"s_mul_i32 s{S_L8}, s{S_WV}, 768", f"s_add_u32 s{S_L8}, s{S_L8}, {MEMIMG + 6144}", f"s_sub_u32 s{S_D8}, s{S_L8}, s{S_B01}")
    I(f"s_mov_b32 s{S_M8}, -1", f"s_mov_b32 s{S_M8+1}, 0xffff")
    I(f"s_cmp_eq_u32 s{S_WV}, 3", f"s_cselect_b32 s{S_PFM}, -1, 0", f"s_mov_b32 s{S_PFM+1}, s{S_PFM}", f"s_lshl_b32 s{S_W2048}, s{S_WV}, 11")
    I(f"s_add_u32 s{S_MEMZ}, s{S_MEMW}, {2*MEM_SLOT}", f"s_add_u32 s{S_MEMWEND}, s{S_MEMW}, {3*MEM_SLOT}")
    I(f"s_lshl_b32 s{S_T0}, s{S_H}, 13", f"s_lshl_b32 s{S_T1}, s{S_WV}, 11", f"s_add_u32 s{S_T0}, s{S_T0}, s{S_T1}", f"s_add_u32 s{S_KX}, s{S_T0}, {KX_OFF}", f"s_add_u32 s{S_VX}, s{S_T0}, {VX_OFF}")
    I(f"s_lshr_b32 s{S_T1}, s{S_T0}, 1", f"s_add_u32 s{S_KM}, s{S_T1}, {KM_OFF}", f"s_lshr_b32 s{S_T1}, s{S_T0}, 2", f"s_add_u32 s{S_VM}, s{S_T1}, {VM_OFF - 32*2048}")
    I(f"s_lshl_b32 s{S_T0}, s{S_WV}, 15", f"s_lshl_b32 s{S_T1}, s{S_H}, 7" if not ROT[0] else f"s_mov_b32 s{S_T1}, 0", f"s_add_u32 s{S_T0}, s{S_T0}, s{S_T1}", f"s_add_u32 s{S_PS}, s{S_T0}, {PART_OFF}")
    for e in range(1, 3): I(f"s_add_u32 s{S_PS+e}, s{S_PS}, {e*131072}")
    I(f"s_add_u32 s{S_MEMR8}, s{S_MEMR}, s{S_D8}")
    if FUSED[0]:
        I(f"s_lshl_b32 s{S_CHF}, s{S_H}, 8", f"s_add_u32 s{S_CHF}, s{S_CHF}, {CHFLG}")
        I(f"s_cmp_eq_u32 s{S_WV}, 0", f"s_cselect_b32 s{S_PUB}, 1, 0", f"s_mov_b32 s{S_PUB+1}, 0")
    skip = p.newlabel("have_rdy")
    if EARLY[0]: I(f"s_cmp_lg_u32 s{S_FAST}, 0", f"s_cbranch_scc1 {skip}")
    if FUSED[0]:
        I(f"s_mov_b32 s{S_RDY}, 0")
        need_segment(p, 2)
    p.L(skip)
    if FUSED[0]:
        I(f"v_lshlrev_b32 v52, 3, v{V_L16}", f"s_lshl_b32 s{S_T0}, s{S_H}, 13")
        I(f"s_and_b32 s{S_T1}, s{S_WV}, 1", f"s_lshr_b32 s{S_T2}, s{S_WV}, 1", f"s_add_u32 s{S_T1}, s{S_T1}, s{S_T2}", f"s_lshl_b32 s{S_T1}, s{S_T1}, 18", f"s_add_u32 s{S_T0}, s{S_T0}, s{S_T1}")
        I(f"s_cmp_ge_u32 s{S_WV}, 2", f"s_cselect_b32 s{S_T2}, 0, {VX_OFF}", f"s_add_u32 s{S_T0}, s{S_T0}, s{S_T2}")
        I(f"buffer_load_dword v{V_DUM}, v52, s[{S_WS}:{S_WS+3}], s{S_T0} offen ; nodep")
    for kt in range(2):
        I(f"buffer_load_dwordx4 v[{V_KX+4*kt}:{V_KX+4*kt+3}], v{V_L16}, s[{S_WS}:{S_WS+3}], s{S_KX} offen offset:{kt*1024} sc1")
    I(f"s_add_u32 s{S_KX}, s{S_KX}, {32*8192}")

SM = lambda d, a, b: f"v_smfmac_f32_16x16x64_bf16 v[{d}:{d+3}], v[{a}:{a+3}], {b}, v{V_IDX}"

class Stream:
    def __init__(self, p): self.p = p; self.q = []
    def add(self, *instrs): self.q.append(list(instrs))
    def emit(self, n=1):
        for _ in range(n):
            if not self.q: return
            for x in self.q.pop(0): self.p.I(x)
    def drain(self): self.emit(len(self.q))


VPERIOD = [24]
LEAD = [0]
HOLD = [0]
BAR4 = [True]
def delay(p, clks):
    n = clks // 4
    while n > 0:
        k = min(n, 16); p.raw(f"    s_nop {k-1}"); n -= k
DELAYG1 = [0]
DELAY3 = [0]
DELAY0 = [0]
DELAY1 = [0]
DELAY2 = [0]
def need_segment(p, add, refresh=None):
    I = p.I
    lab = p.newlabel("rdy"); ok = p.newlabel("rdy_ok")
    I(f"s_add_u32 s{S_T1}, s{S_STEP}, {refresh if refresh is not None else add}", f"s_min_u32 s{S_T1}, s{S_T1}, 63", f"s_cmp_lt_u32 s{S_T1}, s{S_RDY}", f"s_cbranch_scc1 {ok}")
    I(f"s_add_u32 s{S_T1}, s{S_STEP}, {add}", f"s_min_u32 s{S_T1}, s{S_T1}, 63")
    I(f"s_mov_b32 s{S_T2}, 0", f"v_lshrrev_b32 v52, 2, v{V_L16}", f"s_mov_b32 s{S_T0}, {KVCNT}")
    p.L(lab)
    I(f"buffer_load_dword v53, v52, s[{S_WS}:{S_WS+3}], s{S_T0} offen sc1", "s_waitcnt vmcnt(0)")
    I("v_cmp_ne_u32 vcc, 32, v53", f"s_ff1_i32_b64 s{S_RDY}, vcc", f"s_cmp_eq_u32 s{S_RDY}, -1", f"s_cselect_b32 s{S_RDY}, 64, s{S_RDY}")
    I(f"s_cmp_lt_u32 s{S_T1}, s{S_RDY}", f"s_cbranch_scc1 {ok}", "s_sleep 8", f"s_add_u32 s{S_T2}, s{S_T2}, 1", f"s_cmp_lt_u32 s{S_T2}, 0x80000", f"s_cbranch_scc1 {lab}")
    I(f"s_mov_b32 s{S_RDY}, 64")
    p.L(ok)

def step(p, local, first=True, last=False):
    I = p.I
    sc_st = "" if local else " sc1"
    WS = f"s[{S_WS}:{S_WS+3}]"
    QA, QB, KA, KB = 32, 36, 40, 44
    A0, A1, A2 = 56, 60, 48
    VA, VB = 48, 52
    W1, W2 = 64, 72
    wv_state = {"b": 0}
    def wread(u, buf):
        out = []
        blk = u // 8
        while wv_state["b"] < blk:
            out.append(f"v_add_u32 v{V_WV}, 0x10000, v{V_WV}"); wv_state["b"] += 1
        off = (u % 8) * 8192
        out.append(f"ds_read_b128 v[{buf}:{buf+3}], v{V_WV} offset:{off}")
        out.append(f"ds_read_b128 v[{buf+4}:{buf+7}], v{V_WV} offset:{off+1024}")
        return out
    aread = lambda kb, a: f"ds_read_b128 v[{a}:{a+3}], v{V_L16} offset:{MEMIMG+kb*1024}"
    ad = lambda d, a_, b_: f"v_add_f32 v{d}, v{a_}, v{b_}"
    cv = lambda d, a_, b_: f"v_cvt_pk_bf16_f32 v{d}, v{a_}, v{b_}"
    p.C("==== step : acquire mem blocks 0..5 (waves 0,1,3)")
    stamp(p, 0, first)
    if STEPTS[0]:
        lab = p.newlabel("sts")
        I(f"s_cmp_lg_u32 s{S_WV}, 3", f"s_cbranch_scc1 {lab}")
        I("s_memrealtime s[2:3]", "s_waitcnt lgkmcnt(0)", f"s_lshl_b32 s3, s{S_H}, 9", f"s_lshl_b32 s{S_T0}, s{S_STEP}, 2", f"s_add_u32 s3, s3, s{S_T0}", f"s_add_u32 s3, s3, {0x9200000}")
        I("s_mov_b64 exec, 1", "v_mov_b32 v52, s2", f"buffer_store_dword v52, v{V_SQA+1}, {WS}, s3 offen", "s_mov_b64 exec, -1")
        p.L(lab)
    if FUSED[0]:
        nchk = p.newlabel("nochk")
        I(f"s_cmp_lg_u32 s{S_WV}, 3", f"s_cbranch_scc1 {nchk}")
        need_segment(p, 1, refresh=2)
        p.L(nchk)
    I(*wread(0, W1)); I(*wread(1, W2))
    for r in range(0, 16, 2): I(f"v_mov_b64 v[{QA+r}:{QA+r+1}], 0")
    skipa = p.newlabel("skip01"); loop = p.newlabel("mem_poll"); done = p.newlabel("mem_done")
    I(f"s_cmp_eq_u32 s{S_WV}, 2", f"s_cbranch_scc1 {skipa}")
    I(f"v_add_u32 v55, s{S_B01}, v{V_L16}")
    if DELAY3[0]:
        nd = p.newlabel("nd3")
        I(f"s_cmp_lg_u32 s{S_WV}, 3", f"s_cbranch_scc1 {nd}")
        delay(p, DELAY3[0])
        p.L(nd)
    delay(p, DELAY2[0])
    p.L(loop)
    a, b = 56, 60
    I(f"buffer_load_dwordx4 v[{a}:{a+3}], v{V_L16}, {WS}, s{S_MEMR} offen sc1")
    I(f"buffer_load_dwordx4 v[{b}:{b+3}], v{V_L16}, {WS}, s{S_MEMR} offen offset:1024 sc1")
    I(f"s_add_u32 s{S_TO}, s{S_TO}, 1")
    I("s_waitcnt vmcnt(1)")
    I(f"ds_write_b128 v55, v[{a}:{a+3}] offset:{MEMIMG}")
    I(f"v_max3_u32 v52, v{a}, v{a+1}, v{a+2}")
    I("s_waitcnt vmcnt(0)")
    I(f"ds_write_b128 v55, v[{b}:{b+3}] offset:{MEMIMG+1024}")
    I(f"v_max3_u32 v52, v52, v{a+3}, v{b}", f"v_max3_u32 v52, v52, v{b+1}, v{b+2}", f"v_max_u32 v52, v52, v{b+3}")
    I("v_cmp_eq_u32 vcc, -1, v52", f"s_cbranch_vccz {done}", f"s_cmp_lt_u32 s{S_TO}, 0x200000", f"s_cbranch_scc1 {loop}")
    p.L(done)
    p.L(skipa)
    stamp(p, 1, first)
    I("s_waitcnt lgkmcnt(0)")
    I("s_barrier")
    p.reset_q()
    stamp(p, 2, first)
    p.C("QK")
    W = Weaver(p)
    Ab = [A0, A1, A2]
    wb = [W1, W2]
    M48 = f"s[{S_M8}:{S_M8+1}]"
    ld2 = f"buffer_load_dwordx4 v[52:55], v{V_L16}, {WS}, s{S_MEMR8} offen sc1"
    W.raw(aread(0, Ab[0])); W.raw(aread(1, Ab[1]))
    W.raw(f"s_mov_b64 exec, {M48}"); W.raw(ld2); W.raw("s_mov_b64 exec, -1")
    W.raw(f"s_add_u32 s{S_TAG}, s{S_STEP}, 1")
    if FUSED[0]: W.raw(f"s_max_u32 s{S_PUBV}, s{S_STEP}, 1"); W.raw(f"s_sub_u32 s{S_PUBV}, s{S_PUBV}, 1")
    def group(kb, extra, areads=True):
        a = Ab[kb % 3]
        kbsrc = frag(F_KB0) if kb == 0 else f"v[{wb[(kb-1)%2]}:{wb[(kb-1)%2]+7}]"
        X = []
        if kb + 2 < 6: X.append([aread(kb + 2, Ab[(kb + 2) % 3])])
        if kb >= 2:
            w = wread(kb, wb[(kb - 2) % 2])
            if len(w) == 3: X.append([w[1], w[0]] if False else [w[0], w[1]]); X.append([w[2]])
            else: X.append([w[0]]); X.append([w[1]])
        ms = [SM(QA, a, frag(F_QA(kb))), SM(QB, a, frag(F_QB(kb))), SM(KA, a, frag(F_KA(kb))), SM(KB, a, kbsrc)]
        for i, m in enumerate(ms):
            if not (last and i < 2): W.raw(m)
            if X:
                for y in X.pop(0): W.raw(y)
            for y in extra.get(i, []): W.raw(y)
        assert not X, X
    group(0, {1: [f"v_add_u32 v{V_VX}, s{S_L8}, v{V_L16}"]}); group(1, {}); group(2, {})
    group(3, {3: ["s_waitcnt vmcnt(0)", f"s_mov_b64 exec, {M48}", f"ds_write_b128 v{V_VX}, v[52:55]", "s_mov_b64 exec, -1"]})
    slow = p.newlabel("st2_slow"); back = p.newlabel("st2_back")
    group(4, {2: [f"v_max3_u32 v{V_VX+1}, v52, v53, v54"], 3: [f"v_max_u32 v{V_VX+1}, v{V_VX+1}, v55"]})
    I(f"s_mov_b64 exec, {M48}", f"v_cmp_eq_u32 vcc, -1, v{V_VX+1}", "s_mov_b64 exec, -1", f"s_cbranch_vccnz {slow}")
    p.L(back)
    p.waitw()
    I("s_barrier")
    stamp(p, 13, first)
    W.raw(aread(6, Ab[0])); W.raw(aread(7, Ab[1]))
    vxl = [f"buffer_load_dwordx4 v[{V_VX+4*tb}:{V_VX+4*tb+3}], v{V_L16}, {WS}, s{S_VX} offen offset:{tb*1024} sc1" for tb in range(2)]
    io = []
    io_vm = [f"v_lshrrev_b32 v{V_VX+1}, 1, v{V_L16}", f"buffer_store_dwordx2 v[{V_PY}:{V_PY+1}], v{V_VX+1}, {WS}, s{S_VM} offen sc1"]
    group(5, {2: [f"s_add_u32 s{S_MEMR}, s{S_MEMR}, {MEM_SLOT}", f"s_cmp_ge_u32 s{S_MEMR}, s{S_MEMEND}"], 3: [aread(8, Ab[2])]})
    group(6, {2: [f"s_cselect_b32 s{S_T0}, {4*MEM_SLOT}, 0", f"s_sub_u32 s{S_MEMR}, s{S_MEMR}, s{S_T0}"], 3: [vxl[0]]})
    group(7, {2: [f"s_add_u32 s{S_MEMR8}, s{S_MEMR}, s{S_D8}"], 3: [vxl[1]]})
    pf = []
    if PREF[0]:
        pf = [[f"s_sub_u32 s{S_T0}, s{S_VX}, s{S_W2048}", f"s_add_u32 s{S_T0}, s{S_T0}, {32*8192}", f"v_lshlrev_b32 v{V_MP}, 3, v{V_L16}"],
              [f"s_sub_u32 s{S_T1}, s{S_KX}, s{S_W2048}", f"s_add_u32 s{S_T1}, s{S_T1}, {32*8192}"] + ([f"s_add_u32 s{S_T2}, s{S_STEP}, 2", f"s_cmp_lt_u32 s{S_T2}, s{S_RDY}", f"s_cselect_b32 s{S_T1}, s{S_T1}, s{S_T0}"] if FUSED[0] else []),
              [f"s_mov_b64 exec, s[{S_PFM}:{S_PFM+1}]", f"buffer_load_dword v{V_DUM}, v{V_MP}, {WS}, s{S_T0} offen ; nodep"],
              [f"buffer_load_dword v{V_DUM}, v{V_MP}, {WS}, s{S_T1} offen ; nodep", "s_mov_b64 exec, -1"]]
        if PFBR[0]:
            group(8, {})
        else:
            group(8, {0: pf[0], 1: pf[1], 2: pf[2], 3: pf[3]})
    else:
        group(8, {})
    W.raw(f"v_lshrrev_b32 v{V_MP}, 1, v{V_L16}") if False else None
    EXPORT = [f"v_lshrrev_b32 v52, 1, v{V_L16}", f"buffer_store_dwordx2 v[{V_PY}:{V_PY+1}], v52, {WS}, s{S_VM} offen sc1"]
    if FUSED[0]:
        EXPORT += [f"v_mov_b32 v52, s{S_PUBV}", f"s_mov_b64 exec, s[{S_PUB}:{S_PUB+1}]", f"buffer_store_dword v52, v{V_SQA+1}, {WS}, s{S_CHF} offen sc1", "s_mov_b64 exec, -1"]
    if EXPL[0] == 0 or last:
        for y in EXPORT: W.raw(y)
    SLOW.append((slow, back, ld2, M48, V_VX))
    stamp(p, 3, first)
    p.C("post QK, V phase as filler")
    items = []
    w9 = wread(9, wb[1])
    vorder = VRES + VSTR
    vA = [A0, A1]
    ubuf = {8: wb[0], 9: wb[1]}
    for pos, kb in enumerate(vorder):
        a = vA[pos % 2]
        for tb in range(2):
            it = []
            if pos < 4:
                it.append(SM(VA + 4 * tb, a, frag(F_VS(tb, pos))))
                if pos == 0: it.append(w9[tb])
            else:
                u = 8 + (pos - 4) * 2 + tb
                b = ubuf[u]
                it.append(SM(VA + 4 * tb, a, f"v[{b}:{b+7}]"))
                if u + 2 < 18:
                    it += wread(u + 2, b); ubuf[u + 2] = b
            if tb == 1 and pos + 2 < 9: it.append(aread(vorder[pos + 2], a))
            items.append(it)
    def VI(n):
        return ("call", lambda n=n: [W.raw(y) for _ in range(n) if items for y in items.pop(0)])
    crit = []
    C = crit.append
    zero = [f"v_mov_b64 v[{VA}:{VA+1}], 0", f"v_mov_b64 v[{VA+2}:{VA+3}], 0", f"v_mov_b64 v[{VB}:{VB+1}], 0", f"v_mov_b64 v[{VB+2}:{VB+3}], 0"]
    if not last:
        C(ad(32, 32, 34)); C(ad(33, 33, 35)); C(ad(36, 36, 38)); C(ad(37, 37, 39)); C(cv(34, 32, 33)); C(cv(35, 36, 37))
    C(ad(40, 40, 42)); C(ad(41, 41, 43)); C(zero[2]); C(zero[3]); C(ad(44, 44, 46)); C(ad(45, 45, 47)); C(cv(42, 40, 41)); C(cv(43, 44, 45))
    if not last:
        C(f"v_mfma_f32_16x16x16_bf16 v[36:39], v[34:35], v[{V_SQA}:{V_SQA+1}], 0")
        C(zero[0]); C(zero[1])
        C(f"v_mfma_f32_16x16x16_bf16 v[32:35], v[34:35], v[{V_SQB}:{V_SQB+1}], 0")
    else:
        C(zero[0]); C(zero[1])
    C(f"v_mfma_f32_16x16x16_bf16 v[44:47], v[42:43], v[{V_SKA}:{V_SKA+1}], 0")
    C(f"v_mfma_f32_16x16x16_bf16 v[40:43], v[42:43], v[{V_SKB}:{V_SKB+1}], 0")
    KMST = f"buffer_store_dwordx4 v[44:47], v{V_L16}, {WS}, s{S_KM} offen sc1"
    OA_, OB_, LL = 32, 52, 56
    VMST = [f"v_lshrrev_b32 v60, 1, v{V_L16}", f"buffer_store_dwordx2 v[50:51], v60, {WS}, s{S_VM} offen sc1"]
    if last:
        C(cv(44, 44, 45)); C(cv(45, 46, 47)); C(cv(46, 40, 41)); C(cv(47, 42, 43)); C(KMST)
        W.weave(crit, []); W.drain(items)
        W.raw(f"v_subrev_u32 v{V_WV}, 0x20000, v{V_WV}")
        W.raw(ad(VA, VA, VA + 2)); W.raw(ad(VA + 1, VA + 1, VA + 3)); W.raw(ad(VB, VB, VB + 2)); W.raw(ad(VB + 1, VB + 1, VB + 3))
        W.raw(cv(50, VA, VA + 1)); W.raw(cv(51, VB, VB + 1))
        W.raw(f"s_add_u32 s{S_VM}, s{S_VM}, {32*2048}")
        for y in VMST: W.raw(y)
        p.fence(); p.reset_q()
        return
    V1, V2, V3, V4, V5, V6, V7 = VPLACE
    C(cv(36, 36, 37)); C(cv(37, 38, 39)); C(cv(38, 32, 33)); C(cv(39, 34, 35))
    C(f"v_mfma_f32_16x16x32_bf16 v[32:35], v[{V_KX}:{V_KX+3}], v[36:39], 0")
    C(cv(44, 44, 45)); C(cv(45, 46, 47)); C(cv(46, 40, 41)); C(cv(47, 42, 43))
    C(f"v_mfma_f32_16x16x32_bf16 v[40:43], v[{V_KX+4}:{V_KX+7}], v[36:39], 0")
    C(f"v_mfma_f32_16x16x32_bf16 v[36:39], v[44:47], v[36:39], 0")
    k = V_KX
    C(f"v_and_b32 v{k+6}, 0x70, v{V_L16}"); C(f"v_lshrrev_b32 v{k+7}, 1, v{V_L16}"); C(f"v_and_b32 v{k+7}, 0x180, v{k+7}"); C(f"v_or_b32 v{k+6}, v{k+6}, v{k+7}")
    C(f"v_lshrrev_b32 v{k+7}, 1, v{k+6}"); C(f"v_and_b32 v{k}, 0x80, v{V_L16}"); C(f"v_lshl_add_u32 v{k+6}, v{k}, 2, v{k+6}")
    C(VI(V1))
    C(f"v_add_u32 v{k+6}, {SEXX}, v{k+6}"); C(f"v_add_u32 v{k+7}, {SEXM}, v{k+7}")
    C(f"v_add_u32 v{k}, s{S_W1024}, v{k+6}"); C(f"v_add_u32 v{k+1}, s{S_W256}, v{k+7}")
    for r in range(4): C(f"v_cndmask_b32_e64 v{32+r}, v{40+r}, v{32+r}, s[{S_NLT8}:{S_NLT8+1}]")
    C(f"ds_write_b128 v{k}, v[32:35]"); C(f"ds_write_b64 v{k+1}, v[36:37]")
    C(("call", lambda: stamp(p, 4, first)))
    C(VI(V2))
    C(KMST)
    if EXPL[0] == 1:
        for y in EXPORT: C(y.replace("v52", f"v{k+2}"))
    C(("call", p.waitw)); C("s_barrier")
    C(("call", lambda: stamp(p, 5, first)))
    for w in range(4): C(f"ds_read_b128 v[{32+4*w}:{35+4*w}], v{k+6} offset:{w*1024}")
    C(f"ds_read2_b64 v[{k}:{k+3}], v{k+7} offset0:0 offset1:32"); C(f"ds_read2_b64 v[{k+4}:{k+7}], v{k+7} offset0:64 offset1:96")
    C(VI(V3))
    for r in range(4): C(ad(32 + r, 32 + r, 36 + r))
    for r in range(4): C(ad(40 + r, 40 + r, 44 + r))
    for r in range(4): C(ad(32 + r, 32 + r, 40 + r))
    C("v_max3_f32 v38, v32, v33, v34")
    C(VI(V4))
    C(ad(k, k, k + 2)); C(ad(k + 1, k + 1, k + 3)); C(ad(k + 4, k + 4, k + 6)); C(ad(k + 5, k + 5, k + 7)); C(ad(36, k, k + 4)); C(ad(37, k + 1, k + 5))
    for kt in range(2):
        C(f"buffer_load_dwordx4 v[{V_KX+4*kt}:{V_KX+4*kt+3}], v{V_L16}, {WS}, s{S_KX} offen offset:{kt*1024} sc1")
    C("v_max3_f32 v38, v38, v35, v36"); C("v_max_f32 v38, v38, v37")
    C(VI(V5))
    C("v_max_f32_dpp v38, v38, v38 row_ror:8 row_mask:0xf bank_mask:0xf")
    C("v_mov_b32 v39, v38"); C("v_mov_b32 v45, 0"); C("v_mov_b32 v46, 0"); C("v_permlane16_swap_b32 v38, v39"); C("v_max_f32 v38, v38, v39")
    C("v_mov_b32 v39, v38"); C(VI(V6)); C("v_permlane32_swap_b32 v38, v39"); C("v_max_f32 v38, v38, v39")
    C(f"v_mul_f32 v38, s{S_C}, v38")
    for r in range(6): C(f"v_fma_f32 v{32+r}, v{32+r}, s{S_C}, -v38")
    C(VI(V7))
    for r in range(6): C(f"v_exp_f32 v{32+r}, v{32+r}")
    C(cv(40, 32, 33)); C(cv(41, 34, 35)); C(cv(44, 36, 37))
    for r in range(0, 4, 2): C(f"v_mov_b64 v[{36+r}:{37+r}], s[{S_ONES}:{S_ONES+1}]")
    C("v_mov_b32_dpp v42, v40 row_ror:8 row_mask:0xf bank_mask:0xf"); C("v_mov_b32_dpp v43, v41 row_ror:8 row_mask:0xf bank_mask:0xf")
    C("v_mov_b32 v47, v44")
    C(("call", lambda: stamp(p, 6, first)))
    W.weave(crit, [])
    rest = items
    W.raw(f"v_mfma_f32_16x16x32_bf16 v[{OA_}:{OA_+3}], v[{V_VX}:{V_VX+3}], v[40:43], 0")
    W.drain(rest)
    assert wv_state["b"] == 2
    W.raw(f"v_subrev_u32 v{V_WV}, 0x20000, v{V_WV}")
    W.raw(ad(VA, VA, VA + 2)); W.raw(ad(VA + 1, VA + 1, VA + 3)); W.raw(ad(VB, VB, VB + 2)); W.raw(ad(VB + 1, VB + 1, VB + 3))
    W.raw(cv(50, VA, VA + 1)); W.raw(cv(51, VB, VB + 1))
    stamp(p, 7, first)
    p.C("PV")
    crit = [f"v_mfma_f32_16x16x32_bf16 v[{LL}:{LL+3}], v[36:39], v[40:43], 0",
            f"v_mfma_f32_16x16x32_bf16 v[{OB_}:{OB_+3}], v[{V_VX+4}:{V_VX+7}], v[40:43], 0",
            f"v_mfma_f32_16x16x16_bf16 v[{OA_}:{OA_+3}], v[50:51], v[44:45], v[{OA_}:{OA_+3}]",
            f"v_mfma_f32_16x16x16_bf16 v[{LL}:{LL+3}], v[36:37], v[44:45], v[{LL}:{LL+3}]",
            f"v_mfma_f32_16x16x16_bf16 v[{OB_}:{OB_+3}], v[50:51], v[46:47], v[{OB_}:{OB_+3}]",
            f"v_rcp_f32 v{LL}, v{LL}"]
    for b in (OA_, OB_):
        for r in range(4): crit.append(f"v_mul_f32 v{b+r}, v{b+r}, v{LL}")
    crit += [cv(OA_, OA_, OA_ + 1), cv(OA_ + 1, OA_ + 2, OA_ + 3), cv(OB_, OB_, OB_ + 1), cv(OB_ + 1, OB_ + 2, OB_ + 3)]
    fill = [f"v_mov_b64 v[{V_PY}:{V_PY+1}], v[50:51]", f"v_bfe_u32 v61, v{V_L16}, 4, 3", f"v_bfe_u32 v62, v{V_L16}, 9, 1", f"v_add_u32 v62, s{S_W4}, v62", "v_xor_b32 v62, v62, v61",
            "v_lshlrev_b32 v62, 4, v62", "v_lshl_add_u32 v62, v61, 8, v62", f"v_bfe_u32 v61, v{V_L16}, 8, 1", "v_lshl_add_u32 v62, v61, 3, v62", f"v_add_u32 v62, {OIMG}, v62", "v_xor_b32 v63, 32, v62"]
    rest = W.weave(crit, [[f] for f in fill]); W.drain(rest)
    W.raw(f"s_mov_b64 exec, s[{S_NLT8}:{S_NLT8+1}]"); W.raw(f"ds_write_b64 v62, v[{OA_}:{OA_+1}]"); W.raw(f"ds_write_b64 v63, v[{OB_}:{OB_+1}]"); W.raw("s_mov_b64 exec, -1")
    stamp(p, 8, first)
    OACC = [32 + 4 * j for j in range(9)]
    OAr = 72; G = 68
    I(f"v_mov_b32 v71, s{S_TAG}")
    for b in range(34, 68, 2):
        if b in (52, 62): continue
        I(f"v_mov_b64 v[{b}:{b+1}], 0")
    p.waitw()
    I("s_barrier")
    I(f"ds_read_b128 v[{OAr}:{OAr+3}], v{V_OR}", f"ds_read_b128 v[{OAr+4}:{OAr+7}], v{V_OR} offset:128")
    for b in (32, 52, 62): I(f"v_mov_b64 v[{b}:{b+1}], 0")
    stamp(p, 9, first)
    p.C("O-proj")
    W = Weaver(p)
    osm = lambda j, kb: SM(OACC[j], OAr + 4 * kb, frag(F_WO(j, kb)))
    seq = [(0, 0), (1, 0), (0, 1), (1, 1)] + [(j, kb) for j in range(2, 9) for kb in range(2)]
    def fin(j):
        b = OACC[j]
        ops = [ad(b, b, b + 2), ad(b + 1, b + 1, b + 3), cv(G + j % 3, b, b + 1)]
        if j % 3 == 2: ops.append(f"buffer_store_dwordx4 v[{G}:{G+3}], v{V_PS}, {WS}, s{S_PS + j // 3} offen{sc_st}")
        return ops
    done_at = {}
    pend = []
    for idx, (j, kb) in enumerate(seq):
        W.raw(osm(j, kb))
        if kb == 1: done_at[j] = idx
        for jj in list(done_at):
            if idx >= done_at[jj] + 2:
                pend += fin(jj); del done_at[jj]
        n = 2 if len(pend) > 2 else 1
        for _ in range(n):
            if pend: W.raw(pend.pop(0))
    for jj in sorted(done_at): pend += fin(jj)
    for o in pend: W.raw(o)
    stamp(p, 10, first)
    p.C("reduce")
    skip = p.newlabel("notask")
    if PFBR[0] and PREF[0]:
        nt = p.newlabel("hastask")
        I(f"s_cmp_lg_u32 s{S_HASTASK}, 0", f"s_cbranch_scc1 {nt}")
        I(f"s_sub_u32 s{S_T0}, s{S_VX}, s{S_W2048}", f"s_add_u32 s{S_T0}, s{S_T0}, {32*8192}", f"v_lshlrev_b32 v{V_MP}, 3, v{V_L16}",
          f"s_sub_u32 s{S_T1}, s{S_KX}, s{S_W2048}", f"s_add_u32 s{S_T1}, s{S_T1}, {32*8192}")
        I(f"buffer_load_dword v{V_DUM}, v{V_MP}, {WS}, s{S_T0} offen ; nodep", f"buffer_load_dword v{V_DUM}, v{V_MP}, {WS}, s{S_T1} offen ; nodep")
        I(f"s_branch {skip}")
        p.L(nt)
    else:
        I(f"s_cmp_eq_u32 s{S_HASTASK}, 0", f"s_cbranch_scc1 {skip}")
    RS = 64
    if DELAY1[0]:
        nd = p.newlabel("nodelay")
        I(f"s_cmp_eq_u32 s{S_ISW2}, 0", f"s_cbranch_scc1 {nd}")
        delay(p, DELAY1[0])
        p.L(nd)
    if DELAYG1[0]:
        nd = p.newlabel("nodelay1")
        I(f"s_cmp_lg_u32 s{S_WV}, 1", f"s_cbranch_scc1 {nd}")
        delay(p, DELAYG1[0])
        p.L(nd)
    delay(p, DELAY0[0])
    retry = p.newlabel("p_retry"); ok = p.newlabel("p_ok")
    p.L(retry)
    for i in range(4):
        I(f"buffer_load_dwordx4 v[{32+4*i}:{35+4*i}], v{V_L16}, {WS}, s{S_PL} offen offset:{i*1024} sc1")
    I(f"s_add_u32 s{S_TO2}, s{S_TO2}, 1")
    I(f"v_bfe_u32 v69, v{V_L16}, 4, 2", f"v_bfe_u32 v70, v{V_L16}, 6, 2", "v_lshlrev_b32 v71, 4, v69", "v_mov_b32 v68, 0x3f80", "v_lshlrev_b32 v68, v71, v68",
      "v_cmp_gt_u32 vcc, 2, v69", "v_cndmask_b32 v71, 0, v68, vcc")
    for r in range(3): I(f"v_cmp_eq_u32 vcc, {r}, v70", f"v_cndmask_b32 v{RS+r}, 0, v71, vcc")
    I(f"v_mov_b32 v{RS+3}, 0")
    I(f"v_bfe_u32 v68, v{V_L16}, 8, 2", "v_lshlrev_b32 v68, 10, v68", f"v_bfe_u32 v69, v{V_L16}, 4, 3", "v_lshl_add_u32 v68, v69, 1, v68")
    D = 72
    for i in range(4):
        I(f"s_waitcnt vmcnt({3-i})")
        c = "0" if i == 0 else f"v[{D}:{D+3}]"
        I(f"v_mfma_f32_16x16x32_bf16 v[{D}:{D+3}], v[{RS}:{RS+3}], v[{32+4*i}:{35+4*i}], {c}")
        if i == 2: I("v_min3_u32 v76, v35, v39, v43")
        if i == 3: I("v_min_u32 v76, v76, v47")
    I(f"v_cmp_ne_u32 vcc, s{S_TAG}, v76", f"s_cbranch_vccz {ok}", f"s_cmp_lt_u32 s{S_TO2}, 0x200000", f"s_cbranch_scc1 {retry}")
    p.L(ok)
    stamp(p, 11, first)
    p.fence()
    I(f"v_add_f32_dpp v{D}, v{D}, v{D} row_ror:8 row_mask:0xf bank_mask:0xf", f"v_add_f32_dpp v{D+1}, v{D+1}, v{D+1} row_ror:8 row_mask:0xf bank_mask:0xf")
    I(f"v_mov_b32_dpp v76, v{D} quad_perm:[1,0,3,2] row_mask:0xf bank_mask:0xf", f"v_mov_b32_dpp v77, v{D+1} quad_perm:[1,0,3,2] row_mask:0xf bank_mask:0xf")
    I(f"v_cvt_pk_bf16_f32 v76, v{D}, v76", f"v_cvt_pk_bf16_f32 v77, v{D+1}, v77", "v_mov_b32 v78, -1")
    I(f"s_mov_b64 exec, s[{S_EXMS}:{S_EXMS+1}]", f"buffer_store_dword v76, v68, {WS}, s{S_MEMW} offen{sc_st}", f"buffer_store_dword v77, v68, {WS}, s{S_MEMW} offen offset:16{sc_st}")
    I(f"buffer_store_dword v78, v68, {WS}, s{S_MEMZ} offen{sc_st}", f"buffer_store_dword v78, v68, {WS}, s{S_MEMZ} offen offset:16{sc_st}", "s_mov_b64 exec, -1")
    p.L(skip)
    for r_ in (S_MEMW, S_MEMZ):
        I(f"s_add_u32 s{r_}, s{r_}, {MEM_SLOT}", f"s_cmp_ge_u32 s{r_}, s{S_MEMWEND}", f"s_cselect_b32 s{S_T0}, {4*MEM_SLOT}, 0", f"s_sub_u32 s{r_}, s{r_}, s{S_T0}")
    I(f"s_add_u32 s{S_VX}, s{S_VX}, {32*8192}", f"s_add_u32 s{S_KM}, s{S_KM}, {32*4096}", f"s_add_u32 s{S_VM}, s{S_VM}, {32*2048}", f"s_add_u32 s{S_KX}, s{S_KX}, {32*8192}", f"s_add_u32 s{S_STEP}, s{S_STEP}, 1")
    stamp(p, 12, first)
    p.fence()
    p.reset_q()

def emit_slow(p):
    I = p.I
    WS = f"s[{S_WS}:{S_WS+3}]"
    while SLOW:
        slow, back, ld2, M48, areg = SLOW.pop(0)
        p.fence(); p.reset_q()
        p.L(slow)
        lp = p.newlabel("st2_lp")
        I(f"s_mov_b64 exec, {M48}")
        p.L(lp)
        I(ld2, "s_waitcnt vmcnt(0)", f"v_max3_u32 v{V_VX+1}, v52, v53, v54", f"v_max_u32 v{V_VX+1}, v{V_VX+1}, v55", f"v_cmp_eq_u32 vcc, -1, v{V_VX+1}", f"s_add_u32 s{S_TO3}, s{S_TO3}, 1")
        ok = p.newlabel("st2_ok")
        I(f"s_cbranch_vccz {ok}", f"s_cmp_lt_u32 s{S_TO3}, 0x200000", f"s_cbranch_scc1 {lp}")
        p.L(ok)
        I(f"ds_write_b128 v{areg}, v[52:55]", "s_mov_b64 exec, -1", "s_waitcnt lgkmcnt(0)", f"s_branch {back}")
        p.reset_q()

def chain_loop(p, local, nsteps=64):
    I = p.I
    p.reset_q()
    loop = p.newlabel("chain_loop")
    p.fence()
    p.L(loop)
    step(p, local=local)
    I(f"s_cmp_lt_u32 s{S_STEP}, {nsteps-1}", f"s_cbranch_scc1 {loop}")
    step(p, local=local, first=False, last=True)
    I("s_waitcnt vmcnt(0)", "s_barrier")
    if FUSED[0]:
        I("v_mov_b32 v52, 64", "v_mov_b32 v53, 0", f"s_mov_b64 exec, s[{S_PUB}:{S_PUB+1}]", f"buffer_store_dword v52, v53, s[{S_WS}:{S_WS+3}], s{S_CHF} offen sc1", "s_mov_b64 exec, -1")
    over = p.newlabel("over_slow")
    I(f"s_branch {over}")
    emit_slow(p)
    p.L(over)

def gen_chain(p, local=True, nsteps=64, stamps=False):
    I = p.I
    setup_chain(p, local)
    preload(p)
    chain_state(p)
    if stamps: I(f"s_memtime s[{S_TS}:{S_TS+1}]", "s_waitcnt lgkmcnt(0)")
    chain_loop(p, local, nsteps)
    if stamps:
        I("s_waitcnt vmcnt(0) lgkmcnt(0)", f"s_memtime s[{S_TS+2}:{S_TS+3}]", "s_waitcnt lgkmcnt(0)")
        I(f"s_sub_u32 s{S_TS}, s{S_TS+2}, s{S_TS}", f"v_mov_b32 v44, s{S_TS}")
        lab = p.newlabel("st")
        I(f"s_cmp_lg_u32 s{S_WV}, 0", f"s_cbranch_scc1 {lab}")
        I(f"s_lshl_b32 s{S_T0}, s{S_H}, 2", f"s_add_u32 s{S_T0}, s{S_T0}, 128", f"v_mov_b32 v45, s{S_T0}", "s_mov_b64 exec, 1", f"global_store_dword v45, v44, s[{S_DBG}:{S_DBG+1}]", "s_mov_b64 exec, -1")
        p.L(lab)
    prof_dump(p)

def prof_dump(p):
    I = p.I
    if PROF[0]:
        I("s_waitcnt lgkmcnt(0)")
        I(f"s_lshl_b32 s{S_T0}, s{S_H}, 2", f"s_add_u32 s{S_T0}, s{S_T0}, s{S_WV}", f"s_lshl_b32 s{S_T0}, s{S_T0}, 7", f"s_add_u32 s{S_T0}, s{S_T0}, {0x9000000}")
        I("s_mov_b64 exec, 1", "v_mov_b32 v45, 0")
        for k in range(PNST):
            I(f"v_mov_b32 v44, s{S_ST+2*k if k < 13 else 14}", f"buffer_store_dword v44, v45, s[{S_WS}:{S_WS+3}], s{S_T0} offen offset:{4*k}")
        for k, r_ in enumerate((S_TO, S_TO2, S_TO3)):
            I(f"v_mov_b32 v44, s{r_}", f"buffer_store_dword v44, v45, s[{S_WS}:{S_WS+3}], s{S_T0} offen offset:{64+4*k}")
        I("s_mov_b64 exec, -1")

def standalone(local=True, stamps=True, nsteps=64):
    name = "chain_kernel"
    p = AProg()
    p.raw(f"; @launch kernel={name} grid=(256,1,1) block=(256,1,1) lds=163840")
    p.raw('.amdgcn_target "amdgcn-amd-amdhsa--gfx950"\n.text')
    p.raw(f".globl {name}\n.p2align 8\n.type {name},@function\n{name}:")
    I = p.I
    I(f"s_cmp_ge_u32 s2, 256", "s_cbranch_scc1 L_end")
    I(f"s_load_dwordx2 s[{S_PTR}:{S_PTR+1}], s[0:1], {KARG['A_mem0']}")
    I(f"s_load_dwordx4 s[{S_PTR+2}:{S_PTR+5}], s[0:1], {KARG['A_Wq']}")
    I(f"s_load_dwordx2 s[{S_PTR+6}:{S_PTR+7}], s[0:1], {KARG['A_Wv']}")
    I(f"s_load_dwordx2 s[{S_PTR+8}:{S_PTR+9}], s[0:1], {KARG['A_Wo']}")
    I(f"s_load_dwordx2 s[{S_DBG}:{S_DBG+1}], s[0:1], {KARG['dbg']}")
    I(f"s_load_dwordx2 s[{S_PTR+10}:{S_PTR+11}], s[0:1], {KARG['ws']}")
    I("s_waitcnt lgkmcnt(0)")
    I(f"s_mov_b32 s{S_WS}, s{S_PTR+10}", f"s_and_b32 s{S_WS+1}, s{S_PTR+11}, 0xffff", f"s_mov_b32 s{S_WS+2}, {WS_BYTES}", f"s_mov_b32 s{S_WS+3}, 0x20000")
    I(f"s_mov_b32 s{S_MEM}, s{S_PTR}", f"s_and_b32 s{S_MEM+1}, s{S_PTR+1}, 0xffff", f"s_mov_b32 s{S_MEM+2}, 9216", f"s_mov_b32 s{S_MEM+3}, 0x20000")
    lane_consts(p)
    I(f"s_getreg_b32 s{S_T0}, hwreg(HW_REG_XCC_ID, 0, 4)")
    I(f"s_cmp_lg_u32 s{S_T0}, 0", "s_cbranch_scc1 L_end")
    lab = p.newlabel("role")
    I(f"s_cmp_lg_u32 s{S_WV}, 0", f"s_cbranch_scc1 {lab}")
    I("s_mov_b64 exec, 1", "v_mov_b32 v44, 1", "v_mov_b32 v45, 0", f"global_atomic_add v46, v45, v44, s[{S_DBG}:{S_DBG+1}] sc0", "s_waitcnt vmcnt(0)", "v_mov_b32 v45, 0", "ds_write_b32 v45, v46", "s_waitcnt lgkmcnt(0)", "s_mov_b64 exec, -1")
    p.L(lab)
    I("s_barrier", "v_mov_b32 v45, 0", "ds_read_b32 v46, v45", "s_waitcnt lgkmcnt(0)", f"v_readfirstlane_b32 s{S_H}, v46", "s_barrier")
    I(f"s_cmp_ge_u32 s{S_H}, 32", "s_cbranch_scc1 L_end")
    gen_chain(p, local=local, stamps=stamps, nsteps=nsteps)
    p.L("L_end")
    I("s_endpgm")
    p.raw(kd(name))
    return p.render()

if __name__ == "__main__":
    import sys
    for a in sys.argv[2:]:
        if a == "prof": PROF[0] = True
        if a == "rt": RT[0] = True
        if a.startswith("hold="): HOLD[0] = int(a[5:])
        if a.startswith("lead="): LEAD[0] = int(a[5:])
        if a.startswith("lat="): Weaver.LDS_LAT = int(a[4:])
        if a.startswith("vp="): VPERIOD[0] = int(a[3:])
        if a == "nobar4": BAR4[0] = False
        if a.startswith("touch="): TOUCH[0] = int(a[6:])
        if a.startswith("s2i="): ST2_ISSUE[0] = int(a[4:])
        if a.startswith("s2c="): ST2_CHECK[0] = int(a[4:])
        if a.startswith("g1="): DELAYG1[0] = int(a[3:])
        if a == "nopref": PREF[0] = False
        if a.startswith("expl="): EXPL[0] = int(a[5:])
        if a == "pfbr": PFBR[0] = True
        if a == "norot": ROT[0] = False
        if a.startswith("vpl="): VPLACE[:] = [int(c) for c in a[4:]]
        if a.startswith("d3="): DELAY3[0] = int(a[3:])
        if a.startswith("d0="): DELAY0[0] = int(a[3:])
        if a.startswith("d1="): DELAY1[0] = int(a[3:])
        if a.startswith("d2="): DELAY2[0] = int(a[3:])
    open(sys.argv[1], "w").write(standalone())
```

```python
import struct
from asmlib2 import *
from common import *
import common, sys as _sys
if 'hot' in _sys.argv: MEM_SLOT = 0

MEMIMG, SEXM, SEXX, OIMG, WVL = 0, 9216, 10240, 14336, 16384
PART_BYTES = 48 * 8192
SCALE_LOG2E = 0.08838834764831845 * 1.4426950408889634

S_WS, S_MEM, S_W = 4, 8, 12
S_DBG = 16
S_H, S_WV, S_STEP = 18, 19, 20
S_MEMR, S_MEMW, S_KX, S_VX, S_KM, S_VM = 21, 22, 23, 24, 25, 26
S_TO, S_T0, S_T1, S_T2 = 27, 28, 29, 30
S_C = 31
S_NLT8 = 32
S_M8 = 34
S_PS = 36
S_PL, S_ISW2 = 41, 42
S_W1024, S_W256 = 43, 44
S_HASTASK = 45
S_PTR = 46
S_EXMS = 58
S_D8, S_L8, S_MEMR8, S_TAG = 64, 65, 66, 67
S_ONES, S_W4 = 68, 70
S_MEMR2 = 57
S_B01, S_TO3, S_MEMEND, S_MEMZ, S_MEMWEND = 57, 61, 60, 39, 40
SLOW = []
VPLACE = [2, 4, 3, 2, 2, 2, 3]
V_DUM = 27
ST2_ISSUE = [1]
ST2_CHECK = [4]
S_C2 = 62
S_TCH, S_TMASK = 98, 100
S_RDY, S_CHF = 10, 11
S_PUBV = 13
S_FAST = 14
S_PFM, S_W2048 = 46, 48
PREF = [True]
DEPTH = [10]
EXPL = [0]
IOIN = [False]
PKS = [False]
PFBR = [False]
ROT = [True]
STEPTS = [False]
S_PUB = 8
FUSED = [False]
TOUCH = [2]
S_TO2 = 71
S_TS = 50
PNST = 14
S_ST = 72

V_L16, V_IDX = 0, 1
V_SQA, V_SQB, V_SKA, V_SKB = 2, 4, 6, 8
V_KX, V_VX = 10, 18
V_WV, V_MP, V_PY, V_PS, V_OR = 26, 27, 28, 30, 31

def frag(f): return ar(8 * f, 8) if f < 32 else vr(80 + 8 * (f - 32), 8)
def fragb(f): return ("a", 8 * f) if f < 32 else ("v", 80 + 8 * (f - 32))
def frag_sub(f, off, n):
    k, b = fragb(f)
    return f"{k}[{b+off}:{b+off+n-1}]" if n > 1 else f"{k}{b+off}"
def F_QA(kb): return kb
def F_QB(kb): return 9 + kb
def F_KA(kb): return 18 + kb
F_KB0 = 27
VRES = [6, 7, 0, 1]
VSTR = [2, 3, 4, 5, 8]
def F_VS(tb, slot): return 28 + slot * 2 + tb
def F_WO(j, kb): return 36 + j * 2 + kb

PROF = [False]
RT = [False]
TAGALL = [False]
def stamp(p, k, on):
    r = S_ST + 2 * k if k < 13 else 14
    if PROF[0] and on: p.I(f"{'s_memrealtime' if RT[0] else 's_memtime'} s[{r}:{r+1}]")

def lane_consts(p):
    I = p.I
    I("v_lshrrev_b32 v32, 6, v0", "v_and_b32 v33, 63, v0", f"v_readfirstlane_b32 s{S_WV}, v32")
    I("v_and_b32 v34, 15, v33", "v_lshrrev_b32 v35, 4, v33")
    I("v_and_b32 v36, 7, v33")
    I("v_bfe_u32 v37, v33, 3, 1")
    I(f"v_lshlrev_b32 v{V_L16}, 4, v33")
    I("v_lshrrev_b32 v38, 2, v34", "v_lshlrev_b32 v38, 1, v38", "v_and_b32 v39, 1, v34", "v_or_b32 v38, v38, v39", "v_bfe_u32 v39, v34, 1, 1")
    I("v_mov_b32 v40, 0x44444444", "v_mov_b32 v41, 0xeeeeeeee", "v_cmp_eq_u32 vcc, 0, v39", f"v_cndmask_b32 v{V_IDX}, v41, v40, vcc")

def setup_chain(p, local, part=3):
    I = p.I
    sc_st = "" if local else " sc1"
    if part & 1: setup_regs(p)
    if part & 2: init_fills(p, sc_st)

def setup_regs(p):
    I = p.I
    I(f"s_lshl_b32 s{S_W1024}, s{S_WV}, 10", f"s_lshl_b32 s{S_W256}, s{S_WV}, 8")
    I(f"s_lshl_b32 s{S_T0}, s{S_WV}, 11", f"s_add_u32 s{S_T0}, s{S_T0}, {WVL}", f"v_add_u32 v{V_WV}, s{S_T0}, v{V_L16}")
    I(f"v_mul_u32_u24 v{V_MP}, 1152, v38", f"v_lshl_add_u32 v{V_MP}, v35, 5, v{V_MP}", f"v_lshl_add_u32 v{V_MP}, v39, 4, v{V_MP}",
      f"s_lshl_b32 s{S_T0}, s{S_WV}, 7", f"v_add_u32 v{V_MP}, s{S_T0}, v{V_MP}")
    I(f"v_lshlrev_b32 v{V_PS}, 13, v35", f"v_lshl_add_u32 v{V_PS}, v37, 12, v{V_PS}", f"v_lshl_add_u32 v{V_PS}, v36, 4, v{V_PS}")
    if ROT[0]:
        I(f"s_lshl_b32 s{S_T0}, s{S_WV}, 3", f"s_add_u32 s{S_T0}, s{S_T0}, s{S_H}", "v_lshl_add_u32 v40, v35, 1, v37", f"v_add_u32 v40, s{S_T0}, v40", "v_and_b32 v40, 31, v40", f"v_lshl_add_u32 v{V_PS}, v40, 7, v{V_PS}")
    I("v_lshl_add_u32 v40, v35, 1, v39", "v_xor_b32 v40, v40, v38", "v_lshlrev_b32 v40, 4, v40", "v_lshl_add_u32 v40, v38, 8, v40", f"v_add_u32 v{V_OR}, {OIMG}, v40")
    for src, ra, rb in ((36, V_SQA, V_SQB), (38, V_SKA, V_SKB)):
        I("v_lshlrev_b32 v40, 1, v35", f"v_sub_u32 v40, v{src}, v40", "v_mov_b32 v41, 0", "v_mov_b32 v42, 0x3f80", "v_mov_b32 v43, 0x3f800000")
        I("v_cmp_eq_u32 vcc, 0, v40", "v_cndmask_b32 v41, v41, v42, vcc", "v_cmp_eq_u32 vcc, 1, v40", f"v_cndmask_b32 v{ra}, v41, v43, vcc")
        I(f"v_mov_b32 v{ra+1}, 0", f"v_mov_b32 v{rb}, 0", f"v_mov_b32 v{rb+1}, v{ra}")
    I(f"s_mov_b32 s{S_NLT8}, 0x00ff00ff", f"s_mov_b32 s{S_NLT8+1}, 0x00ff00ff")
    I(f"s_mov_b32 s{S_ONES}, 0x3f803f80", f"s_mov_b32 s{S_ONES+1}, 0x3f803f80", f"s_lshl_b32 s{S_W4}, s{S_WV}, 2")
    cbits = struct.unpack("<I", struct.pack("<f", SCALE_LOG2E))[0]
    I(f"s_mov_b32 s{S_C}, 0x{cbits:08x}", f"s_mov_b32 s{S_C2}, 0x{cbits:08x}", f"s_mov_b32 s{S_C2+1}, 0x{cbits:08x}")
def init_fills(p, sc_st):
    I = p.I
    p.C("init fills: PART zero (12288 B per WG), MEM ring sentinel (slots 1..3), slot 0 = mem0 in fragment order")
    I(f"s_mul_i32 s{S_T0}, s{S_H}, 12288", f"s_add_u32 s{S_T1}, s{S_T0}, s{S_W1024}", f"s_add_u32 s{S_T1}, s{S_T1}, {PART_OFF}")
    I("v_mov_b64 v[64:65], 0", "v_mov_b64 v[66:67], 0", "v_mov_b64 v[68:69], -1", "v_mov_b64 v[70:71], -1")
    for rnd in range(3):
        I(f"buffer_store_dwordx4 v[64:67], v{V_L16}, s[{S_WS}:{S_WS+3}], s{S_T1} offen{sc_st}")
        if rnd < 2: I(f"s_add_u32 s{S_T1}, s{S_T1}, 4096")
    lab = p.newlabel("fill_skip")
    I(f"s_lshl_b32 s{S_T0}, s{S_H}, 2", f"s_add_u32 s{S_T0}, s{S_T0}, s{S_WV}", f"s_sub_u32 s{S_T0}, s{S_T0}, 4", f"s_cmp_ge_u32 s{S_T0}, 27", f"s_cbranch_scc1 {lab}")
    I(f"s_lshl_b32 s{S_T0}, s{S_T0}, 10", f"s_add_u32 s{S_T2}, s{S_T0}, {MEM_OFF + MEM_SLOT}", f"buffer_store_dwordx4 v[68:71], v{V_L16}, s[{S_WS}:{S_WS+3}], s{S_T2} offen{sc_st}")
    p.L(lab)
    lab = p.newlabel("no_m0")
    I(f"s_cmp_lg_u32 s{S_H}, 0", f"s_cbranch_scc1 {lab}")
    I(f"buffer_load_dwordx4 v[64:67], v{V_MP}, s[{S_MEM}:{S_MEM+3}], 0 offen", f"buffer_load_dwordx4 v[68:71], v{V_MP}, s[{S_MEM}:{S_MEM+3}], 0 offen offset:512")
    I(f"s_lshl_b32 s{S_T0}, s{S_WV}, 7", f"v_subrev_u32 v72, s{S_T0}, v{V_MP}", f"buffer_load_dwordx4 v[76:79], v72, s[{S_MEM}:{S_MEM+3}], 0 offen offset:1024")
    I(f"s_add_u32 s{S_T0}, s{S_W1024}, {MEM_OFF}", f"s_mov_b32 s{S_T1}, {MEM_OFF + 8192}", "s_waitcnt vmcnt(0)")
    I(f"buffer_store_dwordx4 v[64:67], v{V_L16}, s[{S_WS}:{S_WS+3}], s{S_T0} offen{sc_st}")
    I(f"s_add_u32 s{S_T0}, s{S_T0}, 4096", f"buffer_store_dwordx4 v[68:71], v{V_L16}, s[{S_WS}:{S_WS+3}], s{S_T0} offen{sc_st}")
    I(f"buffer_store_dwordx4 v[76:79], v{V_L16}, s[{S_WS}:{S_WS+3}], s{S_T1} offen{sc_st}")
    p.L(lab)
    I("s_waitcnt vmcnt(0)", "s_barrier")
    lab = p.newlabel("init_arr")
    I(f"s_cmp_lg_u32 s{S_WV}, 0", f"s_cbranch_scc1 {lab}")
    I("s_mov_b64 exec, 1", "v_mov_b32 v64, 1", "v_mov_b32 v65, 40", f"global_atomic_add v65, v64, s[{S_DBG}:{S_DBG+1}]", "s_mov_b64 exec, -1")
    p.L(lab)

def preload(p, mid=None, late=None):
    I = p.I
    p.C("weight preload")
    I("v_lshrrev_b32 v40, 4, v33", "v_lshlrev_b32 v41, 13, v40")
    I("v_and_b32 v42, 1, v40", "v_lshlrev_b32 v42, 1, v42", "v_xor_b32 v42, v42, v34", "v_lshlrev_b32 v42, 4, v42")
    for jj in range(4):
        I(f"v_xor_b32 v43, {64*jj}, v42", "v_add_u32 v43, v43, v41", f"v_add_u32 v{52+jj}, {jj*32768}, v43")
    I("v_lshrrev_b32 v40, 3, v33", "v_and_b32 v41, 7, v33", "v_lshrrev_b32 v42, 5, v33")
    for jj in range(4):
        I(f"v_add_u32 v43, {8*jj}, v40", "v_mul_u32_u24 v43, 1152, v43")
        I(f"v_add_u32 v44, {2*(jj&1)}, v42", "v_lshlrev_b32 v44, 1, v44", "v_xor_b32 v44, v44, v41", f"v_lshl_add_u32 v{56+jj}, v44, 4, v43")
    I("v_lshrrev_b32 v40, 2, v34", "v_and_b32 v41, 3, v34")
    I("v_lshrrev_b32 v42, 1, v35", "v_lshlrev_b32 v42, 4, v42", "v_and_b32 v43, 1, v35", "v_lshl_add_u32 v42, v43, 2, v42")
    I("v_and_b32 v44, 1, v40", "v_add_u32 v42, v42, v44", "v_lshrrev_b32 v45, 1, v40", "v_lshl_add_u32 v42, v45, 3, v42")
    I("v_lshl_add_u32 v46, v45, 1, v43")
    I("v_lshl_or_b32 v47, v46, 1, v44")
    I(f"s_lshl_b32 s{S_T0}, s{S_WV}, 1", f"v_xor_b32 v47, s{S_T0}, v47", "v_lshlrev_b32 v47, 5, v47", "v_lshl_add_u32 v47, v41, 3, v47", "v_lshl_add_u32 v60, v42, 8, v47", "v_xor_b32 v61, 32, v60")
    I(f"v_xor_b32 v46, s{S_WV}, v46", "v_lshlrev_b32 v46, 5, v46", "v_lshl_add_u32 v46, v41, 3, v46", "v_lshl_add_u32 v62, v42, 7, v46")
    chunks = [("q", kb) for kb in range(9)] + [("o", cc) for cc in range(9)] + [("k", kb) for kb in range(9)] + [("v", kb) for kb in VRES + VSTR]
    slot = lambda c: (c + 4) % 10
    ptr = {"q": S_PTR + 2, "k": S_PTR + 4, "v": S_PTR + 6, "o": S_PTR + 8}
    cur = [None]
    nissued = [0]
    def issue(c):
        kind, x = chunks[c]
        if cur[0] != kind:
            cur[0] = kind
            I(f"s_mov_b32 s{S_W}, s{ptr[kind]}", f"s_and_b32 s{S_W+1}, s{ptr[kind]+1}, 0xffff", f"s_mov_b32 s{S_W+2}, {576*8192 if kind != 'o' else 4096*1152}", f"s_mov_b32 s{S_W+3}, 0x20000")
        if kind != "o":
            I(f"s_lshl_b32 s{S_T0}, s{S_WV}, 17", f"s_lshl_b32 s{S_T1}, s{S_H}, 8", f"s_add_u32 s{S_T0}, s{S_T0}, s{S_T1}", f"s_add_u32 s{S_T0}, s{S_T0}, {x*524288}")
            vb = 52
        else:
            I(f"s_lshl_b32 s{S_T0}, s{S_H}, 7", f"s_lshl_b32 s{S_T1}, s{S_WV}, 5", f"s_add_u32 s{S_T0}, s{S_T0}, s{S_T1}", f"s_mul_i32 s{S_T0}, s{S_T0}, 1152", f"s_add_u32 s{S_T0}, s{S_T0}, {x*128}")
            vb = 56
        I(f"s_lshl_b32 s{S_T1}, s{S_WV}, 12", f"s_add_u32 s{S_T1}, s{S_T1}, {slot(c)*16384}")
        for jj in range(4):
            I(f"s_add_u32 m0, s{S_T1}, {jj*1024}")
            I(f"buffer_load_dwordx4 v{vb+jj}, s[{S_W}:{S_W+3}], s{S_T0} offen lds")
        nissued[0] = c + 1
    def tr(dst_of_t, areg, rowb, row0):
        for t in range(4):
            I(f"ds_read_b64_tr_b16 {dst_of_t(t)}, v{areg} offset:{(row0+32*(t//2)+2*(t%2))*rowb}")
    extra = [0]
    for c in range(DEPTH[0]): issue(c)
    if mid: mid(p)
    for c in range(36):
        kind, x = chunks[c]
        if late and c == 27: extra[0] = late(p)
        I(f"s_waitcnt vmcnt({4*(nissued[0]-1-c) + extra[0]})", "s_barrier")
        sb = slot(c) * 16384
        I(f"v_add_u32 v40, {sb}, v60", f"v_add_u32 v41, {sb}, v61", f"v_add_u32 v42, {sb}, v62")
        if kind == "q":
            tr(lambda t: frag_sub(F_QA(x), 2*t, 2), 40, 256, 0); tr(lambda t: frag_sub(F_QB(x), 2*t, 2), 41, 256, 0)
        elif kind == "k":
            fb = F_KB0 if x == 0 else F_VS((x-1) % 2, (x-1) // 2)
            tr(lambda t: frag_sub(F_KA(x), 2*t, 2), 40, 256, 0); tr(lambda t: frag_sub(fb, 2*t, 2), 41, 256, 0)
        elif kind == "o":
            for kb in range(2): tr(lambda t: frag_sub(F_WO(x, kb), 2*t, 2), 42, 128, 64*kb)
        else:
            for tb in range(2): tr(lambda t: f"v[{64+8*tb+2*t}:{65+8*tb+2*t}]", 40 + tb, 256, 0)
        I("s_waitcnt lgkmcnt(0)", "s_barrier")
        if kind == "v":
            pos = c - 27
            I(f"s_lshl_b32 s{S_T0}, s{S_WV}, 11", f"s_add_u32 s{S_T0}, s{S_T0}, {sb}", f"v_add_u32 v40, s{S_T0}, v{V_L16}")
            for sub in range(2):
                for half in range(2):
                    src = frag_sub(F_VS(sub, pos), 4*half, 4) if pos < 4 else f"v[{64+8*sub+4*half}:{67+8*sub+4*half}]"
                    I(f"ds_write_b128 v40, {src} offset:{sub*8192+half*1024}")
            I("s_waitcnt lgkmcnt(0)")
            if pos < 4:
                for tb in range(2):
                    k, b = fragb(F_VS(tb, pos))
                    for r in range(8):
                        I(f"v_accvgpr_write_b32 a{b+r}, v{64+8*tb+r}" if k == "a" else f"v_mov_b32 v{b+r}, v{64+8*tb+r}")
        if c + DEPTH[0] < 36: issue(c + DEPTH[0])
    I("s_barrier")

def early_loads(p):
    I = p.I
    WS = f"s[{S_WS}:{S_WS+3}]"
    I(f"v_lshrrev_b32 v45, 4, v{V_L16}", f"v_mul_u32_u24 v46, {DBG_INIT - 40}, v45", "v_add_u32 v46, 40, v46", "s_mov_b64 exec, 3")
    I(f"global_load_dword v44, v46, s[{S_DBG}:{S_DBG+1}] sc1", "s_mov_b64 exec, -1")
    I(f"v_lshlrev_b32 v47, 2, v45", f"s_mov_b32 s{S_T0}, {KVCNT}", f"buffer_load_dword v45, v47, {WS}, s{S_T0} offen sc1")
    return 2

EARLY = [False]
def chain_state(p):
    I = p.I
    lab = p.newlabel("initw"); lab2 = p.newlabel("initd"); fast = p.newlabel("fast_start")
    if EARLY[0]:
        I("s_waitcnt vmcnt(0)", f"v_readlane_b32 s{S_T0}, v44, 0", f"v_readlane_b32 s{S_T1}, v44, 1", "v_cmp_ne_u32 vcc, 32, v45", f"s_ff1_i32_b64 s{S_RDY}, vcc")
        I(f"s_cmp_eq_u32 s{S_RDY}, -1", f"s_cselect_b32 s{S_RDY}, 64, s{S_RDY}", f"s_mov_b32 s{S_FAST}, 1")
        I(f"s_cmp_lt_u32 s{S_T0}, 32", f"s_cselect_b32 s{S_FAST}, 0, s{S_FAST}", f"s_cmp_eq_u32 s{S_T1}, 0", f"s_cselect_b32 s{S_FAST}, 0, s{S_FAST}", f"s_cmp_lt_u32 s{S_RDY}, 3", f"s_cselect_b32 s{S_FAST}, 0, s{S_FAST}")
        I(f"s_cmp_lg_u32 s{S_FAST}, 0", f"s_cbranch_scc1 {lab2}")
    I(f"s_mov_b32 s{S_TO}, 0", f"v_lshrrev_b32 v45, 4, v{V_L16}", f"v_mul_u32_u24 v45, {DBG_INIT - 40}, v45", "v_add_u32 v45, 40, v45", "s_mov_b64 exec, 3")
    p.L(lab)
    I(f"global_load_dword v44, v45, s[{S_DBG}:{S_DBG+1}] sc1", "s_waitcnt vmcnt(0)", f"v_readlane_b32 s{S_T0}, v44, 0", f"v_readlane_b32 s{S_T1}, v44, 1", f"s_add_u32 s{S_TO}, s{S_TO}, 1")
    if FUSED[0]: I(f"s_cmp_eq_u32 s{S_T1}, 0", f"s_cselect_b32 s{S_T0}, 0, s{S_T0}")
    I(f"s_cmp_ge_u32 s{S_T0}, 32", f"s_cbranch_scc1 {lab2}", f"s_cmp_lt_u32 s{S_TO}, 0x40000", f"s_cbranch_scc1 {lab}")
    p.L(lab2)
    I("s_mov_b64 exec, -1")
    I(f"s_mov_b32 s{S_STEP}, 0", f"s_mov_b32 s{S_TO}, 0", f"s_mov_b32 s{S_TO2}, 0", f"s_mov_b32 s{S_TO3}, 0")
    I(f"s_lshl_b32 s{S_T0}, s{S_WV}, 1", f"s_cmp_eq_u32 s{S_WV}, 2", f"s_cselect_b32 s{S_T0}, 6, s{S_T0}", f"s_cmp_eq_u32 s{S_WV}, 3", f"s_cselect_b32 s{S_T0}, 4, s{S_T0}")
    I(f"s_lshl_b32 s{S_B01}, s{S_T0}, 10", f"s_add_u32 s{S_MEMR}, s{S_B01}, {MEM_OFF}", f"s_add_u32 s{S_MEMEND}, s{S_MEMR}, {4*MEM_SLOT}")
    I(f"s_lshl_b32 s{S_T0}, s{S_WV}, 5", f"s_add_u32 s{S_T0}, s{S_T0}, s{S_H}")
    I(f"s_cmp_lt_u32 s{S_WV}, 3", f"s_cselect_b32 s{S_HASTASK}, 1, 0")
    I(f"s_lshl_b32 s{S_PL}, s{S_T0}, 12", f"s_add_u32 s{S_PL}, s{S_PL}, {PART_OFF}")
    I(f"s_mul_i32 s{S_MEMW}, s{S_WV}, 3072")
    I(f"s_lshr_b32 s{S_T1}, s{S_H}, 3", f"s_lshl_b32 s{S_T1}, s{S_T1}, 8", f"s_add_u32 s{S_MEMW}, s{S_MEMW}, s{S_T1}")
    I(f"s_bfe_u32 s{S_T1}, s{S_H}, 0x20001", f"s_lshl_b32 s{S_T1}, s{S_T1}, 6", f"s_add_u32 s{S_MEMW}, s{S_MEMW}, s{S_T1}")
    I(f"s_and_b32 s{S_T1}, s{S_H}, 1", f"s_lshl_b32 s{S_T1}, s{S_T1}, 5", f"s_add_u32 s{S_MEMW}, s{S_MEMW}, s{S_T1}", f"s_add_u32 s{S_MEMW}, s{S_MEMW}, {MEM_OFF + MEM_SLOT}")
    I(f"s_mov_b32 s{S_EXMS+1}, 0x00000055", f"s_mov_b32 s{S_EXMS}, 0x00550055")
    I(f"s_cmp_eq_u32 s{S_WV}, 2", f"s_cselect_b32 s{S_ISW2}, 1, 0")
    I(f"s_mul_i32 s{S_L8}, s{S_WV}, 768", f"s_add_u32 s{S_L8}, s{S_L8}, {MEMIMG + 6144}", f"s_sub_u32 s{S_D8}, s{S_L8}, s{S_B01}")
    I(f"s_mov_b32 s{S_M8}, -1", f"s_mov_b32 s{S_M8+1}, 0xffff")
    I(f"s_cmp_eq_u32 s{S_WV}, 3", f"s_cselect_b32 s{S_PFM}, -1, 0", f"s_mov_b32 s{S_PFM+1}, s{S_PFM}", f"s_lshl_b32 s{S_W2048}, s{S_WV}, 11")
    I(f"s_add_u32 s{S_MEMZ}, s{S_MEMW}, {2*MEM_SLOT}", f"s_add_u32 s{S_MEMWEND}, s{S_MEMW}, {3*MEM_SLOT}")
    I(f"s_lshl_b32 s{S_T0}, s{S_H}, 13", f"s_lshl_b32 s{S_T1}, s{S_WV}, 11", f"s_add_u32 s{S_T0}, s{S_T0}, s{S_T1}", f"s_add_u32 s{S_KX}, s{S_T0}, {KX_OFF}", f"s_add_u32 s{S_VX}, s{S_T0}, {VX_OFF}")
    I(f"s_lshr_b32 s{S_T1}, s{S_T0}, 1", f"s_add_u32 s{S_KM}, s{S_T1}, {KM_OFF}", f"s_lshr_b32 s{S_T1}, s{S_T0}, 2", f"s_add_u32 s{S_VM}, s{S_T1}, {VM_OFF - 32*2048}")
    I(f"s_lshl_b32 s{S_T0}, s{S_WV}, 15", f"s_lshl_b32 s{S_T1}, s{S_H}, 7" if not ROT[0] else f"s_mov_b32 s{S_T1}, 0", f"s_add_u32 s{S_T0}, s{S_T0}, s{S_T1}", f"s_add_u32 s{S_PS}, s{S_T0}, {PART_OFF}")
    for e in range(1, 3): I(f"s_add_u32 s{S_PS+e}, s{S_PS}, {e*131072}")
    I(f"s_add_u32 s{S_MEMR8}, s{S_MEMR}, s{S_D8}")
    if FUSED[0]:
        I(f"s_lshl_b32 s{S_CHF}, s{S_H}, 8", f"s_add_u32 s{S_CHF}, s{S_CHF}, {CHFLG}")
        I(f"s_cmp_eq_u32 s{S_WV}, 0", f"s_cselect_b32 s{S_PUB}, 1, 0", f"s_mov_b32 s{S_PUB+1}, 0")
    skip = p.newlabel("have_rdy")
    if EARLY[0]: I(f"s_cmp_lg_u32 s{S_FAST}, 0", f"s_cbranch_scc1 {skip}")
    if FUSED[0]:
        I(f"s_mov_b32 s{S_RDY}, 0")
        need_segment(p, 2)
    p.L(skip)
    if FUSED[0]:
        I(f"v_lshlrev_b32 v52, 3, v{V_L16}", f"s_lshl_b32 s{S_T0}, s{S_H}, 13")
        I(f"s_and_b32 s{S_T1}, s{S_WV}, 1", f"s_lshr_b32 s{S_T2}, s{S_WV}, 1", f"s_add_u32 s{S_T1}, s{S_T1}, s{S_T2}", f"s_lshl_b32 s{S_T1}, s{S_T1}, 18", f"s_add_u32 s{S_T0}, s{S_T0}, s{S_T1}")
        I(f"s_cmp_ge_u32 s{S_WV}, 2", f"s_cselect_b32 s{S_T2}, 0, {VX_OFF}", f"s_add_u32 s{S_T0}, s{S_T0}, s{S_T2}")
        I(f"buffer_load_dword v{V_DUM}, v52, s[{S_WS}:{S_WS+3}], s{S_T0} offen ; nodep")
    for kt in range(2):
        I(f"buffer_load_dwordx4 v[{V_KX+4*kt}:{V_KX+4*kt+3}], v{V_L16}, s[{S_WS}:{S_WS+3}], s{S_KX} offen offset:{kt*1024} sc1")
    I(f"s_add_u32 s{S_KX}, s{S_KX}, {32*8192}")

SM = lambda d, a, b: f"v_smfmac_f32_16x16x64_bf16 v[{d}:{d+3}], v[{a}:{a+3}], {b}, v{V_IDX}"

class Stream:
    def __init__(self, p): self.p = p; self.q = []
    def add(self, *instrs): self.q.append(list(instrs))
    def emit(self, n=1):
        for _ in range(n):
            if not self.q: return
            for x in self.q.pop(0): self.p.I(x)
    def drain(self): self.emit(len(self.q))


VPERIOD = [24]
LEAD = [0]
HOLD = [0]
BAR4 = [True]
def delay(p, clks):
    n = clks // 4
    while n > 0:
        k = min(n, 16); p.raw(f"    s_nop {k-1}"); n -= k
DELAYG1 = [0]
DELAY4 = [0]
DELAY3 = [0]
DELAY0 = [0]
DELAY1 = [0]
DELAY2 = [0]
def need_segment(p, add, refresh=None):
    I = p.I
    lab = p.newlabel("rdy"); ok = p.newlabel("rdy_ok")
    I(f"s_add_u32 s{S_T1}, s{S_STEP}, {refresh if refresh is not None else add}", f"s_min_u32 s{S_T1}, s{S_T1}, 63", f"s_cmp_lt_u32 s{S_T1}, s{S_RDY}", f"s_cbranch_scc1 {ok}")
    I(f"s_add_u32 s{S_T1}, s{S_STEP}, {add}", f"s_min_u32 s{S_T1}, s{S_T1}, 63")
    I(f"s_mov_b32 s{S_T2}, 0", f"v_lshrrev_b32 v52, 2, v{V_L16}", f"s_mov_b32 s{S_T0}, {KVCNT}")
    p.L(lab)
    I(f"buffer_load_dword v53, v52, s[{S_WS}:{S_WS+3}], s{S_T0} offen sc1", "s_waitcnt vmcnt(0)")
    I("v_cmp_ne_u32 vcc, 32, v53", f"s_ff1_i32_b64 s{S_RDY}, vcc", f"s_cmp_eq_u32 s{S_RDY}, -1", f"s_cselect_b32 s{S_RDY}, 64, s{S_RDY}")
    I(f"s_cmp_lt_u32 s{S_T1}, s{S_RDY}", f"s_cbranch_scc1 {ok}", "s_sleep 8", f"s_add_u32 s{S_T2}, s{S_T2}, 1", f"s_cmp_lt_u32 s{S_T2}, 0x80000", f"s_cbranch_scc1 {lab}")
    I(f"s_mov_b32 s{S_RDY}, 64")
    p.L(ok)

def step(p, local, first=True, last=False):
    I = p.I
    sc_st = "" if local else " sc1"
    WS = f"s[{S_WS}:{S_WS+3}]"
    QA, QB, KA, KB = 32, 36, 40, 44
    A0, A1, A2 = 56, 60, 48
    VA, VB = 48, 52
    W1, W2 = 64, 72
    wv_state = {"b": 0}
    def wread(u, buf):
        out = []
        blk = u // 8
        while wv_state["b"] < blk:
            out.append(f"v_add_u32 v{V_WV}, 0x10000, v{V_WV}"); wv_state["b"] += 1
        off = (u % 8) * 8192
        out.append(f"ds_read_b128 v[{buf}:{buf+3}], v{V_WV} offset:{off}")
        out.append(f"ds_read_b128 v[{buf+4}:{buf+7}], v{V_WV} offset:{off+1024}")
        return out
    aread = lambda kb, a: f"ds_read_b128 v[{a}:{a+3}], v{V_L16} offset:{MEMIMG+kb*1024}"
    ad = lambda d, a_, b_: f"v_add_f32 v{d}, v{a_}, v{b_}"
    cv = lambda d, a_, b_: f"v_cvt_pk_bf16_f32 v{d}, v{a_}, v{b_}"
    p.C("==== step : acquire mem blocks 0..5 (waves 0,1,3)")
    stamp(p, 0, first)
    if STEPTS[0]:
        lab = p.newlabel("sts")
        I(f"s_cmp_lg_u32 s{S_WV}, 3", f"s_cbranch_scc1 {lab}")
        I("s_memrealtime s[2:3]", "s_waitcnt lgkmcnt(0)", f"s_lshl_b32 s3, s{S_H}, 9", f"s_lshl_b32 s{S_T0}, s{S_STEP}, 2", f"s_add_u32 s3, s3, s{S_T0}", f"s_add_u32 s3, s3, {0x9200000}")
        I("s_mov_b64 exec, 1", "v_mov_b32 v52, s2", f"buffer_store_dword v52, v{V_SQA+1}, {WS}, s3 offen", "s_mov_b64 exec, -1")
        p.L(lab)
    if FUSED[0]:
        nchk = p.newlabel("nochk")
        I(f"s_cmp_lg_u32 s{S_WV}, 3", f"s_cbranch_scc1 {nchk}")
        need_segment(p, 1, refresh=2)
        p.L(nchk)
    I(*wread(0, W1)); I(*wread(1, W2))
    for r in range(0, 16, 2): I(f"v_mov_b64 v[{QA+r}:{QA+r+1}], 0")
    loop = p.newlabel("mem_poll"); done = p.newlabel("mem_done"); loop2 = p.newlabel("mem_poll2"); w2 = p.newlabel("acq_w2")
    I(f"v_add_u32 v55, s{S_B01}, v{V_L16}")
    I(f"s_cmp_eq_u32 s{S_WV}, 2", f"s_cbranch_scc1 {w2}")
    if DELAY3[0]:
        nd = p.newlabel("nd3")
        I(f"s_cmp_lg_u32 s{S_WV}, 3", f"s_cbranch_scc1 {nd}")
        delay(p, DELAY3[0])
        p.L(nd)
    delay(p, DELAY2[0])
    a, b, c = 56, 60, 48
    p.L(loop)
    I(f"buffer_load_dwordx4 v[{a}:{a+3}], v{V_L16}, {WS}, s{S_MEMR} offen sc1")
    I(f"buffer_load_dwordx4 v[{b}:{b+3}], v{V_L16}, {WS}, s{S_MEMR} offen offset:1024 sc1")
    I(f"s_add_u32 s{S_TO}, s{S_TO}, 1")
    I("s_waitcnt vmcnt(1)")
    I(f"ds_write_b128 v55, v[{a}:{a+3}] offset:{MEMIMG}")
    I(f"v_max3_u32 v52, v{a}, v{a+1}, v{a+2}")
    I("s_waitcnt vmcnt(0)")
    I(f"ds_write_b128 v55, v[{b}:{b+3}] offset:{MEMIMG+1024}")
    I(f"v_max3_u32 v52, v52, v{a+3}, v{b}", f"v_max3_u32 v52, v52, v{b+1}, v{b+2}", f"v_max_u32 v52, v52, v{b+3}")
    I("v_cmp_eq_u32 vcc, -1, v52", f"s_cbranch_vccz {done}", f"s_cmp_lt_u32 s{S_TO}, 0x200000", f"s_cbranch_scc1 {loop}")
    I(f"s_branch {done}")
    p.L(w2)
    delay(p, DELAY4[0])
    p.L(loop2)
    I(f"buffer_load_dwordx4 v[{a}:{a+3}], v{V_L16}, {WS}, s{S_MEMR} offen sc1")
    I(f"buffer_load_dwordx4 v[{b}:{b+3}], v{V_L16}, {WS}, s{S_MEMR} offen offset:1024 sc1")
    I(f"buffer_load_dwordx4 v[{c}:{c+3}], v{V_L16}, {WS}, s{S_MEMR} offen offset:2048 sc1")
    I(f"s_add_u32 s{S_TO3}, s{S_TO3}, 1")
    I("s_waitcnt vmcnt(2)")
    I(f"ds_write_b128 v55, v[{a}:{a+3}] offset:{MEMIMG}")
    I(f"v_max3_u32 v52, v{a}, v{a+1}, v{a+2}")
    I("s_waitcnt vmcnt(1)")
    I(f"ds_write_b128 v55, v[{b}:{b+3}] offset:{MEMIMG+1024}")
    I(f"v_max3_u32 v52, v52, v{a+3}, v{b}", f"v_max3_u32 v52, v52, v{b+1}, v{b+2}")
    I("s_waitcnt vmcnt(0)")
    I(f"ds_write_b128 v55, v[{c}:{c+3}] offset:{MEMIMG+2048}")
    I(f"v_max3_u32 v52, v52, v{b+3}, v{c}", f"v_max3_u32 v52, v52, v{c+1}, v{c+2}", f"v_max_u32 v52, v52, v{c+3}")
    I("v_cmp_eq_u32 vcc, -1, v52", f"s_cbranch_vccz {done}", f"s_cmp_lt_u32 s{S_TO3}, 0x200000", f"s_cbranch_scc1 {loop2}")
    p.L(done)
    stamp(p, 1, first)
    I("s_waitcnt lgkmcnt(0)")
    I("s_barrier")
    p.reset_q()
    stamp(p, 2, first)
    p.C("QK")
    W = Weaver(p)
    Ab = [A0, A1, A2]
    wb = [W1, W2]
    W.raw(aread(0, Ab[0])); W.raw(aread(1, Ab[1]))
    W.raw(f"s_add_u32 s{S_TAG}, s{S_STEP}, 1")
    if FUSED[0]: W.raw(f"s_max_u32 s{S_PUBV}, s{S_STEP}, 1"); W.raw(f"s_sub_u32 s{S_PUBV}, s{S_PUBV}, 1")
    def group(kb, extra):
        a = Ab[kb % 3]
        kbsrc = frag(F_KB0) if kb == 0 else f"v[{wb[(kb-1)%2]}:{wb[(kb-1)%2]+7}]"
        X = []
        if kb + 2 < 9: X.append([aread(kb + 2, Ab[(kb + 2) % 3])])
        if kb >= 2:
            w = wread(kb, wb[(kb - 2) % 2])
            if len(w) == 3: X.append([w[0], w[1]]); X.append([w[2]])
            else: X.append([w[0]]); X.append([w[1]])
        ms = [SM(QA, a, frag(F_QA(kb))), SM(QB, a, frag(F_QB(kb))), SM(KA, a, frag(F_KA(kb))), SM(KB, a, kbsrc)]
        for i, m in enumerate(ms):
            if not (last and i < 2): W.raw(m)
            if X:
                for y in X.pop(0): W.raw(y)
            for y in extra.get(i, []): W.raw(y)
        assert not X, X
    vxl = [f"buffer_load_dwordx4 v[{V_VX+4*tb}:{V_VX+4*tb+3}], v{V_L16}, {WS}, s{S_VX} offen offset:{tb*1024} sc1" for tb in range(2)]
    pf = []
    if PREF[0]:
        pf = [[f"s_sub_u32 s{S_T0}, s{S_VX}, s{S_W2048}", f"s_add_u32 s{S_T0}, s{S_T0}, {32*8192}", f"v_lshlrev_b32 v{V_MP}, 3, v{V_L16}"],
              [f"s_sub_u32 s{S_T1}, s{S_KX}, s{S_W2048}", f"s_add_u32 s{S_T1}, s{S_T1}, {32*8192}"] + ([f"s_add_u32 s{S_T2}, s{S_STEP}, 2", f"s_cmp_lt_u32 s{S_T2}, s{S_RDY}", f"s_cselect_b32 s{S_T1}, s{S_T1}, s{S_T0}"] if FUSED[0] else []),
              [f"s_mov_b64 exec, s[{S_PFM}:{S_PFM+1}]", f"buffer_load_dword v{V_DUM}, v{V_MP}, {WS}, s{S_T0} offen ; nodep"],
              [f"buffer_load_dword v{V_DUM}, v{V_MP}, {WS}, s{S_T1} offen ; nodep", "s_mov_b64 exec, -1"]]
    EXPORT = [f"v_lshrrev_b32 v52, 1, v{V_L16}", f"buffer_store_dwordx2 v[{V_PY}:{V_PY+1}], v52, {WS}, s{S_VM} offen sc1"]
    FLAG = [f"v_mov_b32 v53, s{S_PUBV}", f"s_mov_b64 exec, s[{S_PUB}:{S_PUB+1}]", f"buffer_store_dword v53, v{V_SQA+1}, {WS}, s{S_CHF} offen sc1", "s_mov_b64 exec, -1"] if FUSED[0] else []
    mr = [f"s_add_u32 s{S_MEMR}, s{S_MEMR}, {MEM_SLOT}", f"s_cmp_ge_u32 s{S_MEMR}, s{S_MEMEND}", f"s_cselect_b32 s{S_T0}, {4*MEM_SLOT}, 0", f"s_sub_u32 s{S_MEMR}, s{S_MEMR}, s{S_T0}"]
    group(0, {1: [vxl[0]], 2: mr[0:2], 3: [vxl[1]]})
    group(1, {1: mr[2:4], 2: [EXPORT[0]], 3: [EXPORT[1]]})
    group(2, {3: FLAG[:1]})
    group(3, {3: FLAG[1:]})
    if PREF[0]:
        group(4, {3: pf[0]}); group(5, {3: pf[1]}); group(6, {3: pf[2] + pf[3]})
    else:
        group(4, {}); group(5, {}); group(6, {})
    group(7, {}); group(8, {})
    stamp(p, 3, first)
    p.C("post QK, V phase as filler")
    items = []
    w9 = wread(9, wb[1])
    vorder = VRES + VSTR
    vA = [A0, A1]
    ubuf = {8: wb[0], 9: wb[1]}
    for pos, kb in enumerate(vorder):
        a = vA[pos % 2]
        for tb in range(2):
            it = []
            if pos < 4:
                it.append(SM(VA + 4 * tb, a, frag(F_VS(tb, pos))))
                if pos == 0: it.append(w9[tb])
            else:
                u = 8 + (pos - 4) * 2 + tb
                b = ubuf[u]
                it.append(SM(VA + 4 * tb, a, f"v[{b}:{b+7}]"))
                if u + 2 < 18:
                    it += wread(u + 2, b); ubuf[u + 2] = b
            if tb == 1 and pos + 2 < 9: it.append(aread(vorder[pos + 2], a))
            items.append(it)
    def VI(n):
        return ("call", lambda n=n: [W.raw(y) for _ in range(n) if items for y in items.pop(0)])
    crit = []
    C = crit.append
    zero = [f"v_mov_b64 v[{VA}:{VA+1}], 0", f"v_mov_b64 v[{VA+2}:{VA+3}], 0", f"v_mov_b64 v[{VB}:{VB+1}], 0", f"v_mov_b64 v[{VB+2}:{VB+3}], 0"]
    if not last:
        C(ad(32, 32, 34)); C(ad(33, 33, 35)); C(ad(36, 36, 38)); C(ad(37, 37, 39)); C(cv(34, 32, 33)); C(cv(35, 36, 37))
    C(ad(40, 40, 42)); C(ad(41, 41, 43)); C(zero[2]); C(zero[3]); C(ad(44, 44, 46)); C(ad(45, 45, 47)); C(cv(42, 40, 41)); C(cv(43, 44, 45))
    if not last:
        C(f"v_mfma_f32_16x16x16_bf16 v[36:39], v[34:35], v[{V_SQA}:{V_SQA+1}], 0")
        C(zero[0]); C(zero[1])
        C(f"v_mfma_f32_16x16x16_bf16 v[32:35], v[34:35], v[{V_SQB}:{V_SQB+1}], 0")
    else:
        C(zero[0]); C(zero[1])
    C(f"v_mfma_f32_16x16x16_bf16 v[44:47], v[42:43], v[{V_SKA}:{V_SKA+1}], 0")
    C(f"v_mfma_f32_16x16x16_bf16 v[40:43], v[42:43], v[{V_SKB}:{V_SKB+1}], 0")
    KMST = f"buffer_store_dwordx4 v[44:47], v{V_L16}, {WS}, s{S_KM} offen sc1"
    OA_, OB_, LL = 32, 52, 56
    VMST = [f"v_lshrrev_b32 v60, 1, v{V_L16}", f"buffer_store_dwordx2 v[50:51], v60, {WS}, s{S_VM} offen sc1"]
    if last:
        C(cv(44, 44, 45)); C(cv(45, 46, 47)); C(cv(46, 40, 41)); C(cv(47, 42, 43)); C(KMST)
        W.weave(crit, []); W.drain(items)
        W.raw(f"v_subrev_u32 v{V_WV}, 0x20000, v{V_WV}")
        W.raw(ad(VA, VA, VA + 2)); W.raw(ad(VA + 1, VA + 1, VA + 3)); W.raw(ad(VB, VB, VB + 2)); W.raw(ad(VB + 1, VB + 1, VB + 3))
        W.raw(cv(50, VA, VA + 1)); W.raw(cv(51, VB, VB + 1))
        W.raw(f"s_add_u32 s{S_VM}, s{S_VM}, {32*2048}")
        for y in VMST: W.raw(y)
        p.fence(); p.reset_q()
        return
    V1, V2, V3, V4, V5, V6, V7 = VPLACE
    C(cv(36, 36, 37)); C(cv(37, 38, 39)); C(cv(38, 32, 33)); C(cv(39, 34, 35))
    C(f"v_mfma_f32_16x16x32_bf16 v[32:35], v[{V_KX}:{V_KX+3}], v[36:39], 0")
    C(cv(44, 44, 45)); C(cv(45, 46, 47)); C(cv(46, 40, 41)); C(cv(47, 42, 43))
    C(f"v_mfma_f32_16x16x32_bf16 v[40:43], v[{V_KX+4}:{V_KX+7}], v[36:39], 0")
    C(f"v_mfma_f32_16x16x32_bf16 v[36:39], v[44:47], v[36:39], 0")
    k = V_KX
    C(f"v_and_b32 v{k+6}, 0x70, v{V_L16}"); C(f"v_lshrrev_b32 v{k+7}, 1, v{V_L16}"); C(f"v_and_b32 v{k+7}, 0x180, v{k+7}"); C(f"v_or_b32 v{k+6}, v{k+6}, v{k+7}")
    C(f"v_lshrrev_b32 v{k+7}, 1, v{k+6}"); C(f"v_and_b32 v{k}, 0x80, v{V_L16}"); C(f"v_lshl_add_u32 v{k+6}, v{k}, 2, v{k+6}")
    C(VI(V1))
    C(f"v_add_u32 v{k+6}, {SEXX}, v{k+6}"); C(f"v_add_u32 v{k+7}, {SEXM}, v{k+7}")
    C(f"v_add_u32 v{k}, s{S_W1024}, v{k+6}"); C(f"v_add_u32 v{k+1}, s{S_W256}, v{k+7}")
    for r in range(4): C(f"v_cndmask_b32_e64 v{32+r}, v{40+r}, v{32+r}, s[{S_NLT8}:{S_NLT8+1}]")
    C(f"ds_write_b128 v{k}, v[32:35]"); C(f"ds_write_b64 v{k+1}, v[36:37]")
    C(("call", lambda: stamp(p, 4, first)))
    C(VI(V2))
    C(KMST)
    C(("call", p.waitw)); C("s_barrier")
    C(("call", lambda: stamp(p, 5, first)))
    for w in range(4): C(f"ds_read_b128 v[{32+4*w}:{35+4*w}], v{k+6} offset:{w*1024}")
    C(f"ds_read2_b64 v[{k}:{k+3}], v{k+7} offset0:0 offset1:32"); C(f"ds_read2_b64 v[{k+4}:{k+7}], v{k+7} offset0:64 offset1:96")
    C(VI(V3))
    pk = lambda d, a_, b_: f"v_pk_add_f32 v[{d}:{d+1}], v[{a_}:{a_+1}], v[{b_}:{b_+1}]"
    if PKS[0]:
        C(pk(32, 32, 36)); C(pk(34, 34, 38)); C(pk(40, 40, 44)); C(pk(42, 42, 46)); C(pk(32, 32, 40)); C(pk(34, 34, 42))
        C("v_max3_f32 v38, v32, v33, v34")
        C(pk(k, k, k + 2)); C(pk(k + 4, k + 4, k + 6)); C(pk(36, k, k + 4))
        C(VI(V4))
    else:
        for r in range(4): C(ad(32 + r, 32 + r, 36 + r))
        for r in range(4): C(ad(40 + r, 40 + r, 44 + r))
        for r in range(4): C(ad(32 + r, 32 + r, 40 + r))
        C("v_max3_f32 v38, v32, v33, v34")
        C(VI(V4))
        C(ad(k, k, k + 2)); C(ad(k + 1, k + 1, k + 3)); C(ad(k + 4, k + 4, k + 6)); C(ad(k + 5, k + 5, k + 7)); C(ad(36, k, k + 4)); C(ad(37, k + 1, k + 5))
    for kt in range(2):
        C(f"buffer_load_dwordx4 v[{V_KX+4*kt}:{V_KX+4*kt+3}], v{V_L16}, {WS}, s{S_KX} offen offset:{kt*1024} sc1")
    C("v_max3_f32 v38, v38, v35, v36"); C("v_max_f32 v38, v38, v37")
    C(VI(V5))
    C("v_max_f32_dpp v38, v38, v38 row_ror:8 row_mask:0xf bank_mask:0xf")
    C("v_mov_b32 v39, v38"); C("v_mov_b32 v45, 0"); C("v_mov_b32 v46, 0"); C("v_permlane16_swap_b32 v38, v39"); C("v_max_f32 v38, v38, v39")
    C("v_mov_b32 v39, v38"); C(VI(V6)); C("v_permlane32_swap_b32 v38, v39"); C("v_max_f32 v38, v38, v39")
    C(f"v_mul_f32 v38, s{S_C}, v38")
    for r in range(6): C(f"v_fma_f32 v{32+r}, v{32+r}, s{S_C}, -v38")
    C(VI(V7))
    for r in range(6): C(f"v_exp_f32 v{32+r}, v{32+r}")
    C(cv(40, 32, 33)); C(cv(41, 34, 35)); C(cv(44, 36, 37))
    for r in range(0, 4, 2): C(f"v_mov_b64 v[{36+r}:{37+r}], s[{S_ONES}:{S_ONES+1}]")
    C("v_mov_b32_dpp v42, v40 row_ror:8 row_mask:0xf bank_mask:0xf"); C("v_mov_b32_dpp v43, v41 row_ror:8 row_mask:0xf bank_mask:0xf")
    C("v_mov_b32 v47, v44")
    C(("call", lambda: stamp(p, 6, first)))
    W.weave(crit, [])
    rest = items
    W.raw(f"v_mfma_f32_16x16x32_bf16 v[{OA_}:{OA_+3}], v[{V_VX}:{V_VX+3}], v[40:43], 0")
    W.drain(rest)
    assert wv_state["b"] == 2
    W.raw(f"v_subrev_u32 v{V_WV}, 0x20000, v{V_WV}")
    W.raw(ad(VA, VA, VA + 2)); W.raw(ad(VA + 1, VA + 1, VA + 3)); W.raw(ad(VB, VB, VB + 2)); W.raw(ad(VB + 1, VB + 1, VB + 3))
    W.raw(cv(50, VA, VA + 1)); W.raw(cv(51, VB, VB + 1))
    stamp(p, 7, first)
    p.C("PV")
    crit = [f"v_mfma_f32_16x16x32_bf16 v[{LL}:{LL+3}], v[36:39], v[40:43], 0",
            f"v_mfma_f32_16x16x32_bf16 v[{OB_}:{OB_+3}], v[{V_VX+4}:{V_VX+7}], v[40:43], 0",
            f"v_mfma_f32_16x16x16_bf16 v[{OA_}:{OA_+3}], v[50:51], v[44:45], v[{OA_}:{OA_+3}]",
            f"v_mfma_f32_16x16x16_bf16 v[{LL}:{LL+3}], v[36:37], v[44:45], v[{LL}:{LL+3}]",
            f"v_mfma_f32_16x16x16_bf16 v[{OB_}:{OB_+3}], v[50:51], v[46:47], v[{OB_}:{OB_+3}]",
            f"v_rcp_f32 v{LL}, v{LL}"]
    for b in (OA_, OB_):
        for r in range(4): crit.append(f"v_mul_f32 v{b+r}, v{b+r}, v{LL}")
    crit += [cv(OA_, OA_, OA_ + 1), cv(OA_ + 1, OA_ + 2, OA_ + 3), cv(OB_, OB_, OB_ + 1), cv(OB_ + 1, OB_ + 2, OB_ + 3)]
    fill = [f"v_mov_b64 v[{V_PY}:{V_PY+1}], v[50:51]", f"v_bfe_u32 v61, v{V_L16}, 4, 3", f"v_bfe_u32 v62, v{V_L16}, 9, 1", f"v_add_u32 v62, s{S_W4}, v62", "v_xor_b32 v62, v62, v61",
            "v_lshlrev_b32 v62, 4, v62", "v_lshl_add_u32 v62, v61, 8, v62", f"v_bfe_u32 v61, v{V_L16}, 8, 1", "v_lshl_add_u32 v62, v61, 3, v62", f"v_add_u32 v62, {OIMG}, v62", "v_xor_b32 v63, 32, v62"]
    rest = W.weave(crit, [[f] for f in fill]); W.drain(rest)
    W.raw(f"s_mov_b64 exec, s[{S_NLT8}:{S_NLT8+1}]"); W.raw(f"ds_write_b64 v62, v[{OA_}:{OA_+1}]"); W.raw(f"ds_write_b64 v63, v[{OB_}:{OB_+1}]"); W.raw("s_mov_b64 exec, -1")
    stamp(p, 8, first)
    OACC = [32 + 4 * j for j in range(9)]
    OAr = 72; G = 68
    I(f"v_mov_b32 v71, s{S_TAG}")
    for b in range(34, 68, 2):
        if b in (52, 62): continue
        I(f"v_mov_b64 v[{b}:{b+1}], 0")
    p.waitw()
    I("s_barrier")
    I(f"ds_read_b128 v[{OAr}:{OAr+3}], v{V_OR}", f"ds_read_b128 v[{OAr+4}:{OAr+7}], v{V_OR} offset:128")
    for b in (32, 52, 62): I(f"v_mov_b64 v[{b}:{b+1}], 0")
    stamp(p, 9, first)
    p.C("O-proj")
    W = Weaver(p)
    osm = lambda j, kb: SM(OACC[j], OAr + 4 * kb, frag(F_WO(j, kb)))
    seq = [(0, 0), (1, 0), (0, 1), (1, 1)] + [(j, kb) for j in range(2, 9) for kb in range(2)]
    def fin(j):
        b = OACC[j]
        ops = [ad(b, b, b + 2), ad(b + 1, b + 1, b + 3), cv(G + j % 3, b, b + 1)]
        if j % 3 == 2: ops.append(f"buffer_store_dwordx4 v[{G}:{G+3}], v{V_PS}, {WS}, s{S_PS + j // 3} offen{sc_st}")
        return ops
    done_at = {}
    pend = []
    for idx, (j, kb) in enumerate(seq):
        W.raw(osm(j, kb))
        if kb == 1: done_at[j] = idx
        for jj in list(done_at):
            if idx >= done_at[jj] + 2:
                pend += fin(jj); del done_at[jj]
        n = 2 if len(pend) > 2 else 1
        for _ in range(n):
            if pend: W.raw(pend.pop(0))
    for jj in sorted(done_at): pend += fin(jj)
    for o in pend: W.raw(o)
    stamp(p, 10, first)
    p.C("reduce")
    skip = p.newlabel("notask")
    if PFBR[0] and PREF[0]:
        nt = p.newlabel("hastask")
        I(f"s_cmp_lg_u32 s{S_HASTASK}, 0", f"s_cbranch_scc1 {nt}")
        I(f"s_sub_u32 s{S_T0}, s{S_VX}, s{S_W2048}", f"s_add_u32 s{S_T0}, s{S_T0}, {32*8192}", f"v_lshlrev_b32 v{V_MP}, 3, v{V_L16}",
          f"s_sub_u32 s{S_T1}, s{S_KX}, s{S_W2048}", f"s_add_u32 s{S_T1}, s{S_T1}, {32*8192}")
        I(f"buffer_load_dword v{V_DUM}, v{V_MP}, {WS}, s{S_T0} offen ; nodep", f"buffer_load_dword v{V_DUM}, v{V_MP}, {WS}, s{S_T1} offen ; nodep")
        I(f"s_branch {skip}")
        p.L(nt)
    else:
        I(f"s_cmp_eq_u32 s{S_HASTASK}, 0", f"s_cbranch_scc1 {skip}")
    RS = 64
    if DELAY1[0]:
        nd = p.newlabel("nodelay")
        I(f"s_cmp_eq_u32 s{S_ISW2}, 0", f"s_cbranch_scc1 {nd}")
        delay(p, DELAY1[0])
        p.L(nd)
    if DELAYG1[0]:
        nd = p.newlabel("nodelay1")
        I(f"s_cmp_lg_u32 s{S_WV}, 1", f"s_cbranch_scc1 {nd}")
        delay(p, DELAYG1[0])
        p.L(nd)
    delay(p, DELAY0[0])
    retry = p.newlabel("p_retry"); ok = p.newlabel("p_ok")
    p.L(retry)
    for i in range(4):
        I(f"buffer_load_dwordx4 v[{32+4*i}:{35+4*i}], v{V_L16}, {WS}, s{S_PL} offen offset:{i*1024} sc1")
    I(f"s_add_u32 s{S_TO2}, s{S_TO2}, 1")
    I(f"v_bfe_u32 v69, v{V_L16}, 4, 2", f"v_bfe_u32 v70, v{V_L16}, 6, 2", "v_lshlrev_b32 v71, 4, v69", "v_mov_b32 v68, 0x3f80", "v_lshlrev_b32 v68, v71, v68",
      "v_cmp_gt_u32 vcc, 2, v69", "v_cndmask_b32 v71, 0, v68, vcc")
    for r in range(3): I(f"v_cmp_eq_u32 vcc, {r}, v70", f"v_cndmask_b32 v{RS+r}, 0, v71, vcc")
    I(f"v_mov_b32 v{RS+3}, 0")
    I(f"v_bfe_u32 v68, v{V_L16}, 8, 2", "v_lshlrev_b32 v68, 10, v68", f"v_bfe_u32 v69, v{V_L16}, 4, 3", "v_lshl_add_u32 v68, v69, 1, v68")
    D = 72
    for i in range(4):
        I(f"s_waitcnt vmcnt({3-i})")
        c = "0" if i == 0 else f"v[{D}:{D+3}]"
        I(f"v_mfma_f32_16x16x32_bf16 v[{D}:{D+3}], v[{RS}:{RS+3}], v[{32+4*i}:{35+4*i}], {c}")
        if i == 2: I("v_min3_u32 v76, v35, v39, v43")
        if i == 3: I("v_min_u32 v76, v76, v47")
    I(f"v_cmp_ne_u32 vcc, s{S_TAG}, v76", f"s_cbranch_vccz {ok}", f"s_cmp_lt_u32 s{S_TO2}, 0x200000", f"s_cbranch_scc1 {retry}")
    p.L(ok)
    stamp(p, 11, first)
    p.fence()
    I(f"v_add_f32_dpp v{D}, v{D}, v{D} row_ror:8 row_mask:0xf bank_mask:0xf", f"v_add_f32_dpp v{D+1}, v{D+1}, v{D+1} row_ror:8 row_mask:0xf bank_mask:0xf")
    I(f"v_mov_b32_dpp v76, v{D} quad_perm:[1,0,3,2] row_mask:0xf bank_mask:0xf", f"v_mov_b32_dpp v77, v{D+1} quad_perm:[1,0,3,2] row_mask:0xf bank_mask:0xf")
    I(f"v_cvt_pk_bf16_f32 v76, v{D}, v76", f"v_cvt_pk_bf16_f32 v77, v{D+1}, v77", "v_mov_b32 v78, -1")
    I(f"s_mov_b64 exec, s[{S_EXMS}:{S_EXMS+1}]", f"buffer_store_dword v76, v68, {WS}, s{S_MEMW} offen{sc_st}", f"buffer_store_dword v77, v68, {WS}, s{S_MEMW} offen offset:16{sc_st}")
    I(f"buffer_store_dword v78, v68, {WS}, s{S_MEMZ} offen{sc_st}", f"buffer_store_dword v78, v68, {WS}, s{S_MEMZ} offen offset:16{sc_st}", "s_mov_b64 exec, -1")
    p.L(skip)
    for r_ in (S_MEMW, S_MEMZ):
        I(f"s_add_u32 s{r_}, s{r_}, {MEM_SLOT}", f"s_cmp_ge_u32 s{r_}, s{S_MEMWEND}", f"s_cselect_b32 s{S_T0}, {4*MEM_SLOT}, 0", f"s_sub_u32 s{r_}, s{r_}, s{S_T0}")
    I(f"s_add_u32 s{S_VX}, s{S_VX}, {32*8192}", f"s_add_u32 s{S_KM}, s{S_KM}, {32*4096}", f"s_add_u32 s{S_VM}, s{S_VM}, {32*2048}", f"s_add_u32 s{S_KX}, s{S_KX}, {32*8192}", f"s_add_u32 s{S_STEP}, s{S_STEP}, 1")
    stamp(p, 12, first)
    p.fence()
    p.reset_q()

def emit_slow(p):
    I = p.I
    WS = f"s[{S_WS}:{S_WS+3}]"
    while SLOW:
        slow, back, ld2, M48, areg = SLOW.pop(0)
        p.fence(); p.reset_q()
        p.L(slow)
        lp = p.newlabel("st2_lp")
        I(f"s_mov_b64 exec, {M48}")
        p.L(lp)
        I(ld2, "s_waitcnt vmcnt(0)", f"v_max3_u32 v{V_VX+1}, v52, v53, v54", f"v_max_u32 v{V_VX+1}, v{V_VX+1}, v55", f"v_cmp_eq_u32 vcc, -1, v{V_VX+1}", f"s_add_u32 s{S_TO3}, s{S_TO3}, 1")
        ok = p.newlabel("st2_ok")
        I(f"s_cbranch_vccz {ok}", f"s_cmp_lt_u32 s{S_TO3}, 0x200000", f"s_cbranch_scc1 {lp}")
        p.L(ok)
        I(f"ds_write_b128 v{areg}, v[52:55]", "s_mov_b64 exec, -1", "s_waitcnt lgkmcnt(0)", f"s_branch {back}")
        p.reset_q()

def chain_loop(p, local, nsteps=64):
    I = p.I
    p.reset_q()
    loop = p.newlabel("chain_loop")
    p.fence()
    p.L(loop)
    step(p, local=local)
    I(f"s_cmp_lt_u32 s{S_STEP}, {nsteps-1}", f"s_cbranch_scc1 {loop}")
    step(p, local=local, first=False, last=True)
    I("s_waitcnt vmcnt(0)", "s_barrier")
    if FUSED[0]:
        I("v_mov_b32 v52, 64", "v_mov_b32 v53, 0", f"s_mov_b64 exec, s[{S_PUB}:{S_PUB+1}]", f"buffer_store_dword v52, v53, s[{S_WS}:{S_WS+3}], s{S_CHF} offen sc1", "s_mov_b64 exec, -1")
    over = p.newlabel("over_slow")
    I(f"s_branch {over}")
    emit_slow(p)
    p.L(over)

def gen_chain(p, local=True, nsteps=64, stamps=False):
    I = p.I
    setup_chain(p, local)
    preload(p)
    chain_state(p)
    if stamps: I(f"s_memtime s[{S_TS}:{S_TS+1}]", "s_waitcnt lgkmcnt(0)")
    chain_loop(p, local, nsteps)
    if stamps:
        I("s_waitcnt vmcnt(0) lgkmcnt(0)", f"s_memtime s[{S_TS+2}:{S_TS+3}]", "s_waitcnt lgkmcnt(0)")
        I(f"s_sub_u32 s{S_TS}, s{S_TS+2}, s{S_TS}", f"v_mov_b32 v44, s{S_TS}")
        lab = p.newlabel("st")
        I(f"s_cmp_lg_u32 s{S_WV}, 0", f"s_cbranch_scc1 {lab}")
        I(f"s_lshl_b32 s{S_T0}, s{S_H}, 2", f"s_add_u32 s{S_T0}, s{S_T0}, 128", f"v_mov_b32 v45, s{S_T0}", "s_mov_b64 exec, 1", f"global_store_dword v45, v44, s[{S_DBG}:{S_DBG+1}]", "s_mov_b64 exec, -1")
        p.L(lab)
    prof_dump(p)

def prof_dump(p):
    I = p.I
    if PROF[0]:
        I("s_waitcnt lgkmcnt(0)")
        I(f"s_lshl_b32 s{S_T0}, s{S_H}, 2", f"s_add_u32 s{S_T0}, s{S_T0}, s{S_WV}", f"s_lshl_b32 s{S_T0}, s{S_T0}, 7", f"s_add_u32 s{S_T0}, s{S_T0}, {0x9000000}")
        I("s_mov_b64 exec, 1", "v_mov_b32 v45, 0")
        for k in range(PNST):
            I(f"v_mov_b32 v44, s{S_ST+2*k if k < 13 else 14}", f"buffer_store_dword v44, v45, s[{S_WS}:{S_WS+3}], s{S_T0} offen offset:{4*k}")
        for k, r_ in enumerate((S_TO, S_TO2, S_TO3)):
            I(f"v_mov_b32 v44, s{r_}", f"buffer_store_dword v44, v45, s[{S_WS}:{S_WS+3}], s{S_T0} offen offset:{64+4*k}")
        I("s_mov_b64 exec, -1")

def standalone(local=True, stamps=True, nsteps=64):
    name = "chain_kernel"
    p = AProg()
    p.raw(f"; @launch kernel={name} grid=(256,1,1) block=(256,1,1) lds=163840")
    p.raw('.amdgcn_target "amdgcn-amd-amdhsa--gfx950"\n.text')
    p.raw(f".globl {name}\n.p2align 8\n.type {name},@function\n{name}:")
    I = p.I
    I(f"s_cmp_ge_u32 s2, 256", "s_cbranch_scc1 L_end")
    I(f"s_load_dwordx2 s[{S_PTR}:{S_PTR+1}], s[0:1], {KARG['A_mem0']}")
    I(f"s_load_dwordx4 s[{S_PTR+2}:{S_PTR+5}], s[0:1], {KARG['A_Wq']}")
    I(f"s_load_dwordx2 s[{S_PTR+6}:{S_PTR+7}], s[0:1], {KARG['A_Wv']}")
    I(f"s_load_dwordx2 s[{S_PTR+8}:{S_PTR+9}], s[0:1], {KARG['A_Wo']}")
    I(f"s_load_dwordx2 s[{S_DBG}:{S_DBG+1}], s[0:1], {KARG['dbg']}")
    I(f"s_load_dwordx2 s[{S_PTR+10}:{S_PTR+11}], s[0:1], {KARG['ws']}")
    I("s_waitcnt lgkmcnt(0)")
    I(f"s_mov_b32 s{S_WS}, s{S_PTR+10}", f"s_and_b32 s{S_WS+1}, s{S_PTR+11}, 0xffff", f"s_mov_b32 s{S_WS+2}, {WS_BYTES}", f"s_mov_b32 s{S_WS+3}, 0x20000")
    I(f"s_mov_b32 s{S_MEM}, s{S_PTR}", f"s_and_b32 s{S_MEM+1}, s{S_PTR+1}, 0xffff", f"s_mov_b32 s{S_MEM+2}, 9216", f"s_mov_b32 s{S_MEM+3}, 0x20000")
    lane_consts(p)
    I(f"s_getreg_b32 s{S_T0}, hwreg(HW_REG_XCC_ID, 0, 4)")
    I(f"s_cmp_lg_u32 s{S_T0}, 0", "s_cbranch_scc1 L_end")
    lab = p.newlabel("role")
    I(f"s_cmp_lg_u32 s{S_WV}, 0", f"s_cbranch_scc1 {lab}")
    I("s_mov_b64 exec, 1", "v_mov_b32 v44, 1", "v_mov_b32 v45, 0", f"global_atomic_add v46, v45, v44, s[{S_DBG}:{S_DBG+1}] sc0", "s_waitcnt vmcnt(0)", "v_mov_b32 v45, 0", "ds_write_b32 v45, v46", "s_waitcnt lgkmcnt(0)", "s_mov_b64 exec, -1")
    p.L(lab)
    I("s_barrier", "v_mov_b32 v45, 0", "ds_read_b32 v46, v45", "s_waitcnt lgkmcnt(0)", f"v_readfirstlane_b32 s{S_H}, v46", "s_barrier")
    I(f"s_cmp_ge_u32 s{S_H}, 32", "s_cbranch_scc1 L_end")
    gen_chain(p, local=local, stamps=stamps, nsteps=nsteps)
    p.L("L_end")
    I("s_endpgm")
    p.raw(kd(name))
    return p.render()

if __name__ == "__main__":
    import sys
    for a in sys.argv[2:]:
        if a == "prof": PROF[0] = True
        if a == "rt": RT[0] = True
        if a.startswith("hold="): HOLD[0] = int(a[5:])
        if a.startswith("lead="): LEAD[0] = int(a[5:])
        if a.startswith("lat="): Weaver.LDS_LAT = int(a[4:])
        if a.startswith("vp="): VPERIOD[0] = int(a[3:])
        if a == "nobar4": BAR4[0] = False
        if a.startswith("touch="): TOUCH[0] = int(a[6:])
        if a.startswith("s2i="): ST2_ISSUE[0] = int(a[4:])
        if a.startswith("s2c="): ST2_CHECK[0] = int(a[4:])
        if a.startswith("g1="): DELAYG1[0] = int(a[3:])
        if a == "nopref": PREF[0] = False
        if a.startswith("expl="): EXPL[0] = int(a[5:])
        if a == "pfbr": PFBR[0] = True
        if a == "ioin": IOIN[0] = True
        if a == "pks": PKS[0] = True
        if a == "norot": ROT[0] = False
        if a.startswith("vpl="): VPLACE[:] = [int(c) for c in a[4:]]
        if a.startswith("d4="): DELAY4[0] = int(a[3:])
        if a.startswith("d3="): DELAY3[0] = int(a[3:])
        if a.startswith("d0="): DELAY0[0] = int(a[3:])
        if a.startswith("d1="): DELAY1[0] = int(a[3:])
        if a.startswith("d2="): DELAY2[0] = int(a[3:])
    open(sys.argv[1], "w").write(standalone())
```

```python
import sys
import chain5 as ch
from gemm576 import *
from test_gemm import role_gemm1, role_bq
from test_b import role_bo
from attna import *
from attnb import *
from oproja import *
NAME = "concat_heads__memory_aug_recurrent_mem_tr__grouped_kv_mqa__prompt_kernel"
HEAD = open("concat_heads__memory_aug_recurrent_mem_tr__grouped_kv_mqa__prompt.s.ref").read().split("; Override launch geometry")[0]
PT = 72
PN = ["A_x", "A_mem0", "A_Wq", "A_Wk", "A_Wv", "A_Wo", "B_x", "B_wq", "B_wk", "B_wv", "B_wo", "out"]
def ptr(n): return PT + 2 * PN.index(n)
S_ROLE = 44
N_OPROJ, N_BO0, N_BOUT = 48, 48, 24
ATTNB0 = 96

TL = [False]
def ts(p, k, rolereg, a=30, b=31):
    if not TL[0]: return
    I = p.I
    lab = p.newlabel("ts")
    I(f"s_cmp_lg_u32 s19, 0", f"s_cbranch_scc1 {lab}")
    I("s_memrealtime s[2:3]", "s_waitcnt lgkmcnt(0)", f"s_lshl_b32 s3, s{rolereg}, 6", f"s_add_u32 s3, s3, {0x9100000 + 4*k}")
    I("s_mov_b64 exec, 1", f"v_mov_b32 v{a}, s2", f"v_mov_b32 v{b}, 0", f"buffer_store_dword v{a}, v{b}, s[4:7], s3 offen", "s_mov_b64 exec, -1", "s_nop 1")
    p.L(lab)

def tc(p, k, rolereg, a=30, b=31):
    if not TL[0]: return
    I = p.I
    lab = p.newlabel("tc")
    I(f"s_cmp_lg_u32 s19, 0", f"s_cbranch_scc1 {lab}")
    I("s_memtime s[2:3]", "s_waitcnt lgkmcnt(0)", f"s_lshl_b32 s3, s{rolereg}, 6", f"s_add_u32 s3, s3, {0x9100000 + 4*k}")
    I("s_mov_b64 exec, 1", f"v_mov_b32 v{a}, s2", f"v_mov_b32 v{b}, 0", f"buffer_store_dword v{a}, v{b}, s[4:7], s3 offen", "s_mov_b64 exec, -1", "s_nop 1")
    p.L(lab)

DT = [False]
def dts(p, idx, op="umax", a=52, b=53):
    if not DT[0]: return
    I = p.I
    lab = p.newlabel("dts")
    I("s_cmp_lg_u32 s19, 0", f"s_cbranch_scc1 {lab}")
    I("s_memrealtime s[2:3]", "s_waitcnt lgkmcnt(0)")
    if op == "umin": I("s_not_b32 s2, s2")
    I("s_mov_b64 exec, 1", f"v_mov_b32 v{a}, s2", f"v_mov_b32 v{b}, {4*idx}", f"global_atomic_umax v{b}, v{a}, s[16:17]", "s_mov_b64 exec, -1", "s_nop 1")
    p.L(lab)

def build(opts):
    DT[0] = bool(opts.get("dt"))
    TL[0] = bool(opts.get("tl"))
    ch.PROF[0] = bool(opts.get("prof"))
    ch.PREF[0] = not opts.get("nopref")
    ch.ROT[0] = not opts.get("norot")
    ch.EXPL[0] = opts.get("expl", 0)
    ch.PFBR[0] = bool(opts.get("pfbr"))
    ch.DEPTH[0] = opts.get("depth", 10)
    ch.PKM[0] = bool(opts.get("pkm"))
    ch.OPAT[0] = opts.get("opat", 0)
    ch.IOIN[0] = bool(opts.get("ioin"))
    ch.PKS[0] = bool(opts.get("pks"))
    if opts.get("vpl"): ch.VPLACE[:] = [int(c) for c in str(opts["vpl"])]
    ch.STEPTS[0] = bool(opts.get("sts"))
    ch.FUSED[0] = True
    p = AProg(); I = p.I
    p.raw(HEAD.rstrip("\n"))
    p.raw("; Override launch geometry by editing the next line.")
    p.raw("; @launch grid=(256,1,1) block=(256,1,1) lds=163840")
    p.raw('.amdgcn_target "amdgcn-amd-amdhsa--gfx950"\n.text')
    kernel_head(p, NAME)
    S_DBG, S_WS, S_MEM, S_WV, S_H = ch.S_DBG, ch.S_WS, ch.S_MEM, ch.S_WV, ch.S_H
    I("s_cmp_ge_u32 s2, 256", "s_cbranch_scc1 L_end")
    load_ptrs(p, PN, PT)
    I(f"s_load_dwordx2 s[{S_DBG}:{S_DBG+1}], s[0:1], {KARG['dbg']}", f"s_load_dwordx2 s[46:47], s[0:1], {KARG['ws']}")
    I("s_waitcnt lgkmcnt(0)")
    srd(p, S_WS, 46, WS_BYTES)
    I(f"s_mov_b32 s{S_ABORT}, 0")
    if opts.get("cpf"):
        p.L("L_pc_here") if False else None
        I("s_getpc_b64 s[60:61]")
        p.L("L_pc0")
        I("v_lshrrev_b32 v60, 6, v0", "v_and_b32 v61, 63, v0", "v_lshlrev_b32 v61, 7, v61", "v_lshl_add_u32 v61, v60, 13, v61")
        n = opts["cpf"]
        for i in range(n):
            I(f"v_cmp_gt_u32 vcc, L_end - L_pc0, v61" if False else f"v_min_u32 v62, L_end - L_pc0, v61", f"global_load_dword v63, v62, s[60:61] ; nodep", "v_add_u32 v61, 0x8000, v61")
    ch.lane_consts(p)
    dts(p, 9, "umin", 60, 61); dts(p, 11, "umax", 60, 61) if opts.get("dt") == 1 else None
    I("s_getreg_b32 s24, hwreg(HW_REG_XCC_ID, 0, 4)", "s_and_b32 s24, s24, 7")
    lab = p.newlabel("role")
    I(f"s_cmp_lg_u32 s{S_WV}, 0", f"s_cbranch_scc1 {lab}")
    I("s_mov_b64 exec, 1", "v_mov_b32 v44, 1", "s_lshl_b32 s25, s24, 2", "v_mov_b32 v45, s25", f"global_atomic_add v46, v45, v44, s[{S_DBG}:{S_DBG+1}] sc0", "s_waitcnt vmcnt(0)")
    I("v_readfirstlane_b32 s26, v46")
    I(f"s_cmp_eq_u32 s24, {opts.get('chx', 0)}", "s_cselect_b32 s27, s26, 1000", "s_cmp_lt_u32 s27, 32", "s_cbranch_scc1 L_isch")
    I(f"v_mov_b32 v45, {DBG_WORK}", f"global_atomic_add v46, v45, v44, s[{S_DBG}:{S_DBG+1}] sc0", "s_waitcnt vmcnt(0)", "v_add_u32 v46, 32, v46")
    p.L("L_isch")
    I("v_mov_b32 v45, 0", "ds_write_b32 v45, v46", "s_waitcnt lgkmcnt(0)", "s_mov_b64 exec, -1")
    p.L(lab)
    I("s_waitcnt vmcnt(0)", "s_barrier", "v_mov_b32 v45, 0", "ds_read_b32 v46, v45", "s_waitcnt lgkmcnt(0)", f"v_readfirstlane_b32 s{S_H}, v46", "s_barrier")
    I("s_mov_b32 s98, 0")
    I(f"s_cmp_lt_u32 s{S_H}, 256", "s_cbranch_scc1 L_notx", f"s_sub_u32 s{S_H}, 287, s{S_H}", "s_mov_b32 s98, 1")
    p.L("L_notx")
    I(f"s_cmp_ge_u32 s{S_H}, 32", "s_cbranch_scc1 L_worker")
    I("s_mov_b32 s45, s98")
    ts(p, 0, S_H, 52, 53)
    chain_role(p, opts)
    I("s_branch L_end")
    p.L("L_worker")
    I(f"s_sub_u32 s{S_ROLE}, s{S_H}, 32")
    ts(p, 0, S_H)
    worker(p, opts)
    p.L("L_end"); I("s_endpgm")
    p.raw(kd(NAME))
    return p.render()

def chain_role(p, opts):
    I = p.I
    S_PTR = ch.S_PTR
    for i, n in enumerate(["A_mem0", "A_Wq", "A_Wk", "A_Wv", "A_Wo"]):
        I(f"s_mov_b32 s{S_PTR+2*i}, s{ptr(n)}", f"s_mov_b32 s{S_PTR+2*i+1}, s{ptr(n)+1}")
    srd(p, ch.S_MEM, S_PTR, 9216)
    ch.setup_chain(p, local=False, part=1)
    ts(p, 1, ch.S_H, 66, 67); dts(p, 11, "umax", 66, 67) if opts.get("dt") == 2 else None
    def mid(p):
        ch.init_fills(p, " sc1")
        decide_mode(p, opts)
        wait_init(p, ch.S_DBG, tmpv=(64, 65))
    ch.EARLY[0] = True
    ch.preload(p, mid=mid, late=ch.early_loads)
    ts(p, 2, ch.S_H, 52, 53); dts(p, 15, "umax") if opts.get("dt") == 2 else None
    if opts.get("forceglobal"): I("s_mov_b32 s45, 1")
    I("s_mov_b32 s12, s45")
    ch.chain_state(p)
    ts(p, 3, ch.S_H, 52, 53); tc(p, 8, ch.S_H, 52, 53); dts(p, 8, "umax")
    I("s_cmp_lg_u32 s12, 0", "s_cbranch_scc1 L_chain_global")
    ch.chain_loop(p, local=True)
    ts(p, 4, ch.S_H, 52, 53); tc(p, 9, ch.S_H, 52, 53); dts(p, 14, "umax")
    ch.prof_dump(p)
    I("s_branch L_end")
    p.L("L_chain_global")
    ch.chain_loop(p, local=False)

def decide_mode(p, opts):
    I = p.I
    lab = p.newlabel("mode"); dec = p.newlabel("mode_d")
    I("s_cmp_lg_u32 s45, 0", f"s_cbranch_scc1 {dec}", f"s_mov_b32 s{ch.S_T2}, 0")
    p.L(lab)
    I(f"v_mov_b32 v65, {4*opts.get('chx', 0)}", f"global_load_dword v64, v65, s[{ch.S_DBG}:{ch.S_DBG+1}] sc1", f"v_mov_b32 v65, {DBG_WORK}", f"global_load_dword v66, v65, s[{ch.S_DBG}:{ch.S_DBG+1}] sc1", "s_waitcnt vmcnt(0)")
    I(f"v_readfirstlane_b32 s{ch.S_T0}, v64", f"v_readfirstlane_b32 s{ch.S_T1}, v66")
    I(f"s_cmp_ge_u32 s{ch.S_T0}, 32", f"s_cbranch_scc1 {dec}", f"s_cmp_gt_u32 s{ch.S_T1}, 224", "s_cselect_b32 s45, 1, 0", f"s_cbranch_scc1 {dec}")
    I("s_sleep 4", f"s_add_u32 s{ch.S_T2}, s{ch.S_T2}, 1", f"s_cmp_lt_u32 s{ch.S_T2}, 0x100000", f"s_cbranch_scc1 {lab}")
    p.L(dec)

def worker(p, opts):
    I = p.I
    S_DBG = ch.S_DBG
    lab = p.newlabel("noinit")
    I(f"s_cmp_lg_u32 s{S_ROLE}, 0", f"s_cbranch_scc1 {lab}")
    I("v_mov_b64 v[44:45], 0", "v_mov_b64 v[46:47], 0", f"s_lshl_b32 s{G_T0}, s{G_WV}, 10", f"s_add_u32 s{G_T0}, s{G_T0}, {FLAG_OFF}")
    for rnd in range(4):
        I(f"buffer_store_dwordx4 v[44:47], v0, s[{G_WS}:{G_WS+3}], s{G_T0} offen sc1", f"s_add_u32 s{G_T0}, s{G_T0}, 4096")
    I("s_waitcnt vmcnt(0)", "s_barrier")
    lab2 = p.newlabel("ini2")
    I(f"s_cmp_lg_u32 s{G_WV}, 0", f"s_cbranch_scc1 {lab2}")
    I("s_mov_b64 exec, 1", "v_mov_b32 v44, 1", f"v_mov_b32 v45, {DBG_INIT}", f"global_store_dword v45, v44, s[{S_DBG}:{S_DBG+1}] sc1", "s_mov_b64 exec, -1")
    p.L(lab2); p.L(lab)
    mid = lambda p: wait_init(p, S_DBG, tmpv=(48, 49))
    I(f"s_cmp_ge_u32 s{S_ROLE}, 192", "s_cbranch_scc1 L_p1b")
    if opts.get("qd", 0):
        nq = p.newlabel("noqd")
        I(f"s_mul_hi_u32 s36, s{S_ROLE}, {(1 << 32) // 48 + 1}", "s_mul_i32 s36, s36, 48", f"s_sub_u32 s36, s{S_ROLE}, s36", "s_cmp_lt_u32 s36, 32", f"s_cbranch_scc1 {nq}")
        for _ in range(opts["qd"]): I("s_sleep 127")
        p.L(nq)
    role_gemm1(p, f"s{S_ROLE}", ptr("A_x"), ptr("A_Wq"), ptr("A_Wk"), ptr("A_Wv"), mid=mid)
    I("s_branch L_p2")
    p.L("L_p1b")
    I(f"s_cmp_ge_u32 s{S_ROLE}, 216", "s_cbranch_scc1 L_p1c")
    I(f"s_sub_u32 s36, s{S_ROLE}, 192")
    role_bq(p, 36, ptr("B_x"), ptr("B_wq"), endsig=BQCNT, mid=mid)
    I("s_branch L_p2")
    p.L("L_p1c")
    srd(p, G_X, ptr("B_x"), 2048 * 1152)
    I(f"s_sub_u32 s20, s{S_ROLE}, 216", "s_lshl_b32 s20, s20, 2", f"s_add_u32 s20, s20, s{G_WV}", "s_mov_b32 s21, 32")
    kvproj(p, ptr("B_wk"), ptr("B_wv"), 2, 20)
    I("s_waitcnt vmcnt(0)")
    wait_init(p, S_DBG, tmpv=(30, 31))
    I(f"s_mov_b32 s{G_T0}, {BKVCNT}")
    signal_add(p, G_WS, G_T0)
    p.L("L_p2")
    p.fence(); p.reset_q()
    I("s_barrier")
    ts(p, 1, ch.S_H)
    relane(p)
    I(f"s_cmp_lt_u32 s{S_ROLE}, {N_OPROJ}", "s_cbranch_scc1 L_oproj")
    I(f"s_cmp_lt_u32 s{S_ROLE}, {ATTNB0}", "s_cbranch_scc1 L_attna")
    poll_ge(p, G_WS, BQCNT, 24, imm=True, sleep=32); poll_ge(p, G_WS, BKVCNT, 32, imm=True, sleep=32)
    attnb_setup(p)
    I(f"s_sub_u32 s{B_TASK}, s{S_ROLE}, {ATTNB0}", f"s_lshl_b32 s{B_TASK}, s{B_TASK}, 2", f"s_add_u32 s{B_TASK}, s{B_TASK}, s{G_WV}")
    p.fence(); p.reset_q(); p.L("L_bl")
    attnb_task(p)
    I("s_waitcnt vmcnt(0)", f"s_and_b32 s{G_T0}, s{B_TASK}, 31", f"s_lshl_b32 s{G_T0}, s{G_T0}, 2", f"s_add_u32 s{G_T0}, s{G_T0}, {BACNT}")
    signal_add(p, G_WS, G_T0)
    I(f"s_add_u32 s{B_TASK}, s{B_TASK}, 512")
    p.fence(); p.reset_q()
    I(f"s_cmp_lt_u32 s{B_TASK}, 1024", "s_cbranch_scc1 L_bl")
    I("s_barrier")
    ts(p, 2, ch.S_H)
    I(f"s_cmp_ge_u32 s{S_ROLE}, {ATTNB0 + N_BOUT}", "s_cbranch_scc1 L_attna")
    def bo_wait(p, segreg):
        I(f"s_lshr_b32 s{G_T0}, s{segreg}, 1", f"s_lshl_b32 s{G_T0}, s{G_T0}, 2", f"s_add_u32 s{G_T0}, s{G_T0}, {BACNT}", f"s_mov_b32 s45, s{G_T0}")
        poll_ge(p, G_WS, 45, 32, tmpv=(48, 49), sleep=32)
    I(f"s_sub_u32 s36, s{S_ROLE}, {ATTNB0}")
    relane(p)
    role_bo(p, 36, 46, ptr("B_wo"), ptr("out"), prewait=bo_wait, xsc=" sc1")
    p.fence(); p.reset_q()
    I("s_barrier")
    relane(p)
    p.L("L_attna")
    ts(p, 3, ch.S_H)
    relane(p)
    attna_setup(p)
    p.fence(); p.reset_q(); p.L("L_al")
    I("s_mov_b64 exec, 1", "v_mov_b32 v30, 1", "v_mov_b32 v31, 0", f"s_mov_b32 s{G_T0}, {ATICK}", f"buffer_atomic_add v30, v31, s[{G_WS}:{G_WS+3}], s{G_T0} offen sc0", "s_waitcnt vmcnt(0)", "s_mov_b64 exec, -1")
    I(f"v_readfirstlane_b32 s{A_TASK}, v30")
    I(f"s_cmp_ge_u32 s{A_TASK}, 2048", "s_cbranch_scc1 L_aend")
    I(f"s_lshr_b32 s36, s{A_TASK}, 5", "s_lshl_b32 s37, s36, 2")
    I(f"s_add_u32 s38, s37, {QCNT}"); poll_ge(p, G_WS, 38, 16, sleep=32)
    I(f"s_add_u32 s38, s37, {KVCNT}"); poll_ge(p, G_WS, 38, 32, sleep=32)
    def chwait(p):
        I(f"s_and_b32 s38, s{A_TASK}, 31", "s_lshl_b32 s38, s38, 8", f"s_add_u32 s38, s38, {CHFLG}", "s_add_u32 s39, s36, 1")
        poll_ge_far(p, G_WS, 38, 39, tmpv=(29, 30), near_sleep=opts.get("nsl", 6), far_sleep=opts.get("fsl", 60))
    attna_task(p, midwait=chwait)
    I("s_waitcnt vmcnt(0)", f"s_lshr_b32 s{G_T0}, s{A_TASK}, 5", f"s_lshl_b32 s{G_T0}, s{G_T0}, 2", f"s_add_u32 s{G_T0}, s{G_T0}, {ACNT}")
    signal_add(p, G_WS, G_T0)
    p.fence(); p.reset_q()
    I("s_branch L_al")
    p.L("L_aend")
    ts(p, 4, ch.S_H)
    I("s_branch L_end")
    p.L("L_oproj")
    srd(p, G_W, ptr("A_Wo"), 4096 * 1152); srd(p, G_O, ptr("out"), 2048 * 2304)
    I(f"s_mul_hi_u32 s{G_SEG}, s{S_ROLE}, {(1 << 32) // 12 + 1}", f"s_mul_i32 s{G_T0}, s{G_SEG}, 12", f"s_sub_u32 s{G_T0}, s{S_ROLE}, s{G_T0}", f"s_mul_i32 s{G_WCOL}, s{G_T0}, 96")
    oproj_setup(p); oproj_preload(p)
    ts(p, 2, ch.S_H)
    p.fence(); p.reset_q(); p.L("L_ol")
    I(f"s_lshr_b32 s38, s{G_SEG}, 1", "s_lshl_b32 s38, s38, 2", f"s_add_u32 s38, s38, {ACNT}")
    nw = p.newlabel("op_nw")
    I(f"s_cmp_lg_u32 s{G_WV}, 0", f"s_cbranch_scc1 {nw}")
    poll_ge(p, G_WS, 38, 32, tmpv=(30, 31), sleep=opts.get("osl", 8))
    p.L(nw)
    I("s_barrier")
    oproj_seg(p)
    I(f"s_add_u32 s{G_SEG}, s{G_SEG}, {N_OPROJ // 12}")
    p.fence(); p.reset_q()
    I(f"s_cmp_lt_u32 s{G_SEG}, 128", "s_cbranch_scc1 L_ol")
    I("s_waitcnt vmcnt(0)")
    ts(p, 4, ch.S_H); dts(p, 15, "umax", 30, 31) if opts.get("dt") == 1 else None
    I("s_branch L_end")

def relane(p):
    p.I("v_lshrrev_b32 v33, 4, v0", "v_and_b32 v34, 15, v33", "v_lshrrev_b32 v35, 4, v33")

if __name__ == "__main__":
    opts = {}
    for a in sys.argv[2:]:
        if a.startswith("g1="): ch.DELAYG1[0] = int(a[3:])
        elif a.startswith("d3="): ch.DELAY3[0] = int(a[3:])
        elif a.startswith("d4="): ch.DELAY4[0] = int(a[3:])
        elif a.startswith("d0="): ch.DELAY0[0] = int(a[3:])
        elif a.startswith("d1="): ch.DELAY1[0] = int(a[3:])
        elif a.startswith("d2="): ch.DELAY2[0] = int(a[3:])
        elif "=" in a: k, v = a.split("="); opts[k] = int(v)
        else: opts[a] = 1
    open(sys.argv[1], "w").write(build(opts))
```

```python
import struct
from asmlib2 import *
from common import *
import common, sys as _sys
if 'hot' in _sys.argv: MEM_SLOT = 0

MEMIMG, SEXM, SEXX, OIMG, WVL = 0, 9216, 10240, 14336, 16384
PART_BYTES = 48 * 8192
SCALE_LOG2E = 0.08838834764831845 * 1.4426950408889634

S_WS, S_MEM, S_W = 4, 8, 12
S_DBG = 16
S_H, S_WV, S_STEP = 18, 19, 20
S_MEMR, S_MEMW, S_KX, S_VX, S_KM, S_VM = 21, 22, 23, 24, 25, 26
S_TO, S_T0, S_T1, S_T2 = 27, 28, 29, 30
S_C = 31
S_NLT8 = 32
S_M8 = 34
S_PS = 36
S_PL, S_ISW2 = 41, 42
S_W1024, S_W256 = 43, 44
S_HASTASK = 45
S_PTR = 46
S_EXMS = 58
S_D8, S_L8, S_MEMR8, S_TAG = 64, 65, 66, 67
S_ONES, S_W4 = 68, 70
S_MEMR2 = 57
S_B01, S_TO3, S_MEMEND, S_MEMZ, S_MEMWEND = 57, 61, 60, 39, 40
SLOW = []
VPLACE = [2, 4, 3, 2, 2, 2, 3]
V_DUM = 27
ST2_ISSUE = [1]
ST2_CHECK = [4]
S_C2 = 62
S_TCH, S_TMASK = 98, 100
S_RDY, S_CHF = 10, 11
S_PUBV = 13
S_FAST = 14
S_PFM, S_W2048 = 46, 48
PREF = [True]
PKM = [False]
OPAT = [0]
DEPTH = [10]
EXPL = [0]
IOIN = [False]
PKS = [False]
PFBR = [False]
ROT = [True]
STEPTS = [False]
S_PUB = 8
FUSED = [False]
TOUCH = [2]
S_TO2 = 71
S_TS = 50
PNST = 14
S_ST = 72

V_L16, V_IDX = 0, 1
V_SQA, V_SQB, V_SKA, V_SKB = 2, 4, 6, 8
V_KX, V_VX = 10, 18
V_WV, V_MP, V_PY, V_PS, V_OR = 26, 27, 28, 30, 31

def frag(f): return ar(8 * f, 8) if f < 32 else vr(80 + 8 * (f - 32), 8)
def fragb(f): return ("a", 8 * f) if f < 32 else ("v", 80 + 8 * (f - 32))
def frag_sub(f, off, n):
    k, b = fragb(f)
    return f"{k}[{b+off}:{b+off+n-1}]" if n > 1 else f"{k}{b+off}"
def F_QA(kb): return kb
def F_QB(kb): return 9 + kb
def F_KA(kb): return 18 + kb
F_KB0 = 27
VRES = [6, 7, 0, 1]
VSTR = [2, 3, 4, 5, 8]
def F_VS(tb, slot): return 28 + slot * 2 + tb
def F_WO(j, kb): return 36 + j * 2 + kb

PROF = [False]
RT = [False]
TAGALL = [False]
def stamp(p, k, on):
    r = S_ST + 2 * k if k < 13 else 14
    if PROF[0] and on: p.I(f"{'s_memrealtime' if RT[0] else 's_memtime'} s[{r}:{r+1}]")

def lane_consts(p):
    I = p.I
    I("v_lshrrev_b32 v32, 6, v0", "v_and_b32 v33, 63, v0", f"v_readfirstlane_b32 s{S_WV}, v32")
    I("v_and_b32 v34, 15, v33", "v_lshrrev_b32 v35, 4, v33")
    I("v_and_b32 v36, 7, v33")
    I("v_bfe_u32 v37, v33, 3, 1")
    I(f"v_lshlrev_b32 v{V_L16}, 4, v33")
    I("v_lshrrev_b32 v38, 2, v34", "v_lshlrev_b32 v38, 1, v38", "v_and_b32 v39, 1, v34", "v_or_b32 v38, v38, v39", "v_bfe_u32 v39, v34, 1, 1")
    I("v_mov_b32 v40, 0x44444444", "v_mov_b32 v41, 0xeeeeeeee", "v_cmp_eq_u32 vcc, 0, v39", f"v_cndmask_b32 v{V_IDX}, v41, v40, vcc")

def setup_chain(p, local, part=3):
    I = p.I
    sc_st = "" if local else " sc1"
    if part & 1: setup_regs(p)
    if part & 2: init_fills(p, sc_st)

def setup_regs(p):
    I = p.I
    I(f"s_lshl_b32 s{S_W1024}, s{S_WV}, 10", f"s_lshl_b32 s{S_W256}, s{S_WV}, 8")
    I(f"s_lshl_b32 s{S_T0}, s{S_WV}, 11", f"s_add_u32 s{S_T0}, s{S_T0}, {WVL}", f"v_add_u32 v{V_WV}, s{S_T0}, v{V_L16}")
    I(f"v_mul_u32_u24 v{V_MP}, 1152, v38", f"v_lshl_add_u32 v{V_MP}, v35, 5, v{V_MP}", f"v_lshl_add_u32 v{V_MP}, v39, 4, v{V_MP}",
      f"s_lshl_b32 s{S_T0}, s{S_WV}, 7", f"v_add_u32 v{V_MP}, s{S_T0}, v{V_MP}")
    I(f"v_lshlrev_b32 v{V_PS}, 13, v35", f"v_lshl_add_u32 v{V_PS}, v37, 12, v{V_PS}", f"v_lshl_add_u32 v{V_PS}, v36, 4, v{V_PS}")
    if ROT[0]:
        I(f"s_lshl_b32 s{S_T0}, s{S_WV}, 3", f"s_add_u32 s{S_T0}, s{S_T0}, s{S_H}", "v_lshl_add_u32 v40, v35, 1, v37", f"v_add_u32 v40, s{S_T0}, v40", "v_and_b32 v40, 31, v40", f"v_lshl_add_u32 v{V_PS}, v40, 7, v{V_PS}")
    I("v_lshl_add_u32 v40, v35, 1, v39", "v_xor_b32 v40, v40, v38", "v_lshlrev_b32 v40, 4, v40", "v_lshl_add_u32 v40, v38, 8, v40", f"v_add_u32 v{V_OR}, {OIMG}, v40")
    for src, ra, rb in ((36, V_SQA, V_SQB), (38, V_SKA, V_SKB)):
        I("v_lshlrev_b32 v40, 1, v35", f"v_sub_u32 v40, v{src}, v40", "v_mov_b32 v41, 0", "v_mov_b32 v42, 0x3f80", "v_mov_b32 v43, 0x3f800000")
        I("v_cmp_eq_u32 vcc, 0, v40", "v_cndmask_b32 v41, v41, v42, vcc", "v_cmp_eq_u32 vcc, 1, v40", f"v_cndmask_b32 v{ra}, v41, v43, vcc")
        I(f"v_mov_b32 v{ra+1}, 0", f"v_mov_b32 v{rb}, 0", f"v_mov_b32 v{rb+1}, v{ra}")
    I(f"s_mov_b32 s{S_NLT8}, 0x00ff00ff", f"s_mov_b32 s{S_NLT8+1}, 0x00ff00ff")
    I(f"s_mov_b32 s{S_ONES}, 0x3f803f80", f"s_mov_b32 s{S_ONES+1}, 0x3f803f80", f"s_lshl_b32 s{S_W4}, s{S_WV}, 2")
    cbits = struct.unpack("<I", struct.pack("<f", SCALE_LOG2E))[0]
    I(f"s_mov_b32 s{S_C}, 0x{cbits:08x}", f"s_mov_b32 s{S_C2}, 0x{cbits:08x}", f"s_mov_b32 s{S_C2+1}, 0x{cbits:08x}")
def init_fills(p, sc_st):
    I = p.I
    p.C("init fills: PART zero (12288 B per WG), MEM ring sentinel (slots 1..3), slot 0 = mem0 in fragment order")
    I(f"s_mul_i32 s{S_T0}, s{S_H}, 12288", f"s_add_u32 s{S_T1}, s{S_T0}, s{S_W1024}", f"s_add_u32 s{S_T1}, s{S_T1}, {PART_OFF}")
    I("v_mov_b64 v[64:65], 0", "v_mov_b64 v[66:67], 0", "v_mov_b64 v[68:69], -1", "v_mov_b64 v[70:71], -1")
    for rnd in range(3):
        I(f"buffer_store_dwordx4 v[64:67], v{V_L16}, s[{S_WS}:{S_WS+3}], s{S_T1} offen{sc_st}")
        if rnd < 2: I(f"s_add_u32 s{S_T1}, s{S_T1}, 4096")
    lab = p.newlabel("fill_skip")
    I(f"s_lshl_b32 s{S_T0}, s{S_H}, 2", f"s_add_u32 s{S_T0}, s{S_T0}, s{S_WV}", f"s_sub_u32 s{S_T0}, s{S_T0}, 4", f"s_cmp_ge_u32 s{S_T0}, 27", f"s_cbranch_scc1 {lab}")
    I(f"s_lshl_b32 s{S_T0}, s{S_T0}, 10", f"s_add_u32 s{S_T2}, s{S_T0}, {MEM_OFF + MEM_SLOT}", f"buffer_store_dwordx4 v[68:71], v{V_L16}, s[{S_WS}:{S_WS+3}], s{S_T2} offen{sc_st}")
    p.L(lab)
    lab = p.newlabel("no_m0")
    I(f"s_cmp_lg_u32 s{S_H}, 0", f"s_cbranch_scc1 {lab}")
    I(f"buffer_load_dwordx4 v[64:67], v{V_MP}, s[{S_MEM}:{S_MEM+3}], 0 offen", f"buffer_load_dwordx4 v[68:71], v{V_MP}, s[{S_MEM}:{S_MEM+3}], 0 offen offset:512")
    I(f"s_lshl_b32 s{S_T0}, s{S_WV}, 7", f"v_subrev_u32 v72, s{S_T0}, v{V_MP}", f"buffer_load_dwordx4 v[76:79], v72, s[{S_MEM}:{S_MEM+3}], 0 offen offset:1024")
    I(f"s_add_u32 s{S_T0}, s{S_W1024}, {MEM_OFF}", f"s_mov_b32 s{S_T1}, {MEM_OFF + 8192}", "s_waitcnt vmcnt(0)")
    I(f"buffer_store_dwordx4 v[64:67], v{V_L16}, s[{S_WS}:{S_WS+3}], s{S_T0} offen{sc_st}")
    I(f"s_add_u32 s{S_T0}, s{S_T0}, 4096", f"buffer_store_dwordx4 v[68:71], v{V_L16}, s[{S_WS}:{S_WS+3}], s{S_T0} offen{sc_st}")
    I(f"buffer_store_dwordx4 v[76:79], v{V_L16}, s[{S_WS}:{S_WS+3}], s{S_T1} offen{sc_st}")
    p.L(lab)
    I("s_waitcnt vmcnt(0)", "s_barrier")
    lab = p.newlabel("init_arr")
    I(f"s_cmp_lg_u32 s{S_WV}, 0", f"s_cbranch_scc1 {lab}")
    I("s_mov_b64 exec, 1", "v_mov_b32 v64, 1", "v_mov_b32 v65, 40", f"global_atomic_add v65, v64, s[{S_DBG}:{S_DBG+1}]", "s_mov_b64 exec, -1")
    p.L(lab)

def preload(p, mid=None, late=None):
    I = p.I
    p.C("weight preload")
    I("v_lshrrev_b32 v40, 4, v33", "v_lshlrev_b32 v41, 13, v40")
    I("v_and_b32 v42, 1, v40", "v_lshlrev_b32 v42, 1, v42", "v_xor_b32 v42, v42, v34", "v_lshlrev_b32 v42, 4, v42")
    for jj in range(4):
        I(f"v_xor_b32 v43, {64*jj}, v42", "v_add_u32 v43, v43, v41", f"v_add_u32 v{52+jj}, {jj*32768}, v43")
    I("v_lshrrev_b32 v40, 3, v33", "v_and_b32 v41, 7, v33", "v_lshrrev_b32 v42, 5, v33")
    for jj in range(4):
        I(f"v_add_u32 v43, {8*jj}, v40", "v_mul_u32_u24 v43, 1152, v43")
        I(f"v_add_u32 v44, {2*(jj&1)}, v42", "v_lshlrev_b32 v44, 1, v44", "v_xor_b32 v44, v44, v41", f"v_lshl_add_u32 v{56+jj}, v44, 4, v43")
    I("v_lshrrev_b32 v40, 2, v34", "v_and_b32 v41, 3, v34")
    I("v_lshrrev_b32 v42, 1, v35", "v_lshlrev_b32 v42, 4, v42", "v_and_b32 v43, 1, v35", "v_lshl_add_u32 v42, v43, 2, v42")
    I("v_and_b32 v44, 1, v40", "v_add_u32 v42, v42, v44", "v_lshrrev_b32 v45, 1, v40", "v_lshl_add_u32 v42, v45, 3, v42")
    I("v_lshl_add_u32 v46, v45, 1, v43")
    I("v_lshl_or_b32 v47, v46, 1, v44")
    I(f"s_lshl_b32 s{S_T0}, s{S_WV}, 1", f"v_xor_b32 v47, s{S_T0}, v47", "v_lshlrev_b32 v47, 5, v47", "v_lshl_add_u32 v47, v41, 3, v47", "v_lshl_add_u32 v60, v42, 8, v47", "v_xor_b32 v61, 32, v60")
    I(f"v_xor_b32 v46, s{S_WV}, v46", "v_lshlrev_b32 v46, 5, v46", "v_lshl_add_u32 v46, v41, 3, v46", "v_lshl_add_u32 v62, v42, 7, v46")
    chunks = [("q", kb) for kb in range(9)] + [("o", cc) for cc in range(9)] + [("k", kb) for kb in range(9)] + [("v", kb) for kb in VRES + VSTR]
    slot = lambda c: (c + 4) % 10
    ptr = {"q": S_PTR + 2, "k": S_PTR + 4, "v": S_PTR + 6, "o": S_PTR + 8}
    cur = [None]
    nissued = [0]
    def issue(c):
        kind, x = chunks[c]
        if cur[0] != kind:
            cur[0] = kind
            I(f"s_mov_b32 s{S_W}, s{ptr[kind]}", f"s_and_b32 s{S_W+1}, s{ptr[kind]+1}, 0xffff", f"s_mov_b32 s{S_W+2}, {576*8192 if kind != 'o' else 4096*1152}", f"s_mov_b32 s{S_W+3}, 0x20000")
        if kind != "o":
            I(f"s_lshl_b32 s{S_T0}, s{S_WV}, 17", f"s_lshl_b32 s{S_T1}, s{S_H}, 8", f"s_add_u32 s{S_T0}, s{S_T0}, s{S_T1}", f"s_add_u32 s{S_T0}, s{S_T0}, {x*524288}")
            vb = 52
        else:
            I(f"s_lshl_b32 s{S_T0}, s{S_H}, 7", f"s_lshl_b32 s{S_T1}, s{S_WV}, 5", f"s_add_u32 s{S_T0}, s{S_T0}, s{S_T1}", f"s_mul_i32 s{S_T0}, s{S_T0}, 1152", f"s_add_u32 s{S_T0}, s{S_T0}, {x*128}")
            vb = 56
        I(f"s_lshl_b32 s{S_T1}, s{S_WV}, 12", f"s_add_u32 s{S_T1}, s{S_T1}, {slot(c)*16384}")
        for jj in range(4):
            I(f"s_add_u32 m0, s{S_T1}, {jj*1024}")
            I(f"buffer_load_dwordx4 v{vb+jj}, s[{S_W}:{S_W+3}], s{S_T0} offen lds")
        nissued[0] = c + 1
    def tr(dst_of_t, areg, rowb, row0):
        for t in range(4):
            I(f"ds_read_b64_tr_b16 {dst_of_t(t)}, v{areg} offset:{(row0+32*(t//2)+2*(t%2))*rowb}")
    extra = [0]
    for c in range(DEPTH[0]): issue(c)
    if mid: mid(p)
    for c in range(36):
        kind, x = chunks[c]
        if late and c == 27: extra[0] = late(p)
        I(f"s_waitcnt vmcnt({4*(nissued[0]-1-c) + extra[0]})", "s_barrier")
        sb = slot(c) * 16384
        I(f"v_add_u32 v40, {sb}, v60", f"v_add_u32 v41, {sb}, v61", f"v_add_u32 v42, {sb}, v62")
        if kind == "q":
            tr(lambda t: frag_sub(F_QA(x), 2*t, 2), 40, 256, 0); tr(lambda t: frag_sub(F_QB(x), 2*t, 2), 41, 256, 0)
        elif kind == "k":
            fb = F_KB0 if x == 0 else F_VS((x-1) % 2, (x-1) // 2)
            tr(lambda t: frag_sub(F_KA(x), 2*t, 2), 40, 256, 0); tr(lambda t: frag_sub(fb, 2*t, 2), 41, 256, 0)
        elif kind == "o":
            for kb in range(2): tr(lambda t: frag_sub(F_WO(x, kb), 2*t, 2), 42, 128, 64*kb)
        else:
            for tb in range(2): tr(lambda t: f"v[{64+8*tb+2*t}:{65+8*tb+2*t}]", 40 + tb, 256, 0)
        I("s_waitcnt lgkmcnt(0)", "s_barrier")
        if kind == "v":
            pos = c - 27
            I(f"s_lshl_b32 s{S_T0}, s{S_WV}, 11", f"s_add_u32 s{S_T0}, s{S_T0}, {sb}", f"v_add_u32 v40, s{S_T0}, v{V_L16}")
            for sub in range(2):
                for half in range(2):
                    src = frag_sub(F_VS(sub, pos), 4*half, 4) if pos < 4 else f"v[{64+8*sub+4*half}:{67+8*sub+4*half}]"
                    I(f"ds_write_b128 v40, {src} offset:{sub*8192+half*1024}")
            I("s_waitcnt lgkmcnt(0)")
            if pos < 4:
                for tb in range(2):
                    k, b = fragb(F_VS(tb, pos))
                    for r in range(8):
                        I(f"v_accvgpr_write_b32 a{b+r}, v{64+8*tb+r}" if k == "a" else f"v_mov_b32 v{b+r}, v{64+8*tb+r}")
        if c + DEPTH[0] < 36: issue(c + DEPTH[0])
    I("s_barrier")

def early_loads(p):
    I = p.I
    WS = f"s[{S_WS}:{S_WS+3}]"
    I(f"v_lshrrev_b32 v45, 4, v{V_L16}", f"v_mul_u32_u24 v46, {DBG_INIT - 40}, v45", "v_add_u32 v46, 40, v46", "s_mov_b64 exec, 3")
    I(f"global_load_dword v44, v46, s[{S_DBG}:{S_DBG+1}] sc1", "s_mov_b64 exec, -1")
    I(f"v_lshlrev_b32 v47, 2, v45", f"s_mov_b32 s{S_T0}, {KVCNT}", f"buffer_load_dword v45, v47, {WS}, s{S_T0} offen sc1")
    return 2

EARLY = [False]
def chain_state(p):
    I = p.I
    lab = p.newlabel("initw"); lab2 = p.newlabel("initd"); fast = p.newlabel("fast_start")
    if EARLY[0]:
        I("s_waitcnt vmcnt(0)", f"v_readlane_b32 s{S_T0}, v44, 0", f"v_readlane_b32 s{S_T1}, v44, 1", "v_cmp_ne_u32 vcc, 32, v45", f"s_ff1_i32_b64 s{S_RDY}, vcc")
        I(f"s_cmp_eq_u32 s{S_RDY}, -1", f"s_cselect_b32 s{S_RDY}, 64, s{S_RDY}", f"s_mov_b32 s{S_FAST}, 1")
        I(f"s_cmp_lt_u32 s{S_T0}, 32", f"s_cselect_b32 s{S_FAST}, 0, s{S_FAST}", f"s_cmp_eq_u32 s{S_T1}, 0", f"s_cselect_b32 s{S_FAST}, 0, s{S_FAST}", f"s_cmp_lt_u32 s{S_RDY}, 3", f"s_cselect_b32 s{S_FAST}, 0, s{S_FAST}")
        I(f"s_cmp_lg_u32 s{S_FAST}, 0", f"s_cbranch_scc1 {lab2}")
    I(f"s_mov_b32 s{S_TO}, 0", f"v_lshrrev_b32 v45, 4, v{V_L16}", f"v_mul_u32_u24 v45, {DBG_INIT - 40}, v45", "v_add_u32 v45, 40, v45", "s_mov_b64 exec, 3")
    p.L(lab)
    I(f"global_load_dword v44, v45, s[{S_DBG}:{S_DBG+1}] sc1", "s_waitcnt vmcnt(0)", f"v_readlane_b32 s{S_T0}, v44, 0", f"v_readlane_b32 s{S_T1}, v44, 1", f"s_add_u32 s{S_TO}, s{S_TO}, 1")
    if FUSED[0]: I(f"s_cmp_eq_u32 s{S_T1}, 0", f"s_cselect_b32 s{S_T0}, 0, s{S_T0}")
    I(f"s_cmp_ge_u32 s{S_T0}, 32", f"s_cbranch_scc1 {lab2}", f"s_cmp_lt_u32 s{S_TO}, 0x40000", f"s_cbranch_scc1 {lab}")
    p.L(lab2)
    I("s_mov_b64 exec, -1")
    I(f"s_mov_b32 s{S_STEP}, 0", f"s_mov_b32 s{S_TO}, 0", f"s_mov_b32 s{S_TO2}, 0", f"s_mov_b32 s{S_TO3}, 0")
    I(f"s_lshl_b32 s{S_T0}, s{S_WV}, 1", f"s_cmp_eq_u32 s{S_WV}, 2", f"s_cselect_b32 s{S_T0}, 6, s{S_T0}", f"s_cmp_eq_u32 s{S_WV}, 3", f"s_cselect_b32 s{S_T0}, 4, s{S_T0}")
    I(f"s_lshl_b32 s{S_B01}, s{S_T0}, 10", f"s_add_u32 s{S_MEMR}, s{S_B01}, {MEM_OFF}", f"s_add_u32 s{S_MEMEND}, s{S_MEMR}, {4*MEM_SLOT}")
    I(f"s_lshl_b32 s{S_T0}, s{S_WV}, 5", f"s_add_u32 s{S_T0}, s{S_T0}, s{S_H}")
    I(f"s_cmp_lt_u32 s{S_WV}, 3", f"s_cselect_b32 s{S_HASTASK}, 1, 0")
    I(f"s_lshl_b32 s{S_PL}, s{S_T0}, 12", f"s_add_u32 s{S_PL}, s{S_PL}, {PART_OFF}")
    I(f"s_mul_i32 s{S_MEMW}, s{S_WV}, 3072")
    I(f"s_lshr_b32 s{S_T1}, s{S_H}, 3", f"s_lshl_b32 s{S_T1}, s{S_T1}, 8", f"s_add_u32 s{S_MEMW}, s{S_MEMW}, s{S_T1}")
    I(f"s_bfe_u32 s{S_T1}, s{S_H}, 0x20001", f"s_lshl_b32 s{S_T1}, s{S_T1}, 6", f"s_add_u32 s{S_MEMW}, s{S_MEMW}, s{S_T1}")
    I(f"s_and_b32 s{S_T1}, s{S_H}, 1", f"s_lshl_b32 s{S_T1}, s{S_T1}, 5", f"s_add_u32 s{S_MEMW}, s{S_MEMW}, s{S_T1}", f"s_add_u32 s{S_MEMW}, s{S_MEMW}, {MEM_OFF + MEM_SLOT}")
    I(f"s_mov_b32 s{S_EXMS+1}, 0x00000055", f"s_mov_b32 s{S_EXMS}, 0x00550055")
    I(f"s_cmp_eq_u32 s{S_WV}, 2", f"s_cselect_b32 s{S_ISW2}, 1, 0")
    I(f"s_mul_i32 s{S_L8}, s{S_WV}, 768", f"s_add_u32 s{S_L8}, s{S_L8}, {MEMIMG + 6144}", f"s_sub_u32 s{S_D8}, s{S_L8}, s{S_B01}")
    I(f"s_mov_b32 s{S_M8}, -1", f"s_mov_b32 s{S_M8+1}, 0xffff")
    I(f"s_cmp_eq_u32 s{S_WV}, 3", f"s_cselect_b32 s{S_PFM}, -1, 0", f"s_mov_b32 s{S_PFM+1}, s{S_PFM}", f"s_lshl_b32 s{S_W2048}, s{S_WV}, 11")
    I(f"s_add_u32 s{S_MEMZ}, s{S_MEMW}, {2*MEM_SLOT}", f"s_add_u32 s{S_MEMWEND}, s{S_MEMW}, {3*MEM_SLOT}")
    I(f"s_lshl_b32 s{S_T0}, s{S_H}, 13", f"s_lshl_b32 s{S_T1}, s{S_WV}, 11", f"s_add_u32 s{S_T0}, s{S_T0}, s{S_T1}", f"s_add_u32 s{S_KX}, s{S_T0}, {KX_OFF}", f"s_add_u32 s{S_VX}, s{S_T0}, {VX_OFF}")
    I(f"s_lshr_b32 s{S_T1}, s{S_T0}, 1", f"s_add_u32 s{S_KM}, s{S_T1}, {KM_OFF}", f"s_lshr_b32 s{S_T1}, s{S_T0}, 2", f"s_add_u32 s{S_VM}, s{S_T1}, {VM_OFF - 32*2048}")
    I(f"s_lshl_b32 s{S_T0}, s{S_WV}, 15", f"s_lshl_b32 s{S_T1}, s{S_H}, 7" if not ROT[0] else f"s_mov_b32 s{S_T1}, 0", f"s_add_u32 s{S_T0}, s{S_T0}, s{S_T1}", f"s_add_u32 s{S_PS}, s{S_T0}, {PART_OFF}")
    for e in range(1, 3): I(f"s_add_u32 s{S_PS+e}, s{S_PS}, {e*131072}")
    I(f"s_add_u32 s{S_MEMR8}, s{S_MEMR}, s{S_D8}")
    if FUSED[0]:
        I(f"s_lshl_b32 s{S_CHF}, s{S_H}, 8", f"s_add_u32 s{S_CHF}, s{S_CHF}, {CHFLG}")
        I(f"s_cmp_eq_u32 s{S_WV}, 0", f"s_cselect_b32 s{S_PUB}, 1, 0", f"s_mov_b32 s{S_PUB+1}, 0")
    skip = p.newlabel("have_rdy")
    if EARLY[0]: I(f"s_cmp_lg_u32 s{S_FAST}, 0", f"s_cbranch_scc1 {skip}")
    if FUSED[0]:
        I(f"s_mov_b32 s{S_RDY}, 0")
        need_segment(p, 2)
    p.L(skip)
    if FUSED[0]:
        I(f"v_lshlrev_b32 v52, 3, v{V_L16}", f"s_lshl_b32 s{S_T0}, s{S_H}, 13")
        I(f"s_and_b32 s{S_T1}, s{S_WV}, 1", f"s_lshr_b32 s{S_T2}, s{S_WV}, 1", f"s_add_u32 s{S_T1}, s{S_T1}, s{S_T2}", f"s_lshl_b32 s{S_T1}, s{S_T1}, 18", f"s_add_u32 s{S_T0}, s{S_T0}, s{S_T1}")
        I(f"s_cmp_ge_u32 s{S_WV}, 2", f"s_cselect_b32 s{S_T2}, 0, {VX_OFF}", f"s_add_u32 s{S_T0}, s{S_T0}, s{S_T2}")
        I(f"buffer_load_dword v{V_DUM}, v52, s[{S_WS}:{S_WS+3}], s{S_T0} offen ; nodep")
    for kt in range(2):
        I(f"buffer_load_dwordx4 v[{V_KX+4*kt}:{V_KX+4*kt+3}], v{V_L16}, s[{S_WS}:{S_WS+3}], s{S_KX} offen offset:{kt*1024} sc1")
    I(f"s_add_u32 s{S_KX}, s{S_KX}, {32*8192}")

SM = lambda d, a, b: f"v_smfmac_f32_16x16x64_bf16 v[{d}:{d+3}], v[{a}:{a+3}], {b}, v{V_IDX}"

class Stream:
    def __init__(self, p): self.p = p; self.q = []
    def add(self, *instrs): self.q.append(list(instrs))
    def emit(self, n=1):
        for _ in range(n):
            if not self.q: return
            for x in self.q.pop(0): self.p.I(x)
    def drain(self): self.emit(len(self.q))


VPERIOD = [24]
LEAD = [0]
HOLD = [0]
BAR4 = [True]
def delay(p, clks):
    n = clks // 4
    while n > 0:
        k = min(n, 16); p.raw(f"    s_nop {k-1}"); n -= k
DELAYG1 = [0]
DELAY4 = [0]
DELAY3 = [0]
DELAY0 = [0]
DELAY1 = [0]
DELAY2 = [0]
def need_segment(p, add, refresh=None):
    I = p.I
    lab = p.newlabel("rdy"); ok = p.newlabel("rdy_ok")
    I(f"s_add_u32 s{S_T1}, s{S_STEP}, {refresh if refresh is not None else add}", f"s_min_u32 s{S_T1}, s{S_T1}, 63", f"s_cmp_lt_u32 s{S_T1}, s{S_RDY}", f"s_cbranch_scc1 {ok}")
    I(f"s_add_u32 s{S_T1}, s{S_STEP}, {add}", f"s_min_u32 s{S_T1}, s{S_T1}, 63")
    I(f"s_mov_b32 s{S_T2}, 0", f"v_lshrrev_b32 v52, 2, v{V_L16}", f"s_mov_b32 s{S_T0}, {KVCNT}")
    p.L(lab)
    I(f"buffer_load_dword v53, v52, s[{S_WS}:{S_WS+3}], s{S_T0} offen sc1", "s_waitcnt vmcnt(0)")
    I("v_cmp_ne_u32 vcc, 32, v53", f"s_ff1_i32_b64 s{S_RDY}, vcc", f"s_cmp_eq_u32 s{S_RDY}, -1", f"s_cselect_b32 s{S_RDY}, 64, s{S_RDY}")
    I(f"s_cmp_lt_u32 s{S_T1}, s{S_RDY}", f"s_cbranch_scc1 {ok}", "s_sleep 8", f"s_add_u32 s{S_T2}, s{S_T2}, 1", f"s_cmp_lt_u32 s{S_T2}, 0x80000", f"s_cbranch_scc1 {lab}")
    I(f"s_mov_b32 s{S_RDY}, 64")
    p.L(ok)

def step(p, local, first=True, last=False):
    I = p.I
    sc_st = "" if local else " sc1"
    WS = f"s[{S_WS}:{S_WS+3}]"
    QA, QB, KA, KB = 32, 36, 40, 44
    A0, A1, A2 = 56, 60, 48
    VA, VB = 48, 52
    W1, W2 = 64, 72
    wv_state = {"b": 0}
    def wread(u, buf):
        out = []
        blk = u // 8
        while wv_state["b"] < blk:
            out.append(f"v_add_u32 v{V_WV}, 0x10000, v{V_WV}"); wv_state["b"] += 1
        off = (u % 8) * 8192
        out.append(f"ds_read_b128 v[{buf}:{buf+3}], v{V_WV} offset:{off}")
        out.append(f"ds_read_b128 v[{buf+4}:{buf+7}], v{V_WV} offset:{off+1024}")
        return out
    aread = lambda kb, a: f"ds_read_b128 v[{a}:{a+3}], v{V_L16} offset:{MEMIMG+kb*1024}"
    ad = lambda d, a_, b_: f"v_add_f32 v{d}, v{a_}, v{b_}"
    cv = lambda d, a_, b_: f"v_cvt_pk_bf16_f32 v{d}, v{a_}, v{b_}"
    p.C("==== step : acquire mem blocks 0..5 (waves 0,1,3)")
    stamp(p, 0, first)
    if STEPTS[0]:
        lab = p.newlabel("sts")
        I(f"s_cmp_lg_u32 s{S_WV}, 3", f"s_cbranch_scc1 {lab}")
        I("s_memrealtime s[2:3]", "s_waitcnt lgkmcnt(0)", f"s_lshl_b32 s3, s{S_H}, 9", f"s_lshl_b32 s{S_T0}, s{S_STEP}, 2", f"s_add_u32 s3, s3, s{S_T0}", f"s_add_u32 s3, s3, {0x9200000}")
        I("s_mov_b64 exec, 1", "v_mov_b32 v52, s2", f"buffer_store_dword v52, v{V_SQA+1}, {WS}, s3 offen", "s_mov_b64 exec, -1")
        p.L(lab)
    if FUSED[0]:
        nchk = p.newlabel("nochk")
        I(f"s_cmp_lg_u32 s{S_WV}, 3", f"s_cbranch_scc1 {nchk}")
        need_segment(p, 1, refresh=2)
        p.L(nchk)
    I(*wread(0, W1)); I(*wread(1, W2))
    for r in range(0, 16, 2): I(f"v_mov_b64 v[{QA+r}:{QA+r+1}], 0")
    loop = p.newlabel("mem_poll"); done = p.newlabel("mem_done"); loop2 = p.newlabel("mem_poll2"); w2 = p.newlabel("acq_w2")
    I(f"v_add_u32 v55, s{S_B01}, v{V_L16}")
    I(f"s_cmp_eq_u32 s{S_WV}, 2", f"s_cbranch_scc1 {w2}")
    if DELAY3[0]:
        nd = p.newlabel("nd3")
        I(f"s_cmp_lg_u32 s{S_WV}, 3", f"s_cbranch_scc1 {nd}")
        delay(p, DELAY3[0])
        p.L(nd)
    delay(p, DELAY2[0])
    a, b, c = 56, 60, 48
    p.L(loop)
    I(f"buffer_load_dwordx4 v[{a}:{a+3}], v{V_L16}, {WS}, s{S_MEMR} offen sc1")
    I(f"buffer_load_dwordx4 v[{b}:{b+3}], v{V_L16}, {WS}, s{S_MEMR} offen offset:1024 sc1")
    I(f"s_add_u32 s{S_TO}, s{S_TO}, 1")
    I("s_waitcnt vmcnt(1)")
    I(f"ds_write_b128 v55, v[{a}:{a+3}] offset:{MEMIMG}")
    I(f"v_max3_u32 v52, v{a}, v{a+1}, v{a+2}")
    I("s_waitcnt vmcnt(0)")
    I(f"ds_write_b128 v55, v[{b}:{b+3}] offset:{MEMIMG+1024}")
    I(f"v_max3_u32 v52, v52, v{a+3}, v{b}", f"v_max3_u32 v52, v52, v{b+1}, v{b+2}", f"v_max_u32 v52, v52, v{b+3}")
    I("v_cmp_eq_u32 vcc, -1, v52", f"s_cbranch_vccz {done}", f"s_cmp_lt_u32 s{S_TO}, 0x200000", f"s_cbranch_scc1 {loop}")
    I(f"s_branch {done}")
    p.L(w2)
    delay(p, DELAY4[0])
    p.L(loop2)
    I(f"buffer_load_dwordx4 v[{a}:{a+3}], v{V_L16}, {WS}, s{S_MEMR} offen sc1")
    I(f"buffer_load_dwordx4 v[{b}:{b+3}], v{V_L16}, {WS}, s{S_MEMR} offen offset:1024 sc1")
    I(f"buffer_load_dwordx4 v[{c}:{c+3}], v{V_L16}, {WS}, s{S_MEMR} offen offset:2048 sc1")
    I(f"s_add_u32 s{S_TO3}, s{S_TO3}, 1")
    I("s_waitcnt vmcnt(2)")
    I(f"ds_write_b128 v55, v[{a}:{a+3}] offset:{MEMIMG}")
    I(f"v_max3_u32 v52, v{a}, v{a+1}, v{a+2}")
    I("s_waitcnt vmcnt(1)")
    I(f"ds_write_b128 v55, v[{b}:{b+3}] offset:{MEMIMG+1024}")
    I(f"v_max3_u32 v52, v52, v{a+3}, v{b}", f"v_max3_u32 v52, v52, v{b+1}, v{b+2}")
    I("s_waitcnt vmcnt(0)")
    I(f"ds_write_b128 v55, v[{c}:{c+3}] offset:{MEMIMG+2048}")
    I(f"v_max3_u32 v52, v52, v{b+3}, v{c}", f"v_max3_u32 v52, v52, v{c+1}, v{c+2}", f"v_max_u32 v52, v52, v{c+3}")
    I("v_cmp_eq_u32 vcc, -1, v52", f"s_cbranch_vccz {done}", f"s_cmp_lt_u32 s{S_TO3}, 0x200000", f"s_cbranch_scc1 {loop2}")
    p.L(done)
    stamp(p, 1, first)
    I("s_waitcnt lgkmcnt(0)")
    I("s_barrier")
    p.reset_q()
    stamp(p, 2, first)
    p.C("QK")
    W = Weaver(p)
    Ab = [A0, A1, A2]
    wb = [W1, W2]
    W.raw(aread(0, Ab[0])); W.raw(aread(1, Ab[1]))
    W.raw(f"s_add_u32 s{S_TAG}, s{S_STEP}, 1")
    if FUSED[0]: W.raw(f"s_max_u32 s{S_PUBV}, s{S_STEP}, 1"); W.raw(f"s_sub_u32 s{S_PUBV}, s{S_PUBV}, 1")
    def group(kb, extra):
        a = Ab[kb % 3]
        kbsrc = frag(F_KB0) if kb == 0 else f"v[{wb[(kb-1)%2]}:{wb[(kb-1)%2]+7}]"
        X = []
        if kb + 2 < 9: X.append([aread(kb + 2, Ab[(kb + 2) % 3])])
        if kb >= 2:
            w = wread(kb, wb[(kb - 2) % 2])
            if len(w) == 3: X.append([w[0], w[1]]); X.append([w[2]])
            else: X.append([w[0]]); X.append([w[1]])
        ms = [SM(QA, a, frag(F_QA(kb))), SM(QB, a, frag(F_QB(kb))), SM(KA, a, frag(F_KA(kb))), SM(KB, a, kbsrc)]
        for i, m in enumerate(ms):
            if not (last and i < 2): W.raw(m)
            if X:
                for y in X.pop(0): W.raw(y)
            for y in extra.get(i, []): W.raw(y)
        assert not X, X
    vxl = [f"buffer_load_dwordx4 v[{V_VX+4*tb}:{V_VX+4*tb+3}], v{V_L16}, {WS}, s{S_VX} offen offset:{tb*1024} sc1" for tb in range(2)]
    pf = []
    if PREF[0]:
        pf = [[f"s_sub_u32 s{S_T0}, s{S_VX}, s{S_W2048}", f"s_add_u32 s{S_T0}, s{S_T0}, {32*8192}", f"v_lshlrev_b32 v{V_MP}, 3, v{V_L16}"],
              [f"s_sub_u32 s{S_T1}, s{S_KX}, s{S_W2048}", f"s_add_u32 s{S_T1}, s{S_T1}, {32*8192}"] + ([f"s_add_u32 s{S_T2}, s{S_STEP}, 2", f"s_cmp_lt_u32 s{S_T2}, s{S_RDY}", f"s_cselect_b32 s{S_T1}, s{S_T1}, s{S_T0}"] if FUSED[0] else []),
              [f"s_mov_b64 exec, s[{S_PFM}:{S_PFM+1}]", f"buffer_load_dword v{V_DUM}, v{V_MP}, {WS}, s{S_T0} offen ; nodep"],
              [f"buffer_load_dword v{V_DUM}, v{V_MP}, {WS}, s{S_T1} offen ; nodep", "s_mov_b64 exec, -1"]]
    EXPORT = [f"v_lshrrev_b32 v52, 1, v{V_L16}", f"buffer_store_dwordx2 v[{V_PY}:{V_PY+1}], v52, {WS}, s{S_VM} offen sc1"]
    FLAG = [f"v_mov_b32 v53, s{S_PUBV}", f"s_mov_b64 exec, s[{S_PUB}:{S_PUB+1}]", f"buffer_store_dword v53, v{V_SQA+1}, {WS}, s{S_CHF} offen sc1", "s_mov_b64 exec, -1"] if FUSED[0] else []
    mr = [f"s_add_u32 s{S_MEMR}, s{S_MEMR}, {MEM_SLOT}", f"s_cmp_ge_u32 s{S_MEMR}, s{S_MEMEND}", f"s_cselect_b32 s{S_T0}, {4*MEM_SLOT}, 0", f"s_sub_u32 s{S_MEMR}, s{S_MEMR}, s{S_T0}"]
    group(0, {1: [vxl[0]], 2: mr[0:2], 3: [vxl[1]]})
    group(1, {1: mr[2:4], 2: [EXPORT[0]], 3: [EXPORT[1]]})
    group(2, {3: FLAG[:1]})
    group(3, {3: FLAG[1:]})
    if PREF[0]:
        group(4, {3: pf[0]}); group(5, {3: pf[1]}); group(6, {3: pf[2] + pf[3]})
    else:
        group(4, {}); group(5, {}); group(6, {})
    group(7, {}); group(8, {})
    stamp(p, 3, first)
    p.C("post QK, V phase as filler")
    items = []
    w9 = wread(9, wb[1])
    vorder = VRES + VSTR
    vA = [A0, A1]
    ubuf = {8: wb[0], 9: wb[1]}
    for pos, kb in enumerate(vorder):
        a = vA[pos % 2]
        for tb in range(2):
            it = []
            if pos < 4:
                it.append(SM(VA + 4 * tb, a, frag(F_VS(tb, pos))))
                if pos == 0: it.append(w9[tb])
            else:
                u = 8 + (pos - 4) * 2 + tb
                b = ubuf[u]
                it.append(SM(VA + 4 * tb, a, f"v[{b}:{b+7}]"))
                if u + 2 < 18:
                    it += wread(u + 2, b); ubuf[u + 2] = b
            if tb == 1 and pos + 2 < 9: it.append(aread(vorder[pos + 2], a))
            items.append(it)
    def VI(n):
        return ("call", lambda n=n: [W.raw(y) for _ in range(n) if items for y in items.pop(0)])
    crit = []
    C = crit.append
    zero = [f"v_mov_b64 v[{VA}:{VA+1}], 0", f"v_mov_b64 v[{VA+2}:{VA+3}], 0", f"v_mov_b64 v[{VB}:{VB+1}], 0", f"v_mov_b64 v[{VB+2}:{VB+3}], 0"]
    if not last:
        C(ad(32, 32, 34)); C(ad(33, 33, 35)); C(ad(36, 36, 38)); C(ad(37, 37, 39)); C(cv(34, 32, 33)); C(cv(35, 36, 37))
    C(ad(40, 40, 42)); C(ad(41, 41, 43)); C(zero[2]); C(zero[3]); C(ad(44, 44, 46)); C(ad(45, 45, 47)); C(cv(42, 40, 41)); C(cv(43, 44, 45))
    if not last:
        C(f"v_mfma_f32_16x16x16_bf16 v[36:39], v[34:35], v[{V_SQA}:{V_SQA+1}], 0")
        C(zero[0]); C(zero[1])
        C(f"v_mfma_f32_16x16x16_bf16 v[32:35], v[34:35], v[{V_SQB}:{V_SQB+1}], 0")
    else:
        C(zero[0]); C(zero[1])
    C(f"v_mfma_f32_16x16x16_bf16 v[44:47], v[42:43], v[{V_SKA}:{V_SKA+1}], 0")
    C(f"v_mfma_f32_16x16x16_bf16 v[40:43], v[42:43], v[{V_SKB}:{V_SKB+1}], 0")
    KMST = f"buffer_store_dwordx4 v[44:47], v{V_L16}, {WS}, s{S_KM} offen sc1"
    OA_, OB_, LL = 32, 52, 56
    VMST = [f"v_lshrrev_b32 v60, 1, v{V_L16}", f"buffer_store_dwordx2 v[50:51], v60, {WS}, s{S_VM} offen sc1"]
    if last:
        C(cv(44, 44, 45)); C(cv(45, 46, 47)); C(cv(46, 40, 41)); C(cv(47, 42, 43)); C(KMST)
        W.weave(crit, []); W.drain(items)
        W.raw(f"v_subrev_u32 v{V_WV}, 0x20000, v{V_WV}")
        W.raw(ad(VA, VA, VA + 2)); W.raw(ad(VA + 1, VA + 1, VA + 3)); W.raw(ad(VB, VB, VB + 2)); W.raw(ad(VB + 1, VB + 1, VB + 3))
        W.raw(cv(50, VA, VA + 1)); W.raw(cv(51, VB, VB + 1))
        W.raw(f"s_add_u32 s{S_VM}, s{S_VM}, {32*2048}")
        for y in VMST: W.raw(y)
        p.fence(); p.reset_q()
        return
    V1, V2, V3, V4, V5, V6, V7 = VPLACE
    C(cv(36, 36, 37)); C(cv(37, 38, 39)); C(cv(38, 32, 33)); C(cv(39, 34, 35))
    C(f"v_mfma_f32_16x16x32_bf16 v[32:35], v[{V_KX}:{V_KX+3}], v[36:39], 0")
    C(cv(44, 44, 45)); C(cv(45, 46, 47)); C(cv(46, 40, 41)); C(cv(47, 42, 43))
    C(f"v_mfma_f32_16x16x32_bf16 v[40:43], v[{V_KX+4}:{V_KX+7}], v[36:39], 0")
    C(f"v_mfma_f32_16x16x32_bf16 v[36:39], v[44:47], v[36:39], 0")
    k = V_KX
    C(f"v_and_b32 v{k+6}, 0x70, v{V_L16}"); C(f"v_lshrrev_b32 v{k+7}, 1, v{V_L16}"); C(f"v_and_b32 v{k+7}, 0x180, v{k+7}"); C(f"v_or_b32 v{k+6}, v{k+6}, v{k+7}")
    C(f"v_lshrrev_b32 v{k+7}, 1, v{k+6}"); C(f"v_and_b32 v{k}, 0x80, v{V_L16}"); C(f"v_lshl_add_u32 v{k+6}, v{k}, 2, v{k+6}")
    C(VI(V1))
    C(f"v_add_u32 v{k+6}, {SEXX}, v{k+6}"); C(f"v_add_u32 v{k+7}, {SEXM}, v{k+7}")
    C(f"v_add_u32 v{k}, s{S_W1024}, v{k+6}"); C(f"v_add_u32 v{k+1}, s{S_W256}, v{k+7}")
    for r in range(4): C(f"v_cndmask_b32_e64 v{32+r}, v{40+r}, v{32+r}, s[{S_NLT8}:{S_NLT8+1}]")
    C(f"ds_write_b128 v{k}, v[32:35]"); C(f"ds_write_b64 v{k+1}, v[36:37]")
    C(("call", lambda: stamp(p, 4, first)))
    C(VI(V2))
    C(KMST)
    C(("call", p.waitw)); C("s_barrier")
    C(("call", lambda: stamp(p, 5, first)))
    for w in range(4): C(f"ds_read_b128 v[{32+4*w}:{35+4*w}], v{k+6} offset:{w*1024}")
    C(f"ds_read2_b64 v[{k}:{k+3}], v{k+7} offset0:0 offset1:32"); C(f"ds_read2_b64 v[{k+4}:{k+7}], v{k+7} offset0:64 offset1:96")
    C(VI(V3))
    pk = lambda d, a_, b_: f"v_pk_add_f32 v[{d}:{d+1}], v[{a_}:{a_+1}], v[{b_}:{b_+1}]"
    if PKS[0]:
        C(pk(32, 32, 36)); C(pk(34, 34, 38)); C(pk(40, 40, 44)); C(pk(42, 42, 46)); C(pk(32, 32, 40)); C(pk(34, 34, 42))
        C("v_max3_f32 v38, v32, v33, v34")
        C(pk(k, k, k + 2)); C(pk(k + 4, k + 4, k + 6)); C(pk(36, k, k + 4))
        C(VI(V4))
    else:
        for r in range(4): C(ad(32 + r, 32 + r, 36 + r))
        for r in range(4): C(ad(40 + r, 40 + r, 44 + r))
        for r in range(4): C(ad(32 + r, 32 + r, 40 + r))
        C("v_max3_f32 v38, v32, v33, v34")
        C(VI(V4))
        C(ad(k, k, k + 2)); C(ad(k + 1, k + 1, k + 3)); C(ad(k + 4, k + 4, k + 6)); C(ad(k + 5, k + 5, k + 7)); C(ad(36, k, k + 4)); C(ad(37, k + 1, k + 5))
    for kt in range(2):
        C(f"buffer_load_dwordx4 v[{V_KX+4*kt}:{V_KX+4*kt+3}], v{V_L16}, {WS}, s{S_KX} offen offset:{kt*1024} sc1")
    C("v_max3_f32 v38, v38, v35, v36"); C("v_max_f32 v38, v38, v37")
    C(VI(V5))
    C("v_max_f32_dpp v38, v38, v38 row_ror:8 row_mask:0xf bank_mask:0xf")
    C("v_mov_b32 v39, v38"); C("v_mov_b32 v45, 0"); C("v_mov_b32 v46, 0"); C("v_permlane16_swap_b32 v38, v39"); C("v_max_f32 v38, v38, v39")
    C("v_mov_b32 v39, v38"); C(VI(V6)); C("v_permlane32_swap_b32 v38, v39"); C("v_max_f32 v38, v38, v39")
    C(f"v_mul_f32 v38, s{S_C}, v38")
    for r in range(6): C(f"v_fma_f32 v{32+r}, v{32+r}, s{S_C}, -v38")
    C(VI(V7))
    for r in range(6): C(f"v_exp_f32 v{32+r}, v{32+r}")
    C(cv(40, 32, 33)); C(cv(41, 34, 35)); C(cv(44, 36, 37))
    for r in range(0, 4, 2): C(f"v_mov_b64 v[{36+r}:{37+r}], s[{S_ONES}:{S_ONES+1}]")
    C("v_mov_b32_dpp v42, v40 row_ror:8 row_mask:0xf bank_mask:0xf"); C("v_mov_b32_dpp v43, v41 row_ror:8 row_mask:0xf bank_mask:0xf")
    C("v_mov_b32 v47, v44")
    C(("call", lambda: stamp(p, 6, first)))
    W.weave(crit, [])
    rest = items
    W.raw(f"v_mfma_f32_16x16x32_bf16 v[{OA_}:{OA_+3}], v[{V_VX}:{V_VX+3}], v[40:43], 0")
    W.drain(rest)
    assert wv_state["b"] == 2
    W.raw(f"v_subrev_u32 v{V_WV}, 0x20000, v{V_WV}")
    W.raw(ad(VA, VA, VA + 2)); W.raw(ad(VA + 1, VA + 1, VA + 3)); W.raw(ad(VB, VB, VB + 2)); W.raw(ad(VB + 1, VB + 1, VB + 3))
    W.raw(cv(50, VA, VA + 1)); W.raw(cv(51, VB, VB + 1))
    stamp(p, 7, first)
    p.C("PV")
    crit = [f"v_mfma_f32_16x16x32_bf16 v[{LL}:{LL+3}], v[36:39], v[40:43], 0",
            f"v_mfma_f32_16x16x32_bf16 v[{OB_}:{OB_+3}], v[{V_VX+4}:{V_VX+7}], v[40:43], 0",
            f"v_mfma_f32_16x16x16_bf16 v[{OA_}:{OA_+3}], v[50:51], v[44:45], v[{OA_}:{OA_+3}]",
            f"v_mfma_f32_16x16x16_bf16 v[{LL}:{LL+3}], v[36:37], v[44:45], v[{LL}:{LL+3}]",
            f"v_mfma_f32_16x16x16_bf16 v[{OB_}:{OB_+3}], v[50:51], v[46:47], v[{OB_}:{OB_+3}]",
            f"v_rcp_f32 v{LL}, v{LL}"]
    if PKM[0]:
        for b in (OA_, OA_ + 2, OB_, OB_ + 2): crit.append(f"v_pk_mul_f32 v[{b}:{b+1}], v[{b}:{b+1}], v[{LL}:{LL+1}] op_sel_hi:[1,0]")
    else:
        for b in (OA_, OB_):
            for r in range(4): crit.append(f"v_mul_f32 v{b+r}, v{b+r}, v{LL}")
    crit += [cv(OA_, OA_, OA_ + 1), cv(OA_ + 1, OA_ + 2, OA_ + 3), cv(OB_, OB_, OB_ + 1), cv(OB_ + 1, OB_ + 2, OB_ + 3)]
    fill = [f"v_mov_b64 v[{V_PY}:{V_PY+1}], v[50:51]", f"v_bfe_u32 v61, v{V_L16}, 4, 3", f"v_bfe_u32 v62, v{V_L16}, 9, 1", f"v_add_u32 v62, s{S_W4}, v62", "v_xor_b32 v62, v62, v61",
            "v_lshlrev_b32 v62, 4, v62", "v_lshl_add_u32 v62, v61, 8, v62", f"v_bfe_u32 v61, v{V_L16}, 8, 1", "v_lshl_add_u32 v62, v61, 3, v62", f"v_add_u32 v62, {OIMG}, v62", "v_xor_b32 v63, 32, v62"]
    rest = W.weave(crit, [[f] for f in fill]); W.drain(rest)
    W.raw(f"s_mov_b64 exec, s[{S_NLT8}:{S_NLT8+1}]"); W.raw(f"ds_write_b64 v62, v[{OA_}:{OA_+1}]"); W.raw(f"ds_write_b64 v63, v[{OB_}:{OB_+1}]"); W.raw("s_mov_b64 exec, -1")
    stamp(p, 8, first)
    OACC = [32 + 4 * j for j in range(9)]
    OAr = 72; G = 68
    I(f"v_mov_b32 v71, s{S_TAG}")
    for b in range(34, 68, 2):
        if b in (52, 62): continue
        I(f"v_mov_b64 v[{b}:{b+1}], 0")
    p.waitw()
    I("s_barrier")
    I(f"ds_read_b128 v[{OAr}:{OAr+3}], v{V_OR}", f"ds_read_b128 v[{OAr+4}:{OAr+7}], v{V_OR} offset:128")
    for b in (32, 52, 62): I(f"v_mov_b64 v[{b}:{b+1}], 0")
    stamp(p, 9, first)
    p.C("O-proj")
    W = Weaver(p)
    osm = lambda j, kb: SM(OACC[j], OAr + 4 * kb, frag(F_WO(j, kb)))
    seq = [(0, 0), (1, 0), (0, 1), (1, 1)] + [(j, kb) for j in range(2, 9) for kb in range(2)]
    def fin(j):
        b = OACC[j]
        ops = [ad(b, b, b + 2), ad(b + 1, b + 1, b + 3), cv(G + j % 3, b, b + 1)]
        if j % 3 == 2: ops.append(f"buffer_store_dwordx4 v[{G}:{G+3}], v{V_PS}, {WS}, s{S_PS + j // 3} offen{sc_st}")
        return ops
    done_at = {}
    pend = []
    for idx, (j, kb) in enumerate(seq):
        W.raw(osm(j, kb))
        if kb == 1: done_at[j] = idx
        for jj in list(done_at):
            if idx >= done_at[jj] + 2:
                pend += fin(jj); del done_at[jj]
        if OPAT[0] == 0:
            n = 2 if len(pend) > 2 else 1
            for _ in range(n):
                if pend: W.raw(pend.pop(0))
        else:
            if pend and pend[0].startswith("buffer_store"): W.raw(pend.pop(0))
            else:
                n = 2 if idx % 2 == 0 else 1
                for _ in range(n):
                    if pend and not pend[0].startswith("buffer_store"): W.raw(pend.pop(0))
    for jj in sorted(done_at): pend += fin(jj)
    for o in pend: W.raw(o)
    stamp(p, 10, first)
    p.C("reduce")
    skip = p.newlabel("notask")
    if PFBR[0] and PREF[0]:
        nt = p.newlabel("hastask")
        I(f"s_cmp_lg_u32 s{S_HASTASK}, 0", f"s_cbranch_scc1 {nt}")
        I(f"s_sub_u32 s{S_T0}, s{S_VX}, s{S_W2048}", f"s_add_u32 s{S_T0}, s{S_T0}, {32*8192}", f"v_lshlrev_b32 v{V_MP}, 3, v{V_L16}",
          f"s_sub_u32 s{S_T1}, s{S_KX}, s{S_W2048}", f"s_add_u32 s{S_T1}, s{S_T1}, {32*8192}")
        I(f"buffer_load_dword v{V_DUM}, v{V_MP}, {WS}, s{S_T0} offen ; nodep", f"buffer_load_dword v{V_DUM}, v{V_MP}, {WS}, s{S_T1} offen ; nodep")
        I(f"s_branch {skip}")
        p.L(nt)
    else:
        I(f"s_cmp_eq_u32 s{S_HASTASK}, 0", f"s_cbranch_scc1 {skip}")
    RS = 64
    if DELAY1[0]:
        nd = p.newlabel("nodelay")
        I(f"s_cmp_eq_u32 s{S_ISW2}, 0", f"s_cbranch_scc1 {nd}")
        delay(p, DELAY1[0])
        p.L(nd)
    if DELAYG1[0]:
        nd = p.newlabel("nodelay1")
        I(f"s_cmp_lg_u32 s{S_WV}, 1", f"s_cbranch_scc1 {nd}")
        delay(p, DELAYG1[0])
        p.L(nd)
    delay(p, DELAY0[0])
    retry = p.newlabel("p_retry"); ok = p.newlabel("p_ok")
    p.L(retry)
    for i in range(4):
        I(f"buffer_load_dwordx4 v[{32+4*i}:{35+4*i}], v{V_L16}, {WS}, s{S_PL} offen offset:{i*1024} sc1")
    I(f"s_add_u32 s{S_TO2}, s{S_TO2}, 1")
    I(f"v_bfe_u32 v69, v{V_L16}, 4, 2", f"v_bfe_u32 v70, v{V_L16}, 6, 2", "v_lshlrev_b32 v71, 4, v69", "v_mov_b32 v68, 0x3f80", "v_lshlrev_b32 v68, v71, v68",
      "v_cmp_gt_u32 vcc, 2, v69", "v_cndmask_b32 v71, 0, v68, vcc")
    for r in range(3): I(f"v_cmp_eq_u32 vcc, {r}, v70", f"v_cndmask_b32 v{RS+r}, 0, v71, vcc")
    I(f"v_mov_b32 v{RS+3}, 0")
    I(f"v_bfe_u32 v68, v{V_L16}, 8, 2", "v_lshlrev_b32 v68, 10, v68", f"v_bfe_u32 v69, v{V_L16}, 4, 3", "v_lshl_add_u32 v68, v69, 1, v68")
    D = 72
    for i in range(4):
        I(f"s_waitcnt vmcnt({3-i})")
        c = "0" if i == 0 else f"v[{D}:{D+3}]"
        I(f"v_mfma_f32_16x16x32_bf16 v[{D}:{D+3}], v[{RS}:{RS+3}], v[{32+4*i}:{35+4*i}], {c}")
        if i == 2: I("v_min3_u32 v76, v35, v39, v43")
        if i == 3: I("v_min_u32 v76, v76, v47")
    I(f"v_cmp_ne_u32 vcc, s{S_TAG}, v76", f"s_cbranch_vccz {ok}", f"s_cmp_lt_u32 s{S_TO2}, 0x200000", f"s_cbranch_scc1 {retry}")
    p.L(ok)
    stamp(p, 11, first)
    p.fence()
    I(f"v_add_f32_dpp v{D}, v{D}, v{D} row_ror:8 row_mask:0xf bank_mask:0xf", f"v_add_f32_dpp v{D+1}, v{D+1}, v{D+1} row_ror:8 row_mask:0xf bank_mask:0xf")
    I(f"v_mov_b32_dpp v76, v{D} quad_perm:[1,0,3,2] row_mask:0xf bank_mask:0xf", f"v_mov_b32_dpp v77, v{D+1} quad_perm:[1,0,3,2] row_mask:0xf bank_mask:0xf")
    I(f"v_cvt_pk_bf16_f32 v76, v{D}, v76", f"v_cvt_pk_bf16_f32 v77, v{D+1}, v77", "v_mov_b32 v78, -1")
    I(f"s_mov_b64 exec, s[{S_EXMS}:{S_EXMS+1}]", f"buffer_store_dword v76, v68, {WS}, s{S_MEMW} offen{sc_st}", f"buffer_store_dword v77, v68, {WS}, s{S_MEMW} offen offset:16{sc_st}")
    I(f"buffer_store_dword v78, v68, {WS}, s{S_MEMZ} offen{sc_st}", f"buffer_store_dword v78, v68, {WS}, s{S_MEMZ} offen offset:16{sc_st}", "s_mov_b64 exec, -1")
    p.L(skip)
    for r_ in (S_MEMW, S_MEMZ):
        I(f"s_add_u32 s{r_}, s{r_}, {MEM_SLOT}", f"s_cmp_ge_u32 s{r_}, s{S_MEMWEND}", f"s_cselect_b32 s{S_T0}, {4*MEM_SLOT}, 0", f"s_sub_u32 s{r_}, s{r_}, s{S_T0}")
    I(f"s_add_u32 s{S_VX}, s{S_VX}, {32*8192}", f"s_add_u32 s{S_KM}, s{S_KM}, {32*4096}", f"s_add_u32 s{S_VM}, s{S_VM}, {32*2048}", f"s_add_u32 s{S_KX}, s{S_KX}, {32*8192}", f"s_add_u32 s{S_STEP}, s{S_STEP}, 1")
    stamp(p, 12, first)
    p.fence()
    p.reset_q()

def emit_slow(p):
    I = p.I
    WS = f"s[{S_WS}:{S_WS+3}]"
    while SLOW:
        slow, back, ld2, M48, areg = SLOW.pop(0)
        p.fence(); p.reset_q()
        p.L(slow)
        lp = p.newlabel("st2_lp")
        I(f"s_mov_b64 exec, {M48}")
        p.L(lp)
        I(ld2, "s_waitcnt vmcnt(0)", f"v_max3_u32 v{V_VX+1}, v52, v53, v54", f"v_max_u32 v{V_VX+1}, v{V_VX+1}, v55", f"v_cmp_eq_u32 vcc, -1, v{V_VX+1}", f"s_add_u32 s{S_TO3}, s{S_TO3}, 1")
        ok = p.newlabel("st2_ok")
        I(f"s_cbranch_vccz {ok}", f"s_cmp_lt_u32 s{S_TO3}, 0x200000", f"s_cbranch_scc1 {lp}")
        p.L(ok)
        I(f"ds_write_b128 v{areg}, v[52:55]", "s_mov_b64 exec, -1", "s_waitcnt lgkmcnt(0)", f"s_branch {back}")
        p.reset_q()

def chain_loop(p, local, nsteps=64):
    I = p.I
    p.reset_q()
    loop = p.newlabel("chain_loop")
    p.fence()
    p.L(loop)
    step(p, local=local)
    I(f"s_cmp_lt_u32 s{S_STEP}, {nsteps-1}", f"s_cbranch_scc1 {loop}")
    step(p, local=local, first=False, last=True)
    I("s_waitcnt vmcnt(0)", "s_barrier")
    if FUSED[0]:
        I("v_mov_b32 v52, 64", "v_mov_b32 v53, 0", f"s_mov_b64 exec, s[{S_PUB}:{S_PUB+1}]", f"buffer_store_dword v52, v53, s[{S_WS}:{S_WS+3}], s{S_CHF} offen sc1", "s_mov_b64 exec, -1")
    over = p.newlabel("over_slow")
    I(f"s_branch {over}")
    emit_slow(p)
    p.L(over)

def gen_chain(p, local=True, nsteps=64, stamps=False):
    I = p.I
    setup_chain(p, local)
    preload(p)
    chain_state(p)
    if stamps: I(f"s_memtime s[{S_TS}:{S_TS+1}]", "s_waitcnt lgkmcnt(0)")
    chain_loop(p, local, nsteps)
    if stamps:
        I("s_waitcnt vmcnt(0) lgkmcnt(0)", f"s_memtime s[{S_TS+2}:{S_TS+3}]", "s_waitcnt lgkmcnt(0)")
        I(f"s_sub_u32 s{S_TS}, s{S_TS+2}, s{S_TS}", f"v_mov_b32 v44, s{S_TS}")
        lab = p.newlabel("st")
        I(f"s_cmp_lg_u32 s{S_WV}, 0", f"s_cbranch_scc1 {lab}")
        I(f"s_lshl_b32 s{S_T0}, s{S_H}, 2", f"s_add_u32 s{S_T0}, s{S_T0}, 128", f"v_mov_b32 v45, s{S_T0}", "s_mov_b64 exec, 1", f"global_store_dword v45, v44, s[{S_DBG}:{S_DBG+1}]", "s_mov_b64 exec, -1")
        p.L(lab)
    prof_dump(p)

def prof_dump(p):
    I = p.I
    if PROF[0]:
        I("s_waitcnt lgkmcnt(0)")
        I(f"s_lshl_b32 s{S_T0}, s{S_H}, 2", f"s_add_u32 s{S_T0}, s{S_T0}, s{S_WV}", f"s_lshl_b32 s{S_T0}, s{S_T0}, 7", f"s_add_u32 s{S_T0}, s{S_T0}, {0x9000000}")
        I("s_mov_b64 exec, 1", "v_mov_b32 v45, 0")
        for k in range(PNST):
            I(f"v_mov_b32 v44, s{S_ST+2*k if k < 13 else 14}", f"buffer_store_dword v44, v45, s[{S_WS}:{S_WS+3}], s{S_T0} offen offset:{4*k}")
        for k, r_ in enumerate((S_TO, S_TO2, S_TO3)):
            I(f"v_mov_b32 v44, s{r_}", f"buffer_store_dword v44, v45, s[{S_WS}:{S_WS+3}], s{S_T0} offen offset:{64+4*k}")
        I("s_mov_b64 exec, -1")

def standalone(local=True, stamps=True, nsteps=64):
    name = "chain_kernel"
    p = AProg()
    p.raw(f"; @launch kernel={name} grid=(256,1,1) block=(256,1,1) lds=163840")
    p.raw('.amdgcn_target "amdgcn-amd-amdhsa--gfx950"\n.text')
    p.raw(f".globl {name}\n.p2align 8\n.type {name},@function\n{name}:")
    I = p.I
    I(f"s_cmp_ge_u32 s2, 256", "s_cbranch_scc1 L_end")
    I(f"s_load_dwordx2 s[{S_PTR}:{S_PTR+1}], s[0:1], {KARG['A_mem0']}")
    I(f"s_load_dwordx4 s[{S_PTR+2}:{S_PTR+5}], s[0:1], {KARG['A_Wq']}")
    I(f"s_load_dwordx2 s[{S_PTR+6}:{S_PTR+7}], s[0:1], {KARG['A_Wv']}")
    I(f"s_load_dwordx2 s[{S_PTR+8}:{S_PTR+9}], s[0:1], {KARG['A_Wo']}")
    I(f"s_load_dwordx2 s[{S_DBG}:{S_DBG+1}], s[0:1], {KARG['dbg']}")
    I(f"s_load_dwordx2 s[{S_PTR+10}:{S_PTR+11}], s[0:1], {KARG['ws']}")
    I("s_waitcnt lgkmcnt(0)")
    I(f"s_mov_b32 s{S_WS}, s{S_PTR+10}", f"s_and_b32 s{S_WS+1}, s{S_PTR+11}, 0xffff", f"s_mov_b32 s{S_WS+2}, {WS_BYTES}", f"s_mov_b32 s{S_WS+3}, 0x20000")
    I(f"s_mov_b32 s{S_MEM}, s{S_PTR}", f"s_and_b32 s{S_MEM+1}, s{S_PTR+1}, 0xffff", f"s_mov_b32 s{S_MEM+2}, 9216", f"s_mov_b32 s{S_MEM+3}, 0x20000")
    lane_consts(p)
    I(f"s_getreg_b32 s{S_T0}, hwreg(HW_REG_XCC_ID, 0, 4)")
    I(f"s_cmp_lg_u32 s{S_T0}, 0", "s_cbranch_scc1 L_end")
    lab = p.newlabel("role")
    I(f"s_cmp_lg_u32 s{S_WV}, 0", f"s_cbranch_scc1 {lab}")
    I("s_mov_b64 exec, 1", "v_mov_b32 v44, 1", "v_mov_b32 v45, 0", f"global_atomic_add v46, v45, v44, s[{S_DBG}:{S_DBG+1}] sc0", "s_waitcnt vmcnt(0)", "v_mov_b32 v45, 0", "ds_write_b32 v45, v46", "s_waitcnt lgkmcnt(0)", "s_mov_b64 exec, -1")
    p.L(lab)
    I("s_barrier", "v_mov_b32 v45, 0", "ds_read_b32 v46, v45", "s_waitcnt lgkmcnt(0)", f"v_readfirstlane_b32 s{S_H}, v46", "s_barrier")
    I(f"s_cmp_ge_u32 s{S_H}, 32", "s_cbranch_scc1 L_end")
    gen_chain(p, local=local, stamps=stamps, nsteps=nsteps)
    p.L("L_end")
    I("s_endpgm")
    p.raw(kd(name))
    return p.render()

if __name__ == "__main__":
    import sys
    for a in sys.argv[2:]:
        if a == "prof": PROF[0] = True
        if a == "rt": RT[0] = True
        if a.startswith("hold="): HOLD[0] = int(a[5:])
        if a.startswith("lead="): LEAD[0] = int(a[5:])
        if a.startswith("lat="): Weaver.LDS_LAT = int(a[4:])
        if a.startswith("vp="): VPERIOD[0] = int(a[3:])
        if a == "nobar4": BAR4[0] = False
        if a.startswith("touch="): TOUCH[0] = int(a[6:])
        if a.startswith("s2i="): ST2_ISSUE[0] = int(a[4:])
        if a.startswith("s2c="): ST2_CHECK[0] = int(a[4:])
        if a.startswith("g1="): DELAYG1[0] = int(a[3:])
        if a == "nopref": PREF[0] = False
        if a.startswith("expl="): EXPL[0] = int(a[5:])
        if a == "pfbr": PFBR[0] = True
        if a == "ioin": IOIN[0] = True
        if a == "pks": PKS[0] = True
        if a == "pkm": PKM[0] = True
        if a.startswith("opat="): OPAT[0] = int(a[5:])
        if a == "norot": ROT[0] = False
        if a.startswith("vpl="): VPLACE[:] = [int(c) for c in a[4:]]
        if a.startswith("d4="): DELAY4[0] = int(a[3:])
        if a.startswith("d3="): DELAY3[0] = int(a[3:])
        if a.startswith("d0="): DELAY0[0] = int(a[3:])
        if a.startswith("d1="): DELAY1[0] = int(a[3:])
        if a.startswith("d2="): DELAY2[0] = int(a[3:])
    open(sys.argv[1], "w").write(standalone())
```

```python
from asmlib2 import *
from common import *

G_WS   = 4
G_X    = 8
G_W    = 12
G_O    = 40
G_WV   = 19
G_T0, G_T1, G_T2, G_T3 = 28, 29, 30, 31
G_SEG, G_SEGSTEP, G_NSEG, G_IT = 20, 21, 22, 23
G_WCOL = 24
G_WSTR = 25
G_OB   = 26
G_FLG  = 27
G_XB   = 32
G_PREV = 33
G_BUF  = 34
G_DBG  = 16
G_P1, G_P2, G_JIT, G_JSEG, G_NIMM = 60, 61, 62, 63, 64

XB0 = 0; XBUF = 36864

def wfrag(NT, t, ks):
    f = t * 18 + ks
    r = 4 * f
    return ("a", r) if r < 256 else ("v", 256 + 0 + (r - 256) - 256 + 128)

def frag4(idx):
    return f"a[{4*idx}:{4*idx+3}]" if idx < 64 else f"v[{128+4*(idx-64)}:{128+4*(idx-64)+3}]"
def frag4_sub(idx, off, n):
    k, b = ("a", 4*idx) if idx < 64 else ("v", 128 + 4*(idx-64))
    return f"{k}[{b+off}:{b+off+n-1}]"

def lane_common(p):
    I = p.I
    I("v_lshrrev_b32 v32, 6, v0", "v_and_b32 v33, 63, v0", f"v_readfirstlane_b32 s{G_WV}, v32")
    I("v_and_b32 v34, 15, v33", "v_lshrrev_b32 v35, 4, v33", "v_lshlrev_b32 v0, 4, v33")

def hswz(p, dst, src, tmp):
    p.I(f"v_lshrrev_b32 v{tmp}, 1, v{src}", f"v_xor_b32 v{dst}, v{src}, v{tmp}", f"v_and_b32 v{dst}, 1, v{dst}", f"v_lshl_or_b32 v{dst}, v{dst}, 1, v{tmp}")

def preload_w(p, NT):
    I = p.I
    I("v_lshrrev_b32 v40, 5, v33", "v_and_b32 v41, 31, v33")
    I(f"s_and_b32 s{G_T0}, s{G_WV}, 1", f"s_lshl_b32 s{G_T0}, s{G_T0}, 2")
    for jj in range(4):
        I(f"v_add_u32 v42, {2*jj}, v40", "v_and_b32 v43, 3, v42", f"v_or_b32 v43, s{G_T0}, v43", "v_lshlrev_b32 v43, 1, v43", "v_xor_b32 v43, v43, v41",
          "v_lshlrev_b32 v43, 4, v43", f"v_mul_lo_u32 v42, v42, s{G_WSTR}", f"v_add_u32 v{52+jj}, v42, v43")
    I("v_lshrrev_b32 v40, 2, v34", "v_and_b32 v41, 3, v34", "v_and_b32 v42, 1, v35", "v_lshl_or_b32 v42, v42, 2, v40")
    I("v_lshl_add_u32 v43, v35, 3, v40", "v_lshlrev_b32 v43, 9, v43", "v_lshl_add_u32 v43, v41, 3, v43")
    I(f"s_mul_i32 s{G_T0}, s{G_WV}, {NT}")
    for t in range(NT):
        I(f"s_add_u32 s{G_T1}, s{G_T0}, {t}", f"v_xor_b32 v44, s{G_T1}, v42", f"v_lshl_add_u32 v{56+t}, v44, 5, v43")
    NSL = 10
    issued = [0]
    def issue(c):
        I(f"s_lshl_b32 s{G_T0}, s{G_WV}, 3", f"s_add_u32 s{G_T0}, s{G_T0}, {32*c}", f"s_mul_i32 s{G_T0}, s{G_T0}, s{G_WSTR}", f"s_add_u32 s{G_T0}, s{G_T0}, s{G_WCOL}")
        I(f"s_lshl_b32 s{G_T1}, s{G_WV}, 12", f"s_add_u32 s{G_T1}, s{G_T1}, {(c % NSL) * 16384}")
        for jj in range(4):
            I(f"s_add_u32 m0, s{G_T1}, {jj*1024}", f"buffer_load_dwordx4 v{52+jj}, s[{G_W}:{G_W+3}], s{G_T0} offen lds")
        issued[0] = c + 1
    for c in range(NSL): issue(c)
    for c in range(18):
        I(f"s_waitcnt vmcnt({4*(issued[0]-1-c)})", "s_barrier")
        sb = (c % NSL) * 16384
        for t in range(NT):
            I(f"v_add_u32 v44, {sb}, v{56+t}")
            I(f"ds_read_b64_tr_b16 {frag4_sub(t*18+c, 0, 2)}, v44", f"ds_read_b64_tr_b16 {frag4_sub(t*18+c, 2, 2)}, v44 offset:2048")
        I("s_waitcnt lgkmcnt(0)", "s_barrier")
        if c + NSL < 18: issue(c + NSL)

def x_addrs(p):
    I = p.I
    I("v_lshrrev_b32 v40, 2, v33", "v_lshrrev_b32 v41, 4, v33")
    hswz(p, 42, 41, 43)
    I("v_and_b32 v43, 3, v33", "v_xor_b32 v42, v42, v43", "v_mul_u32_u24 v1, 1152, v40", "v_lshl_add_u32 v1, v42, 4, v1")
    I("v_lshrrev_b32 v41, 2, v34")
    hswz(p, 42, 41, 43)
    I("v_xor_b32 v42, v42, v35", "v_lshlrev_b32 v2, 6, v34", "v_lshl_add_u32 v2, v42, 4, v2")

def x_dma(p, segreg, bufbase_sreg, xsc=''):
    I = p.I
    I(f"s_mul_i32 s{G_T0}, s{segreg}, {32*1152}", f"s_lshr_b32 s{G_T1}, s{G_WV}, 1", f"s_mul_i32 s{G_T1}, s{G_T1}, {16*1152}", f"s_add_u32 s{G_T0}, s{G_T0}, s{G_T1}",
      f"s_and_b32 s{G_T1}, s{G_WV}, 1", f"s_mul_i32 s{G_T1}, s{G_T1}, 576", f"s_add_u32 s{G_T0}, s{G_T0}, s{G_T1}")
    I(f"s_mul_i32 s{G_T1}, s{G_WV}, 9216", f"s_add_u32 s{G_T1}, s{G_T1}, s{bufbase_sreg}")
    for j in range(9):
        I(f"s_add_u32 m0, s{G_T1}, {j*1024}")
        I(f"s_add_u32 s{G_T2}, s{G_T0}, {j*64}", f"buffer_load_dwordx4 v1, s[{G_X}:{G_X+3}], s{G_T2} offen{xsc} lds")

def gemm_main(p, NT, epi, sc=" sc1", prewait=None, xsc="", endsig=None):
    I = p.I
    ACC = 64
    NS = {"kq": NT, "v": NT, "row": 2 * NT}[epi]
    I(f"s_mov_b32 s{G_IT}, 0", f"s_mov_b32 s{G_BUF}, {XB0}", f"s_mov_b32 s{G_PREV}, -1")
    if prewait: prewait(p, G_SEG)
    x_dma(p, G_SEG, G_BUF, xsc)
    I("s_waitcnt vmcnt(0)")
    loop = p.newlabel("g_loop");
    p.fence(); p.reset_q()
    p.L(loop)
    I(f"s_waitcnt vmcnt({NS})", "s_barrier")
    if epi != "row":
        nosig = p.newlabel("nosig")
        I(f"s_add_u32 s{G_T0}, s{G_NIMM}, 2", f"s_cmp_lt_u32 s{G_IT}, s{G_T0}", f"s_cbranch_scc1 {nosig}", f"s_cmp_lg_u32 s{G_WV}, 0", f"s_cbranch_scc1 {nosig}")
        I(f"s_lshl_b32 s{G_T0}, s{G_P2}, 2", f"s_add_u32 s{G_T0}, s{G_T0}, s{G_FLG}")
        I("s_mov_b64 exec, 1", "v_mov_b32 v48, 1", "v_mov_b32 v49, 0", f"buffer_atomic_add v48, v49, s[{G_WS}:{G_WS+3}], s{G_T0} offen", "s_mov_b64 exec, -1")
        p.L(nosig)
    nopf = p.newlabel("nopf")
    I(f"s_add_u32 s{G_T3}, s{G_IT}, 1", f"s_cmp_ge_u32 s{G_T3}, s{G_NSEG}", f"s_cbranch_scc1 {nopf}")
    I(f"s_add_u32 s{G_XB}, s{G_SEG}, s{G_SEGSTEP}", f"s_cmp_eq_u32 s{G_T3}, s{G_JIT}", f"s_cselect_b32 s{G_XB}, s{G_JSEG}, s{G_XB}")
    I(f"s_sub_u32 s{G_T3}, {XB0 + XBUF}, s{G_BUF}", f"s_add_u32 s{G_T3}, s{G_T3}, {XB0}")
    if prewait:
        I(f"s_mov_b32 s39, s{G_T3}")
        prewait(p, G_XB)
        I(f"s_mov_b32 s{G_T3}, s39")
    x_dma(p, G_XB, G_T3, xsc)
    p.L(nopf)
    p.reset_q()
    I(f"v_add_u32 v3, s{G_BUF}, v2")
    def xr(ks, st):
        return [f"ds_read_b128 v[{32+8*st}:{35+8*st}], v3 offset:{ks*1024}", f"ds_read_b128 v[{36+8*st}:{39+8*st}], v3 offset:{(18+ks)*1024}"]
    for st in range(2):
        for y in xr(st, st): I(y)
    for ks in range(18):
        st = ks % 2
        k = 0
        pend = xr(ks + 2, st) if ks + 2 < 18 else []
        for t in range(NT):
            for tt in range(2):
                d = ACC + 4 * (t * 2 + tt)
                c = "0" if ks == 0 else f"v[{d}:{d+3}]"
                x = f"v[{32+8*st+4*tt}:{35+8*st+4*tt}]"
                w = frag4(t * 18 + ks)
                if epi == "v": I(f"v_mfma_f32_16x16x32_bf16 v[{d}:{d+3}], {x}, {w}, {c}")
                else: I(f"v_mfma_f32_16x16x32_bf16 v[{d}:{d+3}], {w}, {x}, {c}")
        for y in pend: I(y)
    cv = lambda d, a, b: f"v_cvt_pk_bf16_f32 v{d}, v{a}, v{b}"
    if epi == "kq":
        I(f"s_mul_i32 s{G_T0}, s{G_SEG}, {32*8192}", f"s_add_u32 s{G_T0}, s{G_T0}, s{G_OB}")
        for pp in range(NT // 2):
            for tt in range(2):
                a = ACC + 4 * ((2 * pp) * 2 + tt); b = ACC + 4 * ((2 * pp + 1) * 2 + tt); o = 48 + 4 * ((pp * 2 + tt) % 2)
                I(cv(o, a, a + 1), cv(o + 1, a + 2, a + 3), cv(o + 2, b, b + 1), cv(o + 3, b + 2, b + 3))
                I(f"buffer_store_dwordx4 v[{o}:{o+3}], v0, s[{G_WS}:{G_WS+3}], s{G_T0} offen offset:{pp*2048+tt*1024}{sc}")
    elif epi == "v":
        I(f"s_mul_i32 s{G_T0}, s{G_SEG}, {32*8192}", f"s_add_u32 s{G_T0}, s{G_T0}, s{G_OB}")
        for t in range(NT):
            a = ACC + 4 * (t * 2); b = ACC + 4 * (t * 2 + 1); o = 48 + 4 * (t % 2)
            I(cv(o, a, a + 1), cv(o + 1, a + 2, a + 3), cv(o + 2, b, b + 1), cv(o + 3, b + 2, b + 3))
            I(f"buffer_store_dwordx4 v[{o}:{o+3}], v0, s[{G_WS}:{G_WS+3}], s{G_T0} offen offset:{t*1024}{sc}")
    else:
        for tt in range(2):
            I(f"s_lshl_b32 s{G_T0}, s{G_SEG}, 5", f"s_add_u32 s{G_T0}, s{G_T0}, {16*tt}", f"s_mul_i32 s{G_T0}, s{G_T0}, s35", f"s_add_u32 s{G_T0}, s{G_T0}, s{G_OB}")
            for t in range(NT):
                a = ACC + 4 * (t * 2 + tt); o = 48 + 2 * ((tt * NT + t) % 4)
                I(cv(o, a, a + 1), cv(o + 1, a + 2, a + 3))
                I(f"buffer_store_dwordx2 v[{o}:{o+1}], v4, s[{G_O}:{G_O+3}], s{G_T0} offen offset:{t*32}{sc}")
    if epi != "row":
        nf = p.newlabel("nofirst")
        I(f"s_cmp_ge_u32 s{G_IT}, s{G_NIMM}", f"s_cbranch_scc1 {nf}")
        I("s_waitcnt vmcnt(0)", "s_barrier")
        I(f"s_cmp_lg_u32 s{G_WV}, 0", f"s_cbranch_scc1 {nf}")
        I(f"s_lshl_b32 s{G_T0}, s{G_SEG}, 2", f"s_add_u32 s{G_T0}, s{G_T0}, s{G_FLG}")
        signal_add(p, G_WS, G_T0, tmpv=(48, 49))
        p.L(nf)
    I(f"s_mov_b32 s{G_P2}, s{G_P1}", f"s_mov_b32 s{G_P1}, s{G_SEG}")
    I(f"s_mov_b32 s{G_SEG}, s{G_XB}", f"s_sub_u32 s{G_T0}, {XB0 + XBUF}, s{G_BUF}", f"s_add_u32 s{G_BUF}, s{G_T0}, {XB0}", f"s_add_u32 s{G_IT}, s{G_IT}, 1")
    p.fence(); p.reset_q()
    I(f"s_cmp_lt_u32 s{G_IT}, s{G_NSEG}", f"s_cbranch_scc1 {loop}")
    I("s_waitcnt vmcnt(0)", "s_barrier")
    if epi != "row":
        nosig = p.newlabel("nosig")
        I(f"s_cmp_lg_u32 s{G_WV}, 0", f"s_cbranch_scc1 {nosig}")
        I("s_mov_b64 exec, 1", "v_mov_b32 v48, 1", "v_mov_b32 v49, 0")
        for reg in (G_P1, G_P2):
            I(f"s_lshl_b32 s{G_T0}, s{reg}, 2", f"s_add_u32 s{G_T0}, s{G_T0}, s{G_FLG}")
            I(f"buffer_atomic_add v48, v49, s[{G_WS}:{G_WS+3}], s{G_T0} offen")
        I("s_mov_b64 exec, -1")
        p.L(nosig)

    if endsig is not None:
        nosig = p.newlabel("nosig")
        I(f"s_cmp_lg_u32 s{G_WV}, 0", f"s_cbranch_scc1 {nosig}", f"s_mov_b32 s{G_T0}, {endsig}")
        signal_add(p, G_WS, G_T0, tmpv=(48, 49))
        p.L(nosig)
```

```python
import sys
from gemm576 import *
P = 46
def k_init(p):
    kernel_head(p, "init_kernel")
    I = p.I
    I("s_cmp_ge_u32 s2, 1", "s_cbranch_scc1 L_init_end")
    load_ptrs(p, ["ws"], P); I("s_waitcnt lgkmcnt(0)"); srd(p, G_WS, P, WS_BYTES)
    I("v_lshlrev_b32 v1, 4, v0", "v_mov_b64 v[4:5], 0", "v_mov_b64 v[6:7], 0", f"s_mov_b32 s20, {FLAG_OFF}")
    I(f"buffer_store_dwordx4 v[4:7], v1, s[{G_WS}:{G_WS+3}], s20 offen")
    p.L("L_init_end"); I("s_endpgm")
def k_gemm(p):
    kernel_head(p, "gemm_kernel")
    I = p.I
    I("s_cmp_ge_u32 s2, 216", "s_cbranch_scc1 L_g_end")
    load_ptrs(p, ["A_x", "A_Wq", "A_Wk", "A_Wv", "B_x", "B_wq", "ws"], P)
    I("s_waitcnt lgkmcnt(0)")
    srd(p, G_WS, P + 12, WS_BYTES)
    lane_common(p)
    I("s_cmp_ge_u32 s2, 192", "s_cbranch_scc1 L_bq")
    role_gemm1(p, "s2", P, P + 2, P + 4, P + 6)
    I("s_branch L_g_end")
    p.L("L_bq")
    I("s_sub_u32 s36, s2, 192")
    role_bq(p, 36, P + 8, P + 10)
    p.L("L_g_end"); I("s_endpgm")

def role_gemm1(p, idreg, pX, pWq, pWk, pWv, mid=None, newmap=False):
    I = p.I
    I(f"s_mul_hi_u32 s{G_SEG}, {idreg}, {(1 << 32) // 48 + 1}", f"s_mul_i32 s{G_T0}, s{G_SEG}, 48", f"s_sub_u32 s36, {idreg}, s{G_T0}")
    I(f"s_lshr_b32 s37, s36, 4", "s_and_b32 s38, s36, 15")
    srd(p, G_X, pX, 2048 * 1152)
    I(f"s_cmp_eq_u32 s37, 0", f"s_cselect_b32 s{G_T0}, s{pWk}, s{pWv}", f"s_cselect_b32 s{G_T1}, s{pWk+1}, s{pWv+1}")
    I(f"s_cmp_eq_u32 s37, 2", f"s_cselect_b32 s{G_T0}, s{pWq}, s{G_T0}", f"s_cselect_b32 s{G_T1}, s{pWq+1}, s{G_T1}")
    srd(p, G_W, G_T0, 576 * 8192)
    I(f"s_lshl_b32 s{G_WCOL}, s38, 9", f"s_mov_b32 s{G_WSTR}, 8192", f"s_mov_b32 s{G_NSEG}, 16")
    if newmap:
        I(f"s_cmp_eq_u32 s{G_SEG}, 0", f"s_cselect_b32 s{G_SEGSTEP}, 1, 3", f"s_cselect_b32 s{G_JIT}, 4, -1", f"s_cselect_b32 s{G_NIMM}, 4, 3", f"s_mov_b32 s{G_JSEG}, 52")
        I(f"s_add_u32 s{G_T0}, s{G_SEG}, 3", f"s_cmp_eq_u32 s{G_SEG}, 0", f"s_cselect_b32 s{G_SEG}, 0, s{G_T0}")
    else:
        I(f"s_mov_b32 s{G_SEGSTEP}, 4", f"s_mov_b32 s{G_JIT}, -1", f"s_mov_b32 s{G_JSEG}, 0", f"s_mov_b32 s{G_NIMM}, 3")
    I(f"s_lshr_b32 s{G_T0}, s{G_WV}, 1", f"s_lshl_b32 s{G_T1}, s38, 1", f"s_add_u32 s{G_T0}, s{G_T0}, s{G_T1}", f"s_lshl_b32 s{G_OB}, s{G_T0}, 13",
      f"s_and_b32 s{G_T0}, s{G_WV}, 1", f"s_lshl_b32 s{G_T0}, s{G_T0}, 12", f"s_add_u32 s{G_OB}, s{G_OB}, s{G_T0}")
    I(f"s_mov_b32 s{G_T1}, {VX_OFF}", f"s_cmp_eq_u32 s37, 0", f"s_cselect_b32 s{G_T0}, {KX_OFF}, s{G_T1}", f"s_cmp_eq_u32 s37, 2", f"s_cselect_b32 s{G_T0}, {QX_OFF}, s{G_T0}", f"s_add_u32 s{G_OB}, s{G_OB}, s{G_T0}")
    I(f"s_mov_b32 s{G_T1}, {KVCNT}", f"s_cmp_eq_u32 s37, 2", f"s_cselect_b32 s{G_FLG}, {QCNT}, s{G_T1}")
    preload_w(p, 4)
    x_addrs(p)
    if mid: mid(p)
    lv = p.newlabel("isv"); le = p.newlabel("g1done")
    I("s_cmp_eq_u32 s37, 1", f"s_cbranch_scc1 {lv}")
    gemm_main(p, 4, "kq")
    I(f"s_branch {le}")
    p.L(lv)
    gemm_main(p, 4, "v")
    p.L(le)

def role_bq(p, idreg, pX, pW, out_srd_ptr=None, endsig=None, mid=None):
    I = p.I
    I(f"s_mul_hi_u32 s{G_SEG}, s{idreg}, {(1 << 32) // 3 + 1}", f"s_mul_i32 s{G_T0}, s{G_SEG}, 3", f"s_sub_u32 s37, s{idreg}, s{G_T0}")
    srd(p, G_X, pX, 2048 * 1152)
    srd(p, G_W, pW, 576 * 1152)
    I(f"s_mul_i32 s{G_WCOL}, s37, 384", f"s_mov_b32 s{G_WSTR}, 1152", f"s_mov_b32 s{G_SEGSTEP}, 8", f"s_mov_b32 s{G_NSEG}, 8", "s_mov_b32 s35, 1152", f"s_mov_b32 s{G_JIT}, -1", f"s_mov_b32 s{G_JSEG}, 0", f"s_mov_b32 s{G_NIMM}, 0")
    for k in range(4): I(f"s_mov_b32 s{G_O+k}, s{G_WS+k}")
    I(f"s_mul_i32 s{G_OB}, s{G_WV}, 96", f"s_add_u32 s{G_OB}, s{G_OB}, s{G_WCOL}", f"s_add_u32 s{G_OB}, s{G_OB}, {QB_OFF}")
    preload_w(p, 3)
    x_addrs(p)
    I("v_mul_u32_u24 v4, 1152, v34", "v_lshl_add_u32 v4, v35, 3, v4")
    if mid: mid(p)
    gemm_main(p, 3, "row", endsig=endsig)

if __name__ == "__main__":
    p = AProg()
    p.raw("; @launch kernel=init_kernel grid=(1,1,1) block=(256,1,1) lds=0")
    p.raw("; @launch kernel=gemm_kernel grid=(216,1,1) block=(256,1,1) lds=163840")
    p.raw('.amdgcn_target "amdgcn-amd-amdhsa--gfx950"\n.text')
    k_init(p); k_gemm(p)
    p.raw(kd("init_kernel", vgpr=32, accum=32)); p.raw(kd("gemm_kernel"))
    open(sys.argv[1], "w").write(p.render())
```

```python
import sys
import chain5 as ch
from gemm576 import *
from test_gemm import role_gemm1, role_bq
from test_b import role_bo
from attna import *
from attnb import *
from oproja import *
NAME = "concat_heads__memory_aug_recurrent_mem_tr__grouped_kv_mqa__prompt_kernel"
HEAD = open("concat_heads__memory_aug_recurrent_mem_tr__grouped_kv_mqa__prompt.s.ref").read().split("; Override launch geometry")[0]
PT = 72
PN = ["A_x", "A_mem0", "A_Wq", "A_Wk", "A_Wv", "A_Wo", "B_x", "B_wq", "B_wk", "B_wv", "B_wo", "out"]
def ptr(n): return PT + 2 * PN.index(n)
S_ROLE = 44
N_OPROJ, N_BO0, N_BOUT = 48, 48, 24
ATTNB0 = 96

TL = [False]
def ts(p, k, rolereg, a=30, b=31):
    if not TL[0]: return
    I = p.I
    lab = p.newlabel("ts")
    I(f"s_cmp_lg_u32 s19, 0", f"s_cbranch_scc1 {lab}")
    I("s_memrealtime s[2:3]", "s_waitcnt lgkmcnt(0)", f"s_lshl_b32 s3, s{rolereg}, 6", f"s_add_u32 s3, s3, {0x9100000 + 4*k}")
    I("s_mov_b64 exec, 1", f"v_mov_b32 v{a}, s2", f"v_mov_b32 v{b}, 0", f"buffer_store_dword v{a}, v{b}, s[4:7], s3 offen", "s_mov_b64 exec, -1", "s_nop 1")
    p.L(lab)

def tc(p, k, rolereg, a=30, b=31):
    if not TL[0]: return
    I = p.I
    lab = p.newlabel("tc")
    I(f"s_cmp_lg_u32 s19, 0", f"s_cbranch_scc1 {lab}")
    I("s_memtime s[2:3]", "s_waitcnt lgkmcnt(0)", f"s_lshl_b32 s3, s{rolereg}, 6", f"s_add_u32 s3, s3, {0x9100000 + 4*k}")
    I("s_mov_b64 exec, 1", f"v_mov_b32 v{a}, s2", f"v_mov_b32 v{b}, 0", f"buffer_store_dword v{a}, v{b}, s[4:7], s3 offen", "s_mov_b64 exec, -1", "s_nop 1")
    p.L(lab)

DT = [False]
def dts(p, idx, op="umax", a=52, b=53):
    if not DT[0]: return
    I = p.I
    lab = p.newlabel("dts")
    I("s_cmp_lg_u32 s19, 0", f"s_cbranch_scc1 {lab}")
    I("s_memrealtime s[2:3]", "s_waitcnt lgkmcnt(0)")
    if op == "umin": I("s_not_b32 s2, s2")
    I("s_mov_b64 exec, 1", f"v_mov_b32 v{a}, s2", f"v_mov_b32 v{b}, {4*idx}", f"global_atomic_umax v{b}, v{a}, s[16:17]", "s_mov_b64 exec, -1", "s_nop 1")
    p.L(lab)

def build(opts):
    DT[0] = bool(opts.get("dt"))
    TL[0] = bool(opts.get("tl"))
    ch.PROF[0] = bool(opts.get("prof"))
    ch.PREF[0] = not opts.get("nopref")
    ch.ROT[0] = not opts.get("norot")
    ch.EXPL[0] = opts.get("expl", 0)
    ch.PFBR[0] = bool(opts.get("pfbr"))
    ch.DEPTH[0] = opts.get("depth", 10)
    import oproja
    oproja.OSC[0] = " sc1" if opts.get("wt") in (1, 2) else (" nt" if opts.get("wt") == 3 else "")
    ch.ALIGN[0] = opts.get("al")
    ch.PKM[0] = bool(opts.get("pkm"))
    ch.OPAT[0] = opts.get("opat", 0)
    ch.IOIN[0] = bool(opts.get("ioin"))
    ch.PKS[0] = bool(opts.get("pks"))
    if opts.get("vpl"): ch.VPLACE[:] = [int(c) for c in str(opts["vpl"])]
    ch.STEPTS[0] = bool(opts.get("sts"))
    ch.FUSED[0] = True
    p = AProg(); I = p.I
    p.raw(HEAD.rstrip("\n"))
    p.raw("; Override launch geometry by editing the next line.")
    p.raw("; @launch grid=(256,1,1) block=(256,1,1) lds=163840")
    p.raw('.amdgcn_target "amdgcn-amd-amdhsa--gfx950"\n.text')
    kernel_head(p, NAME)
    S_DBG, S_WS, S_MEM, S_WV, S_H = ch.S_DBG, ch.S_WS, ch.S_MEM, ch.S_WV, ch.S_H
    I("s_cmp_ge_u32 s2, 256", "s_cbranch_scc1 L_end")
    load_ptrs(p, PN, PT)
    I(f"s_load_dwordx2 s[{S_DBG}:{S_DBG+1}], s[0:1], {KARG['dbg']}", f"s_load_dwordx2 s[46:47], s[0:1], {KARG['ws']}")
    I("s_waitcnt lgkmcnt(0)")
    srd(p, S_WS, 46, WS_BYTES)
    I(f"s_mov_b32 s{S_ABORT}, 0")
    if opts.get("cpf"):
        p.L("L_pc_here") if False else None
        I("s_getpc_b64 s[60:61]")
        p.L("L_pc0")
        I("v_lshrrev_b32 v60, 6, v0", "v_and_b32 v61, 63, v0", "v_lshlrev_b32 v61, 7, v61", "v_lshl_add_u32 v61, v60, 13, v61")
        n = opts["cpf"]
        for i in range(n):
            I(f"v_cmp_gt_u32 vcc, L_end - L_pc0, v61" if False else f"v_min_u32 v62, L_end - L_pc0, v61", f"global_load_dword v63, v62, s[60:61] ; nodep", "v_add_u32 v61, 0x8000, v61")
    ch.lane_consts(p)
    dts(p, 9, "umin", 60, 61); dts(p, 11, "umax", 60, 61) if opts.get("dt") == 1 else None
    I("s_getreg_b32 s24, hwreg(HW_REG_XCC_ID, 0, 4)", "s_and_b32 s24, s24, 7")
    lab = p.newlabel("role")
    I(f"s_cmp_lg_u32 s{S_WV}, 0", f"s_cbranch_scc1 {lab}")
    I("s_mov_b64 exec, 1", "v_mov_b32 v44, 1", "s_lshl_b32 s25, s24, 2", "v_mov_b32 v45, s25", f"global_atomic_add v46, v45, v44, s[{S_DBG}:{S_DBG+1}] sc0", "s_waitcnt vmcnt(0)")
    I("v_readfirstlane_b32 s26, v46")
    I(f"s_cmp_eq_u32 s24, {opts.get('chx', 0)}", "s_cselect_b32 s27, s26, 1000", "s_cmp_lt_u32 s27, 32", "s_cbranch_scc1 L_isch")
    I(f"v_mov_b32 v45, {DBG_WORK}", f"global_atomic_add v46, v45, v44, s[{S_DBG}:{S_DBG+1}] sc0", "s_waitcnt vmcnt(0)", "v_add_u32 v46, 32, v46")
    p.L("L_isch")
    I("v_mov_b32 v45, 0", "ds_write_b32 v45, v46", "s_waitcnt lgkmcnt(0)", "s_mov_b64 exec, -1")
    p.L(lab)
    I("s_waitcnt vmcnt(0)", "s_barrier", "v_mov_b32 v45, 0", "ds_read_b32 v46, v45", "s_waitcnt lgkmcnt(0)", f"v_readfirstlane_b32 s{S_H}, v46", "s_barrier")
    I("s_mov_b32 s98, 0")
    I(f"s_cmp_lt_u32 s{S_H}, 256", "s_cbranch_scc1 L_notx", f"s_sub_u32 s{S_H}, 287, s{S_H}", "s_mov_b32 s98, 1")
    p.L("L_notx")
    I(f"s_cmp_ge_u32 s{S_H}, 32", "s_cbranch_scc1 L_worker")
    I("s_mov_b32 s45, s98")
    ts(p, 0, S_H, 52, 53)
    chain_role(p, opts)
    I("s_branch L_end")
    p.L("L_worker")
    I(f"s_sub_u32 s{S_ROLE}, s{S_H}, 32")
    ts(p, 0, S_H)
    worker(p, opts)
    p.L("L_end"); I("s_endpgm")
    p.raw(kd(NAME))
    return p.render()

def chain_role(p, opts):
    I = p.I
    S_PTR = ch.S_PTR
    for i, n in enumerate(["A_mem0", "A_Wq", "A_Wk", "A_Wv", "A_Wo"]):
        I(f"s_mov_b32 s{S_PTR+2*i}, s{ptr(n)}", f"s_mov_b32 s{S_PTR+2*i+1}, s{ptr(n)+1}")
    srd(p, ch.S_MEM, S_PTR, 9216)
    ch.setup_chain(p, local=False, part=1)
    ts(p, 1, ch.S_H, 66, 67); dts(p, 11, "umax", 66, 67) if opts.get("dt") == 2 else None
    def mid(p):
        ch.init_fills(p, " sc1")
        decide_mode(p, opts)
        wait_init(p, ch.S_DBG, tmpv=(64, 65))
    ch.EARLY[0] = True
    ch.preload(p, mid=mid, late=ch.early_loads)
    ts(p, 2, ch.S_H, 52, 53); dts(p, 15, "umax") if opts.get("dt") == 2 else None
    if opts.get("forceglobal"): I("s_mov_b32 s45, 1")
    I("s_mov_b32 s12, s45")
    ch.chain_state(p)
    ts(p, 3, ch.S_H, 52, 53); tc(p, 8, ch.S_H, 52, 53); dts(p, 8, "umax")
    I("s_cmp_lg_u32 s12, 0", "s_cbranch_scc1 L_chain_global")
    ch.chain_loop(p, local=True)
    ts(p, 4, ch.S_H, 52, 53); tc(p, 9, ch.S_H, 52, 53); dts(p, 14, "umax")
    ch.prof_dump(p)
    I("s_branch L_end")
    p.L("L_chain_global")
    ch.chain_loop(p, local=False)

def decide_mode(p, opts):
    I = p.I
    lab = p.newlabel("mode"); dec = p.newlabel("mode_d")
    I("s_cmp_lg_u32 s45, 0", f"s_cbranch_scc1 {dec}", f"s_mov_b32 s{ch.S_T2}, 0")
    p.L(lab)
    I(f"v_mov_b32 v65, {4*opts.get('chx', 0)}", f"global_load_dword v64, v65, s[{ch.S_DBG}:{ch.S_DBG+1}] sc1", f"v_mov_b32 v65, {DBG_WORK}", f"global_load_dword v66, v65, s[{ch.S_DBG}:{ch.S_DBG+1}] sc1", "s_waitcnt vmcnt(0)")
    I(f"v_readfirstlane_b32 s{ch.S_T0}, v64", f"v_readfirstlane_b32 s{ch.S_T1}, v66")
    I(f"s_cmp_ge_u32 s{ch.S_T0}, 32", f"s_cbranch_scc1 {dec}", f"s_cmp_gt_u32 s{ch.S_T1}, 224", "s_cselect_b32 s45, 1, 0", f"s_cbranch_scc1 {dec}")
    I("s_sleep 4", f"s_add_u32 s{ch.S_T2}, s{ch.S_T2}, 1", f"s_cmp_lt_u32 s{ch.S_T2}, 0x100000", f"s_cbranch_scc1 {lab}")
    p.L(dec)

def worker(p, opts):
    I = p.I
    S_DBG = ch.S_DBG
    lab = p.newlabel("noinit")
    I(f"s_cmp_lg_u32 s{S_ROLE}, 0", f"s_cbranch_scc1 {lab}")
    I("v_mov_b64 v[44:45], 0", "v_mov_b64 v[46:47], 0", f"s_lshl_b32 s{G_T0}, s{G_WV}, 10", f"s_add_u32 s{G_T0}, s{G_T0}, {FLAG_OFF}")
    for rnd in range(4):
        I(f"buffer_store_dwordx4 v[44:47], v0, s[{G_WS}:{G_WS+3}], s{G_T0} offen sc1", f"s_add_u32 s{G_T0}, s{G_T0}, 4096")
    I("s_waitcnt vmcnt(0)", "s_barrier")
    lab2 = p.newlabel("ini2")
    I(f"s_cmp_lg_u32 s{G_WV}, 0", f"s_cbranch_scc1 {lab2}")
    I("s_mov_b64 exec, 1", "v_mov_b32 v44, 1", f"v_mov_b32 v45, {DBG_INIT}", f"global_store_dword v45, v44, s[{S_DBG}:{S_DBG+1}] sc1", "s_mov_b64 exec, -1")
    p.L(lab2); p.L(lab)
    mid = lambda p: wait_init(p, S_DBG, tmpv=(48, 49))
    I(f"s_cmp_ge_u32 s{S_ROLE}, 192", "s_cbranch_scc1 L_p1b")
    if opts.get("qd", 0):
        nq = p.newlabel("noqd")
        I(f"s_mul_hi_u32 s36, s{S_ROLE}, {(1 << 32) // 48 + 1}", "s_mul_i32 s36, s36, 48", f"s_sub_u32 s36, s{S_ROLE}, s36", "s_cmp_lt_u32 s36, 32", f"s_cbranch_scc1 {nq}")
        for _ in range(opts["qd"]): I("s_sleep 127")
        p.L(nq)
    if opts.get("gd", 0):
        ng = p.newlabel("nogd")
        I(f"s_cmp_lt_u32 s{S_ROLE}, 48", f"s_cbranch_scc1 {ng}")
        for _ in range(opts["gd"]): I("s_sleep 127")
        p.L(ng)
    role_gemm1(p, f"s{S_ROLE}", ptr("A_x"), ptr("A_Wq"), ptr("A_Wk"), ptr("A_Wv"), mid=mid, newmap=bool(opts.get("nm")))
    I("s_branch L_p2")
    p.L("L_p1b")
    I(f"s_cmp_ge_u32 s{S_ROLE}, 216", "s_cbranch_scc1 L_p1c")
    I(f"s_sub_u32 s36, s{S_ROLE}, 192")
    role_bq(p, 36, ptr("B_x"), ptr("B_wq"), endsig=BQCNT, mid=mid)
    I("s_branch L_p2")
    p.L("L_p1c")
    srd(p, G_X, ptr("B_x"), 2048 * 1152)
    I(f"s_sub_u32 s20, s{S_ROLE}, 216", "s_lshl_b32 s20, s20, 2", f"s_add_u32 s20, s20, s{G_WV}", "s_mov_b32 s21, 32")
    kvproj(p, ptr("B_wk"), ptr("B_wv"), 2, 20)
    I("s_waitcnt vmcnt(0)")
    wait_init(p, S_DBG, tmpv=(30, 31))
    I(f"s_mov_b32 s{G_T0}, {BKVCNT}")
    signal_add(p, G_WS, G_T0)
    p.L("L_p2")
    p.fence(); p.reset_q()
    I("s_barrier")
    ts(p, 1, ch.S_H)
    relane(p)
    I(f"s_cmp_lt_u32 s{S_ROLE}, {N_OPROJ}", "s_cbranch_scc1 L_oproj")
    I(f"s_cmp_lt_u32 s{S_ROLE}, {ATTNB0}", "s_cbranch_scc1 L_attna")
    poll_ge(p, G_WS, BQCNT, 24, imm=True, sleep=32); poll_ge(p, G_WS, BKVCNT, 32, imm=True, sleep=32)
    attnb_setup(p)
    I(f"s_sub_u32 s{B_TASK}, s{S_ROLE}, {ATTNB0}", f"s_lshl_b32 s{B_TASK}, s{B_TASK}, 2", f"s_add_u32 s{B_TASK}, s{B_TASK}, s{G_WV}")
    p.fence(); p.reset_q(); p.L("L_bl")
    attnb_task(p)
    I("s_waitcnt vmcnt(0)", f"s_and_b32 s{G_T0}, s{B_TASK}, 31", f"s_lshl_b32 s{G_T0}, s{G_T0}, 2", f"s_add_u32 s{G_T0}, s{G_T0}, {BACNT}")
    signal_add(p, G_WS, G_T0)
    I(f"s_add_u32 s{B_TASK}, s{B_TASK}, 512")
    p.fence(); p.reset_q()
    I(f"s_cmp_lt_u32 s{B_TASK}, 1024", "s_cbranch_scc1 L_bl")
    I("s_barrier")
    ts(p, 2, ch.S_H)
    I(f"s_cmp_ge_u32 s{S_ROLE}, {ATTNB0 + N_BOUT}", "s_cbranch_scc1 L_attna")
    def bo_wait(p, segreg):
        I(f"s_lshr_b32 s{G_T0}, s{segreg}, 1", f"s_lshl_b32 s{G_T0}, s{G_T0}, 2", f"s_add_u32 s{G_T0}, s{G_T0}, {BACNT}", f"s_mov_b32 s45, s{G_T0}")
        poll_ge(p, G_WS, 45, 32, tmpv=(48, 49), sleep=32)
    I(f"s_sub_u32 s36, s{S_ROLE}, {ATTNB0}")
    relane(p)
    role_bo(p, 36, 46, ptr("B_wo"), ptr("out"), prewait=bo_wait, xsc=" sc1", osc=(" sc1" if opts.get("wt") else ""))
    p.fence(); p.reset_q()
    I("s_barrier")
    relane(p)
    p.L("L_attna")
    ts(p, 3, ch.S_H)
    relane(p)
    attna_setup(p)
    p.fence(); p.reset_q(); p.L("L_al")
    I("s_mov_b64 exec, 1", "v_mov_b32 v30, 1", "v_mov_b32 v31, 0", f"s_mov_b32 s{G_T0}, {ATICK}", f"buffer_atomic_add v30, v31, s[{G_WS}:{G_WS+3}], s{G_T0} offen sc0", "s_waitcnt vmcnt(0)", "s_mov_b64 exec, -1")
    I(f"v_readfirstlane_b32 s{A_TASK}, v30")
    I(f"s_cmp_ge_u32 s{A_TASK}, 2048", "s_cbranch_scc1 L_aend")
    I(f"s_lshr_b32 s36, s{A_TASK}, 5", "s_lshl_b32 s37, s36, 2")
    I(f"s_add_u32 s38, s37, {QCNT}"); poll_ge(p, G_WS, 38, 16, sleep=32)
    I(f"s_add_u32 s38, s37, {KVCNT}"); poll_ge(p, G_WS, 38, 32, sleep=32)
    def chwait(p):
        I(f"s_and_b32 s38, s{A_TASK}, 31", "s_lshl_b32 s38, s38, 8", f"s_add_u32 s38, s38, {CHFLG}", "s_add_u32 s39, s36, 1")
        poll_ge_far(p, G_WS, 38, 39, tmpv=(29, 30), near_sleep=opts.get("nsl", 6), far_sleep=opts.get("fsl", 60), fast_from=(63 if opts.get("ft") else None))
    attna_task(p, midwait=chwait)
    I("s_waitcnt vmcnt(0)", f"s_lshr_b32 s{G_T0}, s{A_TASK}, 5", f"s_lshl_b32 s{G_T0}, s{G_T0}, 2", f"s_add_u32 s{G_T0}, s{G_T0}, {ACNT}")
    signal_add(p, G_WS, G_T0)
    p.fence(); p.reset_q()
    I("s_branch L_al")
    p.L("L_aend")
    ts(p, 4, ch.S_H)
    I("s_branch L_end")
    p.L("L_oproj")
    srd(p, G_W, ptr("A_Wo"), 4096 * 1152); srd(p, G_O, ptr("out"), 2048 * 2304)
    I(f"s_mul_hi_u32 s{G_SEG}, s{S_ROLE}, {(1 << 32) // 12 + 1}", f"s_mul_i32 s{G_T0}, s{G_SEG}, 12", f"s_sub_u32 s{G_T0}, s{S_ROLE}, s{G_T0}", f"s_mul_i32 s{G_WCOL}, s{G_T0}, 96")
    oproj_setup(p); oproj_preload(p)
    ts(p, 2, ch.S_H)
    p.fence(); p.reset_q(); p.L("L_ol")
    I(f"s_lshr_b32 s38, s{G_SEG}, 1", "s_lshl_b32 s38, s38, 2", f"s_add_u32 s38, s38, {ACNT}")
    nw = p.newlabel("op_nw")
    I(f"s_cmp_lg_u32 s{G_WV}, 0", f"s_cbranch_scc1 {nw}")
    poll_ge(p, G_WS, 38, 32, tmpv=(30, 31), sleep=opts.get("osl", 8), fast=((G_SEG, 120) if opts.get("ft") else None))
    p.L(nw)
    I("s_barrier")
    oproj_seg(p)
    I(f"s_add_u32 s{G_SEG}, s{G_SEG}, {N_OPROJ // 12}")
    p.fence(); p.reset_q()
    I(f"s_cmp_lt_u32 s{G_SEG}, 128", "s_cbranch_scc1 L_ol")
    I("s_waitcnt vmcnt(0)")
    ts(p, 4, ch.S_H); dts(p, 15, "umax", 30, 31) if opts.get("dt") == 1 else None
    I("s_branch L_end")

def relane(p):
    p.I("v_lshrrev_b32 v33, 4, v0", "v_and_b32 v34, 15, v33", "v_lshrrev_b32 v35, 4, v33")

if __name__ == "__main__":
    opts = {}
    for a in sys.argv[2:]:
        if a.startswith("g1="): ch.DELAYG1[0] = int(a[3:])
        elif a.startswith("d3="): ch.DELAY3[0] = int(a[3:])
        elif a.startswith("d4="): ch.DELAY4[0] = int(a[3:])
        elif a.startswith("d0="): ch.DELAY0[0] = int(a[3:])
        elif a.startswith("d1="): ch.DELAY1[0] = int(a[3:])
        elif a.startswith("d2="): ch.DELAY2[0] = int(a[3:])
        elif "=" in a: k, v = a.split("="); opts[k] = int(v)
        else: opts[a] = 1
    open(sys.argv[1], "w").write(build(opts))
```

```python
import struct
from asmlib2 import *
from common import *
import common, sys as _sys
if 'hot' in _sys.argv: MEM_SLOT = 0

MEMIMG, SEXM, SEXX, OIMG, WVL = 0, 9216, 10240, 14336, 16384
PART_BYTES = 48 * 8192
SCALE_LOG2E = 0.08838834764831845 * 1.4426950408889634

S_WS, S_MEM, S_W = 4, 8, 12
S_DBG = 16
S_H, S_WV, S_STEP = 18, 19, 20
S_MEMR, S_MEMW, S_KX, S_VX, S_KM, S_VM = 21, 22, 23, 24, 25, 26
S_TO, S_T0, S_T1, S_T2 = 27, 28, 29, 30
S_C = 31
S_NLT8 = 32
S_M8 = 34
S_PS = 36
S_PL, S_ISW2 = 41, 42
S_W1024, S_W256 = 43, 44
S_HASTASK = 45
S_PTR = 46
S_EXMS = 58
S_D8, S_L8, S_MEMR8, S_TAG = 64, 65, 66, 67
S_ONES, S_W4 = 68, 70
S_MEMR2 = 57
S_B01, S_TO3, S_MEMEND, S_MEMZ, S_MEMWEND = 57, 61, 60, 39, 40
SLOW = []
VPLACE = [2, 4, 3, 2, 2, 2, 3]
V_DUM = 27
ST2_ISSUE = [1]
ST2_CHECK = [4]
S_C2 = 62
S_TCH, S_TMASK = 98, 100
S_RDY, S_CHF = 10, 11
S_PUBV = 13
S_FAST = 14
S_PFM, S_W2048 = 46, 48
PREF = [True]
ALIGN = [None]
PKM = [False]
OPAT = [0]
DEPTH = [10]
EXPL = [0]
IOIN = [False]
PKS = [False]
PFBR = [False]
ROT = [True]
STEPTS = [False]
S_PUB = 8
FUSED = [False]
TOUCH = [2]
S_TO2 = 71
S_TS = 50
PNST = 14
S_ST = 72

V_L16, V_IDX = 0, 1
V_SQA, V_SQB, V_SKA, V_SKB = 2, 4, 6, 8
V_KX, V_VX = 10, 18
V_WV, V_MP, V_PY, V_PS, V_OR = 26, 27, 28, 30, 31

def frag(f): return ar(8 * f, 8) if f < 32 else vr(80 + 8 * (f - 32), 8)
def fragb(f): return ("a", 8 * f) if f < 32 else ("v", 80 + 8 * (f - 32))
def frag_sub(f, off, n):
    k, b = fragb(f)
    return f"{k}[{b+off}:{b+off+n-1}]" if n > 1 else f"{k}{b+off}"
def F_QA(kb): return kb
def F_QB(kb): return 9 + kb
def F_KA(kb): return 18 + kb
F_KB0 = 27
VRES = [6, 7, 0, 1]
VSTR = [2, 3, 4, 5, 8]
def F_VS(tb, slot): return 28 + slot * 2 + tb
def F_WO(j, kb): return 36 + j * 2 + kb

PROF = [False]
RT = [False]
TAGALL = [False]
def stamp(p, k, on):
    r = S_ST + 2 * k if k < 13 else 14
    if PROF[0] and on: p.I(f"{'s_memrealtime' if RT[0] else 's_memtime'} s[{r}:{r+1}]")

def lane_consts(p):
    I = p.I
    I("v_lshrrev_b32 v32, 6, v0", "v_and_b32 v33, 63, v0", f"v_readfirstlane_b32 s{S_WV}, v32")
    I("v_and_b32 v34, 15, v33", "v_lshrrev_b32 v35, 4, v33")
    I("v_and_b32 v36, 7, v33")
    I("v_bfe_u32 v37, v33, 3, 1")
    I(f"v_lshlrev_b32 v{V_L16}, 4, v33")
    I("v_lshrrev_b32 v38, 2, v34", "v_lshlrev_b32 v38, 1, v38", "v_and_b32 v39, 1, v34", "v_or_b32 v38, v38, v39", "v_bfe_u32 v39, v34, 1, 1")
    I("v_mov_b32 v40, 0x44444444", "v_mov_b32 v41, 0xeeeeeeee", "v_cmp_eq_u32 vcc, 0, v39", f"v_cndmask_b32 v{V_IDX}, v41, v40, vcc")

def setup_chain(p, local, part=3):
    I = p.I
    sc_st = "" if local else " sc1"
    if part & 1: setup_regs(p)
    if part & 2: init_fills(p, sc_st)

def setup_regs(p):
    I = p.I
    I(f"s_lshl_b32 s{S_W1024}, s{S_WV}, 10", f"s_lshl_b32 s{S_W256}, s{S_WV}, 8")
    I(f"s_lshl_b32 s{S_T0}, s{S_WV}, 11", f"s_add_u32 s{S_T0}, s{S_T0}, {WVL}", f"v_add_u32 v{V_WV}, s{S_T0}, v{V_L16}")
    I(f"v_mul_u32_u24 v{V_MP}, 1152, v38", f"v_lshl_add_u32 v{V_MP}, v35, 5, v{V_MP}", f"v_lshl_add_u32 v{V_MP}, v39, 4, v{V_MP}",
      f"s_lshl_b32 s{S_T0}, s{S_WV}, 7", f"v_add_u32 v{V_MP}, s{S_T0}, v{V_MP}")
    I(f"v_lshlrev_b32 v{V_PS}, 13, v35", f"v_lshl_add_u32 v{V_PS}, v37, 12, v{V_PS}", f"v_lshl_add_u32 v{V_PS}, v36, 4, v{V_PS}")
    if ROT[0]:
        I(f"s_lshl_b32 s{S_T0}, s{S_WV}, 3", f"s_add_u32 s{S_T0}, s{S_T0}, s{S_H}", "v_lshl_add_u32 v40, v35, 1, v37", f"v_add_u32 v40, s{S_T0}, v40", "v_and_b32 v40, 31, v40", f"v_lshl_add_u32 v{V_PS}, v40, 7, v{V_PS}")
    I("v_lshl_add_u32 v40, v35, 1, v39", "v_xor_b32 v40, v40, v38", "v_lshlrev_b32 v40, 4, v40", "v_lshl_add_u32 v40, v38, 8, v40", f"v_add_u32 v{V_OR}, {OIMG}, v40")
    for src, ra, rb in ((36, V_SQA, V_SQB), (38, V_SKA, V_SKB)):
        I("v_lshlrev_b32 v40, 1, v35", f"v_sub_u32 v40, v{src}, v40", "v_mov_b32 v41, 0", "v_mov_b32 v42, 0x3f80", "v_mov_b32 v43, 0x3f800000")
        I("v_cmp_eq_u32 vcc, 0, v40", "v_cndmask_b32 v41, v41, v42, vcc", "v_cmp_eq_u32 vcc, 1, v40", f"v_cndmask_b32 v{ra}, v41, v43, vcc")
        I(f"v_mov_b32 v{ra+1}, 0", f"v_mov_b32 v{rb}, 0", f"v_mov_b32 v{rb+1}, v{ra}")
    I(f"s_mov_b32 s{S_NLT8}, 0x00ff00ff", f"s_mov_b32 s{S_NLT8+1}, 0x00ff00ff")
    I(f"s_mov_b32 s{S_ONES}, 0x3f803f80", f"s_mov_b32 s{S_ONES+1}, 0x3f803f80", f"s_lshl_b32 s{S_W4}, s{S_WV}, 2")
    cbits = struct.unpack("<I", struct.pack("<f", SCALE_LOG2E))[0]
    I(f"s_mov_b32 s{S_C}, 0x{cbits:08x}", f"s_mov_b32 s{S_C2}, 0x{cbits:08x}", f"s_mov_b32 s{S_C2+1}, 0x{cbits:08x}")
def init_fills(p, sc_st):
    I = p.I
    p.C("init fills: PART zero (12288 B per WG), MEM ring sentinel (slots 1..3), slot 0 = mem0 in fragment order")
    I(f"s_mul_i32 s{S_T0}, s{S_H}, 12288", f"s_add_u32 s{S_T1}, s{S_T0}, s{S_W1024}", f"s_add_u32 s{S_T1}, s{S_T1}, {PART_OFF}")
    I("v_mov_b64 v[64:65], 0", "v_mov_b64 v[66:67], 0", "v_mov_b64 v[68:69], -1", "v_mov_b64 v[70:71], -1")
    for rnd in range(3):
        I(f"buffer_store_dwordx4 v[64:67], v{V_L16}, s[{S_WS}:{S_WS+3}], s{S_T1} offen{sc_st}")
        if rnd < 2: I(f"s_add_u32 s{S_T1}, s{S_T1}, 4096")
    lab = p.newlabel("fill_skip")
    I(f"s_lshl_b32 s{S_T0}, s{S_H}, 2", f"s_add_u32 s{S_T0}, s{S_T0}, s{S_WV}", f"s_sub_u32 s{S_T0}, s{S_T0}, 4", f"s_cmp_ge_u32 s{S_T0}, 27", f"s_cbranch_scc1 {lab}")
    I(f"s_lshl_b32 s{S_T0}, s{S_T0}, 10", f"s_add_u32 s{S_T2}, s{S_T0}, {MEM_OFF + MEM_SLOT}", f"buffer_store_dwordx4 v[68:71], v{V_L16}, s[{S_WS}:{S_WS+3}], s{S_T2} offen{sc_st}")
    p.L(lab)
    lab = p.newlabel("no_m0")
    I(f"s_cmp_lg_u32 s{S_H}, 0", f"s_cbranch_scc1 {lab}")
    I(f"buffer_load_dwordx4 v[64:67], v{V_MP}, s[{S_MEM}:{S_MEM+3}], 0 offen", f"buffer_load_dwordx4 v[68:71], v{V_MP}, s[{S_MEM}:{S_MEM+3}], 0 offen offset:512")
    I(f"s_lshl_b32 s{S_T0}, s{S_WV}, 7", f"v_subrev_u32 v72, s{S_T0}, v{V_MP}", f"buffer_load_dwordx4 v[76:79], v72, s[{S_MEM}:{S_MEM+3}], 0 offen offset:1024")
    I(f"s_add_u32 s{S_T0}, s{S_W1024}, {MEM_OFF}", f"s_mov_b32 s{S_T1}, {MEM_OFF + 8192}", "s_waitcnt vmcnt(0)")
    I(f"buffer_store_dwordx4 v[64:67], v{V_L16}, s[{S_WS}:{S_WS+3}], s{S_T0} offen{sc_st}")
    I(f"s_add_u32 s{S_T0}, s{S_T0}, 4096", f"buffer_store_dwordx4 v[68:71], v{V_L16}, s[{S_WS}:{S_WS+3}], s{S_T0} offen{sc_st}")
    I(f"buffer_store_dwordx4 v[76:79], v{V_L16}, s[{S_WS}:{S_WS+3}], s{S_T1} offen{sc_st}")
    p.L(lab)
    I("s_waitcnt vmcnt(0)", "s_barrier")
    lab = p.newlabel("init_arr")
    I(f"s_cmp_lg_u32 s{S_WV}, 0", f"s_cbranch_scc1 {lab}")
    I("s_mov_b64 exec, 1", "v_mov_b32 v64, 1", "v_mov_b32 v65, 40", f"global_atomic_add v65, v64, s[{S_DBG}:{S_DBG+1}]", "s_mov_b64 exec, -1")
    p.L(lab)

def preload(p, mid=None, late=None):
    I = p.I
    p.C("weight preload")
    I("v_lshrrev_b32 v40, 4, v33", "v_lshlrev_b32 v41, 13, v40")
    I("v_and_b32 v42, 1, v40", "v_lshlrev_b32 v42, 1, v42", "v_xor_b32 v42, v42, v34", "v_lshlrev_b32 v42, 4, v42")
    for jj in range(4):
        I(f"v_xor_b32 v43, {64*jj}, v42", "v_add_u32 v43, v43, v41", f"v_add_u32 v{52+jj}, {jj*32768}, v43")
    I("v_lshrrev_b32 v40, 3, v33", "v_and_b32 v41, 7, v33", "v_lshrrev_b32 v42, 5, v33")
    for jj in range(4):
        I(f"v_add_u32 v43, {8*jj}, v40", "v_mul_u32_u24 v43, 1152, v43")
        I(f"v_add_u32 v44, {2*(jj&1)}, v42", "v_lshlrev_b32 v44, 1, v44", "v_xor_b32 v44, v44, v41", f"v_lshl_add_u32 v{56+jj}, v44, 4, v43")
    I("v_lshrrev_b32 v40, 2, v34", "v_and_b32 v41, 3, v34")
    I("v_lshrrev_b32 v42, 1, v35", "v_lshlrev_b32 v42, 4, v42", "v_and_b32 v43, 1, v35", "v_lshl_add_u32 v42, v43, 2, v42")
    I("v_and_b32 v44, 1, v40", "v_add_u32 v42, v42, v44", "v_lshrrev_b32 v45, 1, v40", "v_lshl_add_u32 v42, v45, 3, v42")
    I("v_lshl_add_u32 v46, v45, 1, v43")
    I("v_lshl_or_b32 v47, v46, 1, v44")
    I(f"s_lshl_b32 s{S_T0}, s{S_WV}, 1", f"v_xor_b32 v47, s{S_T0}, v47", "v_lshlrev_b32 v47, 5, v47", "v_lshl_add_u32 v47, v41, 3, v47", "v_lshl_add_u32 v60, v42, 8, v47", "v_xor_b32 v61, 32, v60")
    I(f"v_xor_b32 v46, s{S_WV}, v46", "v_lshlrev_b32 v46, 5, v46", "v_lshl_add_u32 v46, v41, 3, v46", "v_lshl_add_u32 v62, v42, 7, v46")
    chunks = [("q", kb) for kb in range(9)] + [("o", cc) for cc in range(9)] + [("k", kb) for kb in range(9)] + [("v", kb) for kb in VRES + VSTR]
    slot = lambda c: (c + 4) % 10
    ptr = {"q": S_PTR + 2, "k": S_PTR + 4, "v": S_PTR + 6, "o": S_PTR + 8}
    cur = [None]
    nissued = [0]
    def issue(c):
        kind, x = chunks[c]
        if cur[0] != kind:
            cur[0] = kind
            I(f"s_mov_b32 s{S_W}, s{ptr[kind]}", f"s_and_b32 s{S_W+1}, s{ptr[kind]+1}, 0xffff", f"s_mov_b32 s{S_W+2}, {576*8192 if kind != 'o' else 4096*1152}", f"s_mov_b32 s{S_W+3}, 0x20000")
        if kind != "o":
            I(f"s_lshl_b32 s{S_T0}, s{S_WV}, 17", f"s_lshl_b32 s{S_T1}, s{S_H}, 8", f"s_add_u32 s{S_T0}, s{S_T0}, s{S_T1}", f"s_add_u32 s{S_T0}, s{S_T0}, {x*524288}")
            vb = 52
        else:
            I(f"s_lshl_b32 s{S_T0}, s{S_H}, 7", f"s_lshl_b32 s{S_T1}, s{S_WV}, 5", f"s_add_u32 s{S_T0}, s{S_T0}, s{S_T1}", f"s_mul_i32 s{S_T0}, s{S_T0}, 1152", f"s_add_u32 s{S_T0}, s{S_T0}, {x*128}")
            vb = 56
        I(f"s_lshl_b32 s{S_T1}, s{S_WV}, 12", f"s_add_u32 s{S_T1}, s{S_T1}, {slot(c)*16384}")
        for jj in range(4):
            I(f"s_add_u32 m0, s{S_T1}, {jj*1024}")
            I(f"buffer_load_dwordx4 v{vb+jj}, s[{S_W}:{S_W+3}], s{S_T0} offen lds")
        nissued[0] = c + 1
    def tr(dst_of_t, areg, rowb, row0):
        for t in range(4):
            I(f"ds_read_b64_tr_b16 {dst_of_t(t)}, v{areg} offset:{(row0+32*(t//2)+2*(t%2))*rowb}")
    extra = [0]
    for c in range(DEPTH[0]): issue(c)
    if mid: mid(p)
    for c in range(36):
        kind, x = chunks[c]
        if late and c == 27: extra[0] = late(p)
        I(f"s_waitcnt vmcnt({4*(nissued[0]-1-c) + extra[0]})", "s_barrier")
        sb = slot(c) * 16384
        I(f"v_add_u32 v40, {sb}, v60", f"v_add_u32 v41, {sb}, v61", f"v_add_u32 v42, {sb}, v62")
        if kind == "q":
            tr(lambda t: frag_sub(F_QA(x), 2*t, 2), 40, 256, 0); tr(lambda t: frag_sub(F_QB(x), 2*t, 2), 41, 256, 0)
        elif kind == "k":
            fb = F_KB0 if x == 0 else F_VS((x-1) % 2, (x-1) // 2)
            tr(lambda t: frag_sub(F_KA(x), 2*t, 2), 40, 256, 0); tr(lambda t: frag_sub(fb, 2*t, 2), 41, 256, 0)
        elif kind == "o":
            for kb in range(2): tr(lambda t: frag_sub(F_WO(x, kb), 2*t, 2), 42, 128, 64*kb)
        else:
            for tb in range(2): tr(lambda t: f"v[{64+8*tb+2*t}:{65+8*tb+2*t}]", 40 + tb, 256, 0)
        I("s_waitcnt lgkmcnt(0)", "s_barrier")
        if kind == "v":
            pos = c - 27
            I(f"s_lshl_b32 s{S_T0}, s{S_WV}, 11", f"s_add_u32 s{S_T0}, s{S_T0}, {sb}", f"v_add_u32 v40, s{S_T0}, v{V_L16}")
            for sub in range(2):
                for half in range(2):
                    src = frag_sub(F_VS(sub, pos), 4*half, 4) if pos < 4 else f"v[{64+8*sub+4*half}:{67+8*sub+4*half}]"
                    I(f"ds_write_b128 v40, {src} offset:{sub*8192+half*1024}")
            I("s_waitcnt lgkmcnt(0)")
            if pos < 4:
                for tb in range(2):
                    k, b = fragb(F_VS(tb, pos))
                    for r in range(8):
                        I(f"v_accvgpr_write_b32 a{b+r}, v{64+8*tb+r}" if k == "a" else f"v_mov_b32 v{b+r}, v{64+8*tb+r}")
        if c + DEPTH[0] < 36: issue(c + DEPTH[0])
    I("s_barrier")

def early_loads(p):
    I = p.I
    WS = f"s[{S_WS}:{S_WS+3}]"
    I(f"v_lshrrev_b32 v45, 4, v{V_L16}", f"v_mul_u32_u24 v46, {DBG_INIT - 40}, v45", "v_add_u32 v46, 40, v46", "s_mov_b64 exec, 3")
    I(f"global_load_dword v44, v46, s[{S_DBG}:{S_DBG+1}] sc1", "s_mov_b64 exec, -1")
    I(f"v_lshlrev_b32 v47, 2, v45", f"s_mov_b32 s{S_T0}, {KVCNT}", f"buffer_load_dword v45, v47, {WS}, s{S_T0} offen sc1")
    return 2

EARLY = [False]
def chain_state(p):
    I = p.I
    lab = p.newlabel("initw"); lab2 = p.newlabel("initd"); fast = p.newlabel("fast_start")
    if EARLY[0]:
        I("s_waitcnt vmcnt(0)", f"v_readlane_b32 s{S_T0}, v44, 0", f"v_readlane_b32 s{S_T1}, v44, 1", "v_cmp_ne_u32 vcc, 32, v45", f"s_ff1_i32_b64 s{S_RDY}, vcc")
        I(f"s_cmp_eq_u32 s{S_RDY}, -1", f"s_cselect_b32 s{S_RDY}, 64, s{S_RDY}", f"s_mov_b32 s{S_FAST}, 1")
        I(f"s_cmp_lt_u32 s{S_T0}, 32", f"s_cselect_b32 s{S_FAST}, 0, s{S_FAST}", f"s_cmp_eq_u32 s{S_T1}, 0", f"s_cselect_b32 s{S_FAST}, 0, s{S_FAST}", f"s_cmp_lt_u32 s{S_RDY}, 3", f"s_cselect_b32 s{S_FAST}, 0, s{S_FAST}")
        I(f"s_cmp_lg_u32 s{S_FAST}, 0", f"s_cbranch_scc1 {lab2}")
    I(f"s_mov_b32 s{S_TO}, 0", f"v_lshrrev_b32 v45, 4, v{V_L16}", f"v_mul_u32_u24 v45, {DBG_INIT - 40}, v45", "v_add_u32 v45, 40, v45", "s_mov_b64 exec, 3")
    p.L(lab)
    I(f"global_load_dword v44, v45, s[{S_DBG}:{S_DBG+1}] sc1", "s_waitcnt vmcnt(0)", f"v_readlane_b32 s{S_T0}, v44, 0", f"v_readlane_b32 s{S_T1}, v44, 1", f"s_add_u32 s{S_TO}, s{S_TO}, 1")
    if FUSED[0]: I(f"s_cmp_eq_u32 s{S_T1}, 0", f"s_cselect_b32 s{S_T0}, 0, s{S_T0}")
    I(f"s_cmp_ge_u32 s{S_T0}, 32", f"s_cbranch_scc1 {lab2}", f"s_cmp_lt_u32 s{S_TO}, 0x40000", f"s_cbranch_scc1 {lab}")
    p.L(lab2)
    I("s_mov_b64 exec, -1")
    I(f"s_mov_b32 s{S_STEP}, 0", f"s_mov_b32 s{S_TO}, 0", f"s_mov_b32 s{S_TO2}, 0", f"s_mov_b32 s{S_TO3}, 0")
    I(f"s_lshl_b32 s{S_T0}, s{S_WV}, 1", f"s_cmp_eq_u32 s{S_WV}, 2", f"s_cselect_b32 s{S_T0}, 6, s{S_T0}", f"s_cmp_eq_u32 s{S_WV}, 3", f"s_cselect_b32 s{S_T0}, 4, s{S_T0}")
    I(f"s_lshl_b32 s{S_B01}, s{S_T0}, 10", f"s_add_u32 s{S_MEMR}, s{S_B01}, {MEM_OFF}", f"s_add_u32 s{S_MEMEND}, s{S_MEMR}, {4*MEM_SLOT}")
    I(f"s_lshl_b32 s{S_T0}, s{S_WV}, 5", f"s_add_u32 s{S_T0}, s{S_T0}, s{S_H}")
    I(f"s_cmp_lt_u32 s{S_WV}, 3", f"s_cselect_b32 s{S_HASTASK}, 1, 0")
    I(f"s_lshl_b32 s{S_PL}, s{S_T0}, 12", f"s_add_u32 s{S_PL}, s{S_PL}, {PART_OFF}")
    I(f"s_mul_i32 s{S_MEMW}, s{S_WV}, 3072")
    I(f"s_lshr_b32 s{S_T1}, s{S_H}, 3", f"s_lshl_b32 s{S_T1}, s{S_T1}, 8", f"s_add_u32 s{S_MEMW}, s{S_MEMW}, s{S_T1}")
    I(f"s_bfe_u32 s{S_T1}, s{S_H}, 0x20001", f"s_lshl_b32 s{S_T1}, s{S_T1}, 6", f"s_add_u32 s{S_MEMW}, s{S_MEMW}, s{S_T1}")
    I(f"s_and_b32 s{S_T1}, s{S_H}, 1", f"s_lshl_b32 s{S_T1}, s{S_T1}, 5", f"s_add_u32 s{S_MEMW}, s{S_MEMW}, s{S_T1}", f"s_add_u32 s{S_MEMW}, s{S_MEMW}, {MEM_OFF + MEM_SLOT}")
    I(f"s_mov_b32 s{S_EXMS+1}, 0x00000055", f"s_mov_b32 s{S_EXMS}, 0x00550055")
    I(f"s_cmp_eq_u32 s{S_WV}, 2", f"s_cselect_b32 s{S_ISW2}, 1, 0")
    I(f"s_mul_i32 s{S_L8}, s{S_WV}, 768", f"s_add_u32 s{S_L8}, s{S_L8}, {MEMIMG + 6144}", f"s_sub_u32 s{S_D8}, s{S_L8}, s{S_B01}")
    I(f"s_mov_b32 s{S_M8}, -1", f"s_mov_b32 s{S_M8+1}, 0xffff")
    I(f"s_cmp_eq_u32 s{S_WV}, 3", f"s_cselect_b32 s{S_PFM}, -1, 0", f"s_mov_b32 s{S_PFM+1}, s{S_PFM}", f"s_lshl_b32 s{S_W2048}, s{S_WV}, 11")
    I(f"s_add_u32 s{S_MEMZ}, s{S_MEMW}, {2*MEM_SLOT}", f"s_add_u32 s{S_MEMWEND}, s{S_MEMW}, {3*MEM_SLOT}")
    I(f"s_lshl_b32 s{S_T0}, s{S_H}, 13", f"s_lshl_b32 s{S_T1}, s{S_WV}, 11", f"s_add_u32 s{S_T0}, s{S_T0}, s{S_T1}", f"s_add_u32 s{S_KX}, s{S_T0}, {KX_OFF}", f"s_add_u32 s{S_VX}, s{S_T0}, {VX_OFF}")
    I(f"s_lshr_b32 s{S_T1}, s{S_T0}, 1", f"s_add_u32 s{S_KM}, s{S_T1}, {KM_OFF}", f"s_lshr_b32 s{S_T1}, s{S_T0}, 2", f"s_add_u32 s{S_VM}, s{S_T1}, {VM_OFF - 32*2048}")
    I(f"s_lshl_b32 s{S_T0}, s{S_WV}, 15", f"s_lshl_b32 s{S_T1}, s{S_H}, 7" if not ROT[0] else f"s_mov_b32 s{S_T1}, 0", f"s_add_u32 s{S_T0}, s{S_T0}, s{S_T1}", f"s_add_u32 s{S_PS}, s{S_T0}, {PART_OFF}")
    for e in range(1, 3): I(f"s_add_u32 s{S_PS+e}, s{S_PS}, {e*131072}")
    I(f"s_add_u32 s{S_MEMR8}, s{S_MEMR}, s{S_D8}")
    if FUSED[0]:
        I(f"s_lshl_b32 s{S_CHF}, s{S_H}, 8", f"s_add_u32 s{S_CHF}, s{S_CHF}, {CHFLG}")
        I(f"s_cmp_eq_u32 s{S_WV}, 0", f"s_cselect_b32 s{S_PUB}, 1, 0", f"s_mov_b32 s{S_PUB+1}, 0")
    skip = p.newlabel("have_rdy")
    if EARLY[0]: I(f"s_cmp_lg_u32 s{S_FAST}, 0", f"s_cbranch_scc1 {skip}")
    if FUSED[0]:
        I(f"s_mov_b32 s{S_RDY}, 0")
        need_segment(p, 2)
    p.L(skip)
    if FUSED[0]:
        I(f"v_lshlrev_b32 v52, 3, v{V_L16}", f"s_lshl_b32 s{S_T0}, s{S_H}, 13")
        I(f"s_and_b32 s{S_T1}, s{S_WV}, 1", f"s_lshr_b32 s{S_T2}, s{S_WV}, 1", f"s_add_u32 s{S_T1}, s{S_T1}, s{S_T2}", f"s_lshl_b32 s{S_T1}, s{S_T1}, 18", f"s_add_u32 s{S_T0}, s{S_T0}, s{S_T1}")
        I(f"s_cmp_ge_u32 s{S_WV}, 2", f"s_cselect_b32 s{S_T2}, 0, {VX_OFF}", f"s_add_u32 s{S_T0}, s{S_T0}, s{S_T2}")
        I(f"buffer_load_dword v{V_DUM}, v52, s[{S_WS}:{S_WS+3}], s{S_T0} offen ; nodep")
    for kt in range(2):
        I(f"buffer_load_dwordx4 v[{V_KX+4*kt}:{V_KX+4*kt+3}], v{V_L16}, s[{S_WS}:{S_WS+3}], s{S_KX} offen offset:{kt*1024} sc1")
    I(f"s_add_u32 s{S_KX}, s{S_KX}, {32*8192}")

SM = lambda d, a, b: f"v_smfmac_f32_16x16x64_bf16 v[{d}:{d+3}], v[{a}:{a+3}], {b}, v{V_IDX}"

class Stream:
    def __init__(self, p): self.p = p; self.q = []
    def add(self, *instrs): self.q.append(list(instrs))
    def emit(self, n=1):
        for _ in range(n):
            if not self.q: return
            for x in self.q.pop(0): self.p.I(x)
    def drain(self): self.emit(len(self.q))


VPERIOD = [24]
LEAD = [0]
HOLD = [0]
BAR4 = [True]
def delay(p, clks):
    n = clks // 4
    while n > 0:
        k = min(n, 16); p.raw(f"    s_nop {k-1}"); n -= k
DELAYG1 = [0]
DELAY4 = [0]
DELAY3 = [0]
DELAY0 = [0]
DELAY1 = [0]
DELAY2 = [0]
def need_segment(p, add, refresh=None):
    I = p.I
    lab = p.newlabel("rdy"); ok = p.newlabel("rdy_ok")
    I(f"s_add_u32 s{S_T1}, s{S_STEP}, {refresh if refresh is not None else add}", f"s_min_u32 s{S_T1}, s{S_T1}, 63", f"s_cmp_lt_u32 s{S_T1}, s{S_RDY}", f"s_cbranch_scc1 {ok}")
    I(f"s_add_u32 s{S_T1}, s{S_STEP}, {add}", f"s_min_u32 s{S_T1}, s{S_T1}, 63")
    I(f"s_mov_b32 s{S_T2}, 0", f"v_lshrrev_b32 v52, 2, v{V_L16}", f"s_mov_b32 s{S_T0}, {KVCNT}")
    p.L(lab)
    I(f"buffer_load_dword v53, v52, s[{S_WS}:{S_WS+3}], s{S_T0} offen sc1", "s_waitcnt vmcnt(0)")
    I("v_cmp_ne_u32 vcc, 32, v53", f"s_ff1_i32_b64 s{S_RDY}, vcc", f"s_cmp_eq_u32 s{S_RDY}, -1", f"s_cselect_b32 s{S_RDY}, 64, s{S_RDY}")
    I(f"s_cmp_lt_u32 s{S_T1}, s{S_RDY}", f"s_cbranch_scc1 {ok}", "s_sleep 8", f"s_add_u32 s{S_T2}, s{S_T2}, 1", f"s_cmp_lt_u32 s{S_T2}, 0x80000", f"s_cbranch_scc1 {lab}")
    I(f"s_mov_b32 s{S_RDY}, 64")
    p.L(ok)

def step(p, local, first=True, last=False):
    I = p.I
    sc_st = "" if local else " sc1"
    WS = f"s[{S_WS}:{S_WS+3}]"
    QA, QB, KA, KB = 32, 36, 40, 44
    A0, A1, A2 = 56, 60, 48
    VA, VB = 48, 52
    W1, W2 = 64, 72
    wv_state = {"b": 0}
    def wread(u, buf):
        out = []
        blk = u // 8
        while wv_state["b"] < blk:
            out.append(f"v_add_u32 v{V_WV}, 0x10000, v{V_WV}"); wv_state["b"] += 1
        off = (u % 8) * 8192
        out.append(f"ds_read_b128 v[{buf}:{buf+3}], v{V_WV} offset:{off}")
        out.append(f"ds_read_b128 v[{buf+4}:{buf+7}], v{V_WV} offset:{off+1024}")
        return out
    aread = lambda kb, a: f"ds_read_b128 v[{a}:{a+3}], v{V_L16} offset:{MEMIMG+kb*1024}"
    ad = lambda d, a_, b_: f"v_add_f32 v{d}, v{a_}, v{b_}"
    cv = lambda d, a_, b_: f"v_cvt_pk_bf16_f32 v{d}, v{a_}, v{b_}"
    p.C("==== step : acquire mem blocks 0..5 (waves 0,1,3)")
    stamp(p, 0, first)
    if STEPTS[0]:
        lab = p.newlabel("sts")
        I(f"s_cmp_lg_u32 s{S_WV}, 3", f"s_cbranch_scc1 {lab}")
        I("s_memrealtime s[2:3]", "s_waitcnt lgkmcnt(0)", f"s_lshl_b32 s3, s{S_H}, 9", f"s_lshl_b32 s{S_T0}, s{S_STEP}, 2", f"s_add_u32 s3, s3, s{S_T0}", f"s_add_u32 s3, s3, {0x9200000}")
        I("s_mov_b64 exec, 1", "v_mov_b32 v52, s2", f"buffer_store_dword v52, v{V_SQA+1}, {WS}, s3 offen", "s_mov_b64 exec, -1")
        p.L(lab)
    if FUSED[0]:
        nchk = p.newlabel("nochk")
        I(f"s_cmp_lg_u32 s{S_WV}, 3", f"s_cbranch_scc1 {nchk}")
        need_segment(p, 1, refresh=2)
        p.L(nchk)
    I(*wread(0, W1)); I(*wread(1, W2))
    for r in range(0, 16, 2): I(f"v_mov_b64 v[{QA+r}:{QA+r+1}], 0")
    loop = p.newlabel("mem_poll"); done = p.newlabel("mem_done"); loop2 = p.newlabel("mem_poll2"); w2 = p.newlabel("acq_w2")
    I(f"v_add_u32 v55, s{S_B01}, v{V_L16}")
    I(f"s_cmp_eq_u32 s{S_WV}, 2", f"s_cbranch_scc1 {w2}")
    if DELAY3[0]:
        nd = p.newlabel("nd3")
        I(f"s_cmp_lg_u32 s{S_WV}, 3", f"s_cbranch_scc1 {nd}")
        delay(p, DELAY3[0])
        p.L(nd)
    delay(p, DELAY2[0])
    a, b, c = 56, 60, 48
    p.L(loop)
    I(f"buffer_load_dwordx4 v[{a}:{a+3}], v{V_L16}, {WS}, s{S_MEMR} offen sc1")
    I(f"buffer_load_dwordx4 v[{b}:{b+3}], v{V_L16}, {WS}, s{S_MEMR} offen offset:1024 sc1")
    I(f"s_add_u32 s{S_TO}, s{S_TO}, 1")
    I("s_waitcnt vmcnt(1)")
    I(f"ds_write_b128 v55, v[{a}:{a+3}] offset:{MEMIMG}")
    I(f"v_max3_u32 v52, v{a}, v{a+1}, v{a+2}")
    I("s_waitcnt vmcnt(0)")
    I(f"ds_write_b128 v55, v[{b}:{b+3}] offset:{MEMIMG+1024}")
    I(f"v_max3_u32 v52, v52, v{a+3}, v{b}", f"v_max3_u32 v52, v52, v{b+1}, v{b+2}", f"v_max_u32 v52, v52, v{b+3}")
    I("v_cmp_eq_u32 vcc, -1, v52", f"s_cbranch_vccz {done}", f"s_cmp_lt_u32 s{S_TO}, 0x200000", f"s_cbranch_scc1 {loop}")
    I(f"s_branch {done}")
    p.L(w2)
    delay(p, DELAY4[0])
    p.L(loop2)
    I(f"buffer_load_dwordx4 v[{a}:{a+3}], v{V_L16}, {WS}, s{S_MEMR} offen sc1")
    I(f"buffer_load_dwordx4 v[{b}:{b+3}], v{V_L16}, {WS}, s{S_MEMR} offen offset:1024 sc1")
    I(f"buffer_load_dwordx4 v[{c}:{c+3}], v{V_L16}, {WS}, s{S_MEMR} offen offset:2048 sc1")
    I(f"s_add_u32 s{S_TO3}, s{S_TO3}, 1")
    I("s_waitcnt vmcnt(2)")
    I(f"ds_write_b128 v55, v[{a}:{a+3}] offset:{MEMIMG}")
    I(f"v_max3_u32 v52, v{a}, v{a+1}, v{a+2}")
    I("s_waitcnt vmcnt(1)")
    I(f"ds_write_b128 v55, v[{b}:{b+3}] offset:{MEMIMG+1024}")
    I(f"v_max3_u32 v52, v52, v{a+3}, v{b}", f"v_max3_u32 v52, v52, v{b+1}, v{b+2}")
    I("s_waitcnt vmcnt(0)")
    I(f"ds_write_b128 v55, v[{c}:{c+3}] offset:{MEMIMG+2048}")
    I(f"v_max3_u32 v52, v52, v{b+3}, v{c}", f"v_max3_u32 v52, v52, v{c+1}, v{c+2}", f"v_max_u32 v52, v52, v{c+3}")
    I("v_cmp_eq_u32 vcc, -1, v52", f"s_cbranch_vccz {done}", f"s_cmp_lt_u32 s{S_TO3}, 0x200000", f"s_cbranch_scc1 {loop2}")
    p.L(done)
    stamp(p, 1, first)
    I("s_waitcnt lgkmcnt(0)")
    I("s_barrier")
    p.reset_q()
    stamp(p, 2, first)
    p.C("QK")
    W = Weaver(p)
    Ab = [A0, A1, A2]
    wb = [W1, W2]
    W.raw(aread(0, Ab[0])); W.raw(aread(1, Ab[1]))
    W.raw(f"s_add_u32 s{S_TAG}, s{S_STEP}, 1")
    if FUSED[0]: W.raw(f"s_max_u32 s{S_PUBV}, s{S_STEP}, 1"); W.raw(f"s_sub_u32 s{S_PUBV}, s{S_PUBV}, 1")
    def group(kb, extra):
        a = Ab[kb % 3]
        kbsrc = frag(F_KB0) if kb == 0 else f"v[{wb[(kb-1)%2]}:{wb[(kb-1)%2]+7}]"
        X = []
        if kb + 2 < 9: X.append([aread(kb + 2, Ab[(kb + 2) % 3])])
        if kb >= 2:
            w = wread(kb, wb[(kb - 2) % 2])
            if len(w) == 3: X.append([w[0], w[1]]); X.append([w[2]])
            else: X.append([w[0]]); X.append([w[1]])
        ms = [SM(QA, a, frag(F_QA(kb))), SM(QB, a, frag(F_QB(kb))), SM(KA, a, frag(F_KA(kb))), SM(KB, a, kbsrc)]
        for i, m in enumerate(ms):
            if not (last and i < 2): W.raw(m)
            if X:
                for y in X.pop(0): W.raw(y)
            for y in extra.get(i, []): W.raw(y)
        assert not X, X
    vxl = [f"buffer_load_dwordx4 v[{V_VX+4*tb}:{V_VX+4*tb+3}], v{V_L16}, {WS}, s{S_VX} offen offset:{tb*1024} sc1" for tb in range(2)]
    pf = []
    if PREF[0]:
        pf = [[f"s_sub_u32 s{S_T0}, s{S_VX}, s{S_W2048}", f"s_add_u32 s{S_T0}, s{S_T0}, {32*8192}", f"v_lshlrev_b32 v{V_MP}, 3, v{V_L16}"],
              [f"s_sub_u32 s{S_T1}, s{S_KX}, s{S_W2048}", f"s_add_u32 s{S_T1}, s{S_T1}, {32*8192}"] + ([f"s_add_u32 s{S_T2}, s{S_STEP}, 2", f"s_cmp_lt_u32 s{S_T2}, s{S_RDY}", f"s_cselect_b32 s{S_T1}, s{S_T1}, s{S_T0}"] if FUSED[0] else []),
              [f"s_mov_b64 exec, s[{S_PFM}:{S_PFM+1}]", f"buffer_load_dword v{V_DUM}, v{V_MP}, {WS}, s{S_T0} offen ; nodep"],
              [f"buffer_load_dword v{V_DUM}, v{V_MP}, {WS}, s{S_T1} offen ; nodep", "s_mov_b64 exec, -1"]]
    EXPORT = [f"v_lshrrev_b32 v52, 1, v{V_L16}", f"buffer_store_dwordx2 v[{V_PY}:{V_PY+1}], v52, {WS}, s{S_VM} offen sc1"]
    FLAG = [f"v_mov_b32 v53, s{S_PUBV}", f"s_mov_b64 exec, s[{S_PUB}:{S_PUB+1}]", f"buffer_store_dword v53, v{V_SQA+1}, {WS}, s{S_CHF} offen sc1", "s_mov_b64 exec, -1"] if FUSED[0] else []
    mr = [f"s_add_u32 s{S_MEMR}, s{S_MEMR}, {MEM_SLOT}", f"s_cmp_ge_u32 s{S_MEMR}, s{S_MEMEND}", f"s_cselect_b32 s{S_T0}, {4*MEM_SLOT}, 0", f"s_sub_u32 s{S_MEMR}, s{S_MEMR}, s{S_T0}"]
    group(0, {1: [vxl[0]], 2: mr[0:2], 3: [vxl[1]]})
    group(1, {1: mr[2:4], 2: [EXPORT[0]], 3: [EXPORT[1]]})
    group(2, {3: FLAG[:1]})
    group(3, {3: FLAG[1:]})
    if PREF[0]:
        group(4, {3: pf[0]}); group(5, {3: pf[1]}); group(6, {3: pf[2] + pf[3]})
    else:
        group(4, {}); group(5, {}); group(6, {})
    group(7, {}); group(8, {})
    stamp(p, 3, first)
    p.C("post QK, V phase as filler")
    items = []
    w9 = wread(9, wb[1])
    vorder = VRES + VSTR
    vA = [A0, A1]
    ubuf = {8: wb[0], 9: wb[1]}
    for pos, kb in enumerate(vorder):
        a = vA[pos % 2]
        for tb in range(2):
            it = []
            if pos < 4:
                it.append(SM(VA + 4 * tb, a, frag(F_VS(tb, pos))))
                if pos == 0: it.append(w9[tb])
            else:
                u = 8 + (pos - 4) * 2 + tb
                b = ubuf[u]
                it.append(SM(VA + 4 * tb, a, f"v[{b}:{b+7}]"))
                if u + 2 < 18:
                    it += wread(u + 2, b); ubuf[u + 2] = b
            if tb == 1 and pos + 2 < 9: it.append(aread(vorder[pos + 2], a))
            items.append(it)
    def VI(n):
        return ("call", lambda n=n: [W.raw(y) for _ in range(n) if items for y in items.pop(0)])
    crit = []
    C = crit.append
    zero = [f"v_mov_b64 v[{VA}:{VA+1}], 0", f"v_mov_b64 v[{VA+2}:{VA+3}], 0", f"v_mov_b64 v[{VB}:{VB+1}], 0", f"v_mov_b64 v[{VB+2}:{VB+3}], 0"]
    if not last:
        C(ad(32, 32, 34)); C(ad(33, 33, 35)); C(ad(36, 36, 38)); C(ad(37, 37, 39)); C(cv(34, 32, 33)); C(cv(35, 36, 37))
    C(ad(40, 40, 42)); C(ad(41, 41, 43)); C(zero[2]); C(zero[3]); C(ad(44, 44, 46)); C(ad(45, 45, 47)); C(cv(42, 40, 41)); C(cv(43, 44, 45))
    if not last:
        C(f"v_mfma_f32_16x16x16_bf16 v[36:39], v[34:35], v[{V_SQA}:{V_SQA+1}], 0")
        C(zero[0]); C(zero[1])
        C(f"v_mfma_f32_16x16x16_bf16 v[32:35], v[34:35], v[{V_SQB}:{V_SQB+1}], 0")
    else:
        C(zero[0]); C(zero[1])
    C(f"v_mfma_f32_16x16x16_bf16 v[44:47], v[42:43], v[{V_SKA}:{V_SKA+1}], 0")
    C(f"v_mfma_f32_16x16x16_bf16 v[40:43], v[42:43], v[{V_SKB}:{V_SKB+1}], 0")
    KMST = f"buffer_store_dwordx4 v[44:47], v{V_L16}, {WS}, s{S_KM} offen sc1"
    OA_, OB_, LL = 32, 52, 56
    VMST = [f"v_lshrrev_b32 v60, 1, v{V_L16}", f"buffer_store_dwordx2 v[50:51], v60, {WS}, s{S_VM} offen sc1"]
    if last:
        C(cv(44, 44, 45)); C(cv(45, 46, 47)); C(cv(46, 40, 41)); C(cv(47, 42, 43)); C(KMST)
        W.weave(crit, []); W.drain(items)
        W.raw(f"v_subrev_u32 v{V_WV}, 0x20000, v{V_WV}")
        W.raw(ad(VA, VA, VA + 2)); W.raw(ad(VA + 1, VA + 1, VA + 3)); W.raw(ad(VB, VB, VB + 2)); W.raw(ad(VB + 1, VB + 1, VB + 3))
        W.raw(cv(50, VA, VA + 1)); W.raw(cv(51, VB, VB + 1))
        W.raw(f"s_add_u32 s{S_VM}, s{S_VM}, {32*2048}")
        for y in VMST: W.raw(y)
        p.fence(); p.reset_q()
        return
    V1, V2, V3, V4, V5, V6, V7 = VPLACE
    C(cv(36, 36, 37)); C(cv(37, 38, 39)); C(cv(38, 32, 33)); C(cv(39, 34, 35))
    C(f"v_mfma_f32_16x16x32_bf16 v[32:35], v[{V_KX}:{V_KX+3}], v[36:39], 0")
    C(cv(44, 44, 45)); C(cv(45, 46, 47)); C(cv(46, 40, 41)); C(cv(47, 42, 43))
    C(f"v_mfma_f32_16x16x32_bf16 v[40:43], v[{V_KX+4}:{V_KX+7}], v[36:39], 0")
    C(f"v_mfma_f32_16x16x32_bf16 v[36:39], v[44:47], v[36:39], 0")
    k = V_KX
    C(f"v_and_b32 v{k+6}, 0x70, v{V_L16}"); C(f"v_lshrrev_b32 v{k+7}, 1, v{V_L16}"); C(f"v_and_b32 v{k+7}, 0x180, v{k+7}"); C(f"v_or_b32 v{k+6}, v{k+6}, v{k+7}")
    C(f"v_lshrrev_b32 v{k+7}, 1, v{k+6}"); C(f"v_and_b32 v{k}, 0x80, v{V_L16}"); C(f"v_lshl_add_u32 v{k+6}, v{k}, 2, v{k+6}")
    C(VI(V1))
    C(f"v_add_u32 v{k+6}, {SEXX}, v{k+6}"); C(f"v_add_u32 v{k+7}, {SEXM}, v{k+7}")
    C(f"v_add_u32 v{k}, s{S_W1024}, v{k+6}"); C(f"v_add_u32 v{k+1}, s{S_W256}, v{k+7}")
    for r in range(4): C(f"v_cndmask_b32_e64 v{32+r}, v{40+r}, v{32+r}, s[{S_NLT8}:{S_NLT8+1}]")
    C(f"ds_write_b128 v{k}, v[32:35]"); C(f"ds_write_b64 v{k+1}, v[36:37]")
    C(("call", lambda: stamp(p, 4, first)))
    C(VI(V2))
    C(KMST)
    C(("call", p.waitw)); C("s_barrier")
    C(("call", lambda: stamp(p, 5, first)))
    for w in range(4): C(f"ds_read_b128 v[{32+4*w}:{35+4*w}], v{k+6} offset:{w*1024}")
    C(f"ds_read2_b64 v[{k}:{k+3}], v{k+7} offset0:0 offset1:32"); C(f"ds_read2_b64 v[{k+4}:{k+7}], v{k+7} offset0:64 offset1:96")
    C(VI(V3))
    pk = lambda d, a_, b_: f"v_pk_add_f32 v[{d}:{d+1}], v[{a_}:{a_+1}], v[{b_}:{b_+1}]"
    if PKS[0]:
        C(pk(32, 32, 36)); C(pk(34, 34, 38)); C(pk(40, 40, 44)); C(pk(42, 42, 46)); C(pk(32, 32, 40)); C(pk(34, 34, 42))
        C("v_max3_f32 v38, v32, v33, v34")
        C(pk(k, k, k + 2)); C(pk(k + 4, k + 4, k + 6)); C(pk(36, k, k + 4))
        C(VI(V4))
    else:
        for r in range(4): C(ad(32 + r, 32 + r, 36 + r))
        for r in range(4): C(ad(40 + r, 40 + r, 44 + r))
        for r in range(4): C(ad(32 + r, 32 + r, 40 + r))
        C("v_max3_f32 v38, v32, v33, v34")
        C(VI(V4))
        C(ad(k, k, k + 2)); C(ad(k + 1, k + 1, k + 3)); C(ad(k + 4, k + 4, k + 6)); C(ad(k + 5, k + 5, k + 7)); C(ad(36, k, k + 4)); C(ad(37, k + 1, k + 5))
    for kt in range(2):
        C(f"buffer_load_dwordx4 v[{V_KX+4*kt}:{V_KX+4*kt+3}], v{V_L16}, {WS}, s{S_KX} offen offset:{kt*1024} sc1")
    C("v_max3_f32 v38, v38, v35, v36"); C("v_max_f32 v38, v38, v37")
    C(VI(V5))
    C("v_max_f32_dpp v38, v38, v38 row_ror:8 row_mask:0xf bank_mask:0xf")
    C("v_mov_b32 v39, v38"); C("v_mov_b32 v45, 0"); C("v_mov_b32 v46, 0"); C("v_permlane16_swap_b32 v38, v39"); C("v_max_f32 v38, v38, v39")
    C("v_mov_b32 v39, v38"); C(VI(V6)); C("v_permlane32_swap_b32 v38, v39"); C("v_max_f32 v38, v38, v39")
    C(f"v_mul_f32 v38, s{S_C}, v38")
    for r in range(6): C(f"v_fma_f32 v{32+r}, v{32+r}, s{S_C}, -v38")
    C(VI(V7))
    for r in range(6): C(f"v_exp_f32 v{32+r}, v{32+r}")
    C(cv(40, 32, 33)); C(cv(41, 34, 35)); C(cv(44, 36, 37))
    for r in range(0, 4, 2): C(f"v_mov_b64 v[{36+r}:{37+r}], s[{S_ONES}:{S_ONES+1}]")
    C("v_mov_b32_dpp v42, v40 row_ror:8 row_mask:0xf bank_mask:0xf"); C("v_mov_b32_dpp v43, v41 row_ror:8 row_mask:0xf bank_mask:0xf")
    C("v_mov_b32 v47, v44")
    C(("call", lambda: stamp(p, 6, first)))
    W.weave(crit, [])
    rest = items
    W.raw(f"v_mfma_f32_16x16x32_bf16 v[{OA_}:{OA_+3}], v[{V_VX}:{V_VX+3}], v[40:43], 0")
    W.drain(rest)
    assert wv_state["b"] == 2
    W.raw(f"v_subrev_u32 v{V_WV}, 0x20000, v{V_WV}")
    W.raw(ad(VA, VA, VA + 2)); W.raw(ad(VA + 1, VA + 1, VA + 3)); W.raw(ad(VB, VB, VB + 2)); W.raw(ad(VB + 1, VB + 1, VB + 3))
    W.raw(cv(50, VA, VA + 1)); W.raw(cv(51, VB, VB + 1))
    stamp(p, 7, first)
    p.C("PV")
    crit = [f"v_mfma_f32_16x16x32_bf16 v[{LL}:{LL+3}], v[36:39], v[40:43], 0",
            f"v_mfma_f32_16x16x32_bf16 v[{OB_}:{OB_+3}], v[{V_VX+4}:{V_VX+7}], v[40:43], 0",
            f"v_mfma_f32_16x16x16_bf16 v[{OA_}:{OA_+3}], v[50:51], v[44:45], v[{OA_}:{OA_+3}]",
            f"v_mfma_f32_16x16x16_bf16 v[{LL}:{LL+3}], v[36:37], v[44:45], v[{LL}:{LL+3}]",
            f"v_mfma_f32_16x16x16_bf16 v[{OB_}:{OB_+3}], v[50:51], v[46:47], v[{OB_}:{OB_+3}]",
            f"v_rcp_f32 v{LL}, v{LL}"]
    if PKM[0]:
        for b in (OA_, OA_ + 2, OB_, OB_ + 2): crit.append(f"v_pk_mul_f32 v[{b}:{b+1}], v[{b}:{b+1}], v[{LL}:{LL+1}] op_sel_hi:[1,0]")
    else:
        for b in (OA_, OB_):
            for r in range(4): crit.append(f"v_mul_f32 v{b+r}, v{b+r}, v{LL}")
    crit += [cv(OA_, OA_, OA_ + 1), cv(OA_ + 1, OA_ + 2, OA_ + 3), cv(OB_, OB_, OB_ + 1), cv(OB_ + 1, OB_ + 2, OB_ + 3)]
    fill = [f"v_mov_b64 v[{V_PY}:{V_PY+1}], v[50:51]", f"v_bfe_u32 v61, v{V_L16}, 4, 3", f"v_bfe_u32 v62, v{V_L16}, 9, 1", f"v_add_u32 v62, s{S_W4}, v62", "v_xor_b32 v62, v62, v61",
            "v_lshlrev_b32 v62, 4, v62", "v_lshl_add_u32 v62, v61, 8, v62", f"v_bfe_u32 v61, v{V_L16}, 8, 1", "v_lshl_add_u32 v62, v61, 3, v62", f"v_add_u32 v62, {OIMG}, v62", "v_xor_b32 v63, 32, v62"]
    rest = W.weave(crit, [[f] for f in fill]); W.drain(rest)
    W.raw(f"s_mov_b64 exec, s[{S_NLT8}:{S_NLT8+1}]"); W.raw(f"ds_write_b64 v62, v[{OA_}:{OA_+1}]"); W.raw(f"ds_write_b64 v63, v[{OB_}:{OB_+1}]"); W.raw("s_mov_b64 exec, -1")
    stamp(p, 8, first)
    OACC = [32 + 4 * j for j in range(9)]
    OAr = 72; G = 68
    I(f"v_mov_b32 v71, s{S_TAG}")
    for b in range(34, 68, 2):
        if b in (52, 62): continue
        I(f"v_mov_b64 v[{b}:{b+1}], 0")
    p.waitw()
    I("s_barrier")
    I(f"ds_read_b128 v[{OAr}:{OAr+3}], v{V_OR}", f"ds_read_b128 v[{OAr+4}:{OAr+7}], v{V_OR} offset:128")
    for b in (32, 52, 62): I(f"v_mov_b64 v[{b}:{b+1}], 0")
    stamp(p, 9, first)
    p.C("O-proj")
    W = Weaver(p)
    osm = lambda j, kb: SM(OACC[j], OAr + 4 * kb, frag(F_WO(j, kb)))
    seq = [(0, 0), (1, 0), (0, 1), (1, 1)] + [(j, kb) for j in range(2, 9) for kb in range(2)]
    def fin(j):
        b = OACC[j]
        ops = [ad(b, b, b + 2), ad(b + 1, b + 1, b + 3), cv(G + j % 3, b, b + 1)]
        if j % 3 == 2: ops.append(f"buffer_store_dwordx4 v[{G}:{G+3}], v{V_PS}, {WS}, s{S_PS + j // 3} offen{sc_st}")
        return ops
    done_at = {}
    pend = []
    for idx, (j, kb) in enumerate(seq):
        W.raw(osm(j, kb))
        if kb == 1: done_at[j] = idx
        for jj in list(done_at):
            if idx >= done_at[jj] + 2:
                pend += fin(jj); del done_at[jj]
        if OPAT[0] == 0:
            n = 2 if len(pend) > 2 else 1
            for _ in range(n):
                if pend: W.raw(pend.pop(0))
        else:
            if pend and pend[0].startswith("buffer_store"): W.raw(pend.pop(0))
            else:
                n = 2 if idx % 2 == 0 else 1
                for _ in range(n):
                    if pend and not pend[0].startswith("buffer_store"): W.raw(pend.pop(0))
    for jj in sorted(done_at): pend += fin(jj)
    for o in pend: W.raw(o)
    stamp(p, 10, first)
    p.C("reduce")
    skip = p.newlabel("notask")
    if PFBR[0] and PREF[0]:
        nt = p.newlabel("hastask")
        I(f"s_cmp_lg_u32 s{S_HASTASK}, 0", f"s_cbranch_scc1 {nt}")
        I(f"s_sub_u32 s{S_T0}, s{S_VX}, s{S_W2048}", f"s_add_u32 s{S_T0}, s{S_T0}, {32*8192}", f"v_lshlrev_b32 v{V_MP}, 3, v{V_L16}",
          f"s_sub_u32 s{S_T1}, s{S_KX}, s{S_W2048}", f"s_add_u32 s{S_T1}, s{S_T1}, {32*8192}")
        I(f"buffer_load_dword v{V_DUM}, v{V_MP}, {WS}, s{S_T0} offen ; nodep", f"buffer_load_dword v{V_DUM}, v{V_MP}, {WS}, s{S_T1} offen ; nodep")
        I(f"s_branch {skip}")
        p.L(nt)
    else:
        I(f"s_cmp_eq_u32 s{S_HASTASK}, 0", f"s_cbranch_scc1 {skip}")
    RS = 64
    if DELAY1[0]:
        nd = p.newlabel("nodelay")
        I(f"s_cmp_eq_u32 s{S_ISW2}, 0", f"s_cbranch_scc1 {nd}")
        delay(p, DELAY1[0])
        p.L(nd)
    if DELAYG1[0]:
        nd = p.newlabel("nodelay1")
        I(f"s_cmp_lg_u32 s{S_WV}, 1", f"s_cbranch_scc1 {nd}")
        delay(p, DELAYG1[0])
        p.L(nd)
    delay(p, DELAY0[0])
    retry = p.newlabel("p_retry"); ok = p.newlabel("p_ok")
    p.L(retry)
    for i in range(4):
        I(f"buffer_load_dwordx4 v[{32+4*i}:{35+4*i}], v{V_L16}, {WS}, s{S_PL} offen offset:{i*1024} sc1")
    I(f"s_add_u32 s{S_TO2}, s{S_TO2}, 1")
    I(f"v_bfe_u32 v69, v{V_L16}, 4, 2", f"v_bfe_u32 v70, v{V_L16}, 6, 2", "v_lshlrev_b32 v71, 4, v69", "v_mov_b32 v68, 0x3f80", "v_lshlrev_b32 v68, v71, v68",
      "v_cmp_gt_u32 vcc, 2, v69", "v_cndmask_b32 v71, 0, v68, vcc")
    for r in range(3): I(f"v_cmp_eq_u32 vcc, {r}, v70", f"v_cndmask_b32 v{RS+r}, 0, v71, vcc")
    I(f"v_mov_b32 v{RS+3}, 0")
    I(f"v_bfe_u32 v68, v{V_L16}, 8, 2", "v_lshlrev_b32 v68, 10, v68", f"v_bfe_u32 v69, v{V_L16}, 4, 3", "v_lshl_add_u32 v68, v69, 1, v68")
    D = 72
    for i in range(4):
        I(f"s_waitcnt vmcnt({3-i})")
        c = "0" if i == 0 else f"v[{D}:{D+3}]"
        I(f"v_mfma_f32_16x16x32_bf16 v[{D}:{D+3}], v[{RS}:{RS+3}], v[{32+4*i}:{35+4*i}], {c}")
        if i == 2: I("v_min3_u32 v76, v35, v39, v43")
        if i == 3: I("v_min_u32 v76, v76, v47")
    I(f"v_cmp_ne_u32 vcc, s{S_TAG}, v76", f"s_cbranch_vccz {ok}", f"s_cmp_lt_u32 s{S_TO2}, 0x200000", f"s_cbranch_scc1 {retry}")
    p.L(ok)
    stamp(p, 11, first)
    p.fence()
    I(f"v_add_f32_dpp v{D}, v{D}, v{D} row_ror:8 row_mask:0xf bank_mask:0xf", f"v_add_f32_dpp v{D+1}, v{D+1}, v{D+1} row_ror:8 row_mask:0xf bank_mask:0xf")
    I(f"v_mov_b32_dpp v76, v{D} quad_perm:[1,0,3,2] row_mask:0xf bank_mask:0xf", f"v_mov_b32_dpp v77, v{D+1} quad_perm:[1,0,3,2] row_mask:0xf bank_mask:0xf")
    I(f"v_cvt_pk_bf16_f32 v76, v{D}, v76", f"v_cvt_pk_bf16_f32 v77, v{D+1}, v77", "v_mov_b32 v78, -1")
    I(f"s_mov_b64 exec, s[{S_EXMS}:{S_EXMS+1}]", f"buffer_store_dword v76, v68, {WS}, s{S_MEMW} offen{sc_st}", f"buffer_store_dword v77, v68, {WS}, s{S_MEMW} offen offset:16{sc_st}")
    I(f"buffer_store_dword v78, v68, {WS}, s{S_MEMZ} offen{sc_st}", f"buffer_store_dword v78, v68, {WS}, s{S_MEMZ} offen offset:16{sc_st}", "s_mov_b64 exec, -1")
    p.L(skip)
    for r_ in (S_MEMW, S_MEMZ):
        I(f"s_add_u32 s{r_}, s{r_}, {MEM_SLOT}", f"s_cmp_ge_u32 s{r_}, s{S_MEMWEND}", f"s_cselect_b32 s{S_T0}, {4*MEM_SLOT}, 0", f"s_sub_u32 s{r_}, s{r_}, s{S_T0}")
    I(f"s_add_u32 s{S_VX}, s{S_VX}, {32*8192}", f"s_add_u32 s{S_KM}, s{S_KM}, {32*4096}", f"s_add_u32 s{S_VM}, s{S_VM}, {32*2048}", f"s_add_u32 s{S_KX}, s{S_KX}, {32*8192}", f"s_add_u32 s{S_STEP}, s{S_STEP}, 1")
    stamp(p, 12, first)
    p.fence()
    p.reset_q()

def emit_slow(p):
    I = p.I
    WS = f"s[{S_WS}:{S_WS+3}]"
    while SLOW:
        slow, back, ld2, M48, areg = SLOW.pop(0)
        p.fence(); p.reset_q()
        p.L(slow)
        lp = p.newlabel("st2_lp")
        I(f"s_mov_b64 exec, {M48}")
        p.L(lp)
        I(ld2, "s_waitcnt vmcnt(0)", f"v_max3_u32 v{V_VX+1}, v52, v53, v54", f"v_max_u32 v{V_VX+1}, v{V_VX+1}, v55", f"v_cmp_eq_u32 vcc, -1, v{V_VX+1}", f"s_add_u32 s{S_TO3}, s{S_TO3}, 1")
        ok = p.newlabel("st2_ok")
        I(f"s_cbranch_vccz {ok}", f"s_cmp_lt_u32 s{S_TO3}, 0x200000", f"s_cbranch_scc1 {lp}")
        p.L(ok)
        I(f"ds_write_b128 v{areg}, v[52:55]", "s_mov_b64 exec, -1", "s_waitcnt lgkmcnt(0)", f"s_branch {back}")
        p.reset_q()

def chain_loop(p, local, nsteps=64):
    I = p.I
    p.reset_q()
    loop = p.newlabel("chain_loop")
    p.fence()
    if ALIGN[0] is not None:
        p.raw("    .p2align 6")
        for _ in range(ALIGN[0]): p.raw("    s_nop 0")
    p.L(loop)
    step(p, local=local)
    I(f"s_cmp_lt_u32 s{S_STEP}, {nsteps-1}", f"s_cbranch_scc1 {loop}")
    step(p, local=local, first=False, last=True)
    I("s_waitcnt vmcnt(0)", "s_barrier")
    if FUSED[0]:
        I("v_mov_b32 v52, 64", "v_mov_b32 v53, 0", f"s_mov_b64 exec, s[{S_PUB}:{S_PUB+1}]", f"buffer_store_dword v52, v53, s[{S_WS}:{S_WS+3}], s{S_CHF} offen sc1", "s_mov_b64 exec, -1")
    over = p.newlabel("over_slow")
    I(f"s_branch {over}")
    emit_slow(p)
    p.L(over)

def gen_chain(p, local=True, nsteps=64, stamps=False):
    I = p.I
    setup_chain(p, local)
    preload(p)
    chain_state(p)
    if stamps: I(f"s_memtime s[{S_TS}:{S_TS+1}]", "s_waitcnt lgkmcnt(0)")
    chain_loop(p, local, nsteps)
    if stamps:
        I("s_waitcnt vmcnt(0) lgkmcnt(0)", f"s_memtime s[{S_TS+2}:{S_TS+3}]", "s_waitcnt lgkmcnt(0)")
        I(f"s_sub_u32 s{S_TS}, s{S_TS+2}, s{S_TS}", f"v_mov_b32 v44, s{S_TS}")
        lab = p.newlabel("st")
        I(f"s_cmp_lg_u32 s{S_WV}, 0", f"s_cbranch_scc1 {lab}")
        I(f"s_lshl_b32 s{S_T0}, s{S_H}, 2", f"s_add_u32 s{S_T0}, s{S_T0}, 128", f"v_mov_b32 v45, s{S_T0}", "s_mov_b64 exec, 1", f"global_store_dword v45, v44, s[{S_DBG}:{S_DBG+1}]", "s_mov_b64 exec, -1")
        p.L(lab)
    prof_dump(p)

def prof_dump(p):
    I = p.I
    if PROF[0]:
        I("s_waitcnt lgkmcnt(0)")
        I(f"s_lshl_b32 s{S_T0}, s{S_H}, 2", f"s_add_u32 s{S_T0}, s{S_T0}, s{S_WV}", f"s_lshl_b32 s{S_T0}, s{S_T0}, 7", f"s_add_u32 s{S_T0}, s{S_T0}, {0x9000000}")
        I("s_mov_b64 exec, 1", "v_mov_b32 v45, 0")
        for k in range(PNST):
            I(f"v_mov_b32 v44, s{S_ST+2*k if k < 13 else 14}", f"buffer_store_dword v44, v45, s[{S_WS}:{S_WS+3}], s{S_T0} offen offset:{4*k}")
        for k, r_ in enumerate((S_TO, S_TO2, S_TO3)):
            I(f"v_mov_b32 v44, s{r_}", f"buffer_store_dword v44, v45, s[{S_WS}:{S_WS+3}], s{S_T0} offen offset:{64+4*k}")
        I("s_mov_b64 exec, -1")

def standalone(local=True, stamps=True, nsteps=64):
    name = "chain_kernel"
    p = AProg()
    p.raw(f"; @launch kernel={name} grid=(256,1,1) block=(256,1,1) lds=163840")
    p.raw('.amdgcn_target "amdgcn-amd-amdhsa--gfx950"\n.text')
    p.raw(f".globl {name}\n.p2align 8\n.type {name},@function\n{name}:")
    I = p.I
    I(f"s_cmp_ge_u32 s2, 256", "s_cbranch_scc1 L_end")
    I(f"s_load_dwordx2 s[{S_PTR}:{S_PTR+1}], s[0:1], {KARG['A_mem0']}")
    I(f"s_load_dwordx4 s[{S_PTR+2}:{S_PTR+5}], s[0:1], {KARG['A_Wq']}")
    I(f"s_load_dwordx2 s[{S_PTR+6}:{S_PTR+7}], s[0:1], {KARG['A_Wv']}")
    I(f"s_load_dwordx2 s[{S_PTR+8}:{S_PTR+9}], s[0:1], {KARG['A_Wo']}")
    I(f"s_load_dwordx2 s[{S_DBG}:{S_DBG+1}], s[0:1], {KARG['dbg']}")
    I(f"s_load_dwordx2 s[{S_PTR+10}:{S_PTR+11}], s[0:1], {KARG['ws']}")
    I("s_waitcnt lgkmcnt(0)")
    I(f"s_mov_b32 s{S_WS}, s{S_PTR+10}", f"s_and_b32 s{S_WS+1}, s{S_PTR+11}, 0xffff", f"s_mov_b32 s{S_WS+2}, {WS_BYTES}", f"s_mov_b32 s{S_WS+3}, 0x20000")
    I(f"s_mov_b32 s{S_MEM}, s{S_PTR}", f"s_and_b32 s{S_MEM+1}, s{S_PTR+1}, 0xffff", f"s_mov_b32 s{S_MEM+2}, 9216", f"s_mov_b32 s{S_MEM+3}, 0x20000")
    lane_consts(p)
    I(f"s_getreg_b32 s{S_T0}, hwreg(HW_REG_XCC_ID, 0, 4)")
    I(f"s_cmp_lg_u32 s{S_T0}, 0", "s_cbranch_scc1 L_end")
    lab = p.newlabel("role")
    I(f"s_cmp_lg_u32 s{S_WV}, 0", f"s_cbranch_scc1 {lab}")
    I("s_mov_b64 exec, 1", "v_mov_b32 v44, 1", "v_mov_b32 v45, 0", f"global_atomic_add v46, v45, v44, s[{S_DBG}:{S_DBG+1}] sc0", "s_waitcnt vmcnt(0)", "v_mov_b32 v45, 0", "ds_write_b32 v45, v46", "s_waitcnt lgkmcnt(0)", "s_mov_b64 exec, -1")
    p.L(lab)
    I("s_barrier", "v_mov_b32 v45, 0", "ds_read_b32 v46, v45", "s_waitcnt lgkmcnt(0)", f"v_readfirstlane_b32 s{S_H}, v46", "s_barrier")
    I(f"s_cmp_ge_u32 s{S_H}, 32", "s_cbranch_scc1 L_end")
    gen_chain(p, local=local, stamps=stamps, nsteps=nsteps)
    p.L("L_end")
    I("s_endpgm")
    p.raw(kd(name))
    return p.render()

if __name__ == "__main__":
    import sys
    for a in sys.argv[2:]:
        if a == "prof": PROF[0] = True
        if a == "rt": RT[0] = True
        if a.startswith("hold="): HOLD[0] = int(a[5:])
        if a.startswith("lead="): LEAD[0] = int(a[5:])
        if a.startswith("lat="): Weaver.LDS_LAT = int(a[4:])
        if a.startswith("vp="): VPERIOD[0] = int(a[3:])
        if a == "nobar4": BAR4[0] = False
        if a.startswith("touch="): TOUCH[0] = int(a[6:])
        if a.startswith("s2i="): ST2_ISSUE[0] = int(a[4:])
        if a.startswith("s2c="): ST2_CHECK[0] = int(a[4:])
        if a.startswith("g1="): DELAYG1[0] = int(a[3:])
        if a == "nopref": PREF[0] = False
        if a.startswith("expl="): EXPL[0] = int(a[5:])
        if a == "pfbr": PFBR[0] = True
        if a == "ioin": IOIN[0] = True
        if a == "pks": PKS[0] = True
        if a.startswith("al="): ALIGN[0] = int(a[3:])
        if a == "pkm": PKM[0] = True
        if a.startswith("opat="): OPAT[0] = int(a[5:])
        if a == "norot": ROT[0] = False
        if a.startswith("vpl="): VPLACE[:] = [int(c) for c in a[4:]]
        if a.startswith("d4="): DELAY4[0] = int(a[3:])
        if a.startswith("d3="): DELAY3[0] = int(a[3:])
        if a.startswith("d0="): DELAY0[0] = int(a[3:])
        if a.startswith("d1="): DELAY1[0] = int(a[3:])
        if a.startswith("d2="): DELAY2[0] = int(a[3:])
    open(sys.argv[1], "w").write(standalone())
```

```python
KX_OFF   = 0x0000000
VX_OFF   = 0x1000000
QX_OFF   = 0x2000000
KM_OFF   = 0x3000000
VM_OFF   = 0x3810000
MEM_OFF  = 0x3C80000
PART_OFF = 0x3D00000
OX_OFF   = 0x4000000
WS_BYTES = 0x10000000
MEM_SLOT = 9216
KARG = dict(A_x=0, A_mem0=8, A_Wq=16, A_Wk=24, A_Wv=32, A_Wo=40, A_seg=48, B_x=56, B_wq=64, B_wk=72, B_wv=80, B_wo=88, out=96, dbg=104, ws=112)
HEADER = """; Kernarg layout: 15 pointers (see the starter file)
"""
def kd(name, vgpr=512, accum=256, sgpr=102):
    return f""".section .rodata,"a"
.p2align 6
.amdhsa_kernel {name}
  .amdhsa_next_free_vgpr {vgpr}
  .amdhsa_next_free_sgpr {sgpr}
  .amdhsa_accum_offset {accum}
  .amdhsa_group_segment_fixed_size 0
  .amdhsa_kernarg_size 120
  .amdhsa_user_sgpr_count 2
  .amdhsa_user_sgpr_kernarg_segment_ptr 1
  .amdhsa_system_sgpr_workgroup_id_x 1
.end_amdhsa_kernel
"""
FLAG_OFF = 0x3E00000
KVCNT, QCNT, ACNT, OCNT = FLAG_OFF, FLAG_OFF + 256, FLAG_OFF + 512, FLAG_OFF + 768
QB_OFF  = 0x5000000
OB_OFF  = 0x5300000
KB_OFF  = 0x5600000
VB_OFF  = 0x5640000
def load_ptrs(p, names, base):
    for i, n in enumerate(names): p.I(f"s_load_dwordx2 s[{base+2*i}:{base+2*i+1}], s[0:1], {KARG[n]}")
def srd(p, dst, ptr, nbytes):
    p.I(f"s_mov_b32 s{dst}, s{ptr}", f"s_and_b32 s{dst+1}, s{ptr+1}, 0xffff", f"s_mov_b32 s{dst+2}, {nbytes}", f"s_mov_b32 s{dst+3}, 0x20000")
def kernel_head(p, name):
    p.raw(f".globl {name}\n.p2align 8\n.type {name},@function\n{name}:")

CHFLG  = FLAG_OFF + 4096
BQCNT  = FLAG_OFF + 1152
BKVCNT = FLAG_OFF + 1156
ATICK  = FLAG_OFF + 1280
BACNT  = FLAG_OFF + 1536
DBG_INIT = 52
DBG_WORK = 48
S_ABORT = 99
def poll_ge(p, srd_ws, off_sreg_or_imm, target, tmpv=(30, 31), tmps=28, imm=False, sleep=4, fast=None):
    I = p.I
    lab = p.newlabel("pw"); done = p.newlabel("pd")
    a, b = tmpv
    I(f"s_cmp_lg_u32 s{S_ABORT}, 0", f"s_cbranch_scc1 {done}")
    if imm: I(f"s_mov_b32 s{tmps+1}, {off_sreg_or_imm}")
    else: I(f"s_mov_b32 s{tmps+1}, s{off_sreg_or_imm}")
    I(f"s_mov_b32 s{tmps+2}, 0", f"v_mov_b32 v{a}, 0")
    p.L(lab)
    I(f"buffer_load_dword v{b}, v{a}, s[{srd_ws}:{srd_ws+3}], s{tmps+1} offen sc1", "s_waitcnt vmcnt(0)", f"v_readfirstlane_b32 s{tmps}, v{b}")
    I(f"s_cmp_ge_u32 s{tmps}, {target}", f"s_cbranch_scc1 {done}")
    if fast:
        fl = p.newlabel("pf")
        I(f"s_cmp_ge_u32 s{fast[0]}, {fast[1]}", f"s_cbranch_scc1 {fl}", f"s_sleep {sleep}")
        p.L(fl)
        I("s_sleep 1")
    else:
        I(f"s_sleep {sleep}")
    I(f"s_add_u32 s{tmps+2}, s{tmps+2}, 1", f"s_cmp_lt_u32 s{tmps+2}, 0x100000", f"s_cbranch_scc1 {lab}", f"s_mov_b32 s{S_ABORT}, 1")
    p.L(done)
def wait_init(p, dbgpair, tmpv=(30, 31), tmps=28):
    I = p.I
    lab = p.newlabel("iw"); done = p.newlabel("id")
    a, b = tmpv
    I(f"s_mov_b32 s{tmps+2}, 0", f"v_mov_b32 v{a}, {DBG_INIT}")
    p.L(lab)
    I(f"global_load_dword v{b}, v{a}, s[{dbgpair}:{dbgpair+1}] sc1", "s_waitcnt vmcnt(0)", f"v_readfirstlane_b32 s{tmps}, v{b}")
    I(f"s_cmp_lg_u32 s{tmps}, 0", f"s_cbranch_scc1 {done}", "s_sleep 2", f"s_add_u32 s{tmps+2}, s{tmps+2}, 1", f"s_cmp_lt_u32 s{tmps+2}, 0x100000", f"s_cbranch_scc1 {lab}", f"s_mov_b32 s{S_ABORT}, 1")
    p.L(done)
def signal_add(p, srd_ws, off_sreg, tmpv=(30, 31)):
    a, b = tmpv
    p.I("s_mov_b64 exec, 1", f"v_mov_b32 v{a}, 1", f"v_mov_b32 v{b}, 0", f"buffer_atomic_add v{a}, v{b}, s[{srd_ws}:{srd_ws+3}], s{off_sreg} offen", "s_mov_b64 exec, -1")

def poll_ge_far(p, srd_ws, off_sreg, target_sreg, tmpv=(30, 31), tmps=28, near_sleep=6, far_sleep=60, fast_from=None):
    I = p.I
    lab = p.newlabel("pw"); done = p.newlabel("pd"); near = p.newlabel("pn"); slp = p.newlabel("ps")
    a, b = tmpv
    I(f"s_cmp_lg_u32 s{S_ABORT}, 0", f"s_cbranch_scc1 {done}")
    I(f"s_mov_b32 s{tmps+1}, s{off_sreg}", f"s_mov_b32 s{tmps+2}, 0", f"v_mov_b32 v{a}, 0")
    p.L(lab)
    I(f"buffer_load_dword v{b}, v{a}, s[{srd_ws}:{srd_ws+3}], s{tmps+1} offen sc1", "s_waitcnt vmcnt(0)", f"v_readfirstlane_b32 s{tmps}, v{b}")
    I(f"s_cmp_ge_u32 s{tmps}, s{target_sreg}", f"s_cbranch_scc1 {done}")
    I(f"s_sub_u32 s{tmps}, s{target_sreg}, s{tmps}", f"s_cmp_le_u32 s{tmps}, 1", f"s_cbranch_scc1 {near}")
    if fast_from is not None:
        nf = p.newlabel("pnf")
        I(f"s_cmp_lt_u32 s{target_sreg}, {fast_from}", f"s_cbranch_scc1 {nf}", f"s_cmp_le_u32 s{tmps}, 2", f"s_cbranch_scc1 {near}")
        p.L(nf)
    I(f"s_min_u32 s{tmps}, s{tmps}, 9", f"s_sub_u32 s{tmps}, s{tmps}, 1")
    p.L(slp)
    I(f"s_sleep {far_sleep}", f"s_sub_u32 s{tmps}, s{tmps}, 1", f"s_cmp_gt_u32 s{tmps}, 0", f"s_cbranch_scc1 {slp}")
    p.L(near)
    if fast_from is not None:
        fl = p.newlabel("pf")
        I(f"s_cmp_ge_u32 s{target_sreg}, {fast_from}", f"s_cbranch_scc1 {fl}", f"s_sleep {near_sleep}")
        p.L(fl)
    I(f"s_sleep {1 if fast_from is not None else near_sleep}", f"s_add_u32 s{tmps+2}, s{tmps+2}, 1", f"s_cmp_lt_u32 s{tmps+2}, 0x40000", f"s_cbranch_scc1 {lab}", f"s_mov_b32 s{S_ABORT}, 1")
    p.L(done)
```
